```python
import torch

def _softmax(x, axis=-1):
    return torch.softmax(x, dim=axis)
def _gelu(x):
    return torch.nn.functional.gelu(x, approximate="tanh")
def _silu(x):
    return torch.nn.functional.silu(x)
def _sigmoid(x):
    return torch.sigmoid(x)
def _layernorm(x, axis=-1, eps=1e-5):
    m = x.mean(dim=axis, keepdim=True)
    v = x.var(dim=axis, keepdim=True, unbiased=False)
    return (x - m) / torch.sqrt(v + eps)
def _scatter_add(tgt, idx, src, axis=0):
    return tgt.clone().index_add_(axis, idx, src)
def _segment_sum(src, seg, n):
    out = torch.zeros((n,) + src.shape[1:], dtype=src.dtype)
    return out.index_add_(0, seg, src)
def _pad(x, pw):
    flat = tuple(v for pair in reversed(pw) for v in pair)
    return torch.nn.functional.pad(x, flat)

kernel_name = 'sequential_preLN__ssm_conv_s4__swiglu_ffn__prompt'

def setup_inputs():

    _w = (lambda a: (lambda t: t.to(torch.bfloat16) if t.is_floating_point() else t)(torch.as_tensor(a)))
    def _A_setup():
        B, L, D, N = 1, 2048, 640, 192
        A_re = -(lambda _x: torch.exp(torch.as_tensor(_x)))((lambda *s: torch.randn(*s, dtype=torch.bfloat16) * 3.2)(D, N))
        A_im = torch.pi * (lambda *s: torch.randn(*s, dtype=torch.bfloat16) * 0.05)(D, N)
        B_re = (lambda *s: torch.randn(*s, dtype=torch.bfloat16) * 0.05)(D, N)
        B_im = (lambda *s: torch.randn(*s, dtype=torch.bfloat16) * 0.05)(D, N)
        C_re = (lambda *s: torch.randn(*s, dtype=torch.bfloat16) * 0.05)(D, N)
        C_im = (lambda *s: torch.randn(*s, dtype=torch.bfloat16) * 0.05)(D, N)
        log_dt = (lambda *s: torch.randn(*s, dtype=torch.bfloat16) * 0.05)(D) * 0.5 - 4.0
        Dskip = (lambda *s: torch.randn(*s, dtype=torch.bfloat16) * 0.05)(D)
        return {
            "u": _w((lambda *s: torch.randn(*s, dtype=torch.bfloat16) * 0.05)(B, L, D)),
            "A_re": _w(A_re),
            "A_im": _w(A_im),
            "B_re": _w(B_re),
            "B_im": _w(B_im),
            "C_re": _w(C_re),
            "C_im": _w(C_im),
            "log_dt": _w(log_dt),
            "Dskip": _w(Dskip),
        }
    _A_in = _A_setup()

    def _B_setup():
        B, S, D, F = 1, 2048, 640, 1536
        return {
            "x": _w((lambda *s: torch.randn(*s, dtype=torch.bfloat16) * 0.05)(B, S, D)),
            "w_gate": _w((lambda *s: torch.randn(*s, dtype=torch.bfloat16) * 0.05)(D, F)),
            "w_up": _w((lambda *s: torch.randn(*s, dtype=torch.bfloat16) * 0.05)(D, F)),
            "w_down": _w((lambda *s: torch.randn(*s, dtype=torch.bfloat16) * 0.05)(F, D)),
        }
    _B_in = _B_setup()

    return {
        "A_u": _A_in["u"],
        "A_A_re": _A_in["A_re"],
        "A_A_im": _A_in["A_im"],
        "A_B_re": _A_in["B_re"],
        "A_B_im": _A_in["B_im"],
        "A_C_re": _A_in["C_re"],
        "A_C_im": _A_in["C_im"],
        "A_log_dt": _A_in["log_dt"],
        "A_Dskip": _A_in["Dskip"],
        "B_x": _B_in["x"],
        "B_w_gate": _B_in["w_gate"],
        "B_w_up": _B_in["w_up"],
        "B_w_down": _B_in["w_down"],
    }

def reference(A_u, A_A_re, A_A_im, A_B_re, A_B_im, A_C_re, A_C_im, A_log_dt, A_Dskip, B_x, B_w_gate, B_w_up, B_w_down):
    def _A_ref(u, A_re, A_im, B_re, B_im, C_re, C_im, log_dt, Dskip):
        Bsz, L, D = u.shape
        dt = torch.exp(log_dt)[:, None]
        A = A_re + 1j * A_im
        Bc = B_re + 1j * B_im
        Cc = C_re + 1j * C_im
        logdA = dt * A
        dB = dt * Bc
        l = (lambda x, dt: x.to(dt))(torch.arange(L), A_re.dtype)
        P = torch.exp(logdA[:, :, None] * l[None, None, :])
        K = torch.einsum("dn,dnl,dn->dl", Cc, P, dB).real
        L2 = 2 * L
        Kp = _pad(K, ((0, 0), (0, L)))
        up = (lambda x, *d: x.permute(*d))(u, 0, 2, 1)
        up = _pad(up, ((0, 0), (0, 0), (0, L)))
        Kf = (lambda x, axes=(-2,-1): torch.fft.rfft2(x.float(), dim=axes))(Kp[:, None, :], axes=(-2, -1))
        Uf = (lambda x, axes=(-2,-1): torch.fft.rfft2(x.float(), dim=axes))(up[:, :, None, :], axes=(-2, -1))
        Yf = Uf * Kf[None, :, :, :]
        y = (lambda x, s, axes=(-2,-1): torch.fft.irfft2(x, s=s, dim=axes).to(torch.bfloat16))(Yf, (1, L2), axes=(-2, -1))[:, :, 0, :L]
        y = (lambda x, *d: x.permute(*d))(y, 0, 2, 1) + u * Dskip[None, None, :]
        return y

    def _B_ref(x, w_gate, w_up, w_down):
        g = _silu(x @ w_gate)
        u = x @ w_up
        return (g * u) @ w_down

    x = A_u
    h = x + _A_ref(_layernorm(x, axis=-1), A_A_re, A_A_im, A_B_re, A_B_im, A_C_re, A_C_im, A_log_dt, A_Dskip)
    h2 = h + _B_ref(_layernorm(h, axis=-1), B_w_gate, B_w_up, B_w_down)
    return h2
```

```python
import re, copy
NAME = "sequential_preLN__ssm_conv_s4__swiglu_ffn__prompt"

_REG = re.compile(r"^[-|]*\s*(?:abs\()?([vas])(?:(\d+)|\[(\d+):(\d+)\])\)?\|?$")
TRANS = ("v_exp_f32", "v_log_f32", "v_rcp_f32", "v_rsq_f32", "v_sqrt_f32", "v_sin_f32", "v_cos_f32", "v_rcp_iflag_f32")

def regs_of(op):
    op = op.strip()
    if op in ("vcc", "vcc_lo", "vcc_hi"): return {"vcc"}
    if op in ("exec", "exec_lo", "exec_hi"): return {"exec"}
    if op == "m0": return {"m0"}
    m = _REG.match(op)
    if not m: return set()
    k = m.group(1)
    if m.group(2) is not None: return {f"{k}{m.group(2)}"}
    return {f"{k}{i}" for i in range(int(m.group(3)), int(m.group(4)) + 1)}

class Ins:
    __slots__ = ("text", "mn", "ops", "mods", "dst", "src", "cls", "passes", "srcc", "srcab", "tok")
    def __init__(self, text, tok=None):
        self.text = text; self.tok = tok
        body = text.split(";")[0].strip()
        parts = body.split(None, 1)
        mn = self.mn = parts[0]
        rest = parts[1] if len(parts) > 1 else ""
        ops, depth, cur = [], 0, ""
        for ch in rest:
            if ch in "[(": depth += 1
            if ch in "])": depth -= 1
            if ch == "," and depth == 0: ops.append(cur.strip()); cur = ""
            else: cur += ch
        if cur.strip(): ops.append(cur.strip())
        mods = ""
        if ops:
            last = ops[-1].split(None, 1)
            ops[-1] = last[0]
            mods = last[1] if len(last) > 1 else ""
        self.ops, self.mods = ops, mods
        R = [regs_of(o) for o in ops]
        allr = set().union(*R) if R else set()
        tail = set().union(*R[1:]) if len(R) > 1 else set()
        self.passes = 0; self.srcc = set(); self.srcab = set()
        if mn.startswith("v_mfma") or mn.startswith("v_smfmac"):
            self.cls = "mfma"; self.dst = R[0]; self.src = tail
            self.srcab = R[1] | R[2]; self.srcc = R[3] if len(R) > 3 else set()
            self.passes = 8 if "32x32" in mn else 4
        elif mn.startswith("v_"):
            self.cls = "valu"
            if "permlane" in mn and "swap" in mn: self.dst = allr; self.src = allr
            elif mn.startswith(("v_add_co", "v_sub_co", "v_addc_co", "v_subb_co", "v_subrev_co", "v_mad_u64_u32", "v_div_scale")):
                self.dst = R[0] | R[1]; self.src = set().union(*R[2:])
            elif mn.startswith(("v_fmac", "v_dot2c", "v_pk_fmac", "v_writelane")) or "dpp" in mn or "row_" in mods or "quad_perm" in mods or "UNUSED_PRESERVE" in mods:
                self.dst = R[0]; self.src = allr
            elif mn == "v_nop": self.dst = set(); self.src = set()
            else: self.dst = R[0]; self.src = tail
        elif mn.startswith("ds_"):
            self.cls = "ds"
            if mn.startswith(("ds_read", "ds_bpermute", "ds_permute", "ds_swizzle")):
                self.dst = R[0]; self.src = tail
                if "d16" in mn: self.src = allr
            else: self.dst = set(); self.src = allr
            if "addtid" in mn: self.src = self.src | {"m0"}
        elif mn.startswith(("buffer_", "global_")):
            self.cls = "vmem"
            islds = mn.startswith("global_load_lds") or re.search(r"\blds\b", mods) is not None
            if islds: self.dst = set(); self.src = allr | {"m0"}
            elif "_load" in mn:
                self.dst = R[0]; self.src = allr if "d16" in mn else tail
            elif "atomic" in mn and "sc0" in mods: self.dst = R[0]; self.src = allr
            else: self.dst = set(); self.src = allr
        elif mn.startswith(("s_load", "s_buffer_load", "s_memtime", "s_memrealtime")):
            self.cls = "smem"; self.dst = R[0]; self.src = tail
        elif mn.startswith("s_"):
            self.cls = "salu"
            if mn.startswith(("s_cmp", "s_bitcmp", "s_waitcnt", "s_barrier", "s_branch", "s_cbranch", "s_nop", "s_setprio", "s_sleep", "s_endpgm", "s_setpc", "s_setreg")):
                self.dst = set(); self.src = allr
                if "vcc" in mn: self.src = {"vcc"}
            elif "saveexec" in mn: self.dst = R[0] | {"exec"}; self.src = tail | {"exec"}
            elif mn.startswith(("s_addk", "s_mulk", "s_cmov")): self.dst = R[0]; self.src = allr
            else: self.dst = R[0]; self.src = tail
        else:
            raise ValueError("unknown instruction: " + text)

class State:
    def __init__(self):
        self.vm = []
        self.lg = []
        self.sm = set()
        self.hist = []

class K:
    def __init__(self):
        self.out = []; self.st = State(); self.uid = 0; self.kernels = []; self.launches = []
        self.nins = 0; self.nnop = 0; self.marks = []
    def raw(self, s): self.out.append(s)
    def lab(self, base="L"):
        self.uid += 1; return f"{base}{self.uid}"
    def label(self, name): self.out.append(name + ":")
    def _age(self, n):
        h = [(i, a + n) for i, a in self.st.hist if a + n < 24]
        self.st.hist = h
    def _put(self, text, ins=None, states=1):
        self.out.append("    " + text); self.nins += 1
        self._age(states)
        if ins is not None: self.st.hist.append((ins, 0))
    def _need(self, q, regs, cap):
        idx = -1
        for i, e in enumerate(q):
            if e & regs: idx = i
        if idx < 0: return None
        return min(len(q) - 1 - idx, cap)
    def _wait(self, vm=None, lg=None):
        st = self.st; parts = []
        if vm is not None:
            parts.append(f"vmcnt({vm})"); st.vm = st.vm[len(st.vm) - vm:] if vm else []
        if lg is not None:
            parts.append(f"lgkmcnt({lg})"); st.lg = st.lg[len(st.lg) - lg:] if lg else []
            if lg == 0: st.sm = set()
        if parts: self._put("s_waitcnt " + " ".join(parts))
    def wait_tok(self, *toks):
        t = {"#" + x for x in toks}
        vm = self._need(self.st.vm, t, 63); lg = self._need(self.st.lg, t, 15)
        if lg is not None and self.st.sm: lg = 0
        self._wait(vm, lg)
    def wait_all(self, vm=True, lg=True):
        self._wait(0 if vm else None, 0 if lg else None)
    def _hazard(self, c):
        need = 0
        touch = c.src | c.dst
        for p, age in self.st.hist:
            w = 0
            if p.cls == "valu":
                vd = {r for r in p.dst if r[0] in "va" and r != "vcc"}
                sd = p.dst - vd
                if vd & c.src:
                    if c.cls == "mfma": w = 2
                    elif c.cls == "valu":
                        if "permlane" in c.mn or "dpp" in c.mn or "row_" in c.mods or "quad_perm" in c.mods: w = 2
                        elif c.mn.startswith(("v_readlane", "v_readfirstlane")): w = 1
                        if p.mn.startswith(TRANS): w = max(w, 1)
                        if p.mn.startswith("v_dot2") and p.mn != c.mn: w = max(w, 3)
                        if "sdwa" in p.mn and "dst_sel:DWORD" not in p.mods: w = max(w, 1)
                if c.cls == "mfma" and p.mn.startswith(("v_pk_", "v_dot", "v_mov_b64")): w = max(w, 2)
                if sd & c.src:
                    if c.cls == "vmem": w = max(w, 5)
                    elif c.cls == "valu": w = max(w, 4 if "lane" in c.mn else 2)
                    elif c.cls == "salu" and "cbranch" not in c.mn: w = max(w, 1)
            elif p.cls == "mfma":
                big = p.passes == 8
                if c.cls == "mfma":
                    if p.dst & c.srcab: w = 12 if big else 8
                    if p.dst & c.srcc and not (p.dst == c.srcc and p.passes == c.passes): w = max(w, 10 if big else 6)
                    if p.dst & c.dst and not (p.dst == c.dst and p.passes == c.passes): w = max(w, 10 if big else 6)
                elif p.dst & touch: w = 12 if big else 8
                if c.cls == "valu" and p.srcc & c.dst: w = max(w, 7 if big else 3)
            elif p.cls == "salu":
                if "m0" in p.dst and "m0" in c.src and c.cls in ("ds", "vmem"): w = 1
            elif p.cls == "vmem":
                if ("store" in p.mn) and ("x3" in p.mn or "x4" in p.mn) and c.cls != "salu":
                    data = regs_of(p.ops[0]) if p.mn.startswith("buffer") else regs_of(p.ops[1])
                    if data & c.dst: w = 2
            need = max(need, w - age)
        return need
    def ins(self, text, tok=None):
        c = Ins(text, tok); st = self.st
        if c.mn == "s_waitcnt":
            vm = re.search(r"vmcnt\((\d+)\)", text); lg = re.search(r"lgkmcnt\((\d+)\)", text)
            vm = int(vm.group(1)) if vm else None; lg = int(lg.group(1)) if lg else None
            if vm is not None and vm > len(st.vm): st.vm = [set()] * (vm - len(st.vm)) + st.vm
            if lg is not None and lg > len(st.lg): st.lg = [set()] * (lg - len(st.lg)) + st.lg
            self._wait(vm, lg); return
        touch = c.src | c.dst
        vm = self._need(st.vm, touch, 63); lg = self._need(st.lg, touch, 15)
        if st.sm & touch: lg = 0
        if lg is not None and st.sm: lg = 0
        self._wait(vm, lg)
        n = self._hazard(c)
        while n > 0:
            k = min(n, 16); self._put(f"s_nop {k-1}", None, k); self.nnop += 1; n -= k
        states = int(c.ops[0]) + 1 if c.mn == "s_nop" else 1
        self._put(text, c, states)
        e = set(c.dst) | ({"#" + tok} if tok else set())
        if c.cls == "vmem": st.vm.append(e)
        elif c.cls == "ds": st.lg.append(e)
        elif c.cls == "smem": st.sm |= (c.dst or {"?"})
    def __call__(self, s, tok=None):
        if isinstance(s, (list, tuple)):
            for x in s:
                if callable(x): x()
                elif isinstance(x, tuple): self(x[0], x[1])
                else: self(x)
            return
        for l in s.split("\n"):
            l = l.strip()
            if not l or l.startswith(";"): continue
            if l.endswith(":"): self.label(l[:-1])
            elif l.startswith("."): self.raw(l)
            else: self.ins(l, tok)
    def snap(self): return copy.deepcopy(self.st)
    def restore(self, s): self.st = copy.deepcopy(s)
    def merge(self, other):
        def mq(a, b):
            n = max(len(a), len(b)); pos = {}
            for q in (a, b):
                for i, e in enumerate(q):
                    k = len(q) - 1 - i
                    for r in e: pos[r] = min(pos.get(r, 1 << 30), k)
            out = [set() for _ in range(n)]
            for r, k in pos.items(): out[n - 1 - k].add(r)
            return out
        st = self.st
        st.vm = mq(st.vm, other.vm); st.lg = mq(st.lg, other.lg); st.sm |= other.sm
        st.hist = st.hist + other.hist
    def begin(self, name):
        self.out.append(f".globl {name}\n.p2align 8\n.type {name},@function\n{name}:"); self.st = State()
    def text(self, header, grid, block, lds, vgpr=512, accum=256, sgpr=102):
        n = NAME + "_kernel"
        o = [header.rstrip("\n"), f"; @launch grid=({grid},1,1) block=({block},1,1) lds={lds}",
             '.amdgcn_target "amdgcn-amd-amdhsa--gfx950"', ".text"] + self.out
        o.append(f""".section .rodata,"a"
.p2align 6
.amdhsa_kernel {n}
  .amdhsa_next_free_vgpr {vgpr}
  .amdhsa_next_free_sgpr {sgpr}
  .amdhsa_accum_offset {accum}
  .amdhsa_group_segment_fixed_size 0
  .amdhsa_kernarg_size 128
  .amdhsa_user_sgpr_count 2
  .amdhsa_user_sgpr_kernarg_segment_ptr 1
  .amdhsa_system_sgpr_workgroup_id_x 1
.end_amdhsa_kernel""")
        return "\n".join(o) + "\n"

def weave(main, fill, per=2, start=0):
    out = []; fill = list(fill)
    def cost(x):
        t = x[0] if isinstance(x, tuple) else x
        if callable(t): return 0
        return 2 if t.split()[0].startswith(TRANS) else 1
    for i, m in enumerate(main):
        out.append(m)
        if i < start: continue
        b = per
        while fill and cost(fill[0]) <= b:
            b -= cost(fill[0]); out.append(fill.pop(0))
    return out, fill
def v(a, n=1): return f"v{a}" if n == 1 else f"v[{a}:{a+n-1}]"
def ar(a, n=1): return f"a{a}" if n == 1 else f"a[{a}:{a+n-1}]"
def s(a, n=1): return f"s{a}" if n == 1 else f"s[{a}:{a+n-1}]"
```

```python
import sys, numpy as np
from gk import *

STAMP = "--stamp" in sys.argv
CYC = "--cyc" in sys.argv
OUT = [a for a in sys.argv[1:] if a.endswith(".s")]
OUT = OUT[0] if OUT else "v1.s"

FW1, FW2, FH, FA, STB = 0x1000, 0x4000, 0x8000, 0x10000, 0x20000
CGS = 16512
UB, XB, HT, ACT, W1P, W2P = 0x100000, 0x500000, 0x900000, 0xC00000, 0x1300000, 0x1700000
WS_BYTES = 0x10000000
OOB = 0x40000000
NCG = 214
TK, TKCH, CS = 0, 16640, 4160
UL, ULCH = 49920, 4608
XL = UL + 3 * ULCH
TAB, TABW, TROW = 77568, 17408, 272
KC, KCCH = 129792, 3328
PK = 139776
LNS = 160256
SLOT = [81920, 122880, 40960]
SC = 0
RED, RED4 = 0, 49152
LDS_BYTES = 163840
SPIN = 1 << 15
LOG2E = 0x3fb8aa3b
pX, pAre, pAim, pBre, pBim, pCre, pCim, pLdt, pDsk, pBx, pWg, pWu, pWd, pOut, pDbg, pWs = [4 + 2 * i for i in range(16)]
WSR, OUTR = 36, 40
sTag, sWv, sMt, sNt, sHb, sN2 = 44, 45, 46, 47, 48, 49
sT = list(range(50, 64))
sXb = 64
sD = 66
sCnt = 69
sStamp = 70
ws = s(WSR, 4)

k = K()
nstamp = [0]
def stamp():
    if STAMP:
        i = nstamp[0]; nstamp[0] += 1
        k(f"{'s_memtime' if CYC else 's_memrealtime'} {s(sStamp + 2*i, 2)}")

def poll(loads, checks, vacc, nl=64):
    L, D = k.lab("Lpoll"), k.lab("Lgot")
    if nl < 64: k(f"s_mov_b64 exec, {hex((1 << nl) - 1)}" if nl <= 31 else f"s_mov_b32 exec_lo, -1\ns_mov_b32 exec_hi, {hex((1 << (nl - 32)) - 1)}")
    k(f"s_mov_b32 {s(sCnt)}, 0")
    k.wait_all(vm=False, lg=True)
    k.label(L)
    k(loads)
    k("s_waitcnt vmcnt(0)")
    if len(checks) == 1:
        k(f"v_cmp_ne_u32 vcc, {s(sTag)}, {v(checks[0])}")
    else:
        k(f"v_xor_b32 {v(vacc)}, {s(sTag)}, {v(checks[0])}")
        for c in checks[1:]:
            k(f"v_bitop3_b32 {v(vacc)}, {v(vacc)}, {v(c)}, {s(sTag)} bitop3:0xf6")
        k(f"v_cmp_ne_u32 vcc, 0, {v(vacc)}")
    k(f"""s_cbranch_vccz {D}
    s_add_u32 {s(sCnt)}, {s(sCnt)}, 1
    s_cmp_lt_u32 {s(sCnt)}, {SPIN}
    s_cbranch_scc1 {L}""")
    k.label(D)
    if nl < 64: k("s_mov_b64 exec, -1")

def flag_store(soff, vtmp):
    k("s_waitcnt vmcnt(0)")
    k(f"""v_mov_b32 {v(vtmp)}, {s(sTag)}
    s_mov_b64 exec, 1
    buffer_store_dword {v(vtmp)}, off, {ws}, {s(soff)} sc1
    s_mov_b64 exec, -1""")

def cmul(d, a, b):
    return [f"v_pk_mul_f32 {v(d,2)}, {v(a,2)}, {v(b,2)} op_sel:[0,0] op_sel_hi:[0,1]",
            f"v_pk_fma_f32 {v(d,2)}, {v(a,2)}, {v(b,2)}, {v(d,2)} op_sel:[1,1,0] op_sel_hi:[1,0,1] neg_lo:[1,0,0]"]
def zipper(*ls):
    out = []; ls = [list(l) for l in ls]
    while any(ls):
        for l in ls:
            if l: out.append(l.pop(0))
    return out
def mf16(d, a, b, c=None):
    return f"v_mfma_f32_16x16x32_bf16 {d}, {a}, {b}, {d if c is None else c}"

k.begin(NAME + "_kernel")
vTid, vLane, vN, vG = 0, 1, 2, 3
vL16 = 4
stamp()
k(f"""
s_load_dwordx16 s[4:19], s[0:1], 0
s_load_dwordx16 s[20:35], s[0:1], 64
s_cmp_lt_u32 s2, 256
s_cbranch_scc1 Lstart
s_endpgm
Lstart:
s_getpc_b64 {s(sT[0],2)}
Lpc:
v_lshlrev_b32 v5, 7, v0
v_min_u32 v6, Lcode_end-Lpc-4, v5
global_load_dword v250, v6, {s(sT[0],2)}
v_add_u32 v5, 0x8000, v5
v_min_u32 v5, Lcode_end-Lpc-4, v5
global_load_dword v251, v5, {s(sT[0],2)}
s_add_u32 {s(sT[2])}, {s(sT[0])}, Ltab-Lpc
s_addc_u32 {s(sT[3])}, {s(sT[1])}, 0
v_lshrrev_b32 v5, 6, v0
v_and_b32 {v(vLane)}, 63, v0
v_readfirstlane_b32 {s(sWv)}, v5
v_and_b32 {v(vN)}, 15, v0
v_lshrrev_b32 {v(vG)}, 4, {v(vLane)}
v_lshlrev_b32 {v(vL16)}, 4, {v(vLane)}
""")
vQ, vCgl, vXo, vXo3, vSel, vSel3, vRo, vRo3 = 8, 9, 10, 11, 12, 15, 18, 19
k(f"""
v_and_b32 {v(vQ)}, 3, v0
v_lshrrev_b32 {v(vCgl)}, 2, v0
v_mul_u32_u24 v5, 6, {v(vCgl)}
v_and_b32 v5, -4, v5
v_mul_u32_u24 {v(vXo)}, 2560, {v(vQ)}
v_add_u32 {v(vXo3)}, 1152, v5
v_min_u32 {v(vXo3)}, 1272, {v(vXo3)}
v_add_u32 {v(vXo3)}, {v(vXo3)}, {v(vXo)}
v_add_u32 {v(vXo)}, {v(vXo)}, v5
s_mul_i32 {s(sT[4])}, s2, 10240
s_add_u32 {s(sXb)}, {s(pX)}, {s(sT[4])}
s_addc_u32 {s(sXb+1)}, {s(pX+1)}, 0
""")
vRaw = 20
for rho in range(4):
    for e in range(2):
        off = 1280 * e + (384 * rho if rho < 3 else 0)
        k(f"global_load_dwordx2 {v(vRaw + 4*rho + 2*e, 2)}, {v(vXo if rho < 3 else vXo3)}, {s(sXb,2)} offset:{off}")
k(f"""
s_load_dword {s(sTag)}, {s(pWs,2)}, 0
s_mov_b32 {s(WSR)}, {s(pWs)}
s_mov_b32 {s(WSR+1)}, {s(pWs+1)}
s_mov_b32 {s(WSR+2)}, {WS_BYTES}
s_mov_b32 {s(WSR+3)}, 0x20000
s_mov_b32 {s(OUTR)}, {s(pOut)}
s_mov_b32 {s(OUTR+1)}, {s(pOut+1)}
s_mov_b32 {s(OUTR+2)}, 2621440
s_mov_b32 {s(OUTR+3)}, 0x20000
s_and_b32 {s(sT[4])}, s2, 7
s_lshr_b32 {s(sT[5])}, s2, 3
s_lshr_b32 {s(sMt)}, {s(sT[4])}, 1
s_lshl_b32 {s(sMt)}, {s(sMt)}, 2
s_and_b32 {s(sT[6])}, {s(sT[5])}, 3
s_add_u32 {s(sMt)}, {s(sMt)}, {s(sT[6])}
s_and_b32 {s(sHb)}, {s(sT[4])}, 1
s_lshr_b32 {s(sN2)}, {s(sT[5])}, 2
s_lshl_b32 {s(sNt)}, {s(sHb)}, 3
s_add_u32 {s(sNt)}, {s(sNt)}, {s(sN2)}
""")
vPsrc, vPt = 36, 37
k(f"""
v_mul_u32_u24 v5, 21846, {v(vLane)}
v_lshrrev_b32 v5, 16, v5
v_mul_u32_u24 {v(vPsrc)}, 3024, v5
v_add_u32 {v(vPsrc)}, {v(vPsrc)}, {v(vL16)}
""")
def w1_dma(sU, stg_expr_setup):
    a, b = sT[9], sT[10]
    k(f"""
    s_lshr_b32 {s(a)}, {s(sU)}, 4
    s_mul_i32 {s(a)}, {s(a)}, {32*3072}
    s_and_b32 {s(b)}, {s(sU)}, 15
    s_lshl_b32 {s(b)}, {s(b)}, 2
    s_add_u32 {s(b)}, {s(b)}, {s(sWv)}
    s_mul_i32 {s(b)}, {s(b)}, 48
    s_add_u32 {s(a)}, {s(a)}, {s(b)}
    v_add_u32 {v(vPt)}, {s(a)}, {v(vPsrc)}
    v_add_u32 {v(vPt+1)}, {16*3072}, {v(vPt)}
    """)
    k(stg_expr_setup)
    k("s_mov_b32 exec_hi, 0xffff")
    for mat in range(2):
        for hf in range(2):
            k(f"s_add_u32 m0, {s(sT[8])}, {mat*1536 + hf*768}")
            k(f"global_load_lds_dwordx4 {v(vPt+hf)}, {s(pWg if mat == 0 else pWu, 2)}", tok="w1dma")
    k("s_mov_b32 exec_hi, -1")

vPar = 40
vTabl = 60
k(f"s_cmp_ge_u32 s2, {NCG}\ns_cbranch_scc1 Lhelp0")
s0 = k.snap()
k(f"""
s_mul_i32 {s(sT[4])}, s2, 3
s_min_u32 {s(sT[5])}, {s(sWv)}, 2
s_add_u32 {s(sT[5])}, {s(sT[5])}, {s(sT[4])}
s_min_u32 {s(sT[5])}, {s(sT[5])}, 639
s_mul_i32 {s(sT[6])}, {s(sT[5])}, 384
v_lshl_add_u32 v5, {v(vLane)}, 1, {s(sT[6])}
""")
for i in range(18): k(f"v_mov_b32 {v(vPar+i)}, 0")
for t in range(3):
    for i, p in enumerate([pAre, pAim, pBre, pBim, pCre, pCim]):
        k(f"global_load_short_d16_hi {v(vPar + 6*t + i)}, v5, {s(p,2)} offset:{128*t}")
vLdt, vDs = 58, 68
k(f"""
s_lshl_b32 {s(sT[6])}, {s(sT[5])}, 1
v_mov_b32 v5, {s(sT[6])}
global_load_ushort {v(vLdt)}, v5, {s(pLdt,2)}
""")
for c in range(3):
    k(f"""s_add_u32 {s(sT[6])}, {s(sT[4])}, {c}
    s_min_u32 {s(sT[6])}, {s(sT[6])}, 639
    s_lshl_b32 {s(sT[6])}, {s(sT[6])}, 1
    v_mov_b32 v5, {s(sT[6])}
    global_load_ushort {v(vDs+c)}, v5, {s(pDsk,2)}""")
k(f"""
v_lshlrev_b32 v5, 4, v0
global_load_dwordx4 {v(vTabl,4)}, v5, {s(sT[2],2)}
global_load_dwordx4 {v(vTabl+4,4)}, v5, {s(sT[2],2)} offset:16
s_cmp_ge_u32 s2, 194
s_cbranch_scc1 Lln1
""")
s1 = k.snap()
w1_dma(2, f"s_mul_i32 {s(sT[8])}, {s(sWv)}, 5120\ns_add_u32 {s(sT[8])}, {s(sT[8])}, {PK}")
k("s_branch Lln1")
s2_ = k.snap()
k.restore(s0)
k.label("Lhelp0")
for r in range(3):
    k(f"s_add_u32 {s(sT[7])}, s2, {194 - NCG + 42*r}")
    w1_dma(sT[7], f"s_mul_i32 {s(sT[8])}, {s(sWv)}, 24576\ns_add_u32 {s(sT[8])}, {s(sT[8])}, {3072*r}")
k.label("Lln1")
k.merge(s1); k.merge(s2_)

k(f"""
v_and_b32 v5, 1, {v(vCgl)}
v_mul_u32_u24 v5, 0x0202, v5
v_lshlrev_b32 v5, 16, v5
v_add_u32 {v(vSel)}, 0x01000c0c, v5
v_add_u32 {v(vSel+1)}, 0x03020c0c, v5
v_add_u32 {v(vSel+2)}, 0x05040c0c, v5
v_mov_b32 v5, 0x0c0c0c0c
v_cmp_gt_u32 vcc, 21, {v(vCgl)}
v_cndmask_b32 {v(vSel3)}, v5, {v(vSel)}, vcc
v_cndmask_b32 {v(vSel3+1)}, v5, {v(vSel+1)}, vcc
v_cndmask_b32 {v(vSel3+2)}, v5, {v(vSel+2)}, vcc
v_mov_b32 v5, 0x07060c0c
v_cmp_eq_u32 vcc, 21, {v(vCgl)}
v_cndmask_b32 {v(vSel3)}, {v(vSel3)}, v5, vcc
v_mul_u32_u24 {v(vRo)}, {CGS}, {v(vCgl)}
v_lshl_add_u32 {v(vRo)}, {v(vQ)}, 4, {v(vRo)}
v_mov_b32 v5, {OOB}
v_cmp_gt_u32 vcc, 22, {v(vCgl)}
v_cndmask_b32 {v(vRo3)}, v5, {v(vRo)}, vcc
s_add_u32 {s(sTag)}, {s(sTag)}, 0x9E3779B1
""")
vLw, vLr = 38, 39
k(f"""
v_and_b32 v5, 1, {v(vG)}
v_lshrrev_b32 {v(vLw)}, 1, {v(vG)}
v_lshl_add_u32 {v(vLw)}, v5, 1, {v(vLw)}
v_lshlrev_b32 {v(vLw)}, 2, {v(vLw)}
v_lshlrev_b32 {v(vLr)}, 6, {v(vQ)}
v_add_u32 {v(vLr)}, {LNS}, {v(vLr)}
s_lshl_b32 {s(sT[4])}, {s(sWv)}, 4
v_add3_u32 {v(vLw)}, {v(vLw)}, {v(vLr)}, {s(sT[4])}
""")
vX = 80
vS, vSq = 104, 106
vU = 108
vXr = 124
for rho in range(4):
    k(f"v_mov_b32 {v(vU+4*rho+3)}, {s(sTag)}\nv_mov_b32 {v(vXr+4*rho+3)}, {s(sTag)}")
stamp()
first = True
for rho in range(4):
    for c in range(3):
        for e in range(2):
            r = vRaw + 4*rho + 2*e
            k(f"v_perm_b32 {v(vX + 6*rho + 2*c + e)}, {v(r+1)}, {v(r)}, {v((vSel if rho < 3 else vSel3) + c)}")
    for c in range(3):
        x = v(vX + 6*rho + 2*c, 2)
        if first:
            k(f"v_pk_mul_f32 {v(vSq,2)}, {x}, {x}\nv_mov_b64 {v(vS,2)}, {x}"); first = False
        else:
            k(f"v_pk_fma_f32 {v(vSq,2)}, {x}, {x}, {v(vSq,2)}\nv_pk_add_f32 {v(vS,2)}, {v(vS,2)}, {x}")
k(f"""
v_permlane32_swap_b32 {v(vS)}, {v(vS+1)}
v_permlane32_swap_b32 {v(vSq)}, {v(vSq+1)}
v_add_f32 {v(vS)}, {v(vS)}, {v(vS+1)}
v_add_f32 {v(vSq)}, {v(vSq)}, {v(vSq+1)}
v_permlane16_swap_b32 {v(vS)}, {v(vSq)}
v_add_f32 {v(vS)}, {v(vS)}, {v(vSq)}
v_add_f32_dpp {v(vS)}, {v(vS)}, {v(vS)} row_ror:8 row_mask:0xf bank_mask:0xf
v_add_f32_dpp {v(vS)}, {v(vS)}, {v(vS)} row_ror:4 row_mask:0xf bank_mask:0xf
ds_write_b32 {v(vLw)}, {v(vS)}
""")
k(f"s_lshl_b32 {s(sT[4])}, s2, 6\ns_add_u32 {s(sT[5])}, {s(sT[4])}, {XB}\ns_add_u32 {s(sT[4])}, {s(sT[4])}, {UB}")
for rho in range(4):
    for c in range(3):
        k(f"v_cvt_pk_bf16_f32 {v(vXr+4*rho+c)}, {v(vX+6*rho+2*c)}, {v(vX+6*rho+2*c+1)}")
k("s_waitcnt lgkmcnt(0)\ns_barrier")
vP = 140
for w in range(4): k(f"ds_read_b128 {v(vP+4*w,4)}, {v(vLr)} offset:{16*w}")
def ln_stats(S, Q, t, want):
    return [
     f"v_pk_mul_f32 {v(S,2)}, {v(S,2)}, {v(t+6,2)}",
     f"v_pk_mul_f32 {v(Q,2)}, {v(Q,2)}, {v(t+6,2)}",
     f"v_pk_fma_f32 {v(Q,2)}, {v(S,2)}, {v(S,2)}, {v(Q,2)} neg_lo:[1,0,0] neg_hi:[1,0,0]",
     f"v_cvt_pk_bf16_f32 {v(t)}, {v(S)}, {v(S+1)}",
     f"v_max_f32 {v(Q)}, 0, {v(Q)}",
     f"v_max_f32 {v(Q+1)}, 0, {v(Q+1)}",
     f"v_cvt_pk_bf16_f32 {v(t+1)}, {v(Q)}, {v(Q+1)}",
     f"v_lshlrev_b32 {v(S)}, 16, {v(t)}",
     f"v_lshlrev_b32 {v(Q)}, 16, {v(t+1)}",
     f"v_and_b32 {v(Q+1)}, 0xffff0000, {v(t+1)}",
     f"v_add_f32 {v(Q)}, 0x3727c5ac, {v(Q)}",
     f"v_add_f32 {v(Q+1)}, 0x3727c5ac, {v(Q+1)}",
     f"v_cvt_pk_bf16_f32 {v(t+1)}, {v(Q)}, {v(Q+1)}",
     f"v_and_b32 {v(S+1)}, 0xffff0000, {v(t)}",
     f"v_lshlrev_b32 {v(Q)}, 16, {v(t+1)}",
     f"v_and_b32 {v(Q+1)}, 0xffff0000, {v(t+1)}",
     f"v_sqrt_f32 {v(Q)}, {v(Q)}",
     f"v_sqrt_f32 {v(Q+1)}, {v(Q+1)}",
     f"v_cvt_pk_bf16_f32 {v(t+1)}, {v(Q)}, {v(Q+1)}",
     f"v_lshlrev_b32 {v(Q)}, 16, {v(t+1)}",
     f"v_and_b32 {v(Q+1)}, 0xffff0000, {v(t+1)}",
     f"v_rcp_f32 {v(t+2)}, {v(Q)}",
     f"v_rcp_f32 {v(t+3)}, {v(Q+1)}"]
vT8 = 156
INV640 = 0x3acccccd
k(f"v_mov_b32 {v(vT8+6)}, {INV640}\nv_mov_b32 {v(vT8+7)}, {INV640}")
k(f"""
v_pk_add_f32 {v(vP,2)}, {v(vP,2)}, {v(vP+4,2)}
v_pk_add_f32 {v(vP+2,2)}, {v(vP+2,2)}, {v(vP+6,2)}
v_pk_add_f32 {v(vP+8,2)}, {v(vP+8,2)}, {v(vP+12,2)}
v_pk_add_f32 {v(vP+10,2)}, {v(vP+10,2)}, {v(vP+14,2)}
v_pk_add_f32 {v(vP,2)}, {v(vP,2)}, {v(vP+8,2)}
v_pk_add_f32 {v(vP+2,2)}, {v(vP+2,2)}, {v(vP+10,2)}
""")
k(ln_stats(vP, vP+2, vT8, None))
for rho in range(4):
    for c in range(3):
        x = v(vX + 6*rho + 2*c, 2)
        k(f"v_pk_add_f32 {x}, {x}, {v(vP,2)} neg_lo:[0,1] neg_hi:[0,1]")
    for c in range(3):
        x = v(vX + 6*rho + 2*c, 2)
        k(f"v_pk_mul_f32 {x}, {x}, {v(vT8+2,2)}")
    for c in range(3):
        k(f"v_cvt_pk_bf16_f32 {v(vU+4*rho+c)}, {v(vX+6*rho+2*c)}, {v(vX+6*rho+2*c+1)}")
    k(f"buffer_store_dwordx4 {v(vU+4*rho,4)}, {v(vRo if rho < 3 else vRo3)}, {ws}, {s(sT[4])} offen sc1")
    if rho < 3: k(f"s_add_u32 {s(sT[4])}, {s(sT[4])}, {64*CGS}")
for rho in range(4):
    k(f"buffer_store_dwordx4 {v(vXr+4*rho,4)}, {v(vRo if rho < 3 else vRo3)}, {ws}, {s(sT[5])} offen sc1")
    if rho < 3: k(f"s_add_u32 {s(sT[5])}, {s(sT[5])}, {64*CGS}")
stamp()

vPa, vPb, vPst, vPd = 80, 81, 82, 84
def w1_pack_setup():
    k(f"""
    v_bfe_u32 v5, {v(vLane)}, 1, 1
    v_mul_u32_u24 {v(vPa)}, 1536, v5
    v_lshrrev_b32 v5, 2, {v(vLane)}
    v_mad_u32_u24 {v(vPa)}, v5, 48, {v(vPa)}
    v_and_b32 v5, 1, {v(vLane)}
    v_lshl_add_u32 {v(vPb)}, v5, 3, {v(vPa)}
    v_lshl_add_u32 {v(vPa)}, v5, 4, {v(vPa)}
    v_bfe_u32 v6, {v(vLane)}, 2, 1
    v_lshl_add_u32 v5, v6, 2, v5
    v_bfe_u32 v6, {v(vLane)}, 1, 1
    v_lshl_add_u32 v5, v6, 3, v5
    v_bfe_u32 v6, {v(vLane)}, 3, 1
    v_lshl_add_u32 v5, v6, 1, v5
    v_lshl_add_u32 v5, {v(vG)}, 4, v5
    v_lshlrev_b32 {v(vPst)}, 4, v5
    v_add_u32 {v(vPa)}, {s(sT[8])}, {v(vPa)}
    v_add_u32 {v(vPb)}, {s(sT[8])}, {v(vPb)}
    """)
def w1_pack(sU, ldsoff):
    a, b = sT[9], sT[10]
    k.wait_tok("w1dma")
    for t in range(3):
        for hf in range(2):
            k(f"ds_read_b64_tr_b16 {v(vPd+4*t+2*hf,2)}, {v(vPa if t < 2 else vPb)} offset:{ldsoff + 768*hf + (8*t if t < 2 else 32)}")
    k(f"""
    s_and_b32 {s(a)}, {s(sU)}, 15
    s_lshl_b32 {s(a)}, {s(a)}, 2
    s_add_u32 {s(a)}, {s(a)}, {s(sWv)}
    s_lshr_b32 {s(b)}, {s(sU)}, 4
    s_lshl_b32 {s(sT[11])}, {s(a)}, 5
    s_add_u32 {s(sT[11])}, {s(sT[11])}, {s(b)}
    s_lshl_b32 {s(sT[11])}, {s(sT[11])}, 2
    s_add_u32 {s(sT[11])}, {s(sT[11])}, {FW1}
    s_mul_i32 {s(a)}, {s(a)}, 20
    s_add_u32 {s(a)}, {s(a)}, {s(b)}
    s_mul_i32 {s(a)}, {s(a)}, 3072
    s_add_u32 {s(a)}, {s(a)}, {W1P}
    """)
    for t in range(3):
        k(f"buffer_store_dwordx4 {v(vPd+4*t,4)}, {v(vPst)}, {ws}, {s(a)} offen offset:{1024*t} sc1")

k(f"s_cmp_lt_u32 s2, {NCG}\ns_cbranch_scc1 Lconv")
s0 = k.snap()
vW2o = 104
for e in range(5):
    k(f"""v_add_u32 v5, {64*e}, {v(vLane)}
    v_mul_u32_u24 v6, 6554, v5
    v_lshrrev_b32 v6, 16, v6
    v_mul_u32_u24 v6, 1120, v6
    v_lshl_add_u32 {v(vW2o+e)}, v5, 4, v6""")
sU2 = [sT[0], sT[1], sT[2]]
k(f"s_sub_u32 {s(sT[12])}, s2, {NCG}\ns_lshl_b32 {s(sT[12])}, {s(sT[12])}, 2\ns_add_u32 {s(sT[12])}, {s(sT[12])}, {s(sWv)}")
k(f"s_mul_i32 {s(sT[8])}, {s(sWv)}, 24576")
for r in range(3):
    k(f"""s_add_u32 {s(sU2[r])}, {s(sT[12])}, {168*r}
    s_min_u32 {s(sU2[r])}, {s(sU2[r])}, 383
    s_lshr_b32 {s(sT[9])}, {s(sU2[r])}, 3
    s_mul_i32 {s(sT[9])}, {s(sT[9])}, {32*1280}
    s_and_b32 {s(sT[10])}, {s(sU2[r])}, 7
    s_mul_i32 {s(sT[10])}, {s(sT[10])}, 160
    s_add_u32 {s(sT[9])}, {s(sT[9])}, {s(sT[10])}""")
    if r == 1:
        w1_pack_setup()
        for q in range(3):
            k(f"s_add_u32 {s(sT[7])}, s2, {194 - NCG + 42*q}")
            k(f"s_mov_b32 {s(sT[13])}, {s(sT[9])}")
            w1_pack(sT[7], 3072*q)
            k(f"s_mov_b32 {s(sT[9])}, {s(sT[13])}\ns_mov_b32 {s(sT[4+q])}, {s(sT[11])}")
    for e in range(5):
        k(f"v_add_u32 v5, {s(sT[9])}, {v(vW2o+e)}")
        k(f"s_add_u32 m0, {s(sT[8])}, {9216 + 5120*r + 1024*e}")
        k(f"global_load_lds_dwordx4 v5, {s(pWd,2)}", tok=f"w2dma{r}")
for q in range(3): flag_store(sT[4+q], 5)
k(f"""
v_lshrrev_b32 v5, 2, {v(vN)}
v_lshl_add_u32 v5, {v(vG)}, 3, v5
v_mul_u32_u24 {v(vPa)}, 160, v5
v_and_b32 v5, 3, {v(vLane)}
v_lshl_add_u32 {v(vPa)}, v5, 3, {v(vPa)}
v_add_u32 {v(vPa)}, {s(sT[8])}, {v(vPa)}
""")
for r in range(3):
    k.wait_tok(f"w2dma{r}")
    for dl in range(5):
        for hf in range(2):
            k(f"ds_read_b64_tr_b16 {v(vPd+4*dl+2*hf,2)}, {v(vPa)} offset:{9216 + 5120*r + 640*hf + 32*dl}")
    k(f"""s_and_b32 {s(sT[9])}, {s(sU2[r])}, 7
    s_lshr_b32 {s(sT[10])}, {s(sU2[r])}, 3
    s_lshl_b32 {s(sT[4+r])}, {s(sT[9])}, 6
    s_add_u32 {s(sT[4+r])}, {s(sT[4+r])}, {s(sT[10])}
    s_lshl_b32 {s(sT[4+r])}, {s(sT[4+r])}, 2
    s_add_u32 {s(sT[4+r])}, {s(sT[4+r])}, {FW2}
    s_mul_i32 {s(sT[9])}, {s(sT[9])}, 48
    s_add_u32 {s(sT[9])}, {s(sT[9])}, {s(sT[10])}
    s_mul_i32 {s(sT[9])}, {s(sT[9])}, 5120
    s_add_u32 {s(sT[9])}, {s(sT[9])}, {W2P}""")
    for dl in range(4):
        k(f"buffer_store_dwordx4 {v(vPd+4*dl,4)}, {v(vL16)}, {ws}, {s(sT[9])} offen offset:{1024*dl} sc1")
    k(f"s_add_u32 {s(sT[9])}, {s(sT[9])}, 4096")
    k(f"buffer_store_dwordx4 {v(vPd+16,4)}, {v(vL16)}, {ws}, {s(sT[9])} offen sc1")
for r in range(3): flag_store(sT[4+r], 5)

def w1_flagwait():
    k(f"""s_lshl_b32 {s(sT[9])}, {s(sNt)}, 2
    s_add_u32 {s(sT[9])}, {s(sT[9])}, {s(sWv)}
    s_lshl_b32 {s(sT[10])}, {s(sT[9])}, 7
    s_add_u32 {s(sT[10])}, {s(sT[10])}, {FW1}
    v_lshlrev_b32 v5, 2, {v(vLane)}""")
    poll([f"buffer_load_dword v6, v5, {ws}, {s(sT[10])} offen sc1"], [6], 7, nl=20)
def w1_loads():
    pre = [f"s_mul_i32 {s(sT[9])}, {s(sT[9])}, {20*3072}", f"s_add_u32 {s(sT[9])}, {s(sT[9])}, {W1P}"]
    for e in range(4):
        pre += [f"s_xor_b32 {s(sT[e])}, {s(sWv)}, {e}", f"s_mul_i32 {s(sT[e])}, {s(sT[e])}, 3072", f"s_add_u32 {s(sT[e])}, {s(sT[e])}, {s(sT[9])}"]
    L = []
    for kk in range(20):
        e = kk & 3
        for t in range(3):
            L.append(f"buffer_load_dwordx4 {ar(12*kk+4*t,4)}, {v(vL16)}, {ws}, {s(sT[e])} offen offset:{1024*t} sc1")
        if kk < 16: L.append(f"s_add_u32 {s(sT[e])}, {s(sT[e])}, {4*3072}")
    return pre, L
w1_flagwait()
pre, L = w1_loads(); k(pre); k(L)
if STAMP:
    for i in range(4): stamp()
    nstamp[0] -= 4
k("s_branch Lgemm1")
sh = k.snap()

k.restore(s0)
k.label("Lconv")
k("s_cmp_ge_u32 s2, 194\ns_cbranch_scc1 Lnopack")
s1 = k.snap()
w1_pack_setup()
w1_pack(2, 0)
k.label("Lnopack")
k.merge(s1)
k(f"s_cmp_eq_u32 {s(sWv)}, 3\ns_cbranch_scc1 Lw3chores")
s1 = k.snap()
vDt = 104
vAcc = 112
vRdA = 108
vA, vC, vZ1, vZ2, vZ4, vZ8, vZ16, vZ256 = 128, 130, 132, 134, 136, 138, 140, 142
vE = 144
k(f"""
v_lshlrev_b32 {v(vLdt)}, 16, {v(vLdt)}
v_mul_f32 {v(vLdt)}, {LOG2E}, {v(vLdt)}
v_exp_f32 {v(vLdt)}, {v(vLdt)}
s_mul_i32 {s(sT[4])}, {s(sWv)}, {TABW}
v_cvt_pk_bf16_f32 {v(vLdt)}, {v(vLdt)}, {v(vLdt)}
v_and_b32 {v(vDt+2)}, 0xffff0000, {v(vLdt)}
v_and_b32 {v(vDt+3)}, 0xffff0000, {v(vLdt)}
v_and_b32 v5, 31, {v(vLane)}
v_mul_u32_u24 {v(vRdA)}, {TROW}, v5
v_lshrrev_b32 v5, 5, {v(vLane)}
v_lshl_add_u32 {v(vRdA)}, v5, 4, {v(vRdA)}
s_add_u32 {s(sT[4])}, {s(sT[4])}, {TAB}
v_add_u32 {v(vRdA)}, {s(sT[4])}, {v(vRdA)}
v_lshl_add_u32 {v(vRdA+1)}, {v(vLane)}, 2, {s(sT[4])}
v_mov_b32 {v(vDt)}, {LOG2E}
v_mov_b32 {v(vDt+1)}, 0.15915494
v_mov_b32 v5, 0x3f80
ds_write_b32 {v(vRdA+1)}, v5
""")
def cexp(d, l, t):
    lf = {1: "1.0", 8: "0x41000000", 256: "0x43800000"}[l]
    return [f"v_mul_f32 {v(t)}, {lf}, {v(vA)}", f"v_mul_f32 {v(t+1)}, {lf}, {v(vA+1)}", f"v_exp_f32 {v(t)}, {v(t)}", f"v_fract_f32 {v(t+1)}, {v(t+1)}",
            f"v_cos_f32 {v(d)}, {v(t+1)}", f"v_sin_f32 {v(d+1)}, {v(t+1)}",
            f"v_pk_mul_f32 {v(d,2)}, {v(d,2)}, {v(t,2)} op_sel:[0,0] op_sel_hi:[1,0]"]
cv = [0]
def put(src, row, neg):
    t = vE + 40 + 2*(2 if row >= 32 else row & 1) + (cv[0] % 2); cv[0] += 1
    return [f"v_cvt_pk_bf16_f32 {v(t)}, {v(src)}, {'-' if neg else ''}{v(src+1)}", f"ds_write_b32 {v(vRdA+1)}, {v(t)} offset:{row*TROW}"]
vF = 192
for t in range(3):
    P = vPar + 6*t
    k(f"""v_pk_mul_f32 {v(vA,2)}, {v(P,2)}, {v(vDt+2,2)}
    v_pk_mul_f32 {v(P+2,2)}, {v(P+2,2)}, {v(vDt+2,2)}
    v_pk_mul_f32 {v(vA,2)}, {v(vA,2)}, {v(vDt,2)}""")
    k(zipper(cexp(vZ8, 8, vE), cexp(vZ1, 1, vE+2), cexp(vZ256, 256, vE+4), cmul(vC, P+4, P+2)))
    k(zipper(cmul(vZ16, vZ8, vZ8), cmul(vZ2, vZ1, vZ1)))
    ev = [vE+6, vE+8]; od = [vE+10, vE+12]; h0 = [vE+14, vE+16]; hb = [vE+18, vE+20]; hx = [vE+22, vE+24, vE+26]
    cE = put(vZ16, 2, False); prev = vZ16
    for j in range(4, 32, 2):
        d = ev[(j//2) % 2]; cE += cmul(d, prev, vZ16) + put(d, j, False); prev = d
    cO = put(vZ8, 1, False); prev = vZ8
    for j in range(3, 32, 2):
        d = od[(j//2) % 2]; cO += cmul(d, prev, vZ16) + put(d, j, False); prev = d
    cH = cmul(vZ4, vZ2, vZ2) + put(vC, 32, True); prev = vC
    for j in range(1, 8):
        d = h0[j % 2]; cH += cmul(d, prev, vZ1) + put(d, 32+j, True); prev = d
    cB = []; prev = vC
    rows = {1: 8, 2: 12, 3: 14, 4: 16, 5: 17, 6: 18, 7: 19, 8: 20}
    for j in range(1, 9):
        d = hb[j % 2]; cB += cmul(d, prev, vZ256) + put(d, 32+rows[j], True); prev = d
        if j == 1:
            cB += cmul(hx[0], d, vZ2) + put(hx[0], 32+9, True) + cmul(hx[1], d, vZ4) + put(hx[1], 32+10, True) + cmul(hx[2], hx[0], vZ4) + put(hx[2], 32+11, True)
        elif j in (2, 3):
            cB += cmul(hx[0], d, vZ4) + put(hx[0], 32+rows[j]+1, True)
    k(zipper(cE, cO, cH + cB[:20], ["s_nop 0"] * 0))
    k(cB[20:])
    for kk in range(8):
        k(f"ds_read_b128 {v(vF+8*kk,4)}, {v(vRdA)} offset:{32*TROW + 32*kk}")
        k(f"ds_read_b128 {v(vF+8*kk+4,4)}, {v(vRdA)} offset:{32*kk}")
    for kk in range(8):
        c0 = "0" if (t == 0 and kk == 0) else v(vAcc,16)
        k(f"v_mfma_f32_32x32x16_bf16 {v(vAcc,16)}, {v(vF+8*kk,4)}, {v(vF+8*kk+4,4)}, {c0}")
k(f"""s_mul_i32 {s(sT[4])}, {s(sWv)}, {KCCH}
s_add_u32 {s(sT[4])}, {s(sT[4])}, {KC}
v_lshl_add_u32 v5, {v(vLane)}, 2, {s(sT[4])}
v_mov_b32 v6, 0
ds_write_b32 v5, v6 offset:3072""")
for r in range(12): k(f"ds_write_b32 v5, {v(vAcc+r)} offset:{256*r}")
k("s_branch Lkdone")
s2_ = k.snap()
k.restore(s1)
k.label("Lw3chores")
k(f"""v_mov_b32 v104, 0
v_mov_b32 v105, 0
v_lshlrev_b32 v5, 3, {v(vLane)}""")
for c in range(3): k(f"ds_write_b64 v5, v[104:105] offset:{UL + c*ULCH}")
k(f"""v_lshrrev_b32 v6, 2, {v(vLane)}
v_min_u32 v6, 11, v6
v_mul_u32_u24 v6, {CS}, v6
v_and_b32 v5, 3, {v(vLane)}
v_lshl_add_u32 v5, v5, 3, v6
ds_write_b64 v5, v[104:105] offset:{TK}""")
k.label("Lkdone")
k.merge(s2_)
k("s_cmp_ge_u32 s2, 194\ns_cbranch_scc1 Lnoflag")
s1 = k.snap()
flag_store(sT[11], 5)
k.label("Lnoflag")
k.merge(s1)
stamp()
vTa = 80
for i in range(11):
    e = i + 5
    r = vTabl + e // 2
    k(f"v_lshrrev_b32 {v(vTa+i)}, 16, {v(r)}" if e & 1 else f"v_and_b32 {v(vTa+i)}, 0xffff, {v(r)}")
    k(f"v_add_u32 {v(vTa+i)}, {KC}, {v(vTa+i)}")
k(f"v_lshlrev_b32 v91, 4, v0")
k("s_waitcnt lgkmcnt(0)\ns_barrier")
vG0 = 96
vO = 136
for c in range(3):
    for i in range(11): k(f"ds_read_b32 {v(vG0+12*c+i)}, {v(vTa+i)} offset:{c*KCCH}")
for c in range(3):
    g = lambda tap: v(vG0 + 12*c + tap + 3)
    for sg in range(4):
        o = vO + 16*c + 4*sg
        k(f"""v_cvt_pk_bf16_f32 {v(o)}, {g(sg)}, {g(sg-1)}
        v_cvt_pk_bf16_f32 {v(o+1)}, {g(sg-2)}, {g(sg-3)}
        v_cvt_pk_bf16_f32 {v(o+2)}, {g(sg+4)}, {g(sg+3)}
        v_cvt_pk_bf16_f32 {v(o+3)}, {g(sg+2)}, {g(sg+1)}
        ds_write_b128 v91, {v(o,4)} offset:{TK + c*TKCH + sg*CS + 32}""")
stamp()
vR = 96
k(f"""s_mul_i32 {s(sT[4])}, s2, {CGS}
s_add_u32 {s(sT[5])}, {s(sT[4])}, {XB}
s_add_u32 {s(sT[4])}, {s(sT[4])}, {UB}
v_add_u32 v92, 0x2000, v91
v_add_u32 v93, 0x1000, v91
v_add_u32 v94, 0x3000, v91""")
ld = []
for j, so in enumerate([sT[4], sT[5]]):
    for rho in range(4):
        ld.append(f"buffer_load_dwordx4 {v(vR+16*j+4*rho,4)}, {v([91,93,92,94][rho])}, {ws}, {s(so)} offen sc1")
poll(ld, [vR + 4*i + 3 for i in range(8)], 95)
k(f"v_lshlrev_b32 v5, 2, v0\nv_add_u32 v5, {UL}, v5")
for j in range(2):
    for rho in range(4):
        for c in range(3):
            k(f"ds_write_b32 v5, {v(vR+16*j+4*rho+c)} offset:{(512 if j == 0 else XL-UL) + c*ULCH + 1024*rho}")
w1_flagwait()
pre, W1L = w1_loads(); k(pre)
vLa, vLb, vLr2, vHo, vM, vDI = 8, 9, 10, 11, 12, 16
vHc = 28
k(f"""
s_cmp_eq_u32 {s(sWv)}, 3
s_cselect_b32 {s(sT[4])}, 0, {s(sWv)}
s_mul_i32 {s(sT[5])}, {s(sT[4])}, {TKCH}
s_mul_i32 {s(sT[6])}, {s(sT[4])}, {ULCH}
v_and_b32 v5, 3, {v(vN)}
v_mul_u32_u24 {v(vLa)}, {CS}, v5
v_lshrrev_b32 v5, 2, {v(vN)}
v_lshlrev_b32 v6, 1, {v(vG)}
v_sub_u32 v5, v5, v6
v_add_u32 v5, 7, v5
v_lshl_add_u32 {v(vLa)}, v5, 3, {v(vLa)}
v_add_u32 {v(vLa)}, {s(sT[5])}, {v(vLa)}
v_lshlrev_b32 {v(vLb)}, 5, {v(vN)}
v_add_u32 {v(vLb)}, {s(sT[6])}, {v(vLb)}
v_and_b32 v5, 1, {v(vG)}
v_lshl_add_u32 {v(vLr2)}, v5, 4, {v(vLb)}
v_lshl_add_u32 {v(vLb)}, {v(vG)}, 4, {v(vLb)}
v_add_u32 {v(vLb)}, {UL}, {v(vLb)}
v_mov_b32 v6, {UL+512}
v_mov_b32 v7, {XL}
v_cmp_gt_u32 vcc, 2, {v(vG)}
v_cndmask_b32 v6, v7, v6, vcc
v_add_u32 {v(vLr2)}, {v(vLr2)}, v6
v_lshlrev_b32 v5, 3, v5
v_sub_u32 v5, {v(vN)}, v5
v_and_b32 v6, 1, v5
v_lshlrev_b32 v6, 4, v6
v_mov_b32 v7, 0xffff
v_lshlrev_b32 v6, v6, v7
v_ashrrev_i32 v5, 1, v5
""")
for i in range(4):
    k(f"v_cmp_eq_u32 {s(sT[10],2)}, {i}, v5\nv_cndmask_b32 {v(vM+i)}, 0, v6, {s(sT[10],2)}")
k(f"v_mov_b32 v7, 0x3f803f80")
k(f"""s_cmp_eq_u32 {s(sWv)}, 1
s_cselect_b64 {s(sT[10],2)}, -1, 0
v_cndmask_b32 {v(vDs)}, {v(vDs)}, {v(vDs+1)}, {s(sT[10],2)}
s_cmp_eq_u32 {s(sWv)}, 2
s_cselect_b64 {s(sT[10],2)}, -1, 0
v_cndmask_b32 {v(vDs)}, {v(vDs)}, {v(vDs+2)}, {s(sT[10],2)}""")
for c in range(3):
    k(f"v_lshl_or_b32 v5, {v(vDs+c)}, 16, {v(vDs+c)}\nv_cndmask_b32 v5, v7, v5, vcc")
    for i in range(4): k(f"v_and_b32 {v(vDI+4*c+i)}, {v(vM+i)}, v5")
k(f"""v_lshrrev_b32 v5, 1, {v(vN)}
v_mul_u32_u24 v5, 163840, v5
v_lshl_add_u32 v5, {v(vG)}, 3, v5
v_and_b32 v6, 1, {v(vN)}
s_mul_i32 {s(sT[5])}, s2, 3
s_add_u32 {s(sT[5])}, {s(sT[5])}, {s(sT[4])}""")
for c in range(3):
    k(f"""s_bfe_u32 {s(sT[6])}, {s(sT[5])}, 0x10002
    s_lshl_b32 {s(sT[7])}, {s(sT[5])}, 6
    s_cmp_lt_u32 {s(sT[5])}, 640
    s_cselect_b32 {s(sT[7])}, {s(sT[7])}, {OOB}
    v_xor_b32 v7, {s(sT[6])}, v6
    v_lshl_add_u32 v7, v7, 5, v5
    v_add_u32 {v(vHc+c)}, {s(sT[7])}, v7
    s_add_u32 {s(sT[5])}, {s(sT[5])}, 1""")
k("s_waitcnt lgkmcnt(0)\ns_barrier")
stamp()

vCA = 32
vFr = 72
vRs = 200
vPk = 240
def conv_code(jobs, extra):
    steps = []
    acc = {}
    for c, tiles in jobs:
        for i in tiles: acc[(c, i)] = vCA + 4*len(acc)
    nb = 0
    for c, tiles in jobs:
        pm = max(tiles)
        for r in range(8):
            base = vFr + 64*(nb % 2); nb += 1
            A = lambda p: base + 4*p
            B = lambda q: base + 32 + 4*q
            rd = []
            for p in range(pm+1):
                dl = 8*p + r
                rd.append(f"ds_read_b128 {v(B(p),4)}, {v(vLb)} offset:{c*ULCH + 512 + 64*(8*p - r) - 32}")
                rd.append(f"ds_read_b64 {v(A(p),2)}, {v(vLa)} offset:{TK + c*TKCH + 64*dl + 8}")
                rd.append(f"ds_read_b64 {v(A(p)+2,2)}, {v(vLa)} offset:{TK + c*TKCH + 64*dl}")
            pairs = sorted([(max(p, i-p), i, p) for i in tiles for p in range(i+1)])
            mm = [mf16(v(acc[(c,i)],4), v(A(p),4), v(B(i-p),4)) for _, i, p in pairs]
            steps.append((rd, mm))
    out = []
    init_rd, init_mm = [], []
    for n_, ((c, i), a_) in enumerate(acc.items()):
        init_rd.append(f"ds_read_b128 {v(vRs+4*n_,4)}, {v(vLr2)} offset:{c*ULCH + 512*i}")
        init_mm.append(mf16(v(a_,4), v(vDI+4*c,4), v(vRs+4*n_,4), "0"))
    out += init_rd + steps[0][0] + init_mm
    extra = list(extra)
    per = -(-len(extra) // len(steps))
    for n_, (rd, mm) in enumerate(steps):
        nxt = list(steps[n_+1][0]) if n_+1 < len(steps) else []
        fill = nxt + extra[:per]; extra = extra[per:]
        w, left = weave(mm, fill, per=2)
        out += w + left
    for n_, ((c, i), a_) in enumerate(acc.items()):
        p = vPk + 2*(n_ % 8)
        out += [f"v_cvt_pk_bf16_f32 {v(p)}, {v(a_)}, {v(a_+1)}", f"v_cvt_pk_bf16_f32 {v(p+1)}, {v(a_+2)}, {v(a_+3)}",
                f"s_mov_b32 {s(sT[4])}, {HT + (i & 1)*8*163840 + (i >> 1)*40960}",
                f"buffer_store_dwordx2 {v(p,2)}, {v(vHc+c)}, {ws}, {s(sT[4])} offen sc1"]
    return out
k(f"s_cmp_eq_u32 {s(sWv)}, 3\ns_cbranch_scc1 Lconv3")
s1 = k.snap()
k(conv_code([(0, [0, 4, 5, 6, 7])], W1L))
k("s_branch Lconvd")
s2_ = k.snap()
k.restore(s1)
k.label("Lconv3")
k(conv_code([(0, [1, 2, 3]), (1, [1, 2, 3]), (2, [1, 2, 3])], W1L))
k.label("Lconvd")
k.merge(s2_)
stamp()
k(f"s_lshl_b32 {s(sT[4])}, s2, 5\ns_add_u32 {s(sT[4])}, {s(sT[4])}, {s(sWv)}\ns_lshl_b32 {s(sT[4])}, {s(sT[4])}, 2\ns_add_u32 {s(sT[4])}, {s(sT[4])}, {FH}")
flag_store(sT[4], 5)

k.label("Lgemm1")
k.merge(sh)
k("s_waitcnt lgkmcnt(0)\ns_barrier")
vOnes, vCs = 8, 12
vBa = 24
vRa = 32
vScW, vScW2, vScR, vScR2 = 34, 35, 36, 37
vAo1, vAo2 = 38, 39
vRes = 40
vAc = 52
vSt = 100
vFb = 116
vTm = 148
for i in range(4): k(f"v_mov_b32 {v(vOnes+i)}, 0x3f803f80")
k(f"""
v_lshrrev_b32 v5, 2, {v(vLane)}
v_lshlrev_b32 v5, 6, v5
v_and_b32 v6, 3, {v(vLane)}
v_lshl_add_u32 v5, v6, 3, v5
v_and_b32 v6, 1, {v(vG)}
v_lshl_add_u32 v7, v6, 5, v5
""")
for e in range(4):
    k(f"""s_xor_b32 {s(sT[4])}, {s(sWv)}, {e}
    s_lshl_b32 {s(sT[4])}, {s(sT[4])}, 11
    s_add_u32 {s(sT[4])}, {s(sT[4])}, {SLOT[0]}
    v_add_u32 {v(vBa+e)}, {s(sT[4])}, v7
    v_xor_b32 {v(vBa+4+e)}, 32, {v(vBa+e)}""")
k(f"""
s_lshl_b32 {s(sT[4])}, {s(sHb)}, 5
v_xor_b32 v7, {s(sT[4])}, v7
s_mul_i32 {s(sT[4])}, {s(sN2)}, 5120
s_add_u32 {s(sT[4])}, {s(sT[4])}, {SLOT[0]}
s_lshl_b32 {s(sT[5])}, {s(sWv)}, 10
s_add_u32 {s(sT[5])}, {s(sT[5])}, {s(sT[4])}
v_add_u32 {v(vRa)}, {s(sT[5])}, v7
s_add_u32 {s(sT[4])}, {s(sT[4])}, 4096
v_add_u32 {v(vRa+1)}, {s(sT[4])}, v7
s_mul_i32 {s(sT[4])}, {s(sWv)}, 2560
v_add_u32 {v(vScW)}, {s(sT[4])}, {v(vL16)}
v_lshl_add_u32 {v(vScW2)}, {v(vLane)}, 2, {s(sT[4])}
v_lshrrev_b32 v5, 2, {v(vN)}
v_lshl_add_u32 v5, v5, 4, {v(vN)}
v_and_b32 v6, 3, {v(vN)}
v_lshlrev_b32 v6, 2, v6
v_lshl_add_u32 {v(vScR)}, v5, 4, v6
v_lshlrev_b32 {v(vScR2)}, 2, {v(vN)}
v_lshrrev_b32 v5, 1, {v(vG)}
v_mul_u32_u24 v5, 49152, v5
v_lshl_add_u32 v5, {v(vN)}, 4, v5
v_and_b32 v6, 1, {v(vG)}
v_lshl_add_u32 {v(vAo1)}, v6, 8, v5
v_lshl_add_u32 {v(vAo2)}, v6, 3, v5
""")
sAct, sHsrc, sLd = sT[10], sT[11], sT[12]
k(f"""
s_lshl_b32 {s(sAct)}, {s(sNt)}, 2
s_add_u32 {s(sAct)}, {s(sAct)}, {s(sWv)}
s_mul_i32 {s(sAct)}, {s(sAct)}, 768
s_mul_i32 {s(sT[4])}, {s(sMt)}, {2*49152}
s_add_u32 {s(sAct)}, {s(sAct)}, {s(sT[4])}
s_add_u32 {s(sAct)}, {s(sAct)}, {ACT}
s_mul_i32 {s(sLd)}, {s(sWv)}, 10240
s_mul_i32 {s(sHsrc)}, {s(sMt)}, 163840
s_add_u32 {s(sHsrc)}, {s(sHsrc)}, {s(sLd)}
s_add_u32 {s(sHsrc)}, {s(sHsrc)}, {HT}
""")
for kk in range(20):
    for t in range(3):
        k(mf16(v(vCs+4*t,4), ar(12*kk+4*t,4), v(vOnes,4), "0" if kk == 0 else None))
stamp()
k(f"""s_mul_i32 {s(sT[4])}, {s(sWv)}, 53
v_add_u32 v5, {s(sT[4])}, {v(vLane)}
v_min_u32 v5, {NCG-1}, v5
v_lshlrev_b32 v5, 7, v5
s_mov_b32 {s(sT[4])}, {FH}""")
poll([f"buffer_load_dwordx4 {v(vTm,4)}, v5, {ws}, {s(sT[4])} offen sc1"], [vTm, vTm+1, vTm+2, vTm+3], 6, nl=56)
stamp()
def h_dma(c):
    L = []
    for i in range(10):
        if i % 4 == 0:
            L += [f"s_add_u32 m0, {s(sLd)}, {SLOT[c % 3] + 1024*i}", f"s_add_u32 {s(sT[4])}, {s(sHsrc)}, {40960*c + 1024*i}"]
        L.append((f"buffer_load_dwordx4 {v(vL16)}, {ws}, {s(sT[4])} offen offset:{1024*(i % 4)} sc1 lds", f"h{c}"))
    return L
def g1_reads(kk):
    b = vFb + 8*(kk % 4)
    return [f"ds_read_b64_tr_b16 {v(b+4*a+2*hf,2)}, {v(vBa+4*a+(kk&3))} offset:{(kk & ~3)*2048 + 1024*hf}" for a in range(2) for hf in range(2)]
def g1_mm(c, kk):
    b = vFb + 8*(kk % 4); A = vAc + 24*(c % 2); z = "0" if kk == 0 else None
    L = [mf16(v(A+12*a+4*t,4), ar(12*kk+4*t,4), v(b+4*a,4), z) for a in range(2) for t in range(3)]
    if kk % 4 == 0:
        for a in range(2):
            L += [mf16(v(vSt+4*a,4), v(b+4*a,4), v(b+4*a,4), z), mf16(v(vSt+8+4*a,4), v(vOnes,4), v(b+4*a,4), z)]
    return L
def g1_statw(c):
    o = SC + 10240*(c % 2)
    return [f"ds_write_b128 {v(vScW)}, {v(vSt,4)} offset:{o}", f"ds_write_b128 {v(vScW)}, {v(vSt+4,4)} offset:{o+1280}",
            f"ds_write_b32 {v(vScW2)}, {v(vSt+8)} offset:{o+1024}", f"ds_write_b32 {v(vScW2)}, {v(vSt+12)} offset:{o+1280+1024}"]
def g1_epi(c):
    o = (SC + 10240*(c % 2)) // 256; A = vAc + 24*(c % 2)
    Q, S, t8 = vTm, vTm+8, vTm+16
    L = []
    for w in range(4):
        L.append(f"ds_read2st64_b32 {v(Q+2*w,2)}, {v(vScR)} offset0:{o+10*w} offset1:{o+10*w+5}")
        L.append(f"ds_read2st64_b32 {v(S+2*w,2)}, {v(vScR2)} offset0:{o+10*w+4} offset1:{o+10*w+9}")
    L += [f"v_mov_b32 {v(t8+6)}, {INV640}", f"v_mov_b32 {v(t8+7)}, {INV640}"]
    for X in (Q, S):
        L += [f"v_pk_add_f32 {v(X,2)}, {v(X,2)}, {v(X+2,2)}", f"v_pk_add_f32 {v(X+4,2)}, {v(X+4,2)}, {v(X+6,2)}", f"v_pk_add_f32 {v(X,2)}, {v(X,2)}, {v(X+4,2)}"]
    L += ln_stats(S, Q, t8, None)
    L += [f"v_pk_mul_f32 {v(Q,2)}, {v(Q,2)}, {v(Q,2)}", f"v_mul_f32 {v(t8+2)}, 0xbfb8aa3b, {v(t8+2)}", f"v_mul_f32 {v(t8+3)}, 0xbfb8aa3b, {v(t8+3)}"]
    R = vTm + 24
    chains = []
    for a in range(2):
        for t in range(3):
            g_, u_ = A+12*a+4*t, A+12*a+4*t+2
            z = vTm + 32 + 2*(3*a+t)
            chains.append([
              f"v_pk_fma_f32 {v(g_,2)}, {v(vCs+4*t,2)}, {v(S,2)}, {v(g_,2)} op_sel:[0,{a},0] op_sel_hi:[1,{a},1] neg_lo:[0,1,0] neg_hi:[0,1,0]",
              f"v_pk_fma_f32 {v(u_,2)}, {v(vCs+4*t+2,2)}, {v(S,2)}, {v(u_,2)} op_sel:[0,{a},0] op_sel_hi:[1,{a},1] neg_lo:[0,1,0] neg_hi:[0,1,0]",
              f"v_pk_mul_f32 {v(z,2)}, {v(g_,2)}, {v(t8+2,2)} op_sel:[0,{a}] op_sel_hi:[1,{a}]",
              f"v_exp_f32 {v(z)}, {v(z)}", f"v_exp_f32 {v(z+1)}, {v(z+1)}",
              f"v_pk_mul_f32 {v(g_,2)}, {v(g_,2)}, {v(u_,2)}",
              f"v_pk_fma_f32 {v(z,2)}, {v(z,2)}, {v(Q,2)}, {v(Q,2)} op_sel:[0,{a},{a}] op_sel_hi:[1,{a},{a}]",
              f"v_rcp_f32 {v(z)}, {v(z)}", f"v_rcp_f32 {v(z+1)}, {v(z+1)}",
              f"v_pk_mul_f32 {v(g_,2)}, {v(g_,2)}, {v(z,2)}",
              f"v_cvt_pk_bf16_f32 {v(R+2*t+a)}, {v(g_)}, {v(g_+1)}"])
    L += zipper(chains[0], chains[3]) + zipper(chains[1], chains[4]) + zipper(chains[2], chains[5])
    L += [f"s_add_u32 {s(sT[5])}, {s(sAct)}, {32*49152*c}"]
    L += [f"v_permlane32_swap_b32 {v(R+2*t)}, {v(R+2*t+1)}" for t in range(3)]
    L += [f"buffer_store_dwordx4 {v(R,4)}, {v(vAo1)}, {ws}, {s(sT[5])} offen sc1",
          f"buffer_store_dwordx2 {v(R+4,2)}, {v(vAo2)}, {ws}, {s(sT[5])} offen offset:512 sc1"]
    return L
for c in range(3): k(h_dma(c))
for c in range(4):
    k.wait_tok(f"h{c}")
    k("s_waitcnt lgkmcnt(0)\ns_barrier")
    if c == 1: k(h_dma(3))
    if c > 0:
        dlt = SLOT[c % 3] - SLOT[(c-1) % 3]
        for r in list(range(vBa, vBa+8)) + [vRa, vRa+1]: k(f"v_add_u32 {v(r)}, {dlt & 0xffffffff}, {v(r)}")
    k(g1_reads(0) + g1_reads(1))
    k(f"ds_read_b64_tr_b16 {v(vRes+2*c,2)}, {v(vRa)}")
    Ls = k.lab("Lr4")
    k(f"s_cmp_lg_u32 {s(sWv)}, {c}\ns_cbranch_scc1 {Ls}")
    s1 = k.snap()
    k(f"ds_read_b64_tr_b16 {v(vRes+8,2)}, {v(vRa+1)}")
    k.label(Ls); k.merge(s1)
    fill = g1_epi(c-1) if c > 0 else []
    for kk in range(20):
        rd = g1_reads(kk+2) if kk+2 < 20 else []
        mm = g1_mm(c, kk)
        w, left = weave(mm, rd + fill, per=2)
        assert len(left) <= len(fill)
        fill = left
        k(w)
        if kk == 17: fill = fill + g1_statw(c)
    k(fill)
k("s_waitcnt lgkmcnt(0)\ns_barrier")
k(g1_epi(3))
stamp()
k(f"""s_lshl_b32 {s(sT[4])}, {s(sMt)}, 4
s_add_u32 {s(sT[4])}, {s(sT[4])}, {s(sNt)}
s_lshl_b32 {s(sT[4])}, {s(sT[4])}, 5
s_add_u32 {s(sT[4])}, {s(sT[4])}, {s(sWv)}
s_lshl_b32 {s(sT[4])}, {s(sT[4])}, 2
s_add_u32 {s(sT[4])}, {s(sT[4])}, {FA}""")
flag_store(sT[4], 5)

k(f"""s_lshl_b32 {s(sT[4])}, {s(sN2)}, 8
s_mul_i32 {s(sT[5])}, {s(sWv)}, 48
s_add_u32 {s(sT[4])}, {s(sT[4])}, {s(sT[5])}
s_add_u32 {s(sT[4])}, {s(sT[4])}, {FW2}
v_lshlrev_b32 v5, 2, {v(vLane)}""")
poll([f"buffer_load_dword v6, v5, {ws}, {s(sT[4])} offen sc1"], [6], 7, nl=12)
vWo = 8
vRw = 12
vRr, vRr4, vOo = 16, 17, 18
k(f"""s_lshl_b32 {s(sT[4])}, {s(sN2)}, 2
s_add_u32 {s(sT[4])}, {s(sT[4])}, {s(sWv)}
s_mul_i32 {s(sT[4])}, {s(sT[4])}, {12*5120}
s_add_u32 {s(sT[4])}, {s(sT[4])}, {W2P}
v_add_u32 v19, 4096, {v(vL16)}""")
for lam in range(4):
    k(f"""s_xor_b32 {s(sT[5])}, {s(sWv)}, {lam}
    s_lshl_b32 {s(sT[6])}, {s(sT[5])}, 10
    v_add_u32 {v(vWo+lam)}, {s(sT[6])}, {v(vL16)}""")
    if lam:
        k(f"""s_mul_i32 {s(sT[6])}, {s(sT[5])}, 3072
        s_add_u32 {s(sT[6])}, {s(sT[6])}, {RED + 1024*(lam-1)}
        v_add_u32 {v(vRw+lam-1)}, {s(sT[6])}, {v(vL16)}""")
for ks in range(12):
    for lam in range(5):
        k(f"buffer_load_dwordx4 {ar(20*ks+4*lam,4)}, {v(vWo+lam if lam < 4 else 19)}, {ws}, {s(sT[4])} offen sc1")
    if ks < 11: k(f"s_add_u32 {s(sT[4])}, {s(sT[4])}, 5120")
k(f"""
s_lshl_b32 {s(sT[6])}, {s(sWv)}, 10
s_add_u32 {s(sT[6])}, {s(sT[6])}, {RED4}
v_add_u32 {v(vRw+3)}, {s(sT[6])}, {v(vL16)}
s_mul_i32 {s(sT[6])}, {s(sWv)}, 3072
s_add_u32 {s(sT[6])}, {s(sT[6])}, {RED}
v_add_u32 {v(vRr)}, {s(sT[6])}, {v(vL16)}
s_lshl_b32 {s(sT[6])}, {s(sWv)}, 12
s_add_u32 {s(sT[6])}, {s(sT[6])}, {RED4}
v_add_u32 {v(vRr4)}, {s(sT[6])}, {v(vL16)}
v_mul_u32_u24 {v(vOo)}, 1280, {v(vN)}
v_lshl_add_u32 {v(vOo)}, {v(vG)}, 3, {v(vOo)}
s_lshl_b32 {s(sT[6])}, {s(sMt)}, 1
s_add_u32 {s(sT[6])}, {s(sT[6])}, {s(sHb)}
s_mul_i32 {s(sT[7])}, {s(sT[6])}, {16*1280}
s_mul_i32 {s(sT[8])}, {s(sN2)}, 160
s_add_u32 {s(sT[7])}, {s(sT[7])}, {s(sT[8])}
s_mul_i32 {s(sAct)}, {s(sT[6])}, 49152
s_mul_i32 {s(sT[8])}, {s(sWv)}, 12288
s_add_u32 {s(sAct)}, {s(sAct)}, {s(sT[8])}
s_add_u32 {s(sAct)}, {s(sAct)}, {ACT}
s_lshl_b32 {s(sT[4])}, {s(sMt)}, 2
s_add_u32 {s(sT[4])}, {s(sT[4])}, {s(sWv)}
s_lshl_b32 {s(sT[4])}, {s(sT[4])}, 9
s_add_u32 {s(sT[4])}, {s(sT[4])}, {FA}
v_lshlrev_b32 v5, 7, {v(vLane)}
""")
sOut = sT[7]
poll([f"buffer_load_dwordx4 v[20:23], v5, {ws}, {s(sT[4])} offen sc1"], [20, 21, 22, 23], 6, nl=4)
k("s_barrier")
stamp()
vA2 = 52
vBf = 92
vT2 = 236
def act_loads(i):
    L = []
    for ks in range(12):
        if ks % 4 == 0: L.append(f"s_add_u32 {s(sT[4])}, {s(sAct)}, {32*49152*i + 1024*ks}")
        L.append(f"buffer_load_dwordx4 {v(vBf+48*(i%3)+4*ks,4)}, {v(vL16)}, {ws}, {s(sT[4])} offen offset:{1024*(ks%4)} sc1")
    return L
def g2_write(i):
    A = vA2 + 20*(i % 2)
    return [f"ds_write_b128 {v(vRw+lam-1)}, {v(A+4*lam,4)} offset:{12288*i}" for lam in range(1, 4)] + [f"ds_write_b128 {v(vRw+3)}, {v(A+16,4)} offset:{4096*i}"]
def fin(A, parts, res, soff):
    L = []
    for p in parts:
        L += [f"v_pk_add_f32 {v(A,2)}, {v(A,2)}, {v(p,2)}", f"v_pk_add_f32 {v(A+2,2)}, {v(A+2,2)}, {v(p+2,2)}"]
    p = parts[0]
    L += [f"v_lshlrev_b32 {v(p)}, 16, {v(res)}", f"v_and_b32 {v(p+1)}, 0xffff0000, {v(res)}", f"v_lshlrev_b32 {v(p+2)}, 16, {v(res+1)}", f"v_and_b32 {v(p+3)}, 0xffff0000, {v(res+1)}",
          f"v_pk_add_f32 {v(A,2)}, {v(A,2)}, {v(p,2)}", f"v_pk_add_f32 {v(A+2,2)}, {v(A+2,2)}, {v(p+2,2)}",
          f"v_cvt_pk_bf16_f32 {v(p)}, {v(A)}, {v(A+1)}", f"v_cvt_pk_bf16_f32 {v(p+1)}, {v(A+2)}, {v(A+3)}"]
    L += soff + [f"buffer_store_dwordx2 {v(p,2)}, {v(vOo)}, {s(OUTR,4)}, {s(sT[5])} offen"]
    return L
def g2_fin(i):
    A = vA2 + 20*(i % 2)
    L = [f"ds_read_b128 {v(vT2+4*j,4)}, {v(vRr)} offset:{12288*i + 1024*j}" for j in range(3)]
    return L + fin(A, [vT2, vT2+4, vT2+8], vRes+2*i, [f"s_lshl_b32 {s(sT[5])}, {s(sWv)}, 5", f"s_add_u32 {s(sT[5])}, {s(sT[5])}, {s(sOut)}", f"s_add_u32 {s(sT[5])}, {s(sT[5])}, {512*1280*i}"])
for i in range(3): k(act_loads(i))
for i in range(4):
    A = vA2 + 20*(i % 2)
    mm = [mf16(v(A+4*lam,4), ar(20*ks+4*lam,4), v(vBf+48*(i%3)+4*ks,4), "0" if ks == 0 else None) for ks in range(12) for lam in range(5)]
    if i == 0:
        k(mm)
    else:
        w, left = weave(mm[:20], g2_write(i-1) + (act_loads(3) if i == 1 else []), per=1, start=3); k(w + left)
        k("s_waitcnt lgkmcnt(0)\ns_barrier")
        w, left = weave(mm[20:], g2_fin(i-1), per=1); k(w + left)
k(g2_write(3))
k("s_waitcnt lgkmcnt(0)\ns_barrier")
for j in range(4): k(f"ds_read_b128 {v(vBf+4*j,4)}, {v(vRr4)} offset:{1024*j}")
k(g2_fin(3))
k(fin(vBf, [vBf+4, vBf+8, vBf+12], vRes+8, [f"s_mul_i32 {s(sT[5])}, {s(sWv)}, {512*1280}", f"s_add_u32 {s(sT[5])}, {s(sT[5])}, {s(sOut)}", f"s_add_u32 {s(sT[5])}, {s(sT[5])}, 128"]))
stamp()
k(f"""s_or_b32 {s(sT[4])}, s2, {s(sWv)}
s_cmp_lg_u32 {s(sT[4])}, 0
s_cbranch_scc1 Lnoep
v_mov_b32 v5, {s(sTag)}
s_mov_b64 exec, 1
buffer_store_dword v5, off, {ws}, 0
s_mov_b64 exec, -1
Lnoep:""")
if STAMP:
    k("s_waitcnt vmcnt(0)")
    stamp()
    k(f"""s_lshl_b32 {s(sT[4])}, s2, 2
    s_add_u32 {s(sT[4])}, {s(sT[4])}, {s(sWv)}
    s_lshl_b32 {s(sT[4])}, {s(sT[4])}, 7
    s_add_u32 {s(sT[4])}, {s(sT[4])}, {STB}
    s_mov_b64 exec, 1""")
    for i in range(nstamp[0]):
        k(f"v_mov_b32 v5, {s(sStamp+2*i)}\nbuffer_store_dword v5, off, {ws}, {s(sT[4])} offset:{4*i}")
k("s_endpgm")
def rb(x):
    u = np.float32(x).view(np.uint32)
    return int(np.uint32(((int(u) + 0x7FFF + ((int(u) >> 16) & 1)) >> 16) << 16).view(np.float32))
H = list(range(8)) + [256,258,260,262,512,516,768,772,1024,1280,1536,1792,2048]
idx = {}
for i, h in enumerate(H):
    for j in range(32): idx.setdefault(h + 8*j, (i, j))
tab = []
for l in range(-8, 2048):
    if l < 0: tab.append(3072)
    else:
        i, j = idx[rb(l)]
        tab.append((4*(i >> 3) + (i & 3))*256 + ((i >> 2) & 1)*128 + 4*j)
k.raw(".p2align 6\n.type Ltab,@object\nLtab:")
for i in range(0, len(tab), 16): k.raw(".short " + ",".join(map(str, tab[i:i+16])))
k.raw(".size Ltab, .-Ltab\n.p2align 2\n.fill 64, 4, 0\nLcode_end:")
hdr = "".join(l for l in open("cdna_kernels/" + NAME + ".s.ref").readlines()[:18] if l.startswith(";") and "@launch" not in l)
open(OUT, "w").write(k.text(hdr, 256, 256, LDS_BYTES))
print("instructions", k.nins, "nops", k.nnop, "stamps", nstamp[0])
```

```python
import re, copy
NAME = "sequential_preLN__ssm_conv_s4__swiglu_ffn__prompt"

_REG = re.compile(r"^[-|]*\s*(?:abs\()?([vas])(?:(\d+)|\[(\d+):(\d+)\])\)?\|?$")
TRANS = ("v_exp_f32", "v_log_f32", "v_rcp_f32", "v_rsq_f32", "v_sqrt_f32", "v_sin_f32", "v_cos_f32", "v_rcp_iflag_f32")

def regs_of(op):
    op = op.strip()
    if op in ("vcc", "vcc_lo", "vcc_hi"): return {"vcc"}
    if op in ("exec", "exec_lo", "exec_hi"): return {"exec"}
    if op == "m0": return {"m0"}
    m = _REG.match(op)
    if not m: return set()
    k = m.group(1)
    if m.group(2) is not None: return {f"{k}{m.group(2)}"}
    return {f"{k}{i}" for i in range(int(m.group(3)), int(m.group(4)) + 1)}

class Ins:
    __slots__ = ("text", "mn", "ops", "mods", "dst", "src", "cls", "passes", "srcc", "srcab", "tok")
    def __init__(self, text, tok=None):
        self.text = text; self.tok = tok
        body = text.split(";")[0].strip()
        parts = body.split(None, 1)
        mn = self.mn = parts[0]
        rest = parts[1] if len(parts) > 1 else ""
        ops, depth, cur = [], 0, ""
        for ch in rest:
            if ch in "[(": depth += 1
            if ch in "])": depth -= 1
            if ch == "," and depth == 0: ops.append(cur.strip()); cur = ""
            else: cur += ch
        if cur.strip(): ops.append(cur.strip())
        mods = ""
        if ops:
            last = ops[-1].split(None, 1)
            ops[-1] = last[0]
            mods = last[1] if len(last) > 1 else ""
        self.ops, self.mods = ops, mods
        R = [regs_of(o) for o in ops]
        allr = set().union(*R) if R else set()
        tail = set().union(*R[1:]) if len(R) > 1 else set()
        self.passes = 0; self.srcc = set(); self.srcab = set()
        if mn.startswith("v_mfma") or mn.startswith("v_smfmac"):
            self.cls = "mfma"; self.dst = R[0]; self.src = tail
            self.srcab = R[1] | R[2]; self.srcc = R[3] if len(R) > 3 else set()
            self.passes = 8 if "32x32" in mn else 4
        elif mn.startswith("v_"):
            self.cls = "valu"
            if "permlane" in mn and "swap" in mn: self.dst = allr; self.src = allr
            elif mn.startswith(("v_add_co", "v_sub_co", "v_addc_co", "v_subb_co", "v_subrev_co", "v_mad_u64_u32", "v_div_scale")):
                self.dst = R[0] | R[1]; self.src = set().union(*R[2:])
            elif mn.startswith(("v_fmac", "v_dot2c", "v_pk_fmac", "v_writelane")) or "dpp" in mn or "row_" in mods or "quad_perm" in mods or "UNUSED_PRESERVE" in mods:
                self.dst = R[0]; self.src = allr
            elif mn == "v_nop": self.dst = set(); self.src = set()
            else: self.dst = R[0]; self.src = tail
        elif mn.startswith("ds_"):
            self.cls = "ds"
            if mn.startswith(("ds_read", "ds_bpermute", "ds_permute", "ds_swizzle")):
                self.dst = R[0]; self.src = tail
                if "d16" in mn: self.src = allr
            else: self.dst = set(); self.src = allr
            if "addtid" in mn: self.src = self.src | {"m0"}
        elif mn.startswith(("buffer_", "global_")):
            self.cls = "vmem"
            islds = mn.startswith("global_load_lds") or re.search(r"\blds\b", mods) is not None
            if islds: self.dst = set(); self.src = allr | {"m0"}
            elif "_load" in mn:
                self.dst = R[0]; self.src = allr if "d16" in mn else tail
            elif "atomic" in mn and "sc0" in mods: self.dst = R[0]; self.src = allr
            else: self.dst = set(); self.src = allr
        elif mn.startswith(("s_load", "s_buffer_load", "s_memtime", "s_memrealtime")):
            self.cls = "smem"; self.dst = R[0]; self.src = tail
        elif mn.startswith("s_"):
            self.cls = "salu"
            if mn.startswith(("s_cmp", "s_bitcmp", "s_waitcnt", "s_barrier", "s_branch", "s_cbranch", "s_nop", "s_setprio", "s_sleep", "s_endpgm", "s_setpc", "s_setreg")):
                self.dst = set(); self.src = allr
                if "vcc" in mn: self.src = {"vcc"}
            elif "saveexec" in mn: self.dst = R[0] | {"exec"}; self.src = tail | {"exec"}
            elif mn.startswith(("s_addk", "s_mulk", "s_cmov")): self.dst = R[0]; self.src = allr
            else: self.dst = R[0]; self.src = tail
        else:
            raise ValueError("unknown instruction: " + text)

class State:
    def __init__(self):
        self.vm = []
        self.lg = []
        self.sm = set()
        self.hist = []

class K:
    def __init__(self):
        self.out = []; self.st = State(); self.uid = 0; self.kernels = []; self.launches = []
        self.nins = 0; self.nnop = 0; self.marks = []
    def raw(self, s): self.out.append(s)
    def lab(self, base="L"):
        self.uid += 1; return f"{base}{self.uid}"
    def label(self, name): self.out.append(name + ":")
    def _age(self, n):
        h = [(i, a + n) for i, a in self.st.hist if a + n < 24]
        self.st.hist = h
    def _put(self, text, ins=None, states=1):
        self.out.append("    " + text); self.nins += 1
        self._age(states)
        if ins is not None: self.st.hist.append((ins, 0))
    def _need(self, q, regs, cap):
        idx = -1
        for i, e in enumerate(q):
            if e & regs: idx = i
        if idx < 0: return None
        return min(len(q) - 1 - idx, cap)
    def _wait(self, vm=None, lg=None):
        st = self.st; parts = []
        if vm is not None:
            parts.append(f"vmcnt({vm})"); st.vm = st.vm[len(st.vm) - vm:] if vm else []
        if lg is not None:
            parts.append(f"lgkmcnt({lg})"); st.lg = st.lg[len(st.lg) - lg:] if lg else []
            if lg == 0: st.sm = set()
        if parts: self._put("s_waitcnt " + " ".join(parts))
    def wait_tok(self, *toks):
        t = {"#" + x for x in toks}
        vm = self._need(self.st.vm, t, 63); lg = self._need(self.st.lg, t, 15)
        if lg is not None and self.st.sm: lg = 0
        self._wait(vm, lg)
    def wait_all(self, vm=True, lg=True):
        self._wait(0 if vm else None, 0 if lg else None)
    def _hazard(self, c):
        need = 0
        touch = c.src | c.dst
        for p, age in self.st.hist:
            w = 0
            if p.cls == "valu":
                vd = {r for r in p.dst if r[0] in "va" and r != "vcc"}
                sd = p.dst - vd
                if vd & c.src:
                    if c.cls == "mfma": w = 2
                    elif c.cls == "valu":
                        if "permlane" in c.mn or "dpp" in c.mn or "row_" in c.mods or "quad_perm" in c.mods: w = 2
                        elif c.mn.startswith(("v_readlane", "v_readfirstlane")): w = 1
                        if p.mn.startswith(TRANS): w = max(w, 1)
                        if p.mn.startswith("v_dot2") and p.mn != c.mn: w = max(w, 3)
                        if "sdwa" in p.mn and "dst_sel:DWORD" not in p.mods: w = max(w, 1)
                if c.cls == "mfma" and p.mn.startswith(("v_pk_", "v_dot", "v_mov_b64")): w = max(w, 2)
                if sd & c.src:
                    if c.cls == "vmem": w = max(w, 5)
                    elif c.cls == "valu": w = max(w, 4 if "lane" in c.mn else 2)
                    elif c.cls == "salu" and "cbranch" not in c.mn: w = max(w, 1)
            elif p.cls == "mfma":
                big = p.passes == 8
                if c.cls == "mfma":
                    if p.dst & c.srcab: w = 12 if big else 8
                    if p.dst & c.srcc and not (p.dst == c.srcc and p.passes == c.passes): w = max(w, 10 if big else 6)
                    if p.dst & c.dst and not (p.dst == c.dst and p.passes == c.passes): w = max(w, 10 if big else 6)
                elif p.dst & touch: w = 12 if big else 8
                if c.cls == "valu" and p.srcc & c.dst: w = max(w, 7 if big else 3)
            elif p.cls == "salu":
                if "m0" in p.dst and "m0" in c.src and c.cls in ("ds", "vmem"): w = 1
            elif p.cls == "vmem":
                if ("store" in p.mn) and ("x3" in p.mn or "x4" in p.mn) and c.cls != "salu":
                    data = regs_of(p.ops[0]) if p.mn.startswith("buffer") else regs_of(p.ops[1])
                    if data & c.dst: w = 2
            need = max(need, w - age)
        return need
    def ins(self, text, tok=None):
        c = Ins(text, tok); st = self.st
        if c.mn == "s_waitcnt":
            vm = re.search(r"vmcnt\((\d+)\)", text); lg = re.search(r"lgkmcnt\((\d+)\)", text)
            vm = int(vm.group(1)) if vm else None; lg = int(lg.group(1)) if lg else None
            if vm is not None and vm > len(st.vm): st.vm = [set()] * (vm - len(st.vm)) + st.vm
            if lg is not None and lg > len(st.lg): st.lg = [set()] * (lg - len(st.lg)) + st.lg
            self._wait(vm, lg); return
        touch = c.src | c.dst
        vm = self._need(st.vm, touch, 63); lg = self._need(st.lg, touch, 15)
        if st.sm & touch: lg = 0
        if lg is not None and st.sm: lg = 0
        self._wait(vm, lg)
        n = self._hazard(c)
        while n > 0:
            k = min(n, 16); self._put(f"s_nop {k-1}", None, k); self.nnop += 1; n -= k
        states = int(c.ops[0]) + 1 if c.mn == "s_nop" else 1
        self._put(text, c, states)
        e = set(c.dst) | ({"#" + tok} if tok else set())
        if c.cls == "vmem": st.vm.append(e)
        elif c.cls == "ds": st.lg.append(e)
        elif c.cls == "smem": st.sm |= (c.dst or {"?"})
    def __call__(self, s, tok=None):
        if isinstance(s, (list, tuple)):
            for x in s:
                if callable(x): x()
                elif isinstance(x, tuple): self(x[0], x[1])
                else: self(x)
            return
        for l in s.split("\n"):
            l = l.strip()
            if not l or l.startswith(";"): continue
            if l.endswith(":"): self.label(l[:-1])
            elif l.startswith("."): self.raw(l)
            else: self.ins(l, tok)
    def snap(self): return copy.deepcopy(self.st)
    def restore(self, s): self.st = copy.deepcopy(s)
    def merge(self, other):
        def mq(a, b):
            n = max(len(a), len(b)); pos = {}
            for q in (a, b):
                for i, e in enumerate(q):
                    k = len(q) - 1 - i
                    for r in e: pos[r] = min(pos.get(r, 1 << 30), k)
            out = [set() for _ in range(n)]
            for r, k in pos.items(): out[n - 1 - k].add(r)
            return out
        st = self.st
        st.vm = mq(st.vm, other.vm); st.lg = mq(st.lg, other.lg); st.sm |= other.sm
        st.hist = st.hist + other.hist
    def begin(self, name):
        self.out.append(f".globl {name}\n.p2align 8\n.type {name},@function\n{name}:"); self.st = State()
    def text(self, header, grid, block, lds, vgpr=512, accum=256, sgpr=102):
        n = NAME + "_kernel"
        o = [header.rstrip("\n"), f"; @launch grid=({grid},1,1) block=({block},1,1) lds={lds}",
             '.amdgcn_target "amdgcn-amd-amdhsa--gfx950"', ".text"] + self.out
        o.append(f""".section .rodata,"a"
.p2align 6
.amdhsa_kernel {n}
  .amdhsa_next_free_vgpr {vgpr}
  .amdhsa_next_free_sgpr {sgpr}
  .amdhsa_accum_offset {accum}
  .amdhsa_group_segment_fixed_size 0
  .amdhsa_kernarg_size 128
  .amdhsa_user_sgpr_count 2
  .amdhsa_user_sgpr_kernarg_segment_ptr 1
  .amdhsa_system_sgpr_workgroup_id_x 1
.end_amdhsa_kernel""")
        return "\n".join(o) + "\n"

def weave(main, fill, per=2, start=0):
    out = []; fill = list(fill)
    def cost(x):
        t = x[0] if isinstance(x, tuple) else x
        if callable(t): return 0
        return 2 if t.split()[0].startswith(TRANS) else 1
    for i, m in enumerate(main):
        out.append(m)
        if i < start: continue
        b = per
        while fill and cost(fill[0]) <= b:
            b -= cost(fill[0]); out.append(fill.pop(0))
    return out, fill
def v(a, n=1): return f"v{a}" if n == 1 else f"v[{a}:{a+n-1}]"
def ar(a, n=1): return f"a{a}" if n == 1 else f"a[{a}:{a+n-1}]"
def s(a, n=1): return f"s{a}" if n == 1 else f"s[{a}:{a+n-1}]"

def _txt(x): return x[0] if isinstance(x, tuple) else x
def _kind(x):
    t = _txt(x)
    if callable(t): return "call"
    m = t.split()[0]
    if m.startswith(("ds_", "buffer_", "global_")): return "mem"
    if m.startswith("s_"): return "salu"
    if m.startswith(TRANS): return "trans"
    return "valu"
def prewait(k, text):
    c = Ins(text); st = k.st; touch = c.src | c.dst
    vm = k._need(st.vm, touch, 63); lg = k._need(st.lg, touch, 15)
    if lg is not None and st.sm: lg = 0
    n0 = k.nins; k._wait(vm, lg); return k.nins != n0
def weave2(k, mm, rd, fill, nxt=None, slots=2, start=0, minfill=0):
    rd = list(rd); n = len(mm)
    for i, m in enumerate(mm):
        k(m)
        nx = mm[i+1] if i+1 < n else nxt
        free_s = not (nx is not None and prewait(k, nx))
        b = slots; had_valu = False
        if i >= start:
            while fill and (_kind(fill[0]) == "call" or (_kind(fill[0]) == "salu" and free_s)):
                if _kind(fill[0]) == "salu": free_s = False
                n0 = k.nins; k([fill.pop(0)])
                if k.nins != n0: free_s = False
        q = -(-len(rd) // (n - i))
        for _ in range(q): k([rd.pop(0)]); b -= 1
        if i < start: continue
        b = max(b, minfill)
        while fill and b > 0:
            kd = _kind(fill[0])
            if kd == "call": break
            if kd == "mem" and had_valu: break
            c = 2 if kd == "trans" else 1
            if c > b: break
            if kd in ("valu", "trans"): had_valu = True
            k([fill.pop(0)]); b -= c
    assert not rd
```

```python
import sys, numpy as np
from gk import *
from gk import _kind

STAMP = "--stamp" in sys.argv
OUT = [a for a in sys.argv[1:] if a.endswith(".s")]
OUT = OUT[0] if OUT else "v2.s"
def opt(name, default):
    x = [a.split("=")[1] for a in sys.argv if a.startswith(f"--{name}=")]
    return int(x[0]) if x else default
NW1PRE = opt("w1pre", 8)
NW1CONV = opt("w1conv", 42)
NOPACK = opt("nopack", 0)
SLEEP = opt("sleep", 3)
NT = " nt" if opt("nt", 1) else ""
NW2C3 = opt("w2c3", 30)

FW1X = 0x44000
FW1, FW2, FH, FA, STP, STB = 0x40000, 0x50000, 0x8000, 0x10000, 0x18000, 0x20000
CGS = 16512
XB, HT, ACT, W1P, W2P = 0x500000, 0x900000, 0xC00000, 0x1300000, 0x1700000
WS_BYTES = 0x10000000
OOB = 0x40000000
NCG = 214
TK, TKCH, CS = 0, 16640, 4160
UL, ULCH = 49920, 4608
XL = UL + 3 * ULCH
TAB, TABW, TROW, TOF = 77568, 17408, 272, 51000
KC, KCCH = 129792, 3328
PK = 139776
XS, XSP = 129792 - 10400, 2592
LNS = 162560
SLOT = [81920, 122880, 40960]
SC = 0
RED, RED4 = 0, 49152
LDS_BYTES = 163840
SPIN = 1 << 15
LOG2E = 0x3fb8aa3b
INV640 = 0x3acccccd
pX, pAre, pAim, pBre, pBim, pCre, pCim, pLdt, pDsk, pBx, pWg, pWu, pWd, pOut, pDbg, pWs = [4 + 2 * i for i in range(16)]
WSR, OUTR = 36, 40
sTag, sWv, sMt, sNt, sHb, sN2 = 44, 45, 46, 47, 48, 49
sT = list(range(50, 64))
sXb = 64
sU, sStg, sFl = 66, 67, 68
sCnt = 69
sStamp = 70
sW1 = [6, 7, 8, 9]
sAct, sHsrc, sLd, sOut, sFa, sW2 = 10, 11, 12, 13, 14, 15
ws = s(WSR, 4)

k = K()
SEL = [a[6:].split(",") for a in sys.argv if a.startswith("--sel=")]
SEL = SEL[0] if SEL else ["start"]
assert len(SEL) <= 16
def stamp(name):
    if STAMP and name in SEL: k(f"s_memrealtime {s(sStamp + 2*SEL.index(name), 2)}")
def stampc(name): return lambda: stamp(name)

vTid, vLane, vN, vG, vL16 = 0, 1, 2, 3, 4
vTagv, vFl0 = 11, 31

def tagtest(checks, vacc):
    if len(checks) == 1:
        k(f"v_cmp_ne_u32 vcc, {s(sTag)}, {v(checks[0])}")
    else:
        k(f"v_xor_b32 {v(vacc)}, {s(sTag)}, {v(checks[0])}")
        for c in checks[1:]:
            k(f"v_bitop3_b32 {v(vacc)}, {v(vacc)}, {v(c)}, {s(sTag)} bitop3:0xf6")
        k(f"v_cmp_ne_u32 vcc, 0, {v(vacc)}")
def check(loads, checks, vacc):
    L, D = k.lab("Lpoll"), k.lab("Lgot")
    tagtest(checks, vacc)
    k(f"s_cbranch_vccz {D}")
    st = k.snap()
    k(f"s_mov_b32 {s(sCnt)}, 0")
    k.label(L)
    k("s_mov_b64 exec, vcc")
    if SLEEP: k(f"s_sleep {SLEEP}")
    k(loads)
    k("s_waitcnt vmcnt(0)")
    tagtest(checks, vacc)
    k(f"""s_mov_b64 exec, -1
    s_cbranch_vccz {D}
    s_add_u32 {s(sCnt)}, {s(sCnt)}, 1
    s_cmp_lt_u32 {s(sCnt)}, {SPIN}
    s_cbranch_scc1 {L}""")
    k.label(D)
    k.merge(st)
def flag(tok, soff, off=0):
    return [lambda: k.wait_tok(tok), f"buffer_store_dword {v(vTagv)}, {v(vFl0)}, {ws}, {s(soff)} offen offset:{off} sc1"]

def cmul(d, a, b):
    return [f"v_pk_mul_f32 {v(d,2)}, {v(a,2)}, {v(b,2)} op_sel:[0,0] op_sel_hi:[0,1]",
            f"v_pk_fma_f32 {v(d,2)}, {v(a,2)}, {v(b,2)}, {v(d,2)} op_sel:[1,1,0] op_sel_hi:[1,0,1] neg_lo:[1,0,0]"]
def zipper(*ls):
    out = []; ls = [list(l) for l in ls]
    while any(ls):
        for l in ls:
            if l: out.append(l.pop(0))
    return out
def mf16(d, a, b, c=None):
    return f"v_mfma_f32_16x16x32_bf16 {d}, {a}, {b}, {d if c is None else c}"

TAPS = [list(range(-3, 8)), [-3, -2, 0, 4, 6], [-3, 0, 4, 5], [-3, 0, 4, 5]]
def tapsrc(rho, tap):
    if rho == 0: return tap
    if rho == 1: return -3 if tap == -3 else -2 if tap == -2 else 0 if tap <= 2 else 4 if tap <= 5 else 6
    return -3 if tap == -3 else 0 if tap <= 3 else 4 if tap == 4 else 5
def rb(x):
    u = int(np.float32(x).view(np.uint32))
    return int(np.uint32(((u + 0x7FFF + ((u >> 16) & 1)) >> 16) << 16).view(np.float32))
H = list(range(8)) + [256,258,260,262,512,516,768,772,1024,1280,1536,1792,2048]
idx = {}
for i, h in enumerate(H):
    for j in range(32): idx.setdefault(h + 8*j, (i, j))
def kaddr(l):
    if l < 0: return 3072
    i, j = idx[rb(l)]
    return (4*(i >> 3) + (i & 3))*256 + ((i >> 2) & 1)*128 + 4*j
k.raw(".p2align 12\n.type Ltab,@object\nLtab:")
rows_ = []
for lane in range(64):
    row = []
    for rho in range(4):
        x = 64*rho + lane
        for tap in range(-3, 8): assert kaddr(8*x + tap) == kaddr(8*x + tapsrc(rho, tap)), (rho, lane, tap)
        row += [kaddr(8*x + tp) for tp in TAPS[rho]]
    rows_.append(row)
for part in range(3):
    for lane in range(64): k.raw(".short " + ",".join(map(str, rows_[lane][8*part:8*part+8])))
k.raw(".fill 64, 4, 0\n.size Ltab, .-Ltab")
k.begin(NAME + "_kernel")
stamp("start")
vTabl = 160
vQ, vCgl, vXo, vXo3, vSel, vSel3, vRo, vRo3, vLw, vLr = 150, 151, 152, 153, 144, 147, 76, 77, 156, 157
k(f"""
s_load_dwordx16 s[4:19], s[0:1], 0
s_load_dwordx16 s[20:35], s[0:1], 64
s_cmp_lt_u32 s2, 256
s_cbranch_scc1 Lstart
s_endpgm
Lstart:
s_getpc_b64 {s(sT[0],2)}
Lpc:
v_and_b32 {v(vN)}, 15, v0
s_lshr_b32 {s(sT[5])}, s2, 3
s_lshl_b32 {s(sT[4])}, {s(sT[5])}, 11
v_lshl_add_u32 v5, {v(vN)}, 7, {s(sT[4])}
v_min_u32 v5, Lcode_end-Lpc-4, v5
v_lshrrev_b32 v6, 6, v0
global_load_dword v172, v5, {s(sT[0],2)}
v_readfirstlane_b32 {s(sWv)}, v6
v_and_b32 {v(vLane)}, 63, v0
v_lshlrev_b32 {v(vL16)}, 4, {v(vLane)}
s_mul_i32 {s(sT[6])}, s2, 3
s_cmp_eq_u32 {s(sWv)}, 3
s_cselect_b32 {s(sT[7])}, 0, {s(sWv)}
s_add_u32 {s(sT[6])}, {s(sT[6])}, {s(sT[7])}
s_min_u32 {s(sT[8])}, {s(sT[6])}, 639
s_mul_i32 {s(sT[9])}, {s(sT[8])}, 384
v_lshl_add_u32 v6, {v(vLane)}, 1, {s(sT[9])}
""")
sHw = 3
vPs = 176
k(f"""
s_sub_u32 {s(sHw)}, s2, {NCG}
s_mov_b32 {s(sU)}, s2
s_mov_b32 {s(sStg)}, {PK}""")
for i in range(9): k(f"v_mov_b64 {v(56+2*i,2)}, 0")
k(f"""
s_lshl2_add_u32 {s(sT[4])}, s2, {s(sWv)}
s_mul_i32 {s(sT[4])}, {s(sT[4])}, 2560
s_mul_i32 m0, {s(sWv)}, {XSP}
s_add_u32 m0, m0, {XS}
s_add_u32 {s(sXb)}, {s(pX)}, {s(sT[4])}
s_addc_u32 {s(sXb+1)}, {s(pX+1)}, 0
s_load_dword {s(sTag)}, {s(pWs,2)}, 0
""")
stamp("karg")
vRaw = 84
k(f"global_load_lds_dwordx4 {v(vL16)}, {s(sXb,2)}{NT}", tok="x")
k(f"global_load_lds_dwordx4 {v(vL16)}, {s(sXb,2)} offset:1024{NT}", tok="x")
k("s_mov_b32 exec_hi, 0")
k(f"global_load_lds_dwordx4 {v(vL16)}, {s(sXb,2)} offset:2048{NT}", tok="x")
k("s_mov_b32 exec_hi, -1")
vPar, vLdt, vDs = 56, 74, 75
stamp("xis")
def srd_setup():
    if STAMP:
        for i, nm in enumerate(SEL):
            if nm not in ("start", "karg", "xis", "par", "iss"): k(f"s_mov_b32 {s(sStamp+2*i)}, 0")
    k(f"""
    v_min_u32 v7, 2, {v(vLane)}
    v_add_u32 v7, {s(sT[6])}, v7
    v_min_u32 v7, 639, v7
    v_lshlrev_b32 v7, 1, v7
    v_lshrrev_b32 {v(vG)}, 4, {v(vLane)}
    s_mov_b32 {s(WSR)}, {s(pWs)}
    s_mov_b32 {s(WSR+1)}, {s(pWs+1)}
    global_load_ushort {v(vDs)}, v7, {s(pDsk,2)}
    s_mov_b32 {s(WSR+2)}, {WS_BYTES}
    s_mov_b32 {s(WSR+3)}, 0x20000
    s_mov_b32 {s(OUTR)}, {s(pOut)}
    s_mov_b32 {s(OUTR+1)}, {s(pOut+1)}
    s_mov_b32 {s(OUTR+2)}, 2621440
    s_mov_b32 {s(OUTR+3)}, 0x20000""")
def pre_kg():
    for t in range(3):
        for i, p in enumerate([pAre, pAim, pBre, pBim, pCre, pCim]):
            k(f"global_load_short_d16_hi {v(vPar + 6*t + i)}, v6, {s(p,2)} offset:{128*t}{NT}")
    stamp("par")
    srd_setup()
    k(f"""
    s_sub_u32 {s(sT[2])}, {s(sT[0])}, Lpc-Ltab
    s_subb_u32 {s(sT[3])}, {s(sT[1])}, 0
    global_load_ushort {v(vLdt)}, v7, {s(pLdt,2)}
    global_load_dwordx4 {v(vTabl,4)}, {v(vL16)}, {s(sT[2],2)}
    global_load_dwordx4 {v(vTabl+4,4)}, {v(vL16)}, {s(sT[2],2)} offset:1024
    global_load_dwordx4 {v(vTabl+8,4)}, {v(vL16)}, {s(sT[2],2)} offset:2048""")
    stamp("iss")
def w1_dma():
    k(f"""s_lshr_b32 {s(sT[9])}, {s(sU)}, 4
    s_bfe_u32 {s(sT[10])}, {s(sU)}, 0x20002
    s_lshl3_add_u32 {s(sT[9])}, {s(sT[9])}, {s(sT[10])}
    s_mul_i32 {s(sT[9])}, {s(sT[9])}, {4*3072}
    s_and_b32 {s(sT[10])}, {s(sU)}, 3
    s_mul_i32 {s(sT[10])}, {s(sT[10])}, 768
    s_add_u32 {s(sT[9])}, {s(sT[9])}, {s(sT[10])}""")
    k(f"v_lshl_add_u32 v5, {v(vLane)}, 4, {s(sT[9])}\nv_add_u32 v7, 2304, v5")
    for e in range(3):
        k(f"""v_cmp_gt_u32 vcc, {48 - 16*e}, {v(vLane)}
        v_cndmask_b32 {v(vPs+e)}, v7, v5, vcc""")
        if e: k(f"v_add_u32 {v(vPs+e)}, {3328*e}, {v(vPs+e)}")
        k(f"v_add_u32 {v(vPs+3+e)}, {16*3072}, {v(vPs+e)}")
    for mat in range(0 if NOPACK else 2):
        for e in range(6):
            k(f"s_add_u32 m0, {s(sStg)}, {mat*6144 + e*1024}")
            k(f"global_load_lds_dwordx4 {v(vPs+e)}, {s(pWg if mat == 0 else pWu, 2)}{NT}", tok="w1dma")
    k(f"""s_lshr_b32 {s(sT[9])}, s2, 6
    s_bfe_u32 {s(sT[10])}, s2, 0x20004
    s_lshl3_add_u32 {s(sT[9])}, {s(sT[9])}, {s(sT[10])}
    s_mul_i32 {s(sT[9])}, {s(sT[9])}, {4*3072}
    s_and_b32 {s(sT[10])}, s2, 15
    s_mul_i32 {s(sT[10])}, {s(sT[10])}, 192
    s_add_u32 {s(sT[9])}, {s(sT[9])}, {s(sT[10])}
    s_add_u32 {s(sT[9])}, {s(sT[9])}, {512*3072}
    v_mul_u32_u24 v5, 5462, {v(vLane)}
    v_lshrrev_b32 v5, 16, v5
    v_mul_u32_u24 v5, 2880, v5
    v_add3_u32 v5, v5, {v(vL16)}, {s(sT[9])}
    v_add_u32 v7, {16*3072}, v5
    s_mov_b32 exec_hi, 0xffff""")
    for mat in range(2):
        for hf in range(2):
            k(f"s_add_u32 m0, {s(sStg)}, {12288 + mat*1536 + hf*768}")
            k(f"global_load_lds_dwordx4 {v([5, 7][hf])}, {s(pWg if mat == 0 else pWu, 2)}{NT}", tok="w1dma")
    k("s_mov_b32 exec_hi, -1")
k(f"s_cmp_lg_u32 {s(sWv)}, 3\ns_cbranch_scc1 Lnodma")
sDisp = k.snap()
w1_dma()
stamp("iss")
k("s_branch Lw3")
sDma = k.snap()
k.restore(sDisp)
k.label("Lnodma")
k(f"s_cmp_ge_u32 s2, {NCG}\ns_cbranch_scc1 Lh012")
vLa, vLb, vLr2, vM, vDI, vHc = 8, 9, 10, 12, 16, 28
vTa = 32
vX, vS, vSq, vXr = 100, 124, 126, 240
def idle_and_ln1():
    k(f"""
    v_and_b32 {v(vQ)}, 3, v0
    v_lshrrev_b32 {v(vCgl)}, 2, v0
    v_mul_u32_u24 v5, 6, {v(vCgl)}
    v_and_b32 v5, -4, v5
    v_mul_u32_u24 {v(vXo)}, {XSP}, {v(vQ)}
    v_add_u32 {v(vXo)}, {XS}, {v(vXo)}
    v_min_u32 {v(vXo3)}, 120, v5
    v_add_u32 {v(vXo3)}, 1152, {v(vXo3)}
    v_add_u32 {v(vXo3)}, {v(vXo3)}, {v(vXo)}
    v_add_u32 {v(vXo)}, {v(vXo)}, v5
    v_add_u32 v158, 1280, {v(vXo)}
    v_add_u32 v159, 1280, {v(vXo3)}
    s_and_b32 {s(sT[4])}, s2, 7
    s_lshr_b32 {s(sMt)}, {s(sT[4])}, 1
    s_and_b32 {s(sT[10])}, {s(sT[5])}, 3
    s_lshl2_add_u32 {s(sMt)}, {s(sMt)}, {s(sT[10])}
    s_and_b32 {s(sHb)}, {s(sT[4])}, 1
    s_lshr_b32 {s(sN2)}, {s(sT[5])}, 2
    s_lshl3_add_u32 {s(sNt)}, {s(sHb)}, {s(sN2)}
    v_and_b32 v5, 1, {v(vCgl)}
    v_mul_u32_u24 v5, 0x0202, v5
    v_lshlrev_b32 v5, 16, v5
    v_add_u32 {v(vSel)}, 0x01000c0c, v5
    v_add_u32 {v(vSel+1)}, 0x03020c0c, v5
    v_add_u32 {v(vSel+2)}, 0x05040c0c, v5
    v_mov_b32 v5, 0x0c0c0c0c
    v_cmp_gt_u32 vcc, 21, {v(vCgl)}
    v_mul_u32_u24 {v(vRo)}, {CGS}, {v(vCgl)}
    v_lshl_add_u32 {v(vRo)}, {v(vQ)}, 4, {v(vRo)}
    v_cndmask_b32 {v(vSel3)}, v5, {v(vSel)}, vcc
    v_cndmask_b32 {v(vSel3+1)}, v5, {v(vSel+1)}, vcc
    v_cndmask_b32 {v(vSel3+2)}, v5, {v(vSel+2)}, vcc
    v_cmp_eq_u32 vcc, 21, {v(vCgl)}
    v_mov_b32 v5, 0x07060c0c
    v_mov_b32 v6, {OOB}
    v_cndmask_b32 {v(vSel3)}, {v(vSel3)}, v5, vcc
    v_cmp_gt_u32 vcc, 22, {v(vCgl)}
    v_and_b32 v5, 1, {v(vG)}
    v_lshrrev_b32 {v(vLw)}, 1, {v(vG)}
    v_cndmask_b32 {v(vRo3)}, v6, {v(vRo)}, vcc
    v_cmp_ne_u32 vcc, 0, {v(vLane)}
    v_lshl_add_u32 {v(vLw)}, v5, 1, {v(vLw)}
    v_lshlrev_b32 {v(vLw)}, 2, {v(vLw)}
    v_cndmask_b32 {v(vFl0)}, 0, v6, vcc
    v_lshlrev_b32 {v(vLr)}, 6, {v(vQ)}
    v_add_u32 {v(vLr)}, {LNS}, {v(vLr)}
    s_lshl_b32 {s(sT[4])}, {s(sWv)}, 4
    v_add3_u32 {v(vLw)}, {v(vLw)}, {v(vLr)}, {s(sT[4])}
    """)
    vLa, vLb, vLr2, vM, vDI, vHc = 8, 9, 10, 12, 16, 28
    k(f"""
    s_mul_i32 {s(sT[9])}, {s(sT[7])}, {TKCH}
    s_mul_i32 {s(sT[10])}, {s(sT[7])}, {ULCH}
    v_and_b32 v5, 3, {v(vN)}
    v_mul_u32_u24 {v(vLa)}, {CS}, v5
    v_lshrrev_b32 v5, 2, {v(vN)}
    v_lshlrev_b32 v6, 1, {v(vG)}
    v_sub_u32 v5, v5, v6
    v_add_u32 v5, 7, v5
    v_lshl_add_u32 {v(vLa)}, v5, 3, {v(vLa)}
    v_add_u32 {v(vLa)}, {s(sT[9])}, {v(vLa)}
    v_lshlrev_b32 {v(vLb)}, 5, {v(vN)}
    v_add_u32 {v(vLb)}, {s(sT[10])}, {v(vLb)}
    v_and_b32 v5, 1, {v(vG)}
    v_lshl_add_u32 {v(vLr2)}, v5, 4, {v(vLb)}
    v_lshl_add_u32 {v(vLb)}, {v(vG)}, 4, {v(vLb)}
    v_add_u32 {v(vLb)}, {UL}, {v(vLb)}
    v_cmp_gt_u32 vcc, 2, {v(vG)}
    v_mov_b32 v6, {UL+512}
    v_mov_b32 v7, {XL}
    v_cndmask_b32 v6, v7, v6, vcc
    v_add_u32 {v(vLr2)}, {v(vLr2)}, v6
    v_lshlrev_b32 v5, 3, v5
    v_sub_u32 v5, {v(vN)}, v5
    v_and_b32 v6, 1, v5
    v_lshlrev_b32 v6, 4, v6
    v_mov_b32 v7, 0xffff
    v_lshlrev_b32 v6, v6, v7
    v_ashrrev_i32 v5, 1, v5
    """)
    for i in range(4):
        k(f"v_cmp_eq_u32 vcc, {i}, v5\nv_cndmask_b32 {v(vM+i)}, 0, v6, vcc")
    k(f"""v_lshrrev_b32 v5, 2, {v(vLane)}
    v_mul_u32_u24 v5, 163840, v5
    v_and_b32 v6, 3, {v(vLane)}
    s_bfe_u32 {s(sT[9])}, {s(sT[6])}, 0x10002
    s_lshl_b32 {s(sT[9])}, {s(sT[9])}, 1
    s_lshl_b32 {s(sT[10])}, {s(sT[6])}, 6
    s_cmp_lt_u32 {s(sT[6])}, 640
    s_cselect_b32 {s(sT[10])}, {s(sT[10])}, {OOB}
    v_xor_b32 v7, {s(sT[9])}, v6
    v_lshl_add_u32 v7, v7, 4, v5
    v_add_u32 {v(vHc)}, {s(sT[10])}, v7
    s_lshl_b32 {s(sT[9])}, {s(sT[7])}, 12
    s_add_u32 {s(sT[9])}, {s(sT[9])}, 122880
    v_add_u32 v29, {s(sT[9])}, {v(vL16)}""")
    vTa = 32
    k(f"""s_add_u32 {s(sTag)}, {s(sTag)}, 0x9E3779B1
    v_mov_b32 {v(vTagv)}, {s(sTag)}
    s_lshl_b32 {s(sT[4])}, s2, 6
    s_add_u32 {s(sT[5])}, {s(sT[4])}, {XB}""")
    vX, vS, vSq, vXr = 100, 124, 126, 240
    for rho in range(4): k(f"v_mov_b32 {v(vXr+4*rho+3)}, {s(sTag)}")
    stamp("ln0")
    k.wait_tok("x")
    k("s_barrier")
    for rho in range(4):
        for e in range(2):
            o = 96*rho if rho < 3 else 0
            k(f"ds_read2_b32 {v(vRaw + 4*rho + 2*e, 2)}, {v([[vXo, 158], [vXo3, 159]][rho == 3][e])} offset0:{o} offset1:{o+1}")
    for rho in range(4):
        for c in range(3):
            for e in range(2):
                r = vRaw + 4*rho + 2*e
                k(f"v_perm_b32 {v(vX + 6*rho + 2*c + e)}, {v(r+1)}, {v(r)}, {v((vSel if rho < 3 else vSel3) + c)}")
        for c in range(3):
            k(f"v_cvt_pk_bf16_f32 {v(vXr+4*rho+c)}, {v(vX+6*rho+2*c)}, {v(vX+6*rho+2*c+1)}")
    for i in range(12):
        x = v(vX + 2*i, 2)
        if i == 0: k(f"v_pk_mul_f32 {v(vSq,2)}, {x}, {x}")
        else:
            k(f"v_pk_fma_f32 {v(vSq,2)}, {x}, {x}, {v(vSq,2)}")
            k(f"v_pk_add_f32 {v(vS,2)}, {v(vX,2) if i == 1 else v(vS,2)}, {x}")
    stamp("lnx")
    k(f"""
    v_permlane32_swap_b32 {v(vSq)}, {v(vSq+1)}
    v_permlane32_swap_b32 {v(vS)}, {v(vS+1)}
    v_add_f32 {v(vSq)}, {v(vSq)}, {v(vSq+1)}
    v_add_f32 {v(vS)}, {v(vS)}, {v(vS+1)}
    v_permlane16_swap_b32 {v(vS)}, {v(vSq)}
    v_add_f32 {v(vS)}, {v(vS)}, {v(vSq)}
    v_add_f32_dpp {v(vS)}, {v(vS)}, {v(vS)} row_ror:8 row_mask:0xf bank_mask:0xf
    v_add_f32_dpp {v(vS)}, {v(vS)}, {v(vS)} row_ror:4 row_mask:0xf bank_mask:0xf
    ds_write_b32 {v(vLw)}, {v(vS)}
    """)
    k("s_waitcnt lgkmcnt(0)\ns_barrier")
    stamp("lnb")
def x_stores():
    for rho in range(4):
        k(f"buffer_store_dwordx4 {v(vXr+4*rho,4)}, {v(vRo if rho < 3 else vRo3)}, {ws}, {s(sT[5])} offen sc1")
        if rho < 3: k(f"s_add_u32 {s(sT[5])}, {s(sT[5])}, {64*CGS}")
    stamp("xst")
def di_setup():
    k(f"v_cmp_gt_u32 vcc, 2, {v(vG)}\nv_lshl_or_b32 {v(vDs)}, {v(vDs)}, 16, {v(vDs)}\nv_mov_b32 v7, 0x3f803f80")
    for c in range(1):
        k(f"v_readlane_b32 {s(sT[4])}, {v(vDs)}, {c}\nv_mov_b32 v5, {s(sT[4])}\nv_cndmask_b32 v5, v7, v5, vcc")
        for i in range(4): k(f"v_and_b32 {v(vDI+4*c+i)}, {v(vM+i)}, v5")
def w1_flag_issue(va, vd):
    k(f"""v_min_u32 {v(va)}, 19, {v(vLane)}
    s_lshr_b32 {s(sT[9])}, {s(sNt)}, 2
    s_mul_i32 {s(sT[9])}, {s(sT[9])}, 2560
    s_add_u32 {s(sT[9])}, {s(sT[9])}, {FW1}
    s_lshl_b32 {s(sT[10])}, {s(sNt)}, 9
    s_add_u32 {s(sT[10])}, {s(sT[10])}, {FW1X - 16*128}
    v_cmp_gt_u32 vcc, 16, {v(vLane)}
    v_lshl_add_u32 {v(vd)}, {v(va)}, 7, {s(sT[9])}
    v_lshl_add_u32 {v(va)}, {v(va)}, 7, {s(sT[10])}
    v_cndmask_b32 {v(va)}, {v(va)}, {v(vd)}, vcc""")
    b = sT[9]
    k(f"""s_lshl2_add_u32 {s(b)}, {s(sNt)}, {s(sWv)}
    s_mul_i32 {s(b)}, {s(b)}, {20*3072}
    s_add_u32 {s(b)}, {s(b)}, {W1P}""")
    ld = [f"buffer_load_dwordx4 {v(vd,4)}, {v(va)}, {ws}, 0 offen sc1"]
    k(ld)
    for e in range(4):
        k(f"s_xor_b32 {s(sW1[e])}, {s(sWv)}, {e}\ns_mul_i32 {s(sW1[e])}, {s(sW1[e])}, 3072\ns_add_u32 {s(sW1[e])}, {s(sW1[e])}, {s(b)}")
    return ld
def w1_ready(ld, vd, vt):
    check(ld, [vd, vd+1, vd+2, vd+3], vt)
def w1_loads():
    L = []
    for kk in range(20):
        e = kk & 3
        for t in range(3):
            x = [f"s_add_u32 {s(sW1[e])}, {s(sW1[e])}, {4*3072}"] if (t == 0 and kk >= 4) else []
            L.append(x + [f"buffer_load_dwordx4 {ar(12*kk+4*t,4)}, {v(vL16)}, {ws}, {s(sW1[e])} offen offset:{1024*t} sc1"])
    return L

pre_kg()
idle_and_ln1()
vDt, vRdA, vAcc = 78, 82, 84
vA, vC, vZ1, vZ2, vZ4, vZ8, vZ16, vZ256 = 100, 102, 104, 106, 108, 110, 112, 114
vE, vPkd, vF = 116, 140, 192
k(f"""
v_readfirstlane_b32 {s(sT[4])}, {v(vLdt)}
s_lshl_b32 {s(sT[4])}, {s(sT[4])}, 16
v_mov_b32 {v(vDt)}, {LOG2E}
v_mul_f32 {v(vLdt)}, {s(sT[4])}, {v(vDt)}
v_exp_f32 {v(vLdt)}, {v(vLdt)}
s_mul_i32 {s(sT[4])}, {s(sWv)}, {TABW}
s_add_u32 m0, {s(sT[4])}, {TAB - TOF}
s_add_u32 {s(sT[4])}, {s(sT[4])}, {TAB}
v_and_b32 v5, 31, {v(vLane)}
v_cvt_pk_bf16_f32 {v(vLdt)}, {v(vLdt)}, {v(vLdt)}
v_mul_u32_u24 {v(vRdA)}, {TROW}, v5
v_and_b32 {v(vDt+2)}, 0xffff0000, {v(vLdt)}
v_lshrrev_b32 v5, 5, {v(vLane)}
v_lshl_add_u32 {v(vRdA)}, v5, 4, {v(vRdA)}
v_add_u32 {v(vRdA)}, {s(sT[4])}, {v(vRdA)}
v_mov_b32 {v(vDt+1)}, 0.15915494
v_mov_b32 v5, 0x3f80
""")
k(f"ds_write_addtid_b32 v5 offset:{TOF}")
k(f"s_mul_i32 {s(sT[9])}, {s(sWv)}, {KCCH}\ns_add_u32 {s(sT[9])}, {s(sT[9])}, {KC}")
for i in range(24):
    k(f"v_add_u32_sdwa {v(vTa+i)}, {s(sT[9])}, {v(vTabl + i//2)} dst_sel:DWORD dst_unused:UNUSED_PAD src0_sel:DWORD src1_sel:WORD_{i & 1}")
def put(src, row):
    return [f"v_cvt_pk_bf16_f32 {v(vPkd+row-1)}, {v(src)}, {'-' if row >= 32 else ''}{v(src+1)}"]
def kg_mm(t):
    return [f"v_mfma_f32_32x32x16_bf16 {v(vAcc,16)}, {v(vF+8*kk,4)}, {v(vF+8*kk+4,4)}, {'0' if (t == 0 and kk == 0) else v(vAcc,16)}" for kk in range(8)]
for t in range(3):
    P = vPar + 6*t
    k(f"""v_pk_mul_f32 {v(vA,2)}, {v(P,2)}, {v(vDt+2,2)} op_sel_hi:[1,0]
    v_pk_mul_f32 {v(P+2,2)}, {v(P+2,2)}, {v(vDt+2,2)} op_sel_hi:[1,0]
    v_pk_mul_f32 {v(vA,2)}, {v(vA,2)}, {v(vDt,2)}""")
    cm = cmul(vC, P+4, P+2)
    k([cm[0], f"v_fract_f32 {v(vA+1)}, {v(vA+1)}", f"v_exp_f32 {v(vA)}, {v(vA)}", f"v_cos_f32 {v(vZ1)}, {v(vA+1)}", f"v_sin_f32 {v(vZ1+1)}, {v(vA+1)}", cm[1],
       f"v_pk_mul_f32 {v(vZ1,2)}, {v(vZ1,2)}, {v(vA,2)} op_sel_hi:[1,0]"])
    ev = [vE, vE+2]; od = [vE+4, vE+6]; h0 = [vE+8, vE+10]; hb = [vE+12, vE+14]; hx = [vE+16, vE+18, vE+20]
    cH = put(vC, 32); prev = vC
    for j in range(1, 8):
        d = h0[j % 2]; cH += cmul(d, prev, vZ1) + put(d, 32+j); prev = d
    sq = cmul(vZ2, vZ1, vZ1) + cmul(vZ4, vZ2, vZ2) + cmul(vZ8, vZ4, vZ4) + cmul(vZ16, vZ8, vZ8)
    k(zipper(sq, cH[:8])); cH = cH[8:]
    cE = put(vZ16, 2); prev = vZ16; cut = None
    for j in range(4, 32, 2):
        d = ev[(j//2) % 2]; cE += cmul(d, prev, vZ16) + put(d, j); prev = d
        if j == 16: cE += cmul(vZ256, d, d); cut = len(cE)
    cO = put(vZ8, 1); prev = vZ8
    for j in range(3, 32, 2):
        d = od[(j//2) % 2]; cO += cmul(d, prev, vZ16) + put(d, j); prev = d
    cB = []; prev = vC
    rows = {1: 8, 2: 12, 3: 14, 4: 16, 5: 17, 6: 18, 7: 19, 8: 20}
    for j in range(1, 9):
        d = hb[j % 2]; cB += cmul(d, prev, vZ256) + put(d, 32+rows[j]); prev = d
        if j == 1:
            cB += cmul(hx[0], d, vZ2) + put(hx[0], 32+9) + cmul(hx[1], d, vZ4) + put(hx[1], 32+10) + cmul(hx[2], hx[0], vZ4) + put(hx[2], 32+11)
        elif j in (2, 3):
            cB += cmul(hx[0], d, vZ4) + put(hx[0], 32+rows[j]+1)
    k(zipper(cE[:cut], cH + cO[:10])); cO = cO[10:]
    k(zipper(cB, cO, cE[cut:]))
    wr = [f"ds_write_addtid_b32 {v(vPkd+r-1)} offset:{TOF + r*TROW}" for r in range(1, 53)]
    if t == 2: w1ld = w1_flag_issue(76, 56)
    if t == 0: x_stores(); k(wr)
    else: weave2(k, kg_mm(t-1), wr, [], slots=6)
    for kk in range(8):
        k(f"ds_read_b128 {v(vF+8*kk,4)}, {v(vRdA)} offset:{32*TROW + 32*kk}")
        k(f"ds_read_b128 {v(vF+8*kk+4,4)}, {v(vRdA)} offset:{32*kk}")
    stamp(f"kt{t}")
k(kg_mm(2))
di_setup()
k(f"""s_mul_i32 {s(sT[4])}, {s(sWv)}, {KCCH}
s_add_u32 {s(sT[4])}, {s(sT[4])}, {KC}
v_lshl_add_u32 v5, {v(vLane)}, 2, {s(sT[4])}
s_mul_i32 {s(sT[4])}, {s(sWv)}, {TKCH}
v_add_u32 v7, {s(sT[4])}, {v(vL16)}
v_mov_b32 v6, 0
ds_write_b32 v5, v6 offset:3072""")
for r in range(12): k(f"ds_write_b32 v5, {v(vAcc+r)} offset:{256*r}")
stamp("kg1")
vG0, vO = 100, 128
gi = {}
for rho in range(4):
    for tp in TAPS[rho]:
        gi[(rho, tp)] = len(gi)
        k(f"ds_read_b32 {v(vG0+gi[(rho,tp)])}, {v(vTa+gi[(rho,tp)])}")
w1_ready(w1ld, 56, 6)
stamp("wf1")
for rho in range(4):
    g = lambda tap: v(vG0 + gi[(rho, tapsrc(rho, tap))])
    for sg in range(4):
        o = vO + 16*rho + 4*sg
        k(f"""v_cvt_pk_bf16_f32 {v(o)}, {g(sg)}, {g(sg-1)}
        v_cvt_pk_bf16_f32 {v(o+1)}, {g(sg-2)}, {g(sg-3)}
        v_cvt_pk_bf16_f32 {v(o+2)}, {g(sg+4)}, {g(sg+3)}
        v_cvt_pk_bf16_f32 {v(o+3)}, {g(sg+2)}, {g(sg+1)}""")
    for sg in range(4):
        k(f"ds_write_b128 v7, {v(vO+16*rho+4*sg,4)} offset:{TK + sg*CS + 32 + 1024*rho}")
    for g_ in w1_loads()[NW1PRE*rho//4:NW1PRE*(rho+1)//4]: k(g_)
stamp("tp1")
k("s_waitcnt lgkmcnt(0)\ns_barrier")
stamp("cv0")

vCA, vFr, vRs, vPk = 32, 72, 200, 236
PART = 122880
vPt = 29
vFa, vFd = 68, 248
def hflag_ld(stage): return [f"buffer_load_dwordx4 {v(vFd,4)}, {v(vFa)}, {ws}, 0 offen offset:{16*stage} sc1"]
HCHK = [vFd, vFd+1, vFd+2]
def hflag_setup():
    return [f"s_mul_i32 {s(sT[11])}, {s(sWv)}, 53", f"v_min_u32 {v(vFa)}, 55, {v(vLane)}", f"v_add_u32 {v(vFa)}, {s(sT[11])}, {v(vFa)}", f"v_min_u32 {v(vFa)}, {NCG-1}, {v(vFa)}",
            f"v_lshlrev_b32 {v(vFa)}, 7, {v(vFa)}", f"v_add_u32 {v(vFa)}, {FH}, {v(vFa)}"]
def tile_off(i): return (i & 1)*8*163840 + (i >> 1)*40960
def h_out(stage, tok):
    A = vCA + 16*stage
    L = [f"ds_read_b128 {v(vRs+4*j,4)}, {v(vPt)} offset:{12288*stage + 1024*j}" for j in range(4)]
    for pr in range(2):
        p = vPk + 4*pr; a_ = A + 8*pr
        L += [f"v_add_f32 {v(a_+j)}, {v(a_+j)}, {v(vRs+8*pr+j)}" for j in range(8)]
        L += [f"v_cvt_pk_bf16_f32 {v(p)}, {v(a_)}, {v(a_+1)}", f"v_cvt_pk_bf16_f32 {v(p+2)}, {v(a_+4)}, {v(a_+5)}",
              f"v_cvt_pk_bf16_f32 {v(p+1)}, {v(a_+2)}, {v(a_+3)}", f"v_cvt_pk_bf16_f32 {v(p+3)}, {v(a_+6)}, {v(a_+7)}",
              f"s_mov_b32 {s(sT[4])}, {HT + 40960*(2*stage + pr)}",
              (f"buffer_store_dwordx4 {v(p,4)}, {v(vHc)}, {ws}, {s(sT[4])} offen sc1", tok)]
    return L
def bar(): k("s_waitcnt lgkmcnt(0)\ns_barrier")
def conv_code(main):
    steps = []; nb = 0; touched = set()
    for stage in range(2):
        tiles = list(range(4*stage, 4*stage+4)); pm = tiles[-1]
        for c, rs in ([(0, range(6))] if main else [(0, (6, 7)), (1, (6, 7)), (2, (6, 7))]):
            accb = vCA + 16*stage if main else vCA + 16*((3*stage + c) % 2)
            for r in rs:
                base = vFr + 64*(nb % 2); nb += 1
                A = lambda p: base + 4*p
                B = lambda q: base + 32 + 4*q
                order = sorted([(max(p, i-p), i, p) for i in tiles for p in range(i+1)])
                rd = []; seen = set(); mm = []
                for _, i, p in order:
                    if ("b", i-p) not in seen:
                        seen.add(("b", i-p)); rd.append(f"ds_read_b128 {v(B(i-p),4)}, {v(vLb)} offset:{c*ULCH + 512 + 64*(8*(i-p) - r) - 32}")
                    if ("a", p) not in seen:
                        seen.add(("a", p)); dl = 8*p + r
                        rd.append(f"ds_read_b64 {v(A(p),2)}, {v(vLa)} offset:{TK + c*TKCH + 64*dl + 8}")
                        rd.append(f"ds_read_b64 {v(A(p)+2,2)}, {v(vLa)} offset:{TK + c*TKCH + 64*dl}")
                    z = None if (main or (c, i) in touched) else "0"; touched.add((c, i))
                    mm.append(mf16(v(accb + 4*(i % 4),4), v(A(p),4), v(B(i-p),4), z))
                wr = [] if (main or r == 6) else [f"ds_write_b128 {v(vPt)}, {v(accb+4*j,4)} offset:{12288*stage + 4096*c + 1024*j}" for j in range(4)]
                steps.append((rd, mm, wr))
    fill = []
    if main:
        k(f"s_lshl_b32 {s(sFl)}, s2, 5\ns_add_u32 {s(sFl)}, {s(sFl)}, {s(sWv)}\ns_lshl_b32 {s(sFl)}, {s(sFl)}, 2\ns_add_u32 {s(sFl)}, {s(sFl)}, {FH}")
        for i in range(8): k(f"ds_read_b128 {v(vRs+4*i,4)}, {v(vLr2)} offset:{512*i}")
        weave2(k, [mf16(v(vCA+4*i,4), v(vDI,4), v(vRs+4*i,4), "0") for i in range(8)], steps[0][0], [], nxt=steps[0][1][0])
    else:
        k(f"s_mov_b32 {s(sFl)}, {OOB}")
        k(steps[0][0])
    W = w1_loads(); sent = NW1PRE; done = 0
    fill = hflag_setup(); pend = []
    for n_, (rd, mm, wr) in enumerate(steps):
        nxt = steps[n_+1] if n_+1 < len(steps) else ([], [None], [])
        done += len(mm)
        want = NW1PRE + (NW1CONV - NW1PRE) * done // 216
        wl = []
        while sent < want: wl.append(W[sent]); sent += 1
        if n_ == 6:
            stamp("cvA")
            cut = 10
            weave2(k, mm[:cut], nxt[0][:8], pend, nxt=mm[cut], start=3); k(pend); pend = []
            bar()
            if main: fill += h_out(0, "hA")
            mm = mm[cut:]; nrd = nxt[0][8:]
        else:
            nrd = nxt[0]
        if n_ == opt("fA", 10) and main: fill += flag("hA", sFl)
        if n_ == 11: fill += hflag_ld(0)
        parts = max(1, len(wl)); m0_ = 0; r0_ = 0
        for j in range(parts):
            m1 = len(mm)*(j+1)//parts; r1 = len(nrd)*(j+1)//parts
            if j == 0 and pend:
                fill[:0] = pend; pend = []; st_ = 3
            else: st_ = 0
            assert not any(isinstance(x, str) and x.startswith("buffer_load_dwordx4 a[") for x in fill)
            if wl: fill[:0] = wl[j]
            weave2(k, mm[m0_:m1], nrd[r0_:r1], fill, nxt=mm[m1] if m1 < len(mm) else nxt[1][0], start=st_, minfill=1 if wl else 0)
            m0_, r0_ = m1, r1
        if wr: assert not any(isinstance(x, str) and x.startswith("ds_write") for x in fill)
        pend = list(wr)
    k(fill); k(pend)
    bar()
    stamp("cv1")
    if main: k(h_out(1, "hB"))
conv_code(True)
k("s_branch Lconvd")
sConvMain = k.snap()

k.restore(sDisp)
k.label("Lh012")
srd_setup()
idle_and_ln1()
k("s_sleep 16")
x_stores()
k(f"s_branch Lhelp")
sHelp0 = k.snap()
k.restore(sDma)
k.label("Lw3")
srd_setup()
idle_and_ln1()

vP, vT8 = 100, 116
for w in range(4): k(f"ds_read_b128 {v(vP+4*w,4)}, {v(vLr)} offset:{16*w}")
k(f"""v_mov_b32 {v(vT8+6)}, {INV640}
v_cmp_gt_u32 vcc, 4, {v(vLane)}
v_mov_b32 v6, {OOB}
s_lshl_b32 {s(sT[4])}, s2, 6
s_add_u32 {s(sT[4])}, {s(sT[4])}, {STP}
v_cndmask_b32 v6, v6, {v(vL16)}, vcc
v_mov_b32 {v(vT8+5)}, {s(sTag)}
v_pk_add_f32 {v(vP,2)}, {v(vP,2)}, {v(vP+4,2)}
v_pk_add_f32 {v(vP+2,2)}, {v(vP+2,2)}, {v(vP+6,2)}
v_pk_add_f32 {v(vP+8,2)}, {v(vP+8,2)}, {v(vP+12,2)}
v_pk_add_f32 {v(vP+10,2)}, {v(vP+10,2)}, {v(vP+14,2)}
v_pk_add_f32 {v(vP,2)}, {v(vP,2)}, {v(vP+8,2)}
v_pk_add_f32 {v(vP+2,2)}, {v(vP+2,2)}, {v(vP+10,2)}
""")
S_, Q_, t_ = vP, vP+2, vT8
k(f"""v_pk_mul_f32 {v(S_,2)}, {v(S_,2)}, {v(t_+6,2)} op_sel_hi:[1,0]
v_pk_mul_f32 {v(Q_,2)}, {v(Q_,2)}, {v(t_+6,2)} op_sel_hi:[1,0]
v_pk_fma_f32 {v(Q_,2)}, {v(S_,2)}, {v(S_,2)}, {v(Q_,2)} neg_lo:[1,0,0] neg_hi:[1,0,0]
v_cvt_pk_bf16_f32 {v(t_+4)}, {v(S_)}, {v(S_+1)}
v_max_f32 {v(Q_)}, 0, {v(Q_)}
v_max_f32 {v(Q_+1)}, 0, {v(Q_+1)}
v_cvt_pk_bf16_f32 {v(t_+1)}, {v(Q_)}, {v(Q_+1)}
v_lshlrev_b32 {v(Q_)}, 16, {v(t_+1)}
v_and_b32 {v(Q_+1)}, 0xffff0000, {v(t_+1)}
v_add_f32 {v(Q_)}, 0x3727c5ac, {v(Q_)}
v_add_f32 {v(Q_+1)}, 0x3727c5ac, {v(Q_+1)}
v_cvt_pk_bf16_f32 {v(t_+1)}, {v(Q_)}, {v(Q_+1)}
v_lshlrev_b32 {v(Q_)}, 16, {v(t_+1)}
v_and_b32 {v(Q_+1)}, 0xffff0000, {v(t_+1)}
v_sqrt_f32 {v(Q_)}, {v(Q_)}
v_sqrt_f32 {v(Q_+1)}, {v(Q_+1)}
v_cvt_pk_bf16_f32 {v(t_+1)}, {v(Q_)}, {v(Q_+1)}
v_lshlrev_b32 {v(Q_)}, 16, {v(t_+1)}
v_and_b32 {v(Q_+1)}, 0xffff0000, {v(t_+1)}
v_rcp_f32 {v(t_+2)}, {v(Q_)}
v_rcp_f32 {v(t_+3)}, {v(Q_+1)}
s_nop 0
buffer_store_dwordx4 {v(t_+2,4)}, v6, {ws}, {s(sT[4])} offen sc1
""")
stamp("ln1")

vPa, vPb, vPst, vPd = 80, 81, 82, 128
k(f"""
v_bfe_u32 v5, {v(vLane)}, 1, 1
v_mul_u32_u24 {v(vPa)}, 6144, v5
v_bfe_u32 v5, {v(vLane)}, 2, 2
v_mul_u32_u24 v5, 768, v5
v_add3_u32 {v(vPa)}, {v(vPa)}, v5, {s(sStg)}
v_mad_u32_u24 {v(vPa)}, {v(vG)}, 48, {v(vPa)}
v_and_b32 v5, 1, {v(vLane)}
v_lshl_add_u32 {v(vPb)}, v5, 3, {v(vPa)}
v_lshl_add_u32 {v(vPa)}, v5, 4, {v(vPa)}
v_mul_u32_u24 v6, {20*3072}, {v(vG)}
v_lshl_add_u32 {v(vPst)}, {v(vN)}, 4, v6
s_and_b32 {s(sT[9])}, {s(sU)}, 3
s_lshr_b32 {s(sT[10])}, {s(sU)}, 4
s_bfe_u32 {s(sT[8])}, {s(sU)}, 0x20002
s_mul_i32 {s(sT[11])}, {s(sT[9])}, 20
s_add_u32 {s(sT[11])}, {s(sT[11])}, {s(sT[10])}
s_lshl_b32 {s(sT[11])}, {s(sT[11])}, 7
s_lshl2_add_u32 {s(sT[11])}, {s(sT[8])}, {s(sT[11])}
s_add_u32 {s(sT[11])}, {s(sT[11])}, {FW1}
s_mul_i32 {s(sT[9])}, {s(sT[9])}, 320
s_add_u32 {s(sT[9])}, {s(sT[9])}, {s(sT[10])}
s_mul_i32 {s(sT[9])}, {s(sT[9])}, 3072
s_lshl_b32 {s(sT[8])}, {s(sT[8])}, 8
s_add_u32 {s(sT[9])}, {s(sT[9])}, {s(sT[8])}
s_add_u32 {s(sT[9])}, {s(sT[9])}, {W1P}
""")
k(f"""
v_bfe_u32 v5, {v(vLane)}, 1, 1
v_mul_u32_u24 v78, 1536, v5
v_bfe_u32 v5, {v(vLane)}, 2, 2
v_mul_u32_u24 v5, 192, v5
v_add3_u32 v78, v78, v5, {s(sStg)}
v_mad_u32_u24 v78, {v(vG)}, 48, v78
v_and_b32 v5, 1, {v(vLane)}
v_lshl_add_u32 v79, v5, 3, v78
v_lshl_add_u32 v78, v5, 4, v78
s_and_b32 {s(sT[12])}, s2, 15
s_lshr_b32 {s(sT[10])}, s2, 6
s_bfe_u32 {s(sT[8])}, s2, 0x20004
s_lshl2_add_u32 {s(sT[13])}, {s(sT[12])}, {s(sT[10])}
s_lshl_b32 {s(sT[13])}, {s(sT[13])}, 7
s_lshl2_add_u32 {s(sT[13])}, {s(sT[8])}, {s(sT[13])}
s_add_u32 {s(sT[13])}, {s(sT[13])}, {FW1X}
s_mul_i32 {s(sT[12])}, {s(sT[12])}, 80
s_add_u32 {s(sT[12])}, {s(sT[12])}, {s(sT[10])}
s_mul_i32 {s(sT[12])}, {s(sT[12])}, 3072
s_lshl_b32 {s(sT[8])}, {s(sT[8])}, 8
s_add_u32 {s(sT[12])}, {s(sT[12])}, {s(sT[8])}
s_add_u32 {s(sT[12])}, {s(sT[12])}, {W1P + 16*3072}
""")
k.wait_tok("w1dma")
stamp("pk0")
x_stores()
for wv in range(4):
    for t in range(3):
        for hf in range(2):
            k(f"ds_read_b64_tr_b16 {v(vPd+12*wv+4*t+2*hf,2)}, {v(vPa if t < 2 else vPb)} offset:{3072*hf + 192*wv + (8*t if t < 2 else 32)}")
for t in range(3):
    for hf in range(2):
        k(f"ds_read_b64_tr_b16 {v(vPd+48+4*t+2*hf,2)}, {v(78 if t < 2 else 79)} offset:{12288 + 768*hf + (8*t if t < 2 else 32)}")
for wv in range(0 if NOPACK else 4):
    for t in range(3):
        k(f"buffer_store_dwordx4 {v(vPd+12*wv+4*t,4)}, {v(vPst)}, {ws}, {s(sT[9])} offen offset:{1024*t} sc1", tok="w1st")
    if wv < 3: k(f"s_add_u32 {s(sT[9])}, {s(sT[9])}, {80*3072}")
for t in range(3):
    k(f"buffer_store_dwordx4 {v(vPd+48+4*t,4)}, {v(vPst)}, {ws}, {s(sT[12])} offen offset:{1024*t} sc1", tok="w1st")
stamp("pk1")
k(flag("w1st", sT[11]) + flag("w1st", sT[13]))
stamp("pkf")
k(f"s_cmp_ge_u32 s2, {NCG}\ns_cbranch_scc1 Lhelp")
sHelp = k.snap()
k(f"""v_mov_b32 v6, 0
v_mov_b32 v7, 0
v_lshlrev_b32 v5, 3, {v(vLane)}
v_lshrrev_b32 v80, 2, {v(vLane)}
v_min_u32 v80, 11, v80
v_mul_u32_u24 v80, {CS}, v80
v_and_b32 v81, 3, {v(vLane)}
v_lshl_add_u32 v80, v81, 3, v80
s_mul_i32 {s(sT[5])}, s2, {CGS}
s_add_u32 {s(sT[5])}, {s(sT[5])}, {XB}""")
vRx, vRt = 84, 148
def plane(dst, base):
    L = []
    for rho in range(16):
        if rho % 4 == 0: L.append(f"s_add_u32 {s(sT[4])}, {base}, {1024*rho}" if isinstance(base, str) else f"s_mov_b32 {s(sT[4])}, {base + 1024*rho}")
        L.append(f"buffer_load_dwordx4 {v(dst+4*rho,4)}, {v(vL16)}, {ws}, {s(sT[4])} offen offset:{1024*(rho % 4)} sc1")
    return L
ldx = plane(vRx, s(sT[5])); lds_ = plane(vRt, STP)
for c in range(3): k(f"ds_write_b64 v5, v[6:7] offset:{UL + c*ULCH}")
k(f"ds_write_b64 v80, v[6:7] offset:{TK}")
k(lds_); k(ldx)
check(ldx, [vRx + 4*r + 3 for r in range(16)], 5)
stamp("rx1")
k(f"s_mov_b32 m0, {UL}")
for rho in range(16):
    for c in range(3): k(f"ds_write_addtid_b32 {v(vRx+4*rho+c)} offset:{XL - UL + c*ULCH + 256*rho}")
check(lds_, [vRt + 4*r + 3 for r in range(16)], 5)
stamp("rs1")
w1ld3 = w1_flag_issue(76, 56)

vW = 212
for r4 in range(4):
    ch = []
    for j in range(4):
        rho = 4*r4 + j; X = vRx + 4*rho; T = vRt + 4*rho; w_ = vW + 8*j
        L = [f"v_and_b32 {v(T+3)}, 0xffff0000, {v(T+2)}", f"v_lshlrev_b32 {v(T+2)}, 16, {v(T+2)}"]
        for c in range(3): L += [f"v_lshlrev_b32 {v(w_+2*c)}, 16, {v(X+c)}", f"v_and_b32 {v(w_+2*c+1)}, 0xffff0000, {v(X+c)}"]
        L += [f"v_pk_mul_f32 {v(T+2,2)}, {v(T+2,2)}, {v(T,2)}"]
        for c in range(3): L += [f"v_pk_fma_f32 {v(w_+2*c,2)}, {v(w_+2*c,2)}, {v(T,2)}, {v(T+2,2)} neg_lo:[0,0,1] neg_hi:[0,0,1]"]
        for c in range(3): L += [f"v_cvt_pk_bf16_f32 {v(X+c)}, {v(w_+2*c)}, {v(w_+2*c+1)}"]
        ch.append(L)
    k(zipper(*ch))
    for j in range(4):
        rho = 4*r4 + j
        for c in range(3): k(f"ds_write_addtid_b32 {v(vRx+4*rho+c)} offset:{512 + c*ULCH + 256*rho}")
    if r4 == 1: w1_ready(w1ld3, 56, 5); stamp("wf1")
    if r4 >= 2:
        for g_ in w1_loads()[NW1PRE*(r4-2)//2:NW1PRE*(r4-1)//2]: k(g_)
stamp("tp1")
k("s_waitcnt lgkmcnt(0)\ns_barrier")
stamp("cv0")
conv_code(False)
k("s_branch Lconvd")
sConv3 = k.snap()

k.restore(sHelp)
k.label("Lhelp")
k.merge(sHelp0)
k(f"""
s_add_u32 {s(sT[12])}, {s(sHw)}, 168
s_cmp_eq_u32 {s(sWv)}, 2
s_cselect_b32 {s(sT[12])}, {s(sT[12])}, 192
s_lshl2_add_u32 {s(sHw)}, {s(sHw)}, {s(sWv)}
s_mul_i32 {s(sStg)}, {s(sWv)}, 20480
v_bfe_u32 v5, {v(vLane)}, 2, 2
v_mul_u32_u24 {v(vPa)}, 1280, v5
v_and_b32 v5, 3, {v(vLane)}
v_lshl_add_u32 {v(vPa)}, v5, 3, {v(vPa)}
v_lshl_add_u32 {v(vPa)}, {v(vG)}, 5, {v(vPa)}
v_add_u32 {v(vPa)}, {s(sStg)}, {v(vPa)}""")
vW2o = 104
for j in range(10):
    k(f"""v_add_u32 v5, {4*j}, {v(vG)}
    v_mul_u32_u24 v6, 13108, v5
    v_lshrrev_b32 v6, 16, v6
    v_mul_u32_u24 v6, {48*5120 - 5120}, v6
    v_lshl_add_u32 v6, v5, 10, v6
    v_lshl_add_u32 {v(vW2o+j)}, {v(vN)}, 4, v6""")
stamp("hp1")
k("s_barrier")
def w2_dma(su, off):
    k(f"s_mul_i32 {s(sT[9])}, {s(su)}, 10240\nv_add_u32 v5, {s(sT[9])}, {v(vL16)}")
    for e in range(10):
        if e % 4 == 0:
            k(f"s_add_u32 m0, {s(sStg)}, {off + 1024*e}")
            if e: k("v_add_u32 v5, 4096, v5")
        k(f"global_load_lds_dwordx4 v5, {s(pWd,2)} offset:{1024*(e % 4)}{NT}", tok="w2dma")
def w2_pack(su, off, sf):
    k(f"""s_lshr_b32 {s(sT[10])}, {s(su)}, 2
    s_and_b32 {s(sT[8])}, {s(su)}, 3
    s_lshl_b32 {s(sf)}, {s(sT[10])}, 7
    s_lshl2_add_u32 {s(sf)}, {s(sT[8])}, {s(sf)}
    s_add_u32 {s(sf)}, {s(sf)}, {FW2}
    s_mul_i32 {s(sT[9])}, {s(sT[10])}, 5120
    s_lshl_b32 {s(sT[8])}, {s(sT[8])}, 8
    s_add_u32 {s(sT[9])}, {s(sT[9])}, {s(sT[8])}
    s_add_u32 {s(sT[9])}, {s(sT[9])}, {W2P}""")
    k.wait_tok("w2dma")
    for j in range(10):
        for hf in range(2):
            k(f"ds_read_b64_tr_b16 {v(vPd+4*j+2*hf,2)}, {v(vPa)} offset:{off + 5120*hf + 128*j}")
    for j in range(10):
        k(f"buffer_store_dwordx4 {v(vPd+4*j,4)}, {v(vW2o+j)}, {ws}, {s(sT[9])} offen sc1", tok="w2st")
w2_dma(sHw, 0)
k(f"s_mov_b32 {s(sT[13])}, {OOB}\ns_cmp_ge_u32 {s(sT[12])}, 192\ns_cbranch_scc1 Lw2one")
s1 = k.snap()
w2_dma(sT[12], 10240)
w2_pack(sT[12], 10240, sT[13])
k.label("Lw2one")
k.merge(s1)
w2_pack(sHw, 0, sT[4])
w1ldh = w1_flag_issue(76, 56)
k(flag("w2st", sT[4]) + flag("w2st", sT[13]))
stamp("hp2")
w1_ready(w1ldh, 56, 5)
for g_ in w1_loads()[:NW1CONV]: k(g_)
k(hflag_setup())
k(f"s_mov_b32 {s(sFl)}, {OOB}")
k("s_waitcnt lgkmcnt(0)\ns_barrier")
k(hflag_ld(0))
stamp("cv1")

k.label("Lconvd")
k.merge(sConvMain); k.merge(sConv3)
k(f"""s_mul_i32 {s(sLd)}, {s(sWv)}, 10240
s_mul_i32 {s(sHsrc)}, {s(sMt)}, 163840
s_add_u32 {s(sHsrc)}, {s(sHsrc)}, {s(sLd)}
s_add_u32 {s(sHsrc)}, {s(sHsrc)}, {HT}""")
def h_dma(c):
    L = []
    for i in range(10):
        if i % 4 == 0:
            L += [f"s_add_u32 m0, {s(sLd)}, {SLOT[c % 3] + 1024*i}", f"s_add_u32 {s(sT[4])}, {s(sHsrc)}, {40960*c + 1024*i}"]
        L.append((f"buffer_load_dwordx4 {v(vL16)}, {ws}, {s(sT[4])} offen offset:{1024*(i % 4)} sc1 lds", f"h{c}"))
    return L
check(hflag_ld(0), HCHK, 5)
stamp("hfA")
k(h_dma(0))
k(flag("hB", sFl, 16))
stamp("hfl")
for g_ in w1_loads()[NW1CONV:]: k(g_)
vOnes, vCs = 12, 184
vBa = 32
vRa = 8
vScW, vScW2, vScR, vScR2 = 28, 29, 30, 10
vAo1, vAo2 = 69, 70
vRes = 40
vAc = 72
vSt = 52
vFb = 120
vTm = 144
setup = [f"v_mov_b32 {v(vOnes+i)}, 0x3f803f80" for i in range(4)]
k(setup)
setup = f"""
v_lshrrev_b32 v5, 2, {v(vLane)}
v_lshlrev_b32 v5, 6, v5
v_and_b32 v6, 3, {v(vLane)}
v_lshl_add_u32 v5, v6, 3, v5
v_and_b32 v6, 1, {v(vG)}
v_lshl_add_u32 v7, v6, 5, v5
"""
for e in range(4):
    setup += f"""s_xor_b32 {s(sT[5])}, {s(sWv)}, {e}
    s_lshl_b32 {s(sT[5])}, {s(sT[5])}, 11
    s_add_u32 {s(sT[5])}, {s(sT[5])}, {SLOT[0]}
    v_add_u32 {v(vBa+e)}, {s(sT[5])}, v7
    v_xor_b32 {v(vBa+4+e)}, 32, {v(vBa+e)}
    """
setup += f"""
s_lshl_b32 {s(sT[5])}, {s(sHb)}, 5
v_xor_b32 v7, {s(sT[5])}, v7
s_mul_i32 {s(sT[6])}, {s(sN2)}, 5120
s_add_u32 {s(sT[6])}, {s(sT[6])}, {SLOT[0]}
s_lshl_b32 {s(sT[5])}, {s(sWv)}, 10
s_add_u32 {s(sT[5])}, {s(sT[5])}, {s(sT[6])}
v_add_u32 {v(vRa)}, {s(sT[5])}, v7
s_add_u32 {s(sT[6])}, {s(sT[6])}, 4096
v_add_u32 {v(vRa+1)}, {s(sT[6])}, v7
s_mul_i32 {s(sT[5])}, {s(sWv)}, 2560
v_add_u32 {v(vScW)}, {s(sT[5])}, {v(vL16)}
v_lshl_add_u32 {v(vScW2)}, {v(vLane)}, 2, {s(sT[5])}
v_lshrrev_b32 v5, 2, {v(vN)}
v_lshl_add_u32 v5, v5, 4, {v(vN)}
v_and_b32 v6, 3, {v(vN)}
v_lshlrev_b32 v6, 2, v6
v_lshl_add_u32 {v(vScR)}, v5, 4, v6
v_lshrrev_b32 v5, 1, {v(vG)}
v_mul_u32_u24 v6, 1280, v5
v_add_u32 {v(vScR)}, {v(vScR)}, v6
v_lshl_add_u32 {v(vScR2)}, {v(vN)}, 2, v6
v_mul_u32_u24 v5, 49152, v5
v_lshl_add_u32 v5, {v(vN)}, 4, v5
v_and_b32 v6, 1, {v(vG)}
v_lshl_add_u32 {v(vAo1)}, v6, 8, v5
v_lshl_add_u32 {v(vAo2)}, v6, 30, v5
s_lshl2_add_u32 {s(sAct)}, {s(sNt)}, {s(sWv)}
s_mul_i32 {s(sAct)}, {s(sAct)}, 768
s_mul_i32 {s(sT[5])}, {s(sMt)}, {2*49152}
s_add_u32 {s(sAct)}, {s(sAct)}, {s(sT[5])}
s_add_u32 {s(sAct)}, {s(sAct)}, {ACT}
s_lshl4_add_u32 {s(sFa)}, {s(sMt)}, {s(sNt)}
s_lshl_b32 {s(sFa)}, {s(sFa)}, 7
s_lshl2_add_u32 {s(sFa)}, {s(sWv)}, {s(sFa)}
s_add_u32 {s(sFa)}, {s(sFa)}, {FA}
"""
setup = [l.strip() for l in setup.split("\n") if l.strip()]
cs_mm = [mf16(v(vCs+4*t,4), ar(12*kk+4*t,4), v(vOnes,4), "0" if kk == 0 else None) for kk in range(20) for t in range(3)]
weave2(k, cs_mm, [], setup); k(setup)
csfix = [f"v_mov_b32 {v(vCs+12+j)}, {v(vCs+j)}" for j in range(12)] + [f"v_permlane32_swap_b32 {v(vCs+j)}, {v(vCs+12+j)}" for j in range(12)]
stamp("cs1")
def g1_reads(kk):
    b = vFb + 8*(kk % 3)
    return [f"ds_read_b64_tr_b16 {v(b+4*a+2*hf,2)}, {v(vBa+4*a+(kk&3))} offset:{(kk & ~3)*2048 + 1024*hf}" for a in range(2) for hf in range(2)]
def g1_mm(c, kk):
    b = vFb + 8*(kk % 3); A = vAc + 24*(c % 2); z = "0" if kk == 0 else None
    L = [mf16(v(A+12*a+4*t,4), ar(12*kk+4*t,4), v(b+4*a,4), z) for a in range(2) for t in range(3)]
    if kk % 4 == 0:
        for a in range(2):
            L += [mf16(v(vSt+4*a,4), v(b+4*a,4), v(b+4*a,4), z), mf16(v(vSt+8+4*a,4), v(vOnes,4), v(b+4*a,4), z)]
    return L
def g1_statw(c):
    o = SC + 10240*(c % 2)
    return [f"ds_write_b128 {v(vScW)}, {v(vSt,4)} offset:{o}", f"ds_write_b128 {v(vScW)}, {v(vSt+4,4)} offset:{o+1280}",
            f"ds_write_b32 {v(vScW2)}, {v(vSt+8)} offset:{o+1024}", f"ds_write_b32 {v(vScW2)}, {v(vSt+12)} offset:{o+1280+1024}"]
def g1_epi(c, pk=False):
    o = (SC + 10240*(c % 2)) // 256; A = vAc + 24*(c % 2)
    Q, S = vTm, vTm+4
    M, Z, S2 = vTm+8, vTm+10, vTm+12
    L = []
    for w in range(2):
        L.append(f"ds_read2st64_b32 {v(Q+2*w,2)}, {v(vScR)} offset0:{o+20*w} offset1:{o+20*w+10}")
        L.append(f"ds_read2st64_b32 {v(S+2*w,2)}, {v(vScR2)} offset0:{o+20*w+4} offset1:{o+20*w+14}")
    L += [f"v_permlane32_swap_b32 {v(A+j)}, {v(A+12+j)}" for j in range(12)]
    L += [f"v_add_f32 {v(Q)}, {v(Q)}, {v(Q+1)}", f"v_add_f32 {v(S)}, {v(S)}, {v(S+1)}", f"v_add_f32 {v(Q+2)}, {v(Q+2)}, {v(Q+3)}", f"v_add_f32 {v(S+2)}, {v(S+2)}, {v(S+3)}",
          f"v_add_f32 {v(S)}, {v(S)}, {v(S+2)}", f"v_add_f32 {v(Q)}, {v(Q)}, {v(Q+2)}",
          f"v_mul_f32 {v(S)}, {INV640}, {v(S)}", f"v_mul_f32 {v(Q)}, {INV640}, {v(Q)}",
          f"v_fma_f32 {v(Q)}, -{v(S)}, {v(S)}, {v(Q)}", f"v_cvt_pk_bf16_f32 {v(M)}, 0, {v(S)}", f"v_max_f32 {v(Q)}, 0, {v(Q)}",
          f"v_cvt_pk_bf16_f32 {v(Q)}, 0, {v(Q)}",
          f"v_add_f32 {v(Q)}, 0x3727c5ac, {v(Q)}", f"v_cvt_pk_bf16_f32 {v(Q)}, 0, {v(Q)}"]
    R = vTm + 16
    if pk:
        cen = [f"v_pk_fma_f32 {v(A+2*j,2)}, {v(vCs+2*j,2)}, {v(M,2)}, {v(A+2*j,2)} op_sel_hi:[1,0,1] neg_lo:[0,1,0] neg_hi:[0,1,0]" for j in range(12)]
    else:
        cen = [f"v_fma_f32 {v(A+j)}, -{v(vCs+j)}, {v(M)}, {v(A+j)}" for j in range(24)]
    L += [f"v_sqrt_f32 {v(Q)}, {v(Q)}"] + cen[:2] + [f"v_cvt_pk_bf16_f32 {v(Q)}, 0, {v(Q)}"] + cen[2:3] + [f"v_rcp_f32 {v(Z)}, {v(Q)}", f"v_mul_f32 {v(S2)}, {v(Q)}, {v(Q)}"] + cen[3:4]
    L += [f"v_mul_f32 {v(Z)}, 0xbfb8aa3b, {v(Z)}"] + cen[4:]
    chains = []
    for j in range(6):
        g_, u_ = A+2*j, A+12+2*j
        z = vTm + 24 + 2*j
        if pk:
            ch = [f"v_pk_mul_f32 {v(z,2)}, {v(g_,2)}, {v(Z,2)} op_sel_hi:[1,0]",
                  f"v_exp_f32 {v(z)}, {v(z)}", f"v_exp_f32 {v(z+1)}, {v(z+1)}",
                  f"v_pk_mul_f32 {v(g_,2)}, {v(g_,2)}, {v(u_,2)}",
                  f"v_pk_fma_f32 {v(z,2)}, {v(z,2)}, {v(S2,2)}, {v(S2,2)} op_sel_hi:[1,0,0]",
                  f"v_rcp_f32 {v(z)}, {v(z)}", f"v_rcp_f32 {v(z+1)}, {v(z+1)}",
                  f"v_pk_mul_f32 {v(g_,2)}, {v(g_,2)}, {v(z,2)}"]
        else:
            ch = [f"v_mul_f32 {v(z)}, {v(g_)}, {v(Z)}", f"v_mul_f32 {v(z+1)}, {v(g_+1)}, {v(Z)}",
                  f"v_exp_f32 {v(z)}, {v(z)}", f"v_exp_f32 {v(z+1)}, {v(z+1)}", f"v_mul_f32 {v(g_)}, {v(g_)}, {v(u_)}", f"v_mul_f32 {v(g_+1)}, {v(g_+1)}, {v(u_+1)}",
                  f"v_fma_f32 {v(z)}, {v(z)}, {v(S2)}, {v(S2)}", f"v_fma_f32 {v(z+1)}, {v(z+1)}, {v(S2)}, {v(S2)}",
                  f"v_rcp_f32 {v(z)}, {v(z)}", f"v_rcp_f32 {v(z+1)}, {v(z+1)}",
                  f"v_mul_f32 {v(g_)}, {v(g_)}, {v(z)}", f"v_mul_f32 {v(g_+1)}, {v(g_+1)}, {v(z+1)}"]
        chains.append(ch + [f"v_cvt_pk_bf16_f32 {v(R+j)}, {v(g_)}, {v(g_+1)}"])
    order = [4, 5, 0, 1, 2, 3]
    sw = [f"v_permlane16_swap_b32 {v(R+4)}, {v(R+6)}", f"v_permlane16_swap_b32 {v(R+5)}, {v(R+7)}"]
    if pk: L += zipper(chains[4], chains[5]) + zipper(chains[0], chains[1]) + sw + zipper(chains[2], chains[3])
    else: L += chains[4] + chains[5] + chains[0] + sw + chains[1] + chains[2] + chains[3]
    L += [f"s_add_u32 {s(sT[5])}, {s(sAct)}, {32*49152*c}"]
    L += [(f"buffer_store_dwordx4 {v(R+4,4)}, {v(vAo2)}, {ws}, {s(sT[5])} offen offset:512 sc1", f"a{c}"),
          (f"buffer_store_dwordx4 {v(R,4)}, {v(vAo1)}, {ws}, {s(sT[5])} offen sc1", f"a{c}")]
    return L
vWo = 16
vF2a, vF2 = 21, 22
vFAa = 71
vB0 = 208
vFAd = 24
g2setup = f"""
s_mul_i32 {s(sT[6])}, {s(sWv)}, {12*128}
s_add_u32 {s(sT[6])}, {s(sT[6])}, {FW2}
v_min_u32 {v(vF2a)}, 11, {v(vLane)}
v_lshl_add_u32 {v(vF2a)}, {v(vF2a)}, 7, {s(sT[6])}
s_lshl2_add_u32 {s(sW2)}, {s(sN2)}, {s(sWv)}
s_mul_i32 {s(sW2)}, {s(sW2)}, {12*5120}
s_add_u32 {s(sW2)}, {s(sW2)}, {W2P}
v_add_u32 {v(vWo+4)}, 4096, {v(vL16)}
"""
for lam in range(4):
    g2setup += f"""s_xor_b32 {s(sT[6])}, {s(sWv)}, {lam}
    s_lshl_b32 {s(sT[6])}, {s(sT[6])}, 10
    v_add_u32 {v(vWo+lam)}, {s(sT[6])}, {v(vL16)}
    """
g2setup += f"""
s_lshl2_add_u32 {s(sT[6])}, {s(sMt)}, {s(sWv)}
s_lshl_b32 {s(sT[6])}, {s(sT[6])}, 9
s_add_u32 {s(sT[6])}, {s(sT[6])}, {FA}
v_and_b32 {v(vFAa)}, 3, {v(vLane)}
v_lshl_add_u32 {v(vFAa)}, {v(vFAa)}, 7, {s(sT[6])}
s_lshl1_add_u32 {s(sT[6])}, {s(sMt)}, {s(sHb)}
s_and_b32 {s(sOut)}, {s(sMt)}, 3
s_lshl1_add_u32 {s(sOut)}, {s(sOut)}, {s(sHb)}
s_lshl_b32 {s(sOut)}, {s(sOut)}, 5
s_and_b32 {s(sT[7])}, {s(sMt)}, 12
s_add_u32 {s(sOut)}, {s(sOut)}, {s(sT[7])}
s_mul_i32 {s(sOut)}, {s(sOut)}, 1280
s_mul_i32 {s(sT[7])}, {s(sN2)}, 160
s_add_u32 {s(sOut)}, {s(sOut)}, {s(sT[7])}
s_mul_i32 {s(sT[8])}, {s(sT[6])}, 49152
s_mul_i32 {s(sT[7])}, {s(sWv)}, 12288
s_add_u32 {s(sT[8])}, {s(sT[8])}, {s(sT[7])}
s_add_u32 {s(sT[8])}, {s(sT[8])}, {ACT}
"""
sAin = sT[8]
g2setup = [l.strip() for l in g2setup.split("\n") if l.strip()]
w2fl = [f"buffer_load_dwordx4 {v(vFAd,4)}, {v(vF2a)}, {ws}, 0 offen sc1"]
def w2_ready():
    check(w2fl, [vFAd+j for j in range(4)], 5)
w2pre = [f"v_min_u32 {v(vF2)}, 29, {v(vLane)}", f"s_and_b32 {s(sT[6])}, {s(sMt)}, 3", f"s_mul_i32 {s(sT[6])}, {s(sT[6])}, 15360",
         f"v_lshl_add_u32 {v(vF2)}, {v(vF2)}, 7, {s(sT[6])}"]
def w2pf(j): return [f"s_add_u32 {s(sT[6])}, {s(sW2)}, {3840*j}", f"buffer_load_dword a{240+j}, {v(vF2)}, {ws}, {s(sT[6])} offen sc1"]
W2L = []
for ks in range(12):
    for lam in range(5):
        x = [f"s_add_u32 {s(sW2)}, {s(sW2)}, 5120"] if (lam == 0 and ks) else []
        W2L.append(x + [f"buffer_load_dwordx4 {ar(20*ks+4*lam,4)}, {v(vWo+lam)}, {ws}, {s(sW2)} offen sc1"])
def aflag_ld(i): return [f"buffer_load_dwordx4 {v(vFAd,4)}, {v(vFAa)}, {ws}, 0 offen offset:{16*i} sc1"]
def aflag_chk(i): check(aflag_ld(i), [vFAd+j for j in range(4)], 5)
ABUF = [vB0, 72+40, 72+40+48]
def act_loads(i, buf):
    L = []
    for ks in range(12):
        if ks % 4 == 0: L.append(f"s_add_u32 {s(sT[4])}, {s(sAin)}, {32*49152*i + 1024*ks}")
        L.append(f"buffer_load_dwordx4 {v(buf+4*ks,4)}, {v(vL16)}, {ws}, {s(sT[4])} offen offset:{1024*(ks%4)} sc1")
    return L
sent2 = 0
for c in range(4):
    k.wait_tok(f"h{c}")
    k("s_waitcnt lgkmcnt(0)\ns_barrier")
    stamp(f"c{c}")
    k(g1_reads(0) + g1_reads(1))
    k(f"ds_read_b64_tr_b16 {v(vRes+2*c,2)}, {v(vRa)}")
    Ls = k.lab("Lr4")
    k(f"s_cmp_lg_u32 {s(sWv)}, {c}\ns_cbranch_scc1 {Ls}")
    s1 = k.snap()
    k(f"ds_read_b64_tr_b16 {v(vRes+8,2)}, {v(vRa+1)}")
    k.label(Ls); k.merge(s1)
    fill = []
    if c == 1:
        check(hflag_ld(1), HCHK, 5)
        stamp("hfB")
    mem = []
    if c == 0:
        fill = csfix + list(g2setup); mem = [(8, w2fl), (13, hflag_ld(1)), (15, [w2_ready] + w2pre), (17, w2pf(0))]
    else:
        fill = g1_epi(c-1)
    if c <= 1:
        d = h_dma(1) if c == 0 else h_dma(2) + h_dma(3); n_ = 0
        while d:
            grp = []
            while _kind(d[0]) == "salu": grp.append(d.pop(0))
            grp.append(d.pop(0)); mem.append((n_, grp)); n_ += 1
    if c == 2: mem += [(1, w2pf(1)), (5, w2pf(2)), (11, w2pf(3))]
    if c >= 2: mem.append((opt("fk", 9), flag(f"a{c-2}", sFa, 16*(c-2))))
    if c == 3:
        mem += [(6, aflag_ld(0)), (13, [lambda: aflag_chk(0)])]
        al = act_loads(0, vB0); mem += [(14, al[:5]), (16, al[5:10]), (18, al[10:])]
    nurg = 0
    for kk in range(20):
        rd = g1_reads(kk+2) if kk+2 < 20 else []
        pre = sum([list(it) for q, it in mem if q == kk], [])
        if c == 3:
            while sent2 < min(NW2C3 * (kk+1) // 20, 3*kk): pre += W2L[sent2]; sent2 += 1
        if kk == 18: pre = g1_statw(c) + pre
        fill[nurg:nurg] = pre; nurg += len(pre)
        if kk == 18:
            if c < 3:
                dlt = (SLOT[(c+1) % 3] - SLOT[c % 3]) & 0xffffffff
                fill += [f"v_add_u32 {v(r)}, {dlt}, {v(r)}" for r in list(range(vBa, vBa+8)) + [vRa, vRa+1]]
        n0 = len(fill)
        weave2(k, g1_mm(c, kk), rd, fill, nxt=g1_mm(c, kk+1)[0] if kk < 19 else None)
        nurg = max(0, nurg - (n0 - len(fill)))
    print("chunk", c, "leftover", len(fill))
    k(fill)
k("s_waitcnt lgkmcnt(0)\ns_barrier")
stamp("c4")
k(g1_epi(3, pk=True))
stamp("g1e")
k(aflag_ld(1))
k(flag("a2", sFa, 32))
n1 = opt("w2a", 16)
for g_ in W2L[sent2:sent2+n1]: k(g_)
k(flag("a3", sFa, 48))
stamp("afl")
for g_ in W2L[sent2+n1:]: k(g_)
vRw, vRr, vRr4, vOo = 12, 32, 33, 34
vA2, vT2 = 52, 20
vT2 = 92
BUF = [vB0, 104, 152-12]
BUF[2] = None
aflag_chk(1)
k(act_loads(1, BUF[1]))
for lam in range(1, 4):
    k(f"""s_xor_b32 {s(sT[5])}, {s(sWv)}, {lam}
    s_mul_i32 {s(sT[6])}, {s(sT[5])}, 3072
    s_add_u32 {s(sT[6])}, {s(sT[6])}, {RED + 1024*(lam-1)}
    v_add_u32 {v(vRw+lam-1)}, {s(sT[6])}, {v(vL16)}""")
k(f"""
s_lshl_b32 {s(sT[6])}, {s(sWv)}, 10
s_add_u32 {s(sT[6])}, {s(sT[6])}, {RED4}
v_add_u32 {v(vRw+3)}, {s(sT[6])}, {v(vL16)}
s_mul_i32 {s(sT[6])}, {s(sWv)}, 3072
s_add_u32 {s(sT[6])}, {s(sT[6])}, {RED}
v_add_u32 {v(vRr)}, {s(sT[6])}, {v(vL16)}
s_lshl_b32 {s(sT[6])}, {s(sWv)}, 12
s_add_u32 {s(sT[6])}, {s(sT[6])}, {RED4}
v_add_u32 {v(vRr4)}, {s(sT[6])}, {v(vL16)}
v_and_b32 v5, 3, {v(vN)}
v_bfe_u32 v6, {v(vN)}, 2, 1
v_lshl_add_u32 v5, v6, 8, v5
v_lshrrev_b32 v6, 3, {v(vN)}
v_lshl_add_u32 v5, v6, 4, v5
v_mul_u32_u24 {v(vOo)}, 1280, v5
v_lshl_add_u32 {v(vOo)}, {v(vG)}, 3, {v(vOo)}
v_mov_b32 v35, {v(vFAa)}
""")
vFAa = 35
k(aflag_ld(2))
k("s_barrier")
def g2_write(i):
    A = vA2 + 20*(i % 2)
    return [f"ds_write_b128 {v(vRw+lam-1)}, {v(A+4*lam,4)} offset:{12288*i}" for lam in range(1, 4)] + [f"ds_write_b128 {v(vRw+3)}, {v(A+16,4)} offset:{4096*i}"]
def fin(A, parts, res, soff):
    L = []
    for p in parts: L += [f"v_add_f32 {v(A+j)}, {v(A+j)}, {v(p+j)}" for j in range(4)]
    p = parts[0]
    L += [f"v_lshlrev_b32 {v(p)}, 16, {v(res)}", f"v_and_b32 {v(p+1)}, 0xffff0000, {v(res)}", f"v_lshlrev_b32 {v(p+2)}, 16, {v(res+1)}", f"v_and_b32 {v(p+3)}, 0xffff0000, {v(res+1)}"]
    L += [f"v_add_f32 {v(A+j)}, {v(A+j)}, {v(p+j)}" for j in range(4)]
    L += [f"v_cvt_pk_bf16_f32 {v(p)}, {v(A)}, {v(A+1)}", f"v_cvt_pk_bf16_f32 {v(p+1)}, {v(A+2)}, {v(A+3)}"]
    L += soff + [f"buffer_store_dwordx2 {v(p,2)}, {v(vOo)}, {s(OUTR,4)}, {s(sT[5])} offen"]
    return L
def g2_fin(i):
    A = vA2 + 20*(i % 2)
    L = [f"ds_read_b128 {v(vT2+4*j,4)}, {v(vRr)} offset:{12288*i + 1024*j}" for j in range(3)]
    return L + fin(A, [vT2, vT2+4, vT2+8], vRes+2*i, [f"s_lshl_b32 {s(sT[5])}, {s(sWv)}, 5", f"s_add_u32 {s(sT[5])}, {s(sT[5])}, {s(sOut)}", f"s_add_u32 {s(sT[5])}, {s(sT[5])}, {512*1280*i}"])
for i in range(4):
    stamp(f"t{i}")
    A = vA2 + 20*(i % 2); B = BUF[i % 2]
    mm = [mf16(v(A+4*lam,4), ar(20*ks+4*lam,4), v(B+4*ks,4), "0" if ks == 0 else None) for ks in range(12) for lam in range(5)]
    if i == 0:
        weave2(k, mm, [], [])
    else:
        fill = []
        if i < 3:
            aflag_chk(i+1)
            fill = act_loads(i+1, BUF[(i+1) % 2]) + (aflag_ld(i+2) if i+2 < 4 else [])
        f2 = g2_write(i-1)
        weave2(k, mm[:8], [], f2, nxt=mm[8], slots=1, start=2); k(f2)
        weave2(k, mm[8:24], [], fill, nxt=mm[24], slots=1); k(fill)
        k("s_waitcnt lgkmcnt(0)\ns_barrier")
        f3 = g2_fin(i-1)
        weave2(k, mm[24:], [], f3); k(f3)
stamp("t4")
k(g2_write(3))
k("s_waitcnt lgkmcnt(0)\ns_barrier")
for j in range(4): k(f"ds_read_b128 {v(vB0+4*j,4)}, {v(vRr4)} offset:{1024*j}")
k(g2_fin(3))
k(fin(vB0, [vB0+4, vB0+8, vB0+12], vRes+8, [f"s_mul_i32 {s(sT[5])}, {s(sWv)}, {512*1280}", f"s_add_u32 {s(sT[5])}, {s(sT[5])}, {s(sOut)}", f"s_add_u32 {s(sT[5])}, {s(sT[5])}, 128"]))
stamp("g2e")
k(f"""s_or_b32 {s(sT[4])}, s2, {s(sWv)}
s_cmp_lg_u32 {s(sT[4])}, 0
s_cselect_b32 {s(sT[4])}, {OOB}, 0
buffer_store_dword {v(vTagv)}, {v(vFl0)}, {ws}, {s(sT[4])} offen""")
if STAMP:
    k("s_waitcnt vmcnt(0)")
    stamp("end")
    k(f"""s_lshl2_add_u32 {s(sT[4])}, s2, {s(sWv)}
    s_lshl_b32 {s(sT[4])}, {s(sT[4])}, 7
    s_add_u32 {s(sT[4])}, {s(sT[4])}, {STB}""")
    for i in range(len(SEL)):
        k(f"v_mov_b32 v5, {s(sStamp+2*i)}\nbuffer_store_dword v5, {v(vFl0)}, {ws}, {s(sT[4])} offen offset:{4*i}")
k("s_endpgm")
k.raw(".p2align 2\n.fill 64, 4, 0\nLcode_end:")
hdr = "".join(l for l in open("cdna_kernels/" + NAME + ".s.ref").readlines()[:18] if l.startswith(";") and "@launch" not in l)
if STAMP: hdr += "; stamps: " + ",".join(SEL) + "\n"
open(OUT, "w").write(k.text(hdr, 256, 256, LDS_BYTES))
print("instructions", k.nins, "nops", k.nnop)
```

```python
import re, copy
NAME = "sequential_preLN__ssm_conv_s4__swiglu_ffn__prompt"

_REG = re.compile(r"^[-|]*\s*(?:abs\()?([vas])(?:(\d+)|\[(\d+):(\d+)\])\)?\|?$")
TRANS = ("v_exp_f32", "v_log_f32", "v_rcp_f32", "v_rsq_f32", "v_sqrt_f32", "v_sin_f32", "v_cos_f32", "v_rcp_iflag_f32")

def regs_of(op):
    op = op.strip()
    if op in ("vcc", "vcc_lo", "vcc_hi"): return {"vcc"}
    if op in ("exec", "exec_lo", "exec_hi"): return {"exec"}
    if op == "m0": return {"m0"}
    m = _REG.match(op)
    if not m: return set()
    k = m.group(1)
    if m.group(2) is not None: return {f"{k}{m.group(2)}"}
    return {f"{k}{i}" for i in range(int(m.group(3)), int(m.group(4)) + 1)}

class Ins:
    __slots__ = ("text", "mn", "ops", "mods", "dst", "src", "cls", "passes", "srcc", "srcab", "tok")
    def __init__(self, text, tok=None):
        self.text = text; self.tok = tok
        body = text.split(";")[0].strip()
        parts = body.split(None, 1)
        mn = self.mn = parts[0]
        rest = parts[1] if len(parts) > 1 else ""
        ops, depth, cur = [], 0, ""
        for ch in rest:
            if ch in "[(": depth += 1
            if ch in "])": depth -= 1
            if ch == "," and depth == 0: ops.append(cur.strip()); cur = ""
            else: cur += ch
        if cur.strip(): ops.append(cur.strip())
        mods = ""
        if ops:
            last = ops[-1].split(None, 1)
            ops[-1] = last[0]
            mods = last[1] if len(last) > 1 else ""
        self.ops, self.mods = ops, mods
        R = [regs_of(o) for o in ops]
        allr = set().union(*R) if R else set()
        tail = set().union(*R[1:]) if len(R) > 1 else set()
        self.passes = 0; self.srcc = set(); self.srcab = set()
        if mn.startswith("v_mfma") or mn.startswith("v_smfmac"):
            self.cls = "mfma"; self.dst = R[0]; self.src = tail
            self.srcab = R[1] | R[2]; self.srcc = R[3] if len(R) > 3 else set()
            self.passes = 8 if "32x32" in mn else 4
        elif mn.startswith("v_"):
            self.cls = "valu"
            if "permlane" in mn and "swap" in mn: self.dst = allr; self.src = allr
            elif mn.startswith(("v_add_co", "v_sub_co", "v_addc_co", "v_subb_co", "v_subrev_co", "v_mad_u64_u32", "v_div_scale")):
                self.dst = R[0] | R[1]; self.src = set().union(*R[2:])
            elif mn.startswith(("v_fmac", "v_dot2c", "v_pk_fmac", "v_writelane")) or "dpp" in mn or "row_" in mods or "quad_perm" in mods or "UNUSED_PRESERVE" in mods:
                self.dst = R[0]; self.src = allr
            elif mn == "v_nop": self.dst = set(); self.src = set()
            else: self.dst = R[0]; self.src = tail
        elif mn.startswith("ds_"):
            self.cls = "ds"
            if mn.startswith(("ds_read", "ds_bpermute", "ds_permute", "ds_swizzle")):
                self.dst = R[0]; self.src = tail
                if "d16" in mn: self.src = allr
            else: self.dst = set(); self.src = allr
            if "addtid" in mn: self.src = self.src | {"m0"}
        elif mn.startswith(("buffer_", "global_")):
            self.cls = "vmem"
            islds = mn.startswith("global_load_lds") or re.search(r"\blds\b", mods) is not None
            if islds: self.dst = set(); self.src = allr | {"m0"}
            elif "_load" in mn:
                self.dst = R[0]; self.src = allr if "d16" in mn else tail
            elif "atomic" in mn and "sc0" in mods: self.dst = R[0]; self.src = allr
            else: self.dst = set(); self.src = allr
        elif mn.startswith(("s_load", "s_buffer_load", "s_memtime", "s_memrealtime")):
            self.cls = "smem"; self.dst = R[0]; self.src = tail
        elif mn.startswith("s_"):
            self.cls = "salu"
            if mn.startswith(("s_cmp", "s_bitcmp", "s_waitcnt", "s_barrier", "s_branch", "s_cbranch", "s_nop", "s_setprio", "s_sleep", "s_endpgm", "s_setpc", "s_setreg")):
                self.dst = set(); self.src = allr
                if "vcc" in mn: self.src = {"vcc"}
            elif "saveexec" in mn: self.dst = R[0] | {"exec"}; self.src = tail | {"exec"}
            elif mn.startswith(("s_addk", "s_mulk", "s_cmov")): self.dst = R[0]; self.src = allr
            else: self.dst = R[0]; self.src = tail
        else:
            raise ValueError("unknown instruction: " + text)

class State:
    def __init__(self):
        self.vm = []
        self.lg = []
        self.sm = set()
        self.hist = []

class K:
    def __init__(self):
        self.out = []; self.st = State(); self.uid = 0; self.kernels = []; self.launches = []
        self.nins = 0; self.nnop = 0; self.marks = []
    def raw(self, s): self.out.append(s)
    def lab(self, base="L"):
        self.uid += 1; return f"{base}{self.uid}"
    def label(self, name): self.out.append(name + ":")
    def _age(self, n):
        h = [(i, a + n) for i, a in self.st.hist if a + n < 24]
        self.st.hist = h
    def _put(self, text, ins=None, states=1):
        self.out.append("    " + text); self.nins += 1
        self._age(states)
        if ins is not None: self.st.hist.append((ins, 0))
    def _need(self, q, regs, cap):
        idx = -1
        for i, e in enumerate(q):
            if e & regs: idx = i
        if idx < 0: return None
        return min(len(q) - 1 - idx, cap)
    def _wait(self, vm=None, lg=None):
        st = self.st; parts = []
        if vm is not None:
            parts.append(f"vmcnt({vm})"); st.vm = st.vm[len(st.vm) - vm:] if vm else []
        if lg is not None:
            parts.append(f"lgkmcnt({lg})"); st.lg = st.lg[len(st.lg) - lg:] if lg else []
            if lg == 0: st.sm = set()
        if parts: self._put("s_waitcnt " + " ".join(parts))
    def wait_tok(self, *toks):
        t = {"#" + x for x in toks}
        vm = self._need(self.st.vm, t, 63); lg = self._need(self.st.lg, t, 15)
        if lg is not None and self.st.sm: lg = 0
        self._wait(vm, lg)
    def wait_all(self, vm=True, lg=True):
        self._wait(0 if vm else None, 0 if lg else None)
    def _hazard(self, c):
        need = 0
        touch = c.src | c.dst
        for p, age in self.st.hist:
            w = 0
            if p.cls == "valu":
                vd = {r for r in p.dst if r[0] in "va" and r != "vcc"}
                sd = p.dst - vd
                if vd & c.src:
                    if c.cls == "mfma": w = 2
                    elif c.cls == "valu":
                        if "permlane" in c.mn or "dpp" in c.mn or "row_" in c.mods or "quad_perm" in c.mods: w = 2
                        elif c.mn.startswith(("v_readlane", "v_readfirstlane")): w = 1
                        if p.mn.startswith(TRANS): w = max(w, 1)
                        if p.mn.startswith("v_dot2") and p.mn != c.mn: w = max(w, 3)
                        if "sdwa" in p.mn and "dst_sel:DWORD" not in p.mods: w = max(w, 1)
                if c.cls == "mfma" and p.mn.startswith(("v_pk_", "v_dot", "v_mov_b64")): w = max(w, 2)
                if sd & c.src:
                    if c.cls == "vmem": w = max(w, 5)
                    elif c.cls == "valu": w = max(w, 4 if "lane" in c.mn else 2)
                    elif c.cls == "salu" and "cbranch" not in c.mn: w = max(w, 1)
            elif p.cls == "mfma":
                big = p.passes == 8
                if c.cls == "mfma":
                    if p.dst & c.srcab: w = 12 if big else 8
                    if p.dst & c.srcc and not (p.dst == c.srcc and p.passes == c.passes): w = max(w, 10 if big else 6)
                    if p.dst & c.dst and not (p.dst == c.dst and p.passes == c.passes): w = max(w, 10 if big else 6)
                elif p.dst & touch: w = 12 if big else 8
                if c.cls == "valu" and p.srcc & c.dst: w = max(w, 7 if big else 3)
            elif p.cls == "salu":
                if "m0" in p.dst and "m0" in c.src and c.cls in ("ds", "vmem"): w = 1
            elif p.cls == "vmem":
                if ("store" in p.mn) and ("x3" in p.mn or "x4" in p.mn) and c.cls != "salu":
                    data = regs_of(p.ops[0]) if p.mn.startswith("buffer") else regs_of(p.ops[1])
                    if data & c.dst: w = 2
            need = max(need, w - age)
        return need
    def ins(self, text, tok=None):
        c = Ins(text, tok); st = self.st
        if c.mn == "s_waitcnt":
            vm = re.search(r"vmcnt\((\d+)\)", text); lg = re.search(r"lgkmcnt\((\d+)\)", text)
            vm = int(vm.group(1)) if vm else None; lg = int(lg.group(1)) if lg else None
            if vm is not None and vm > len(st.vm): st.vm = [set()] * (vm - len(st.vm)) + st.vm
            if lg is not None and lg > len(st.lg): st.lg = [set()] * (lg - len(st.lg)) + st.lg
            self._wait(vm, lg); return
        touch = c.src | c.dst
        vm = self._need(st.vm, touch, 63); lg = self._need(st.lg, touch, 15)
        if st.sm & touch: lg = 0
        if lg is not None and st.sm: lg = 0
        self._wait(vm, lg)
        n = self._hazard(c)
        while n > 0:
            k = min(n, 16); self._put(f"s_nop {k-1}", None, k); self.nnop += 1; n -= k
        states = int(c.ops[0]) + 1 if c.mn == "s_nop" else 1
        self._put(text, c, states)
        e = set(c.dst) | ({"#" + tok} if tok else set())
        if c.cls == "vmem": st.vm.append(e)
        elif c.cls == "ds": st.lg.append(e)
        elif c.cls == "smem": st.sm |= (c.dst or {"?"})
    def __call__(self, s, tok=None):
        if isinstance(s, (list, tuple)):
            for x in s:
                if callable(x): x()
                elif isinstance(x, tuple): self(x[0], x[1])
                else: self(x)
            return
        for l in s.split("\n"):
            l = l.strip()
            if not l or l.startswith(";"): continue
            if l.endswith(":"): self.label(l[:-1])
            elif l.startswith("."): self.raw(l)
            else: self.ins(l, tok)
    def snap(self): return copy.deepcopy(self.st)
    def restore(self, s): self.st = copy.deepcopy(s)
    def merge(self, other):
        def mq(a, b):
            n = max(len(a), len(b)); pos = {}
            for q in (a, b):
                for i, e in enumerate(q):
                    k = len(q) - 1 - i
                    for r in e: pos[r] = min(pos.get(r, 1 << 30), k)
            out = [set() for _ in range(n)]
            for r, k in pos.items(): out[n - 1 - k].add(r)
            return out
        st = self.st
        st.vm = mq(st.vm, other.vm); st.lg = mq(st.lg, other.lg); st.sm |= other.sm
        st.hist = st.hist + other.hist
    def begin(self, name):
        self.out.append(f".globl {name}\n.p2align 8\n.type {name},@function\n{name}:"); self.st = State()
    def text(self, header, grid, block, lds, vgpr=512, accum=256, sgpr=102):
        n = NAME + "_kernel"
        o = [header.rstrip("\n"), f"; @launch grid=({grid},1,1) block=({block},1,1) lds={lds}",
             '.amdgcn_target "amdgcn-amd-amdhsa--gfx950"', ".text"] + self.out
        o.append(f""".section .rodata,"a"
.p2align 6
.amdhsa_kernel {n}
  .amdhsa_next_free_vgpr {vgpr}
  .amdhsa_next_free_sgpr {sgpr}
  .amdhsa_accum_offset {accum}
  .amdhsa_group_segment_fixed_size 0
  .amdhsa_kernarg_size 128
  .amdhsa_user_sgpr_count 2
  .amdhsa_user_sgpr_kernarg_segment_ptr 1
  .amdhsa_system_sgpr_workgroup_id_x 1
.end_amdhsa_kernel""")
        return "\n".join(o) + "\n"

def weave(main, fill, per=2, start=0):
    out = []; fill = list(fill)
    def cost(x):
        t = x[0] if isinstance(x, tuple) else x
        if callable(t): return 0
        return 2 if t.split()[0].startswith(TRANS) else 1
    for i, m in enumerate(main):
        out.append(m)
        if i < start: continue
        b = per
        while fill and cost(fill[0]) <= b:
            b -= cost(fill[0]); out.append(fill.pop(0))
    return out, fill
def v(a, n=1): return f"v{a}" if n == 1 else f"v[{a}:{a+n-1}]"
def ar(a, n=1): return f"a{a}" if n == 1 else f"a[{a}:{a+n-1}]"
def s(a, n=1): return f"s{a}" if n == 1 else f"s[{a}:{a+n-1}]"

def _txt(x): return x[0] if isinstance(x, tuple) else x
def _kind(x):
    t = _txt(x)
    if callable(t): return "call"
    m = t.split()[0]
    if m.startswith(("ds_", "buffer_", "global_")): return "mem"
    if m.startswith("s_"): return "salu"
    if m.startswith(TRANS): return "trans"
    return "valu"
def prewait(k, text):
    c = Ins(text); st = k.st; touch = c.src | c.dst
    vm = k._need(st.vm, touch, 63); lg = k._need(st.lg, touch, 15)
    if lg is not None and st.sm: lg = 0
    n0 = k.nins; k._wait(vm, lg); return k.nins != n0
def weave2(k, mm, rd, fill, nxt=None, slots=2, start=0, minfill=0):
    rd = list(rd); n = len(mm)
    for i, m in enumerate(mm):
        k(m)
        nx = mm[i+1] if i+1 < n else nxt
        free_s = not (nx is not None and prewait(k, nx))
        b = slots; had_valu = False
        if i >= start:
            while fill and (_kind(fill[0]) == "call" or (_kind(fill[0]) == "salu" and free_s)):
                if _kind(fill[0]) == "salu": free_s = False
                n0 = k.nins; k([fill.pop(0)])
                if k.nins != n0: free_s = False
        q = -(-len(rd) // (n - i))
        for _ in range(q): k([rd.pop(0)]); b -= 1
        if i < start: continue
        b = max(b, minfill)
        while fill and b > 0:
            kd = _kind(fill[0])
            if kd == "call": break
            if kd == "mem" and had_valu: break
            c = 2 if kd == "trans" else 1
            if c > b: break
            if kd in ("valu", "trans"): had_valu = True
            k([fill.pop(0)]); b -= c
    assert not rd

def sched(k, mm, rd=(), urgent=(), normal=(), checks=(), slots=2, tail=True):
    rd = list(rd); U, N = [], []; n = len(mm)
    def q(): return U if U else N
    def peek(j):
        a = U + N
        return _kind(a[j]) if j < len(a) else None
    for g_, it in urgent:
        if g_ < 0: k(list(it))
    while rd and rd[0][2] < 0: k([rd.pop(0)[3]])
    for i, m in enumerate(mm):
        k(m)
        for g_, fn in checks:
            if g_ == i: fn(U, N)
        for g_, it in urgent:
            if g_ == i: U += list(it)
        for g_, it in normal:
            if g_ == i: N += list(it)
        free_s = not (i+1 < n and prewait(k, mm[i+1]))
        while (U or N) and (peek(0) == "call" or (peek(0) == "salu" and free_s)):
            n0 = k.nins; k([q().pop(0)])
            if k.nins != n0: free_s = False
        b = slots
        must = sum(1 for r in rd if r[2] <= i); avail = sum(1 for r in rd if r[0] <= i); nom = sum(1 for r in rd if r[1] <= i)
        p0, p1 = peek(0), peek(1)
        if p0 is None: nr = min(avail, max(nom, must)) if nom <= slots else max(slots, must)
        elif p0 == "trans": nr = max(must, min(avail, slots)) if (must or nom >= 2) else 0
        elif p1 == "trans" or p1 is None or (p0 == "valu" and p1 == "mem"): nr = max(must, min(avail, slots-1))
        else: nr = max(must, min(nom, slots-1 if nom < 3 else slots))
        for _ in range(nr): k([rd.pop(0)[3]]); b -= 1
        if U: b = max(b, 1)
        had = False
        while (U or N) and b > 0:
            kd = peek(0)
            if kd == "call" or (kd == "mem" and had): break
            c = 2 if kd == "trans" else 1
            if c > b: break
            if kd in ("valu", "trans"): had = True
            k([q().pop(0)]); b -= c
    assert not rd
    left = U + N
    if tail: k(left)
    return left
def spread(items, a, b, late=None):
    n = len(items); late = b-1 if late is None else late
    return [(a, a + (b-a)*j//n, late, x) for j, x in enumerate(items)]
```

```python
import sys, numpy as np
from gk import *
from gk import _kind

STAMP = "--stamp" in sys.argv
OUT = [a for a in sys.argv[1:] if a.endswith(".s")]
OUT = OUT[0] if OUT else "v3.s"
def opt(name, default):
    x = [a.split("=")[1] for a in sys.argv if a.startswith(f"--{name}=")]
    return int(x[0]) if x else default
NW1C = opt("w1conv", 30)
NW1G = opt("w1gap", 6)
NW2C3 = opt("w2c3", 38)
SLEEP = opt("sleep", 1)
DBG = opt("dbg", 0)
MB = opt("mb", 3)
XEARLY = opt("xearly", 1)

STP, STB = 0x18000, 0x20000
FB, RS = 0x40000, 4096
oH, oW2 = 0, 8
FA = FB + 16*RS
FF = FA + 64*128
oRDY, oW1 = FF - FB, FF - FB + 1024
CGS = 16512
XB, HT, ACT, W1P, W2P = 0x500000, 0x900000, 0xC00000, 0x1300000, 0x1700000
WS_BYTES = 0x10000000
OOB = 0x40000000
NCG = 214
TK, TKCH, CS = 0, 16640, 4160
UL, ULCH = 49920, 4608
XL = UL + 3 * ULCH
TAB, TABW, TROW, TOF = 77568, 17408, 272, 51000
PK = 129792
XS, XSP = 148224, 2592
LNS = 158592
PART = 122880
SLOT = [81920, 122880, 40960]
SC = 0
RED, RED4 = 0, 49152
LDS_BYTES = 163840
SPIN = 1 << 15
LOG2E = 0x3fb8aa3b
INV640 = 0x3acccccd
pX, pAre, pAim, pBre, pBim, pCre, pCim, pLdt, pDsk, pBx, pWg, pWu, pWd, pOut, pDbg, pWs = [4 + 2 * i for i in range(16)]
WSR, OUTR = 36, 40
sTag, sWv, sMt, sNt, sHb, sN2 = 44, 45, 46, 47, 48, 49
sT = list(range(50, 64))
sXb = 64
sPkS, sPkF, sFl, sCnt = 66, 67, 68, 69
sStamp = 70
sHw = 3
sW1 = [6, 7, 8, 9]
sAct, sHsrc, sLd, sOut, sFa, sW2, sRep, sAin, sFAc = 10, 11, 12, 13, 14, 15, 16, 17, 18
ws = s(WSR, 4)

k = K()
SEL = [a[6:].split(",") for a in sys.argv if a.startswith("--sel=")]
SEL = SEL[0] if SEL else ["start"]
assert len(SEL) <= 16
def stamp(name):
    if STAMP and name in SEL: k(f"{'s_memtime' if opt('cyc', 0) else 's_memrealtime'} {s(sStamp + 2*SEL.index(name), 2)}")
def stampc(name): return lambda: stamp(name)
def lines(t): return [l.strip() for l in t.split("\n") if l.strip()]

vLane, vN, vG, vL16 = 1, 2, 3, 4
vTagv, vRep, vFl0 = 11, 30, 31

def tagtest(checks, vacc, ref):
    if len(checks) == 1:
        k(f"v_cmp_ne_u32 vcc, {s(ref)}, {v(checks[0])}"); return
    k(f"v_xor_b32 {v(vacc)}, {s(ref)}, {v(checks[0])}")
    for c in checks[1:]:
        k(f"v_bitop3_b32 {v(vacc)}, {v(vacc)}, {v(c)}, {s(ref)} bitop3:0xf6")
    k(f"v_cmp_ne_u32 vcc, 0, {v(vacc)}")
def check(loads, checks, vacc, nl=64, cnt=0, ref=None):
    L, D = k.lab("Lpoll"), k.lab("Lgot")
    if ref is None:
        ref = sTag
        if cnt: ref = sT[0]; k(f"s_add_u32 {s(ref)}, {s(sTag)}, {cnt}")
    tagtest(checks, vacc, ref)
    if nl <= 31: k(f"s_and_b64 vcc, vcc, {hex((1 << nl) - 1)}\ns_cbranch_scc0 {D}")
    elif nl < 64: k(f"s_bfm_b64 {s(sT[2],2)}, {nl}, 0\ns_and_b64 vcc, vcc, {s(sT[2],2)}\ns_cbranch_scc0 {D}")
    else: k(f"s_cbranch_vccz {D}")
    st = k.snap()
    k(f"s_mov_b32 {s(sCnt)}, 0")
    k.label(L)
    k("s_mov_b64 exec, vcc")
    if SLEEP: k(f"s_sleep {SLEEP}")
    k(loads)
    k("s_waitcnt vmcnt(0)")
    tagtest(checks, vacc, ref)
    k(f"""s_mov_b64 exec, -1
    s_cbranch_vccz {D}
    s_add_u32 {s(sCnt)}, {s(sCnt)}, 1
    s_cmp_lt_u32 {s(sCnt)}, {SPIN}
    s_cbranch_scc1 {L}""")
    k.label(D)
    k.merge(st)
def apoll(d, va, off, soff=None):
    return [f"v_mov_b32 {v(d)}, 0", f"buffer_atomic_add {v(d)}, {v(va)}, {ws}, {s(sRep if soff is None else soff)} offen offset:{off} sc0 sc1"]
vOne = 27
def flag(tok, soff, off=0, rep=True):
    return [lambda: k.wait_tok(tok), f"buffer_atomic_add {v(vOne)}, {v(vRep if rep else vFl0)}, {ws}, {s(soff)} offen offset:{off} sc1"]
def tagflag(tok, soff):
    return [lambda: k.wait_tok(tok), f"buffer_atomic_swap {v(vTagv)}, {v(vRep)}, {ws}, {s(soff)} offen sc1"]
def apoll2(d, va, off):
    return [f"v_mov_b32 {v(d)}, 0", f"v_mov_b32 {v(d+1)}, 0", f"buffer_atomic_add_x2 {v(d,2)}, {v(va)}, {ws}, {s(sRep)} offen offset:{off} sc0 sc1"]
def bar(): k("s_waitcnt lgkmcnt(0)\ns_barrier")
def cmul(d, a, b):
    return [f"v_pk_mul_f32 {v(d,2)}, {v(a,2)}, {v(b,2)} op_sel:[0,0] op_sel_hi:[0,1]",
            f"v_pk_fma_f32 {v(d,2)}, {v(a,2)}, {v(b,2)}, {v(d,2)} op_sel:[1,1,0] op_sel_hi:[1,0,1] neg_lo:[1,0,0]"]
def zipper(*ls):
    out = []; ls = [list(l) for l in ls]
    while any(ls):
        for l in ls:
            if l: out.append(l.pop(0))
    return out
def mf16(d, a, b, c=None):
    return f"v_mfma_f32_16x16x32_bf16 {d}, {a}, {b}, {d if c is None else c}"
def groups(d):
    out = []; g_ = []
    for x in d:
        g_.append(x)
        if _kind(x) == "mem": out.append(g_); g_ = []
    assert not g_
    return out

TAPS = [list(range(-3, 8)), [-3, -2, 0, 4, 6], [-3, 0, 4, 5], [-3, 0, 4, 5]]
def tapsrc(rho, tap):
    if rho == 0: return tap
    if rho == 1: return -3 if tap == -3 else -2 if tap == -2 else 0 if tap <= 2 else 4 if tap <= 5 else 6
    return -3 if tap == -3 else 0 if tap <= 3 else 4 if tap == 4 else 5
def rb(x):
    u = int(np.float32(x).view(np.uint32))
    return int(np.uint32(((u + 0x7FFF + ((u >> 16) & 1)) >> 16) << 16).view(np.float32))
H = list(range(8)) + [256,258,260,262,512,516,768,772,1024,1280,1536,1792,2048]
idx = {}
for i, h in enumerate(H):
    for j in range(32): idx.setdefault(h + 8*j, (i, j))
def kaddr(l):
    if l < 0: return 3072
    i, j = idx[rb(l)]
    return (4*(i >> 3) + (i & 3))*256 + ((i >> 2) & 1)*128 + 4*j
k.raw(".p2align 12\n.type Ltab,@object\nLtab:")
rows_ = []
for lane in range(64):
    row = []
    for rho in range(4):
        x = 64*rho + lane
        for tap in range(-3, 8): assert kaddr(8*x + tap) == kaddr(8*x + tapsrc(rho, tap)), (rho, lane, tap)
        row += [kaddr(8*x + tp) for tp in TAPS[rho]]
    rows_.append(row)
for part in range(3):
    for lane in range(64): k.raw(".short " + ",".join(map(str, rows_[lane][8*part:8*part+8])))
k.raw(".fill 64, 4, 0\n.size Ltab, .-Ltab")

k.begin(NAME + "_kernel")
stamp("start")
vTabl, vPar, vLdt, vDs = 44, 56, 74, 75
k(f"""
s_load_dwordx16 s[4:19], s[0:1], 0
s_load_dwordx16 s[20:35], s[0:1], 64
s_cmp_lt_u32 s2, 256
s_cbranch_scc1 Lstart
s_endpgm
Lstart:
s_getpc_b64 {s(sT[0],2)}
Lpc:
v_and_b32 {v(vN)}, 15, v0
s_lshr_b32 {s(sT[5])}, s2, 3
s_lshl_b32 {s(sT[4])}, {s(sT[5])}, 11
v_lshl_add_u32 v5, {v(vN)}, 7, {s(sT[4])}
v_min_u32 v5, Lcode_end-Lpc-4, v5
v_lshrrev_b32 v6, 6, v0
global_load_dword v172, v5, {s(sT[0],2)}
v_readfirstlane_b32 {s(sWv)}, v6
v_and_b32 {v(vLane)}, 63, v0
v_lshlrev_b32 {v(vL16)}, 4, {v(vLane)}
s_mul_i32 {s(sT[6])}, s2, 3
s_cmp_eq_u32 {s(sWv)}, 3
s_cselect_b32 {s(sT[7])}, 0, {s(sWv)}
s_cselect_b32 {s(sT[10])}, 255, s2
s_add_u32 {s(sT[6])}, {s(sT[6])}, {s(sT[7])}
s_min_u32 {s(sT[8])}, {s(sT[6])}, 639
s_mul_i32 {s(sT[9])}, {s(sT[8])}, 384
v_lshl_add_u32 v6, {v(vLane)}, 1, {s(sT[9])}
s_lshl_b32 {s(sT[9])}, {s(sT[8])}, 1
v_mov_b32 v7, {s(sT[9])}
""")
for i in range(9): k(f"v_mov_b64 {v(vPar+2*i,2)}, 0")
k(f"""
s_lshl2_add_u32 {s(sT[4])}, s2, {s(sWv)}
s_mul_i32 {s(sT[4])}, {s(sT[4])}, 2560
s_mul_i32 m0, {s(sWv)}, {XSP}
s_add_u32 m0, m0, {XS}
s_add_u32 {s(sXb)}, {s(pX)}, {s(sT[4])}
s_addc_u32 {s(sXb+1)}, {s(pX+1)}, 0
s_load_dword {s(sTag)}, {s(pWs,2)}, 0
""")
k(f"global_load_lds_dwordx4 {v(vL16)}, {s(sXb,2)}", tok="x")
k(f"global_load_lds_dwordx4 {v(vL16)}, {s(sXb,2)} offset:1024", tok="x")
k("s_mov_b32 exec_hi, 0")
k(f"global_load_lds_dwordx4 {v(vL16)}, {s(sXb,2)} offset:2048", tok="x")
k(f"s_mov_b32 exec_hi, -1\ns_cmp_ge_u32 {s(sT[10])}, {NCG}\ns_cbranch_scc1 Lother")
sDisp = k.snap()

vQ, vCgl, vXo, vSel, vSel3, vRo, vRo3, vLw, vLr = 150, 151, 152, 144, 147, 76, 77, 156, 157
vLa, vLb, vLr2, vM, vDI, vHc, vPt = 8, 9, 10, 12, 16, 28, 29
vW1a, vW1d = 22, 20
vFa, vFd = 23, 24
vRaw, vX, vS, vSq, vXr = 84, 100, 124, 126, 240
def common_setup(other=False):
    if STAMP:
        for i, nm in enumerate(SEL):
            if nm not in ("start", "iss"): k(f"s_mov_b32 {s(sStamp+2*i)}, 0")
    k(f"""
    s_mov_b32 {s(WSR)}, {s(pWs)}
    s_mov_b32 {s(WSR+1)}, {s(pWs+1)}
    s_mov_b32 {s(WSR+2)}, {WS_BYTES}
    s_mov_b32 {s(WSR+3)}, 0x20000
    """)
    if other:
        k(f"""v_lshlrev_b32 v63, 7, {v(vLane)}
        s_lshl_b32 {s(sT[9])}, s2, 7
        s_sub_u32 {s(sT[9])}, {16*RS}, {s(sT[9])}
        s_cmp_lt_u32 s2, 64
        s_cselect_b32 {s(sT[9])}, {s(sT[9])}, {OOB}
        v_writelane_b32 v63, {s(sT[9])}, 2
        v_cmp_gt_u32 vcc, 3, {v(vLane)}
        v_mov_b32 v6, {OOB}
        v_mov_b32 v5, 0
        v_cndmask_b32 v63, v6, v63, vcc
        v_lshlrev_b32 v62, 6, {v(vLane)}
        v_add_u32 v62, {FF - FB - 192}, v62
        v_cndmask_b32 v62, v62, v63, vcc
        v_cmp_gt_u32 vcc, 7, {v(vLane)}
        v_cndmask_b32 v62, v6, v62, vcc
        s_lshl_b32 {s(sT[12])}, s2, 8
        s_add_u32 {s(sT[12])}, {s(sT[12])}, {FB}
        s_cmp_eq_u32 {s(sWv)}, 3
        s_cselect_b32 {s(sT[12])}, {s(sT[12])}, {OOB}
        buffer_atomic_add v5, v62, {ws}, {s(sT[12])} offen sc1""")
    k(f"""
    s_mov_b32 {s(OUTR)}, {s(pOut)}
    s_mov_b32 {s(OUTR+1)}, {s(pOut+1)}
    s_mov_b32 {s(OUTR+2)}, 2621440
    s_mov_b32 {s(OUTR+3)}, 0x20000
    v_mov_b32 v6, {OOB}
    v_mov_b32 {v(vOne)}, 1
    v_and_b32 {v(vQ)}, 3, v0
    v_lshrrev_b32 {v(vCgl)}, 2, v0
    v_mul_u32_u24 v5, 6, {v(vCgl)}
    v_and_b32 v5, -4, v5
    v_mul_u32_u24 {v(vXo)}, {XSP}, {v(vQ)}
    v_add_u32 {v(vXo)}, {XS}, {v(vXo)}
    v_min_u32 {v(vXo+2)}, 120, v5
    v_add_u32 {v(vXo+2)}, 1152, {v(vXo+2)}
    v_add_u32 {v(vXo+2)}, {v(vXo+2)}, {v(vXo)}
    v_add_u32 {v(vXo)}, {v(vXo)}, v5
    v_add_u32 {v(vXo+1)}, 1280, {v(vXo)}
    v_add_u32 {v(vXo+3)}, 1280, {v(vXo+2)}
    s_and_b32 {s(sT[4])}, s2, 7
    s_lshr_b32 {s(sMt)}, {s(sT[4])}, {MB-1}
    s_lshl_b32 {s(sMt)}, {s(sMt)}, {MB}
    s_and_b32 {s(sT[10])}, {s(sT[5])}, {(1<<MB)-1}
    s_add_u32 {s(sMt)}, {s(sMt)}, {s(sT[10])}
    s_and_b32 {s(sNt)}, {s(sT[4])}, {(1<<(MB-1))-1}
    s_lshl_b32 {s(sNt)}, {s(sNt)}, {5-MB}
    s_lshr_b32 {s(sT[10])}, {s(sT[5])}, {MB}
    s_add_u32 {s(sNt)}, {s(sNt)}, {s(sT[10])}
    s_lshr_b32 {s(sHb)}, {s(sNt)}, 3
    s_and_b32 {s(sN2)}, {s(sNt)}, 7
    s_and_b32 {s(sRep)}, {s(sT[5])}, 15
    s_mul_i32 {s(sRep)}, {s(sRep)}, {RS}
    s_add_u32 {s(sRep)}, {s(sRep)}, {FB}
    v_and_b32 v5, 1, {v(vCgl)}
    v_mul_u32_u24 v5, 0x0202, v5
    v_lshlrev_b32 v5, 16, v5
    v_add_u32 {v(vSel)}, 0x01000c0c, v5
    v_add_u32 {v(vSel+1)}, 0x03020c0c, v5
    v_add_u32 {v(vSel+2)}, 0x05040c0c, v5
    v_mov_b32 v5, 0x0c0c0c0c
    v_cmp_gt_u32 vcc, 21, {v(vCgl)}
    v_mul_u32_u24 {v(vRo)}, {CGS}, {v(vCgl)}
    v_lshl_add_u32 {v(vRo)}, {v(vQ)}, 4, {v(vRo)}
    v_cndmask_b32 {v(vSel3)}, v5, {v(vSel)}, vcc
    v_cndmask_b32 {v(vSel3+1)}, v5, {v(vSel+1)}, vcc
    v_cndmask_b32 {v(vSel3+2)}, v5, {v(vSel+2)}, vcc
    v_cmp_eq_u32 vcc, 21, {v(vCgl)}
    v_mov_b32 v5, 0x07060c0c
    v_lshrrev_b32 {v(vLw)}, 1, {v(vG)}
    v_cndmask_b32 {v(vSel3)}, {v(vSel3)}, v5, vcc
    v_cmp_gt_u32 vcc, 22, {v(vCgl)}
    v_and_b32 v5, 1, {v(vG)}
    v_lshl_add_u32 {v(vLw)}, v5, 1, {v(vLw)}
    v_cndmask_b32 {v(vRo3)}, v6, {v(vRo)}, vcc
    v_cmp_ne_u32 vcc, 0, {v(vLane)}
    v_lshlrev_b32 {v(vLw)}, 2, {v(vLw)}
    v_lshlrev_b32 {v(vLr)}, 6, {v(vQ)}
    v_cndmask_b32 {v(vFl0)}, 0, v6, vcc
    v_cmp_gt_u32 vcc, 16, {v(vLane)}
    v_mul_u32_u24 {v(vRep)}, {RS}, {v(vLane)}
    v_add_u32 {v(vLr)}, {LNS}, {v(vLr)}
    v_cndmask_b32 {v(vRep)}, v6, {v(vRep)}, vcc
    s_lshl_b32 {s(sT[4])}, {s(sWv)}, 4
    v_add3_u32 {v(vLw)}, {v(vLw)}, {v(vLr)}, {s(sT[4])}
    s_lshr_b32 {s(sT[9])}, {s(sNt)}, 1
    s_mul_i32 {s(sT[9])}, {s(sT[9])}, 320
    s_add_u32 {s(sT[9])}, {s(sT[9])}, {oW1}
    s_lshl_b32 {s(sT[10])}, {s(sWv)}, 10
    v_cmp_gt_u32 vcc, 40, {v(vLane)}
    v_lshl_add_u32 {v(vW1a)}, {v(vLane)}, 3, {s(sT[9])}
    v_lshl_add_u32 {v(vFa)}, {v(vLane)}, 7, {s(sT[10])}
    v_cndmask_b32 {v(vW1a)}, v6, {v(vW1a)}, vcc
    v_cmp_gt_u32 vcc, 8, {v(vLane)}
    v_cndmask_b32 {v(vFa)}, v6, {v(vFa)}, vcc
    s_lshl2_add_u32 {s(sT[9])}, {s(sNt)}, {s(sWv)}
    s_mul_i32 {s(sT[9])}, {s(sT[9])}, {20*3072}
    s_add_u32 {s(sT[9])}, {s(sT[9])}, {W1P}""")
    for e in range(4):
        k(f"s_xor_b32 {s(sW1[e])}, {s(sWv)}, {e}\ns_mul_i32 {s(sW1[e])}, {s(sW1[e])}, 3072\ns_add_u32 {s(sW1[e])}, {s(sW1[e])}, {s(sT[9])}")
    k(f"""
    s_mul_i32 {s(sLd)}, {s(sWv)}, 10240
    s_mul_i32 {s(sHsrc)}, {s(sMt)}, 163840
    s_add_u32 {s(sHsrc)}, {s(sHsrc)}, {s(sLd)}
    s_add_u32 {s(sHsrc)}, {s(sHsrc)}, {HT}
    s_mul_i32 {s(sT[9])}, {s(sT[7])}, {TKCH}
    s_mul_i32 {s(sT[10])}, {s(sT[7])}, {ULCH}
    v_and_b32 v5, 3, {v(vN)}
    v_mul_u32_u24 {v(vLa)}, {CS}, v5
    v_lshrrev_b32 v5, 2, {v(vN)}
    v_lshlrev_b32 v6, 1, {v(vG)}
    v_sub_u32 v5, v5, v6
    v_add_u32 v5, 7, v5
    v_lshl_add_u32 {v(vLa)}, v5, 3, {v(vLa)}
    v_add_u32 {v(vLa)}, {s(sT[9])}, {v(vLa)}
    v_lshl_add_u32 {v(vLr2)}, {v(vN)}, 5, {s(sT[10])}
    v_lshl_add_u32 {v(vLb)}, {v(vG)}, 4, {v(vLr2)}
    v_add_u32 {v(vLb)}, {UL}, {v(vLb)}
    s_lshl_b32 {s(sT[9])}, {s(sT[7])}, 12
    s_add_u32 {s(sT[9])}, {s(sT[9])}, {PART}
    v_add_u32 {v(vPt)}, {s(sT[9])}, {v(vL16)}""")
def ln1(other):
    k(f"""s_add_u32 {s(sTag)}, {s(sTag)}, 0x9E3779B1
    v_mov_b32 {v(vTagv)}, {s(sTag)}
    s_lshl_b32 {s(sT[4])}, s2, 6
    s_add_u32 {s(sT[5])}, {s(sT[4])}, {XB}""")
    for rho in range(4): k(f"v_mov_b32 {v(vXr+4*rho+3)}, {s(sTag)}")
    if other:
        for j in range(4): k(f"v_mov_b32 {v(64+j)}, {s(sTag)}")
        k(f"buffer_store_dwordx4 v[64:67], v63, {ws}, {s(sT[12])} offen sc1", tok="init")
    stamp("ln0")
    k.wait_tok("x")
    k("s_barrier")
    for rho in range(4):
        for e in range(2):
            o = 96*rho if rho < 3 else 0
            k(f"ds_read2_b32 {v(vRaw + 4*rho + 2*e, 2)}, {v(vXo + e + (2 if rho == 3 else 0))} offset0:{o} offset1:{o+1}")
    for rho in range(4):
        for c in range(3):
            for e in range(2):
                r = vRaw + 4*rho + 2*e
                k(f"v_perm_b32 {v(vX + 6*rho + 2*c + e)}, {v(r+1)}, {v(r)}, {v((vSel if rho < 3 else vSel3) + c)}")
    for i in range(12):
        x = v(vX + 2*i, 2)
        if i == 0: k(f"v_pk_mul_f32 {v(vSq,2)}, {x}, {x}")
        else:
            k(f"v_pk_fma_f32 {v(vSq,2)}, {x}, {x}, {v(vSq,2)}")
            k(f"v_pk_add_f32 {v(vS,2)}, {v(vX,2) if i == 1 else v(vS,2)}, {x}")
    cv = [f"v_cvt_pk_bf16_f32 {v(vXr+4*(i//3)+i%3)}, {v(vX+2*i)}, {v(vX+2*i+1)}" for i in range(12)]
    k(cv[:1] + [f"v_permlane32_swap_b32 {v(vSq)}, {v(vSq+1)}", f"v_permlane32_swap_b32 {v(vS)}, {v(vS+1)}",
       f"v_add_f32 {v(vSq)}, {v(vSq)}, {v(vSq+1)}", f"v_add_f32 {v(vS)}, {v(vS)}, {v(vS+1)}"] + cv[1:3] +
      [f"v_permlane16_swap_b32 {v(vS)}, {v(vSq)}", f"v_add_f32 {v(vS)}, {v(vS)}, {v(vSq)}"] + cv[3:5] +
      [f"v_add_f32_dpp {v(vS)}, {v(vS)}, {v(vS)} row_ror:8 row_mask:0xf bank_mask:0xf"] + cv[5:7] +
      [f"v_add_f32_dpp {v(vS)}, {v(vS)}, {v(vS)} row_ror:4 row_mask:0xf bank_mask:0xf", f"ds_write_b32 {v(vLw)}, {v(vS)}"] + cv[7:])
    bar()
    stamp("lnb")
def x_stores():
    for rho in range(4):
        k(f"buffer_store_dwordx4 {v(vXr+4*rho,4)}, {v(vRo if rho < 3 else vRo3)}, {ws}, {s(sT[5])} offen sc1")
        if rho < 3: k(f"s_add_u32 {s(sT[5])}, {s(sT[5])}, {64*CGS}")
    stamp("xst")
w1poll = apoll2(vW1d, vW1a, 0)
rdypoll = apoll2(56, 61, 0) + apoll2(58, 61, 512)
def rdy_chk(): check(rdypoll, [56, 57, 58, 59], 5); stamp('rdy')
def w1_ready():
    check(w1poll, [vW1d, vW1d+1], 5, 40); stamp("wf1")
W1L = []
for kk in range(20):
    for t in range(3):
        e = kk & 3
        x = [f"s_add_u32 {s(sW1[e])}, {s(sW1[e])}, {4*3072}"] if (t == 0 and kk >= 4) else []
        W1L.append(x + [f"buffer_load_dwordx4 {ar(12*kk+4*t,4)}, {v(vL16)}, {ws}, {s(sW1[e])} offen offset:{1024*t} sc1"])
def hflag_ld(stage): return apoll(vFd, vFa, oH + 4*stage)
def hflag_chk(stage):
    check(hflag_ld(stage), [vFd], 5, 8, 20); stamp("hf" + "AB"[stage])
def h_dma(c):
    L = []
    for i in range(10):
        if i % 4 == 0:
            L += [f"s_add_u32 m0, {s(sLd)}, {SLOT[c % 3] + 1024*i}", f"s_add_u32 {s(sT[4])}, {s(sHsrc)}, {40960*c + 1024*i}"]
        L.append((f"buffer_load_dwordx4 {v(vL16)}, {ws}, {s(sT[4])} offen offset:{1024*(i % 4)} sc1 lds", f"h{c}"))
    return groups(L)

for t in range(3):
    for i, p in enumerate([pAre, pAim, pBre, pBim, pCre, pCim]):
        k(f"global_load_short_d16_hi {v(vPar + 6*t + i)}, v6, {s(p,2)} offset:{128*t}")
vPs, vPa, vPst = 176, 32, 34
assert all((p*2731) >> 16 == p // 24 for p in range(192))
k(f"""
s_sub_u32 {s(sT[2])}, {s(sT[0])}, Lpc-Ltab
s_subb_u32 {s(sT[3])}, {s(sT[1])}, 0
global_load_short_d16_hi {v(vLdt)}, v7, {s(pLdt,2)}
global_load_ushort {v(vDs)}, v7, {s(pDsk,2)}
global_load_dwordx4 {v(vTabl,4)}, {v(vL16)}, {s(sT[2],2)}
global_load_dwordx4 {v(vTabl+4,4)}, {v(vL16)}, {s(sT[2],2)} offset:1024
global_load_dwordx4 {v(vTabl+8,4)}, {v(vL16)}, {s(sT[2],2)} offset:2048
s_lshr_b32 {s(sT[9])}, {s(sT[8])}, 5
s_bfe_u32 {s(sT[10])}, {s(sT[8])}, 0x20003
s_and_b32 {s(sT[11])}, {s(sT[8])}, 7
s_lshl3_add_u32 {s(sT[12])}, {s(sT[9])}, {s(sT[10])}
s_mul_i32 {s(sT[12])}, {s(sT[12])}, {4*3072}
s_mul_i32 {s(sT[13])}, {s(sT[11])}, 384
s_add_u32 {s(sT[12])}, {s(sT[12])}, {s(sT[13])}""")
for e in range(3):
    k(f"""v_add_u32 v5, {64*e}, {v(vLane)}
    v_mul_u32_u24 v6, 2731, v5
    v_lshrrev_b32 v7, 18, v6
    v_lshrrev_b32 v6, 16, v6
    v_mul_u32_u24 v6, 2688, v6
    v_mul_u32_u24 v7, 36864, v7
    v_lshl_add_u32 v5, v5, 4, {s(sT[12])}
    v_add3_u32 {v(vPs+e)}, v5, v6, v7""")
k(f"s_mul_i32 {s(sT[13])}, {s(sWv)}, 6144\ns_add_u32 {s(sT[13])}, {s(sT[13])}, {PK}")
for mat in range(2):
    for e in range(3):
        k(f"s_add_u32 m0, {s(sT[13])}, {mat*3072 + e*1024}")
        k(f"global_load_lds_dwordx4 {v(vPs+e)}, {s(pWg if mat == 0 else pWu, 2)}", tok="w1dma")
stamp("iss")
vDt, vRdA, vAcc = 78, 82, 84
k(f"""
s_mul_i32 {s(sPkS)}, {s(sT[11])}, 160
s_add_u32 {s(sPkS)}, {s(sPkS)}, {s(sT[9])}
s_mul_i32 {s(sPkS)}, {s(sPkS)}, 3072
s_lshl_b32 {s(sT[10])}, {s(sT[10])}, 8
s_add_u32 {s(sPkS)}, {s(sPkS)}, {s(sT[10])}
s_add_u32 {s(sPkS)}, {s(sPkS)}, {W1P}
s_mul_i32 {s(sPkF)}, {s(sT[11])}, 80
s_lshr_b32 {s(sT[10])}, {s(sT[8])}, 3
s_add_u32 {s(sPkF)}, {s(sPkF)}, {s(sT[10])}
s_lshl_b32 {s(sPkF)}, {s(sPkF)}, 2
s_add_u32 {s(sPkF)}, {s(sPkF)}, {FB + oW1}
v_lshrrev_b32 {v(vG)}, 4, {v(vLane)}
v_bfe_u32 v5, {v(vLane)}, 1, 1
v_mul_u32_u24 {v(vPa)}, 3072, v5
v_bfe_u32 v5, {v(vLane)}, 2, 2
v_mul_u32_u24 v5, 384, v5
v_add3_u32 {v(vPa)}, {v(vPa)}, v5, {s(sT[13])}
v_mad_u32_u24 {v(vPa)}, {v(vG)}, 48, {v(vPa)}
v_and_b32 v5, 1, {v(vLane)}
v_lshl_add_u32 {v(vPa+1)}, v5, 3, {v(vPa)}
v_lshl_add_u32 {v(vPa)}, v5, 4, {v(vPa)}
v_mul_u32_u24 v6, {20*3072}, {v(vG)}
v_lshl_add_u32 {v(vPst)}, {v(vN)}, 4, v6
s_mul_i32 {s(sT[4])}, {s(sWv)}, {TABW}
s_add_u32 m0, {s(sT[4])}, {TAB - TOF}
s_add_u32 {s(sT[13])}, {s(sT[4])}, {TAB}
v_and_b32 v5, 31, {v(vLane)}
v_mul_u32_u24 {v(vRdA)}, {TROW}, v5
v_lshrrev_b32 v5, 5, {v(vLane)}
v_lshl_add_u32 {v(vRdA)}, v5, 4, {v(vRdA)}
v_add_u32 {v(vRdA)}, {s(sT[13])}, {v(vRdA)}
v_mov_b32 {v(vDt)}, {LOG2E}
v_mov_b32 {v(vDt+1)}, 0.15915494
v_mov_b32 v5, 0x3f80
ds_write_addtid_b32 v5 offset:{TOF}
""")
common_setup()
ln1(False)
if XEARLY == 1: x_stores()
vA, vC, vZ1, vZ2, vZ4, vZ8, vZ16, vZ256 = 100, 102, 104, 106, 108, 110, 112, 114
vE, vPkd, vF, vPd = 116, 140, 192, 144
k(f"""v_and_b32 {v(vLdt)}, 0xffff0000, {v(vLdt)}
v_mul_f32 {v(vLdt)}, {v(vLdt)}, {v(vDt)}
v_exp_f32 {v(vLdt)}, {v(vLdt)}""")
if XEARLY == 2: x_stores()
k(f"v_cvt_pk_bf16_f32 {v(vDt+2)}, 0, {v(vLdt)}")
def put(src, row):
    return [f"v_cvt_pk_bf16_f32 {v(vPkd+row-1)}, {v(src)}, {'-' if row >= 32 else ''}{v(src+1)}"]
def kg_mm(t):
    return [f"v_mfma_f32_32x32x16_bf16 {v(vAcc,16)}, {v(vF+8*kk,4)}, {v(vF+8*kk+4,4)}, {'0' if (t == 0 and kk == 0) else v(vAcc,16)}" for kk in range(8)]
PKT = opt("pkt", 1); PKF = opt("pkf", PKT); XBAR = opt("xbar", 2)
for t in range(3):
    P = vPar + 6*t
    if t == PKT:
        k.wait_tok("w1dma")
        for a_ in range(2):
            for tt in range(3):
                for hf in range(2):
                    k(f"ds_read_b64_tr_b16 {v(vPd+12*a_+4*tt+2*hf,2)}, {v(vPa + (tt == 2))} offset:{1536*hf + 192*a_ + (8*tt if tt < 2 else 32)}")
    k(f"""v_pk_mul_f32 {v(vA,2)}, {v(P,2)}, {v(vDt+2,2)} op_sel_hi:[1,0]
    v_pk_mul_f32 {v(P+2,2)}, {v(P+2,2)}, {v(vDt+2,2)} op_sel_hi:[1,0]
    v_pk_mul_f32 {v(vA,2)}, {v(vA,2)}, {v(vDt,2)}""")
    cm = cmul(vC, P+4, P+2)
    k([cm[0], f"v_fract_f32 {v(vA+1)}, {v(vA+1)}", f"v_exp_f32 {v(vA)}, {v(vA)}", f"v_cos_f32 {v(vZ1)}, {v(vA+1)}", f"v_sin_f32 {v(vZ1+1)}, {v(vA+1)}", cm[1],
       f"v_pk_mul_f32 {v(vZ1,2)}, {v(vZ1,2)}, {v(vA,2)} op_sel_hi:[1,0]"])
    ev = [vE, vE+2]; od = [vE+4, vE+6]; h0 = [vE+8, vE+10]; hb = [vE+12, vE+14]; hx = [vE+16, vE+18, vE+20]
    cH = put(vC, 32); prev = vC
    for j in range(1, 8):
        d = h0[j % 2]; cH += cmul(d, prev, vZ1) + put(d, 32+j); prev = d
    sq = cmul(vZ2, vZ1, vZ1) + cmul(vZ4, vZ2, vZ2) + cmul(vZ8, vZ4, vZ4) + cmul(vZ16, vZ8, vZ8)
    k(zipper(sq, cH[:8])); cH = cH[8:]
    if t == PKT:
        for a_ in range(2):
            if a_: k(f"s_add_u32 {s(sPkS)}, {s(sPkS)}, {80*3072}")
            for tt in range(3):
                k(f"buffer_store_dwordx4 {v(vPd+12*a_+4*tt,4)}, {v(vPst)}, {ws}, {s(sPkS)} offen offset:{1024*tt} sc1", tok="w1st")
        stamp("pk1")
    cE = put(vZ16, 2); prev = vZ16; cut = None
    for j in range(4, 32, 2):
        d = ev[(j//2) % 2]; cE += cmul(d, prev, vZ16) + put(d, j); prev = d
        if j == 16: cE += cmul(vZ256, d, d); cut = len(cE)
    cO = put(vZ8, 1); prev = vZ8
    for j in range(3, 32, 2):
        d = od[(j//2) % 2]; cO += cmul(d, prev, vZ16) + put(d, j); prev = d
    cB = []; prev = vC
    rows = {1: 8, 2: 12, 3: 14, 4: 16, 5: 17, 6: 18, 7: 19, 8: 20}
    for j in range(1, 9):
        d = hb[j % 2]; cB += cmul(d, prev, vZ256) + put(d, 32+rows[j]); prev = d
        if j == 1:
            cB += cmul(hx[0], d, vZ2) + put(hx[0], 32+9) + cmul(hx[1], d, vZ4) + put(hx[1], 32+10) + cmul(hx[2], hx[0], vZ4) + put(hx[2], 32+11)
        elif j in (2, 3):
            cB += cmul(hx[0], d, vZ4) + put(hx[0], 32+rows[j]+1)
    k(zipper(cE[:cut], cH + cO[:10])); cO = cO[10:]
    k(zipper(cB, cO, cE[cut:]))
    if 2*t == XBAR: k("s_barrier")
    wr = [f"ds_write_addtid_b32 {v(vPkd+r-1)} offset:{TOF + r*TROW}" for r in range(1, 53)]
    if t == 0:
        if XEARLY == 0: x_stores()
        k(wr)
    else: weave2(k, kg_mm(t-1), wr, [], slots=6)
    for kk in range(8):
        k(f"ds_read_b128 {v(vF+8*kk,4)}, {v(vRdA)} offset:{32*TROW + 32*kk}")
        k(f"ds_read_b128 {v(vF+8*kk+4,4)}, {v(vRdA)} offset:{32*kk}")
    if t == PKF: k(tagflag("w1st", sPkF)); stamp("pkf")
    if 2*t + 1 == XBAR: k("s_barrier")
    stamp(f"kt{t}")
vG0, vO = 100, 128
fill = [f"v_add_u32_sdwa {v(vG0+i)}, {s(sT[13])}, {v(vTabl + i//2)} dst_sel:DWORD dst_unused:UNUSED_PAD src0_sel:DWORD src1_sel:WORD_{i & 1}" for i in range(24)]
fill += lines(f"""
v_and_b32 v5, 1, {v(vG)}
v_lshl_add_u32 {v(vLr2)}, v5, 4, {v(vLr2)}
v_cmp_gt_u32 vcc, 2, {v(vG)}
v_mov_b32 v6, {UL+512}
v_mov_b32 v7, {XL}
v_cndmask_b32 v6, v7, v6, vcc
v_add_u32 {v(vLr2)}, {v(vLr2)}, v6
v_mov_b32 v7, 0x3f80
v_cndmask_b32 v7, v7, {v(vDs)}, vcc
v_lshlrev_b32 v5, 3, v5
v_sub_u32 v5, {v(vN)}, v5
v_and_b32 v6, 1, v5
v_lshlrev_b32 v6, 4, v6
v_lshlrev_b32 v6, v6, v7
v_ashrrev_i32 v5, 1, v5
v_cmp_eq_u32 vcc, 0, v5
v_cmp_eq_u32 {s(sT[0],2)}, 1, v5
v_cmp_eq_u32 {s(sT[2],2)}, 2, v5
v_cndmask_b32 {v(vDI)}, 0, v6, vcc
v_cmp_eq_u32 vcc, 3, v5
v_cndmask_b32 {v(vDI+1)}, 0, v6, {s(sT[0],2)}
v_cndmask_b32 {v(vDI+2)}, 0, v6, {s(sT[2],2)}
v_cndmask_b32 {v(vDI+3)}, 0, v6, vcc
v_lshrrev_b32 v5, 2, {v(vLane)}
v_mul_u32_u24 v5, 163840, v5
v_and_b32 v6, 3, {v(vLane)}
s_bfe_u32 {s(sT[9])}, {s(sT[6])}, 0x10002
s_lshl_b32 {s(sT[9])}, {s(sT[9])}, 1
s_lshl_b32 {s(sT[10])}, {s(sT[6])}, 6
s_mul_i32 {s(sFl)}, {s(sT[6])}, 3277
s_lshr_b32 {s(sFl)}, {s(sFl)}, 16
s_lshl_b32 {s(sFl)}, {s(sFl)}, 7
s_add_u32 {s(sFl)}, {s(sFl)}, {FB + oH}
s_cmp_lt_u32 {s(sT[6])}, 640
s_cselect_b32 {s(sT[10])}, {s(sT[10])}, {OOB}
s_cselect_b32 {s(sFl)}, {s(sFl)}, {OOB}
v_xor_b32 v7, {s(sT[9])}, v6
v_lshl_add_u32 v7, v7, 4, v5
v_add_u32 {v(vHc)}, {s(sT[10])}, v7
s_mul_i32 {s(sT[4])}, {s(sWv)}, {TKCH}
v_add_u32 v7, {s(sT[4])}, {v(vL16)}
v_mov_b32 v6, 0""")
k(fill[:10])
sched(k, kg_mm(2), normal=[(0, fill[10:])], slots=6)
k(f"ds_write_addtid_b32 v6 offset:{TOF + 3072}")
for r in range(12): k(f"ds_write_addtid_b32 {v(vAcc+r)} offset:{TOF + 256*r}")
stamp("kg1")
gi = {}
for rho in range(4):
    for tp in TAPS[rho]:
        gi[(rho, tp)] = len(gi)
        k(f"ds_read_b32 {v(vG0+gi[(rho,tp)])}, {v(vG0+gi[(rho,tp)])}")
for rho in range(4):
    g = lambda tap: v(vG0 + gi[(rho, tapsrc(rho, tap))])
    for sg in range(4):
        o = vO + 16*rho + 4*sg
        k(f"""v_cvt_pk_bf16_f32 {v(o)}, {g(sg)}, {g(sg-1)}
        v_cvt_pk_bf16_f32 {v(o+1)}, {g(sg-2)}, {g(sg-3)}
        v_cvt_pk_bf16_f32 {v(o+2)}, {g(sg+4)}, {g(sg+3)}
        v_cvt_pk_bf16_f32 {v(o+3)}, {g(sg+2)}, {g(sg+1)}""")
    for sg in range(4):
        k(f"ds_write_b128 v7, {v(vO+16*rho+4*sg,4)} offset:{TK + sg*CS + 32 + 1024*rho}")
stamp("tp1")

vCA, vFr, vRs, vPk = 32, 72, 200, 236
def h_out(stage, tok):
    A = vCA + 16*stage; L = []
    if stage: L += [f"ds_read_b128 {v(vRs+4*j,4)}, {v(vPt)} offset:{1024*j}" for j in range(4)]
    for pr in range(2):
        p = vPk + 4*pr; a_ = A + 8*pr
        if stage: L += [f"v_pk_add_f32 {v(a_+2*j,2)}, {v(a_+2*j,2)}, {v(vRs+8*pr+2*j,2)}" for j in range(4)]
        L += [f"v_cvt_pk_bf16_f32 {v(p+j)}, {v(a_+2*j)}, {v(a_+2*j+1)}" for j in range(4)]
        L += [f"s_mov_b32 {s(sT[5])}, {HT + 40960*(2*stage + pr)}", (f"buffer_store_dwordx4 {v(p,4)}, {v(vHc)}, {ws}, {s(sT[5])} offen sc1", tok)]
    return L
def conv_code(main):
    bar()
    stamp("cv0")
    if main: jobs = [(0, r, [0,1,2,3]) for r in range(8)] + [(0, r, [4,5,6,7]) for r in range(5)] + [(0, 5, [4,5])]
    else: jobs = [(c, r, t) for c in range(3) for r, t in ((6, [4,5,6,7]), (7, [4,5,6,7]), (5, [6,7]))]
    mm = []; rd = []; urgent = []; normal = []; checks = []; touched = set(); prev0 = -1
    if main:
        for i in range(8): k(f"ds_read_b128 {v(vRs+4*i,4)}, {v(vLr2)} offset:{512*i}")
        mm = [mf16(v(vCA+4*i,4), v(vDI,4), v(vRs+4*i,4), "0") for i in range(8)]; prev0 = 0
    for nb, (c, r, tiles) in enumerate(jobs):
        base = vFr + 64*(nb % 2)
        A = lambda p: base + 4*p
        B = lambda q: base + 32 + 4*q
        acc = (lambda i: vCA + 4*i) if main else (lambda i: vCA + 16*(c % 2) + 4*(i-4))
        order = sorted([(max(p, i-p), i, p) for i in tiles for p in range(i+1)])
        R = []; seen = set(); m0 = len(mm)
        for _, i, p in order:
            due = len(mm) - opt("la", 6)
            if ("b", i-p) not in seen:
                seen.add(("b", i-p)); R.append((due, f"ds_read_b128 {v(B(i-p),4)}, {v(vLb)} offset:{c*ULCH + 512 + 64*(8*(i-p) - r) - 32}"))
            if ("a", p) not in seen:
                seen.add(("a", p)); dl = 8*p + r
                R.append((due, f"ds_read_b64 {v(A(p),2)}, {v(vLa)} offset:{TK + c*TKCH + 64*dl + 8}"))
                R.append((due, f"ds_read_b64 {v(A(p)+2,2)}, {v(vLa)} offset:{TK + c*TKCH + 64*dl}"))
            z = None if (main or (c, i) in touched) else "0"; touched.add((c, i))
            mm.append(mf16(v(acc(i),4), v(A(p),4), v(B(i-p),4), z))
        for j, (due, x) in enumerate(R):
            due = max(due, prev0)
            rd.append((prev0, min(due, prev0 + (m0-prev0)*j//len(R)), due, x))
        prev0 = m0
        if main and nb == 7:
            normal.append((len(mm)+1, [stampc("cvA")] + h_out(0, "hA")))
            normal.append((len(mm) + opt("dA", 40), flag("hA", sFl)))
        if not main and r == 5:
            wr = [f"ds_write_b128 {v(vPt)}, {v(acc(4+j),4)} offset:{4096*c + 1024*j}" for j in range(4)]
            urgent += [(len(mm) - 12 + 4*j, [wr[j]]) for j in range(2)]
            if c < 2: urgent += [(len(mm) + 3 + 4*j, [wr[2+j]]) for j in range(2)]
            else: last = wr[2:]
    n = len(mm)
    g0 = opt("w1s", 2); g1 = n - opt("dC", 10)
    urgent += [(g0 + 1 + (g1-g0-4)*j//NW1C, W1L[j]) for j in range(NW1C)]
    urgent.append((g1 - opt("dP", 45), hflag_ld(0)))
    urgent.append((g1, [lambda: hflag_chk(0)]))
    urgent += [(min(n-1, g1 + 1 + 2*j), g_) for j, g_ in enumerate(h_dma(0))]
    urgent.sort(key=lambda e: e[0])
    sched(k, mm, rd, urgent, normal)
    if not main: k(last)
    bar()
    stamp("cv1")
    if main: k(h_out(1, "hB"))
conv_code(True)
k("s_branch Lconvd")
sConvMain = k.snap()

k.restore(sDisp)
k.label("Lother")
k(f"v_lshrrev_b32 {v(vG)}, 4, {v(vLane)}\ns_mov_b32 {s(sFl)}, {OOB}")
common_setup(True)
ln1(True)
k(f"s_cmp_lg_u32 {s(sWv)}, 3\ns_cbranch_scc1 Lnostat")
s1 = k.snap()
vP, vT8 = 128, 116
for w in range(4): k(f"ds_read_b128 {v(vP+4*w,4)}, {v(vLr)} offset:{16*w}")
S_, Q_, t_ = vP, vP+2, vT8
k(f"""v_mov_b32 {v(t_+6)}, {INV640}
v_cmp_gt_u32 vcc, 4, {v(vLane)}
v_mov_b32 v6, {OOB}
s_add_u32 {s(sT[4])}, {s(sT[4])}, {STP}
v_cndmask_b32 v6, v6, {v(vL16)}, vcc
v_mov_b32 {v(t_+5)}, {s(sTag)}
v_pk_add_f32 {v(vP,2)}, {v(vP,2)}, {v(vP+4,2)}
v_pk_add_f32 {v(vP+2,2)}, {v(vP+2,2)}, {v(vP+6,2)}
v_pk_add_f32 {v(vP+8,2)}, {v(vP+8,2)}, {v(vP+12,2)}
v_pk_add_f32 {v(vP+10,2)}, {v(vP+10,2)}, {v(vP+14,2)}
v_pk_add_f32 {v(vP,2)}, {v(vP,2)}, {v(vP+8,2)}
v_pk_add_f32 {v(vP+2,2)}, {v(vP+2,2)}, {v(vP+10,2)}
v_pk_mul_f32 {v(S_,2)}, {v(S_,2)}, {v(t_+6,2)} op_sel_hi:[1,0]
v_pk_mul_f32 {v(Q_,2)}, {v(Q_,2)}, {v(t_+6,2)} op_sel_hi:[1,0]
v_pk_fma_f32 {v(Q_,2)}, {v(S_,2)}, {v(S_,2)}, {v(Q_,2)} neg_lo:[1,0,0] neg_hi:[1,0,0]
v_cvt_pk_bf16_f32 {v(t_+4)}, {v(S_)}, {v(S_+1)}
v_max_f32 {v(Q_)}, 0, {v(Q_)}
v_max_f32 {v(Q_+1)}, 0, {v(Q_+1)}
v_cvt_pk_bf16_f32 {v(Q_)}, 0, {v(Q_)}
v_cvt_pk_bf16_f32 {v(Q_+1)}, 0, {v(Q_+1)}
v_add_f32 {v(Q_)}, 0x3727c5ac, {v(Q_)}
v_add_f32 {v(Q_+1)}, 0x3727c5ac, {v(Q_+1)}
v_cvt_pk_bf16_f32 {v(Q_)}, 0, {v(Q_)}
v_cvt_pk_bf16_f32 {v(Q_+1)}, 0, {v(Q_+1)}
v_sqrt_f32 {v(Q_)}, {v(Q_)}
v_sqrt_f32 {v(Q_+1)}, {v(Q_+1)}
v_cvt_pk_bf16_f32 {v(Q_)}, 0, {v(Q_)}
v_cvt_pk_bf16_f32 {v(Q_+1)}, 0, {v(Q_+1)}
v_rcp_f32 {v(t_+2)}, {v(Q_)}
v_rcp_f32 {v(t_+3)}, {v(Q_+1)}
s_nop 0
buffer_store_dwordx4 {v(t_+2,4)}, v6, {ws}, {s(sT[4])} offen sc1
""")
k.label("Lnostat")
k.merge(s1)
x_stores()
k(f"""s_lshl_b32 {s(sT[9])}, s2, 2
s_add_u32 {s(sT[9])}, {s(sT[9])}, {FB + oRDY}
s_cmp_eq_u32 {s(sWv)}, 3
s_cselect_b32 {s(sT[9])}, {s(sT[9])}, {OOB}
v_lshlrev_b32 v61, 3, {v(vLane)}
v_add_u32 v61, {oRDY}, v61""")
k(tagflag("init", sT[9]))
k(f"s_cmp_ge_u32 s2, {NCG}\ns_cbranch_scc1 Lhelp")
sHelp = k.snap()
k(f"""v_mov_b32 v6, 0
v_mov_b32 v7, 0
v_lshlrev_b32 v60, 3, {v(vLane)}
v_lshrrev_b32 v80, 2, {v(vLane)}
v_min_u32 v80, 11, v80
v_mul_u32_u24 v80, {CS}, v80
v_and_b32 v81, 3, {v(vLane)}
v_lshl_add_u32 v80, v81, 3, v80
s_mul_i32 {s(sT[5])}, s2, {CGS}
s_add_u32 {s(sT[5])}, {s(sT[5])}, {XB}
s_mov_b32 m0, {UL}""")
for c in range(3): k(f"ds_write_b64 v60, v[6:7] offset:{UL + c*ULCH}")
k(f"ds_write_b64 v80, v[6:7] offset:{TK}")
vRx, vRt, vW = 84, 148, 212
def plane(dst, base, r0, r1):
    L = []
    for rho in range(r0, r1):
        if rho % 4 == 0: L.append(f"s_add_u32 {s(sT[4])}, {base}, {1024*rho}" if isinstance(base, str) else f"s_mov_b32 {s(sT[4])}, {base + 1024*rho}")
        L.append(f"buffer_load_dwordx4 {v(dst+4*rho,4)}, {v(vL16)}, {ws}, {s(sT[4])} offen offset:{1024*(rho % 4)} sc1")
    return L
k("s_barrier")
stamp("gx1")
LD = [plane(vRx, s(sT[5]), 4*q, 4*q+4) + plane(vRt, STP, 4*q, 4*q+4) for q in range(4)]
k(LD[0]); k(LD[1])
for r4 in range(4):
    if r4 < 2: k(LD[r4+2])
    if r4 == 1: k(rdypoll)
    if r4 == opt("wp", 2): k(w1poll)
    check(LD[r4], [b_ + 4*r + 3 for b_ in (vRx, vRt) for r in range(4*r4, 4*r4+4)], 5)
    if r4 == 0: stamp("rx1")
    if r4 == 3: stamp("rs1")
    ch = []
    for j in range(4):
        rho = 4*r4 + j; X = vRx + 4*rho; T = vRt + 4*rho; w_ = vW + 8*j
        L = [f"v_and_b32 {v(T+3)}, 0xffff0000, {v(T+2)}", f"v_lshlrev_b32 {v(T+2)}, 16, {v(T+2)}"]
        for c in range(3): L += [f"v_lshlrev_b32 {v(w_+2*c)}, 16, {v(X+c)}", f"v_and_b32 {v(w_+2*c+1)}, 0xffff0000, {v(X+c)}"]
        L += [f"v_pk_mul_f32 {v(T+2,2)}, {v(T+2,2)}, {v(T,2)}"]
        for c in range(3): L += [f"v_pk_fma_f32 {v(w_+2*c,2)}, {v(w_+2*c,2)}, {v(T,2)}, {v(T+2,2)} neg_lo:[0,0,1] neg_hi:[0,0,1]"]
        for c in range(3): L += [f"v_cvt_pk_bf16_f32 {v(T+c)}, {v(w_+2*c)}, {v(w_+2*c+1)}"]
        ch.append(L)
    k(zipper(*ch))
    for j in range(4):
        rho = 4*r4 + j
        for c in range(3):
            k(f"ds_write_addtid_b32 {v(vRt+4*rho+c)} offset:{512 + c*ULCH + 256*rho}")
            k(f"ds_write_addtid_b32 {v(vRx+4*rho+c)} offset:{XL - UL + c*ULCH + 256*rho}")
stamp("tp1")
rdy_chk(); w1_ready()
conv_code(False)
k("s_branch Lconvd")
sConv3 = k.snap()

k.restore(sHelp)
k.label("Lhelp")
sStg = sT[11]; vPa2, vW2o, vPd2 = 62, 104, 148
k(f"""
s_sub_u32 {s(sHw)}, s2, {NCG}
s_add_u32 {s(sT[12])}, {s(sHw)}, 168
s_cmp_eq_u32 {s(sWv)}, 2
s_cselect_b32 {s(sT[12])}, {s(sT[12])}, 192
s_lshl2_add_u32 {s(sHw)}, {s(sHw)}, {s(sWv)}
s_mul_i32 {s(sStg)}, {s(sWv)}, 20480""")
def w2_dma(su, off):
    k(f"s_mul_i32 {s(sT[9])}, {s(su)}, 10240\nv_add_u32 v5, {s(sT[9])}, {v(vL16)}\nv_add_u32 v6, 4096, v5\nv_add_u32 v7, 8192, v5")
    for e in range(10):
        if e % 4 == 0: k(f"s_add_u32 m0, {s(sStg)}, {off + 1024*e}")
        k(f"global_load_lds_dwordx4 {v(5 + e//4)}, {s(pWd,2)} offset:{1024*(e % 4)}", tok="w2dma")
def w2_pack(su, off, sf):
    k(f"""s_lshr_b32 {s(sT[10])}, {s(su)}, 2
    s_and_b32 {s(sT[8])}, {s(su)}, 3
    s_mul_i32 {s(sf)}, {s(su)}, 10923
    s_lshr_b32 {s(sf)}, {s(sf)}, 16
    s_lshl_b32 {s(sf)}, {s(sf)}, 7
    s_add_u32 {s(sf)}, {s(sf)}, {FB + oW2}
    s_mul_i32 {s(sT[9])}, {s(sT[10])}, 5120
    s_lshl_b32 {s(sT[8])}, {s(sT[8])}, 8
    s_add_u32 {s(sT[9])}, {s(sT[9])}, {s(sT[8])}
    s_add_u32 {s(sT[9])}, {s(sT[9])}, {W2P}""")
    k.wait_tok("w2dma")
    for j in range(10):
        for hf in range(2):
            k(f"ds_read_b64_tr_b16 {v(vPd2+4*j+2*hf,2)}, {v(vPa2)} offset:{off + 5120*hf + 128*j}")
    for j in range(10):
        k(f"buffer_store_dwordx4 {v(vPd2+4*j,4)}, {v(vW2o+j)}, {ws}, {s(sT[9])} offen sc1", tok="w2st")
w2_dma(sHw, 0)
k(f"""v_bfe_u32 v5, {v(vLane)}, 2, 2
v_mul_u32_u24 {v(vPa2)}, 1280, v5
v_and_b32 v5, 3, {v(vLane)}
v_lshl_add_u32 {v(vPa2)}, v5, 3, {v(vPa2)}
v_lshl_add_u32 {v(vPa2)}, {v(vG)}, 5, {v(vPa2)}
v_add_u32 {v(vPa2)}, {s(sStg)}, {v(vPa2)}""")
assert all((p*13108) >> 16 == p // 5 for p in range(40))
for j in range(10):
    k(f"""v_add_u32 v5, {4*j}, {v(vG)}
    v_mul_u32_u24 v6, 13108, v5
    v_lshrrev_b32 v6, 16, v6
    v_mul_u32_u24 v6, {48*5120 - 5120}, v6
    v_lshl_add_u32 v6, v5, 10, v6
    v_lshl_add_u32 {v(vW2o+j)}, {v(vN)}, 4, v6""")
k(f"s_mov_b32 {s(sT[13])}, {OOB}\ns_cmp_ge_u32 {s(sT[12])}, 192\ns_cbranch_scc1 Lw2one")
s1 = k.snap()
w2_dma(sT[12], 10240)
w2_pack(sT[12], 10240, sT[13])
k.label("Lw2one")
k.merge(s1)
w2_pack(sHw, 0, sT[7])
k(f"s_cmp_lg_u32 {s(sWv)}, 3\ns_cbranch_scc1 Lhnp")
s1 = k.snap()
k(rdypoll + w1poll); rdy_chk(); w1_ready()
k.label("Lhnp"); k.merge(s1)
k("s_barrier")
k(flag("w2st", sT[7]) + flag("w2st", sT[13]))
stamp("hp2")
for g_ in W1L[:NW1C]: k(g_)
k(hflag_ld(0)); hflag_chk(0)
for g_ in h_dma(0): k(g_)
stamp("cv1")

k.label("Lconvd")
k.merge(sConvMain); k.merge(sConv3)
for g_ in W1L[NW1C:NW1C+NW1G]: k(g_)
vOnes, vCs = 12, 184
vBa = 32
vRa = 8
vScW, vScW2, vScR, vScR2 = 28, 29, 50, 10
vAo1, vAo2, vFAa = 69, 70, 71
vRes = 40
vSt = 52
vAc = 72
vFb = 120
vTm = 144
vFAd = 180
vWo, vF2a, vF2 = 16, 21, 22
k([f"v_mov_b32 {v(vOnes+i)}, 0x3f803f80" for i in range(4)])
setup = f"""
v_lshrrev_b32 v5, 2, {v(vLane)}
v_lshlrev_b32 v5, 6, v5
v_and_b32 v6, 3, {v(vLane)}
v_lshl_add_u32 v5, v6, 3, v5
v_and_b32 v6, 1, {v(vG)}
v_lshl_add_u32 v7, v6, 5, v5
"""
for e in range(4):
    setup += f"""s_xor_b32 {s(sT[5])}, {s(sWv)}, {e}
    s_lshl_b32 {s(sT[5])}, {s(sT[5])}, 11
    s_add_u32 {s(sT[5])}, {s(sT[5])}, {SLOT[0]}
    v_add_u32 {v(vBa+e)}, {s(sT[5])}, v7
    v_xor_b32 {v(vBa+4+e)}, 32, {v(vBa+e)}
    """
setup += f"""
s_lshl_b32 {s(sT[5])}, {s(sHb)}, 5
v_xor_b32 v7, {s(sT[5])}, v7
s_mul_i32 {s(sT[6])}, {s(sN2)}, 5120
s_add_u32 {s(sT[6])}, {s(sT[6])}, {SLOT[0]}
s_lshl_b32 {s(sT[5])}, {s(sWv)}, 10
s_add_u32 {s(sT[5])}, {s(sT[5])}, {s(sT[6])}
v_add_u32 {v(vRa)}, {s(sT[5])}, v7
s_add_u32 {s(sT[6])}, {s(sT[6])}, 4096
v_add_u32 {v(vRa+1)}, {s(sT[6])}, v7
"""
setup2 = f"""
s_lshl2_add_u32 {s(sFAc)}, {s(sMt)}, {s(sWv)}
s_lshl_b32 {s(sFAc)}, {s(sFAc)}, 7
s_add_u32 {s(sFAc)}, {s(sFAc)}, {FA}
s_mul_i32 {s(sT[5])}, {s(sWv)}, 2560
v_add_u32 {v(vScW)}, {s(sT[5])}, {v(vL16)}
v_lshl_add_u32 {v(vScW2)}, {v(vLane)}, 2, {s(sT[5])}
v_lshrrev_b32 v7, 2, {v(vN)}
v_lshl_add_u32 v7, v7, 4, {v(vN)}
v_and_b32 v6, 3, {v(vN)}
v_lshlrev_b32 v6, 2, v6
v_lshl_add_u32 {v(vScR)}, v7, 4, v6
v_lshrrev_b32 v7, 1, {v(vG)}
v_mul_u32_u24 v6, 1280, v7
v_add_u32 {v(vScR)}, {v(vScR)}, v6
v_lshl_add_u32 {v(vScR2)}, {v(vN)}, 2, v6
v_mul_u32_u24 v7, 49152, v7
v_lshl_add_u32 v7, {v(vN)}, 4, v7
v_and_b32 v6, 1, {v(vG)}
v_lshl_add_u32 {v(vAo1)}, v6, 8, v7
v_lshl_add_u32 {v(vAo2)}, v6, 30, v7
s_lshl2_add_u32 {s(sFa)}, {s(sNt)}, {s(sWv)}
s_mul_i32 {s(sAct)}, {s(sFa)}, 768
s_mul_i32 {s(sT[5])}, {s(sMt)}, {2*49152}
s_add_u32 {s(sAct)}, {s(sAct)}, {s(sT[5])}
s_add_u32 {s(sAct)}, {s(sAct)}, {ACT}
s_lshr_b32 {s(sFa)}, {s(sNt)}, 2
s_lshl2_add_u32 {s(sFa)}, {s(sMt)}, {s(sFa)}
s_lshl_b32 {s(sFa)}, {s(sFa)}, 7
s_add_u32 {s(sFa)}, {s(sFa)}, {FA}
s_lshl2_add_u32 {s(sW2)}, {s(sN2)}, {s(sWv)}
s_mul_i32 {s(sW2)}, {s(sW2)}, {12*5120}
s_add_u32 {s(sW2)}, {s(sW2)}, {W2P}
v_add_u32 {v(vWo+4)}, 4096, {v(vL16)}
"""
for lam in range(4):
    setup2 += f"""s_xor_b32 {s(sT[6])}, {s(sWv)}, {lam}
    s_lshl_b32 {s(sT[6])}, {s(sT[6])}, 10
    v_add_u32 {v(vWo+lam)}, {s(sT[6])}, {v(vL16)}
    """
PFL = 480 >> MB
setup2 += f"""
s_lshl1_add_u32 {s(sT[6])}, {s(sMt)}, {s(sHb)}
s_mul_i32 {s(sAin)}, {s(sT[6])}, 49152
s_mul_i32 {s(sT[7])}, {s(sWv)}, 12288
s_add_u32 {s(sAin)}, {s(sAin)}, {s(sT[7])}
s_add_u32 {s(sAin)}, {s(sAin)}, {ACT}
s_and_b32 {s(sOut)}, {s(sMt)}, 3
s_lshl1_add_u32 {s(sOut)}, {s(sOut)}, {s(sHb)}
s_lshl_b32 {s(sOut)}, {s(sOut)}, 5
s_and_b32 {s(sT[7])}, {s(sMt)}, 12
s_add_u32 {s(sOut)}, {s(sOut)}, {s(sT[7])}
s_mul_i32 {s(sOut)}, {s(sOut)}, 1280
s_mul_i32 {s(sT[7])}, {s(sN2)}, 160
s_add_u32 {s(sOut)}, {s(sOut)}, {s(sT[7])}
v_min_u32 {v(vF2)}, {PFL//2-1}, {v(vLane)}
s_and_b32 {s(sT[6])}, {s(sMt)}, {(1<<MB)-1}
s_mul_i32 {s(sT[6])}, {s(sT[6])}, {PFL*128}
v_lshl_add_u32 {v(vF2)}, {v(vF2)}, 7, {s(sT[6])}
"""
def cs_mm(kk): return [mf16(v(vCs+4*t,4), ar(12*kk+4*t,4), v(vOnes,4), "0" if kk == 0 else None) for t in range(3)]
KCS = opt("kcs", NW1C // 3)
sched(k, sum([cs_mm(kk) for kk in range(KCS)], []), normal=[(0, lines(setup))])
stamp("cs1")
def g1_reads(st):
    kk = st % 20; b = vFb + 8*(st % 3)
    return [f"ds_read_b64_tr_b16 {v(b+4*a+2*hf,2)}, {v(vBa+4*a+(kk&3))} offset:{(kk & ~3)*2048 + 1024*hf}" for a in range(2) for hf in range(2)]
def g1_mm(st):
    c, kk = divmod(st, 20)
    b = vFb + 8*(st % 3); A = vAc + 24*(c % 2); z = "0" if kk == 0 else None
    L = [mf16(v(A+12*a+4*t,4), ar(12*kk+4*t,4), v(b+4*a,4), z) for a in range(2) for t in range(3)]
    if kk % 4 == 0:
        for a in range(2):
            L += [mf16(v(vSt+4*a,4), v(b+4*a,4), v(b+4*a,4), z), mf16(v(vSt+8+4*a,4), v(vOnes,4), v(b+4*a,4), z)]
    if c == 0 and kk >= KCS: L += cs_mm(kk)
    return L
def g1_statw(c):
    o = SC + 10240*(c % 2)
    return [f"ds_write_b128 {v(vScW)}, {v(vSt,4)} offset:{o}", f"ds_write_b32 {v(vScW2)}, {v(vSt+8)} offset:{o+1024}",
            f"ds_write_b128 {v(vScW)}, {v(vSt+4,4)} offset:{o+1280}", f"ds_write_b32 {v(vScW2)}, {v(vSt+12)} offset:{o+1280+1024}"]
Q, S, M, Z, S2 = vTm, vTm+4, vTm+8, vTm+10, vTm+12
def g1_statr(c):
    o = (SC + 10240*(c % 2)) // 256; L = []
    for w in range(2):
        L.append(f"ds_read2st64_b32 {v(S+2*w,2)}, {v(vScR2)} offset0:{o+20*w+4} offset1:{o+20*w+14}")
        L.append(f"ds_read2st64_b32 {v(Q+2*w,2)}, {v(vScR)} offset0:{o+20*w} offset1:{o+20*w+10}")
    return L
def g1_epi(c, pk=False):
    A = vAc + 24*(c % 2)
    L = [f"v_add_f32 {v(S)}, {v(S)}, {v(S+1)}", f"v_add_f32 {v(Q)}, {v(Q)}, {v(Q+1)}", f"v_add_f32 {v(S+2)}, {v(S+2)}, {v(S+3)}", f"v_add_f32 {v(Q+2)}, {v(Q+2)}, {v(Q+3)}",
         f"v_add_f32 {v(S)}, {v(S)}, {v(S+2)}", f"v_add_f32 {v(Q)}, {v(Q)}, {v(Q+2)}",
         f"v_mul_f32 {v(S)}, {INV640}, {v(S)}", f"v_mul_f32 {v(Q)}, {INV640}, {v(Q)}",
         f"v_cvt_pk_bf16_f32 {v(M)}, 0, {v(S)}", f"v_cvt_pk_bf16_f32 {v(M+1)}, 0, {v(S)}",
         f"v_fma_f32 {v(Q)}, -{v(S)}, {v(S)}, {v(Q)}", f"v_max_f32 {v(Q)}, 0, {v(Q)}",
         f"v_permlane32_swap_b32 {v(M)}, {v(M+1)}",
         f"v_cvt_pk_bf16_f32 {v(Q)}, 0, {v(Q)}",
         f"v_add_f32 {v(Q)}, 0x3727c5ac, {v(Q)}", f"v_cvt_pk_bf16_f32 {v(Q)}, 0, {v(Q)}"]
    R = vTm + 16
    if pk: cen = [f"v_pk_fma_f32 {v(A+12*a+2*j,2)}, {v(vCs+2*j,2)}, {v(M,2)}, {v(A+12*a+2*j,2)} op_sel:[0,{a},0] op_sel_hi:[1,{a},1] neg_lo:[0,1,0] neg_hi:[0,1,0]" for j in range(6) for a in range(2)]
    else: cen = [f"v_fma_f32 {v(A+12*a+j)}, -{v(vCs+j)}, {v(M+a)}, {v(A+12*a+j)}" for j in range(12) for a in range(2)]
    L += [f"v_sqrt_f32 {v(Q)}, {v(Q)}"] + cen[:2] + [f"v_cvt_pk_bf16_f32 {v(Q)}, 0, {v(Q)}"] + cen[2:3] + [f"v_rcp_f32 {v(Z)}, {v(Q)}", f"v_mul_f32 {v(S2)}, {v(Q)}, {v(Q)}"] + cen[3:4]
    L += [f"v_mul_f32 {v(Z)}, 0xbfb8aa3b, {v(Z)}"] + cen[4:]
    L += [f"v_permlane32_swap_b32 {v(A+j)}, {v(A+12+j)}" for j in range(12)]
    chains = []
    for j in range(6):
        g_, u_ = A+2*j, A+12+2*j
        z = vTm + 24 + 2*j
        if pk:
            ch = [f"v_pk_mul_f32 {v(z,2)}, {v(g_,2)}, {v(Z,2)} op_sel_hi:[1,0]",
                  f"v_exp_f32 {v(z)}, {v(z)}", f"v_exp_f32 {v(z+1)}, {v(z+1)}",
                  f"v_pk_mul_f32 {v(g_,2)}, {v(g_,2)}, {v(u_,2)}",
                  f"v_pk_fma_f32 {v(z,2)}, {v(z,2)}, {v(S2,2)}, {v(S2,2)} op_sel_hi:[1,0,0]",
                  f"v_rcp_f32 {v(z)}, {v(z)}", f"v_rcp_f32 {v(z+1)}, {v(z+1)}",
                  f"v_pk_mul_f32 {v(g_,2)}, {v(g_,2)}, {v(z,2)}"]
        else:
            ch = [f"v_mul_f32 {v(z)}, {v(g_)}, {v(Z)}", f"v_mul_f32 {v(z+1)}, {v(g_+1)}, {v(Z)}",
                  f"v_exp_f32 {v(z)}, {v(z)}", f"v_exp_f32 {v(z+1)}, {v(z+1)}", f"v_mul_f32 {v(g_)}, {v(g_)}, {v(u_)}", f"v_mul_f32 {v(g_+1)}, {v(g_+1)}, {v(u_+1)}",
                  f"v_fma_f32 {v(z)}, {v(z)}, {v(S2)}, {v(S2)}", f"v_fma_f32 {v(z+1)}, {v(z+1)}, {v(S2)}, {v(S2)}",
                  f"v_rcp_f32 {v(z)}, {v(z)}", f"v_rcp_f32 {v(z+1)}, {v(z+1)}",
                  f"v_mul_f32 {v(g_)}, {v(g_)}, {v(z)}", f"v_mul_f32 {v(g_+1)}, {v(g_+1)}, {v(z+1)}"]
        chains.append(ch + [f"v_cvt_pk_bf16_f32 {v(R+j)}, {v(g_)}, {v(g_+1)}"])
    sw = [f"v_permlane16_swap_b32 {v(R+4)}, {v(R+6)}", f"v_permlane16_swap_b32 {v(R+5)}, {v(R+7)}"]
    if pk: L += zipper(chains[4], chains[5]) + zipper(chains[0], chains[1]) + sw + zipper(chains[2], chains[3])
    else: L += chains[4] + chains[5] + chains[0] + sw + chains[1] + chains[2] + chains[3]
    L += [f"s_add_u32 {s(sT[5])}, {s(sAct)}, {32*49152*c}"]
    L += [(f"buffer_store_dwordx4 {v(R+4,4)}, {v(vAo2)}, {ws}, {s(sT[5])} offen offset:512 sc1", f"a{c}"),
          (f"buffer_store_dwordx4 {v(R,4)}, {v(vAo1)}, {ws}, {s(sT[5])} offen sc1", f"a{c}")]
    return L
w2fl = apoll(vFAd, vFa, oW2)
def w2_ready(): check(w2fl, [vFAd], 5, 8, 6)
def w2pf(j): return [f"s_add_u32 {s(sT[6])}, {s(sW2)}, {PFL*64*j}", f"buffer_load_dword {v(182+j)}, {v(vF2)}, {ws}, {s(sT[6])} offen sc1"]
NPRE = 19
NA0 = opt("na0", 12)
def w2reg(j):
    if j < 15: return v(196 + 4*j, 4)
    if j < NPRE: return ar(240 + 4*(j-15), 4)
    q = j - NPRE
    return ar(4*q if q < NA0 else 4*q + 48, 4)
W2L = []
for ks in range(12):
    for lam in range(5):
        x = [f"s_add_u32 {s(sW2)}, {s(sW2)}, 5120"] if (lam == 0 and ks) else []
        W2L.append(x + [f"buffer_load_dwordx4 {w2reg(5*ks+lam)}, {v(vWo+lam)}, {ws}, {s(sW2)} offen sc1"])
def aflag_ld(i): return apoll(vFAd, vFl0, 4*i, sFAc)
def aflag_chk(i): check(aflag_ld(i), [vFAd], 5, 1, 16)
def abuf(i, ks): return ar(4*NA0 + 4*ks, 4) if i % 3 == 0 else v((100 if i == 1 else 148) + 4*ks, 4)
def act_loads(i):
    L = []
    for ks in range(12):
        x = [f"s_add_u32 {s(sT[4])}, {s(sAin)}, {32*49152*i + 1024*ks}"] if ks % 4 == 0 else []
        L.append(x + [f"buffer_load_dwordx4 {abuf(i, ks)}, {v(vL16)}, {ws}, {s(sT[4])} offen offset:{1024*(ks%4)} sc1"])
    return L
C3L = W2L[NPRE:NPRE+NA0] + act_loads(0) + W2L[NPRE+NA0:]
C3L[NA0] = [lambda: aflag_chk(0)] + C3L[NA0]
def res_reads(c):
    def f():
        k(f"ds_read_b64_tr_b16 {v(vRes+2*c,2)}, {v(vRa)}")
        Ls = k.lab("Lr4")
        k(f"s_cmp_lg_u32 {s(sWv)}, {c}\ns_cbranch_scc1 {Ls}")
        s1 = k.snap()
        k(f"ds_read_b64_tr_b16 {v(vRes+8,2)}, {v(vRa+1)}")
        k.label(Ls); k.merge(s1)
    return f
mm = []; cum = []
for st in range(80): cum.append(len(mm)); mm += g1_mm(st)
cum.append(len(mm))
G = lambda c, kk, d=0: cum[20*c + kk] + d
rd = [(-1, -1, -1, x) for x in g1_reads(0) + g1_reads(1)]
urgent = []; normal = []; checks = []
def boundary(c):
    def f(U, N):
        k(list(U)); U.clear()
        if c < 3: k.wait_tok(f"h{c+1}")
        bar(); stamp(f"c{c+1}")
    return f
def flush(nm):
    def f(U, N):
        print(nm, "leftover", len(U), len(N)); k(U + N); U.clear(); N.clear()
    return f
for st in range(2, 80):
    c, kk = divmod(st, 20)
    if kk == 0: rd += spread(g1_reads(st), G(c-1, 18, 2), G(c-1, 19), G(c-1, 19))
    else: rd += spread(g1_reads(st), cum[st-2], cum[st-1], cum[st-1] - 1 if kk == 19 else cum[st-1] + 1)
for c in range(4):
    urgent.append((G(c, 1), [res_reads(c)]))
    urgent += [(G(c, 17, 1+j), [x]) for j, x in enumerate(g1_statw(c))]
    checks.append((G(c, 18, 2), boundary(c)))
    if c < 3:
        dlt = (SLOT[(c+1) % 3] - SLOT[c % 3]) & 0xffffffff
        for e in range(4): urgent.append((G(c, 15+e, 2 if e < 3 else 0), [f"v_add_u32 {v(vBa+4*a+e)}, {dlt}, {v(vBa+4*a+e)}" for a in range(2)]))
        urgent.append((G(c, 3), [f"v_add_u32 {v(vRa+j)}, {dlt}, {v(vRa+j)}" for j in range(2)]))
    if c > 0:
        if not DBG & 1: normal.append((G(c, 0, 2), g1_epi(c-1)))
        checks.append((G(c, 19, 1), flush(f"chunk {c}")))
    urgent.append((G(c, 19, 2), g1_statr(c)))
    if c >= 2: urgent.append((G(c, opt("fk", 6)), flag(f"a{c-2}", sFa, 4*(c-2), False)))
normal.append((0, lines(setup2)))
def noleft(U, N): assert not N
rest = W1L[NW1C+NW1G:]
c0l = zipper(rest[:len(rest)//2+2], []) + zipper(rest[len(rest)//2+2:], h_dma(1))
e0 = opt("e0", 14)
for j, g_ in enumerate(c0l): urgent.append((1 + G(0, e0)*j//len(c0l), g_))
checks.append((G(0, 14), noleft))
urgent += [(G(0, 14), hflag_ld(1)), (G(0, 19), [lambda: hflag_chk(1)]), (G(0, 15), w2fl), (G(1, 2), [w2_ready]), (G(1, 3), w2pf(0)), (G(1, 12), w2pf(1))]
for j, g_ in enumerate(h_dma(2) + h_dma(3)): urgent.append((G(1, j, 3), g_))
for j in range(NPRE): urgent.append((G(2, j, 3), W2L[j]))
urgent.append((G(3, 0), aflag_ld(0)))
for j in range(NW2C3): urgent.append((max(G(3, j//3 + 1), G(3, 1) + (G(3, 19, 4) - G(3, 1))*j//NW2C3), C3L[j]))
if DBG & 2: urgent = [(g_, [x for x in it if not (isinstance(x, str) and x.startswith('buffer_load'))]) for g_, it in urgent]
if DBG & 4: rd = rd[:8]
if DBG & 8: urgent = [(g_, [x for x in it if not (isinstance(x, str) and x.startswith('ds_write'))]) for g_, it in urgent]
urgent.sort(key=lambda e: e[0])
k(flag("hB", sFl, 4))
k.wait_tok("h0")
bar()
stamp("c0")
sched(k, mm, rd, urgent, normal, checks)
stamp("g1m")
k(aflag_ld(1))
ep = g1_epi(3, pk=True)
n1 = opt("w2a", 6)
for g_ in C3L[NW2C3:NW2C3+n1]: k(g_)
k(ep[:56]); k(flag("a2", sFa, 8, False)); k(ep[56:])
stamp("g1e")
vRw, vRr, vRr4, vOo = 12, 32, 33, 34
vA2, vT2 = 52, 16
for g_ in C3L[NW2C3+n1:]: k(g_)
aflag_chk(1)
vFAd = 36
g2b = ""
for lam in range(1, 4):
    g2b += f"""s_xor_b32 {s(sT[5])}, {s(sWv)}, {lam}
    s_mul_i32 {s(sT[6])}, {s(sT[5])}, 3072
    s_add_u32 {s(sT[6])}, {s(sT[6])}, {RED + 1024*(lam-1)}
    v_add_u32 {v(vRw+lam-1)}, {s(sT[6])}, {v(vL16)}
    """
g2b += f"""
s_lshl_b32 {s(sT[6])}, {s(sWv)}, 10
s_add_u32 {s(sT[6])}, {s(sT[6])}, {RED4}
v_add_u32 {v(vRw+3)}, {s(sT[6])}, {v(vL16)}
s_mul_i32 {s(sT[6])}, {s(sWv)}, 3072
s_add_u32 {s(sT[6])}, {s(sT[6])}, {RED}
v_add_u32 {v(vRr)}, {s(sT[6])}, {v(vL16)}
s_lshl_b32 {s(sT[6])}, {s(sWv)}, 12
s_add_u32 {s(sT[6])}, {s(sT[6])}, {RED4}
v_add_u32 {v(vRr4)}, {s(sT[6])}, {v(vL16)}
v_and_b32 v7, 3, {v(vN)}
v_bfe_u32 v6, {v(vN)}, 2, 1
v_lshl_add_u32 v7, v6, 8, v7
v_lshrrev_b32 v6, 3, {v(vN)}
v_lshl_add_u32 v7, v6, 4, v7
v_mul_u32_u24 {v(vOo)}, 1280, v7
v_lshl_add_u32 {v(vOo)}, {v(vG)}, 3, {v(vOo)}
"""
def g2_write(i):
    A = vA2 + 20*(i % 2)
    return [f"ds_write_b128 {v(vRw+lam-1)}, {v(A+4*lam,4)} offset:{12288*i}" for lam in range(1, 4)] + [f"ds_write_b128 {v(vRw+3)}, {v(A+16,4)} offset:{4096*i}"]
def fin(A, parts, res, soff):
    L = []
    for p in parts: L += [f"v_add_f32 {v(A+j)}, {v(A+j)}, {v(p+j)}" for j in range(4)]
    p = parts[0]
    L += [f"v_lshlrev_b32 {v(p)}, 16, {v(res)}", f"v_and_b32 {v(p+1)}, 0xffff0000, {v(res)}", f"v_lshlrev_b32 {v(p+2)}, 16, {v(res+1)}", f"v_and_b32 {v(p+3)}, 0xffff0000, {v(res+1)}"]
    L += [f"v_add_f32 {v(A+j)}, {v(A+j)}, {v(p+j)}" for j in range(4)]
    L += [f"v_cvt_pk_bf16_f32 {v(p)}, {v(A)}, {v(A+1)}", f"v_cvt_pk_bf16_f32 {v(p+1)}, {v(A+2)}, {v(A+3)}"]
    L += soff + [f"buffer_store_dwordx2 {v(p,2)}, {v(vOo)}, {s(OUTR,4)}, {s(sT[5])} offen"]
    return L
def g2_fin(i):
    A = vA2 + 20*(i % 2)
    L = [f"ds_read_b128 {v(vT2+4*j,4)}, {v(vRr)} offset:{12288*i + 1024*j}" for j in range(3)]
    return L + fin(A, [vT2, vT2+4, vT2+8], vRes+2*i, [f"s_lshl_b32 {s(sT[5])}, {s(sWv)}, 5", f"s_add_u32 {s(sT[5])}, {s(sT[5])}, {s(sOut)}", f"s_add_u32 {s(sT[5])}, {s(sT[5])}, {512*1280*i}"])
stamp("t0")
mm = []; urgent = []; normal = [(0, lines(g2b))]; checks = []
AP = opt("ap", 4)
for i in range(4):
    A = vA2 + 20*(i % 2); b_ = 60*i
    mm += [mf16(v(A+4*lam,4), w2reg(5*ks+lam), abuf(i, ks), "0" if ks == 0 else None) for ks in range(12) for lam in range(5)]
    if i < 3:
        g0 = 0 if i == 0 else b_ - (opt("ae", 10) if i == 1 else 0)
        if i: urgent += [(g0 - opt("pa", 30), aflag_ld(i+1)), (g0, [(lambda j: lambda: aflag_chk(j))(i+1)])]
        urgent += [(g0 + AP*j, g_) for j, g_ in enumerate(act_loads(i+1))]
    if i:
        urgent.append((b_, [stampc(f"t{i}")]))
        urgent += [(b_ + 3 + 3*j, [x]) for j, x in enumerate(g2_write(i-1))] + [(b_ + 20, [bar] + g2_fin(i-1)[:3])]
        normal.append((b_ + 28, g2_fin(i-1)[3:]))
        checks.append((b_ + 59, noleft))
urgent += [(opt("f3", 26), flag("a3", sFa, 12, False) + [stampc("afl")]), (45, ["s_barrier"])]
urgent.sort(key=lambda e: e[0])
sched(k, mm, [], urgent, normal, checks)
stamp("t4")
k(g2_write(3))
bar()
vB0 = 100
for j in range(4): k(f"ds_read_b128 {v(vB0+4*j,4)}, {v(vRr4)} offset:{1024*j}")
k(g2_fin(3))
k(fin(vB0, [vB0+4, vB0+8, vB0+12], vRes+8, [f"s_mul_i32 {s(sT[5])}, {s(sWv)}, {512*1280}", f"s_add_u32 {s(sT[5])}, {s(sT[5])}, {s(sOut)}", f"s_add_u32 {s(sT[5])}, {s(sT[5])}, 128"]))
stamp("g2e")
k(f"""s_or_b32 {s(sT[4])}, s2, {s(sWv)}
s_cmp_lg_u32 {s(sT[4])}, 0
s_cselect_b32 {s(sT[4])}, {OOB}, 0
buffer_store_dword {v(vTagv)}, {v(vFl0)}, {ws}, {s(sT[4])} offen""")
if STAMP:
    k("s_waitcnt vmcnt(0)")
    stamp("end")
    k(f"""s_lshl2_add_u32 {s(sT[4])}, s2, {s(sWv)}
    s_lshl_b32 {s(sT[4])}, {s(sT[4])}, 7
    s_add_u32 {s(sT[4])}, {s(sT[4])}, {STB}""")
    for i in range(len(SEL)):
        k(f"v_mov_b32 v5, {s(sStamp+2*i)}\nbuffer_store_dword v5, {v(vFl0)}, {ws}, {s(sT[4])} offen offset:{4*i}")
k("s_endpgm")
k.raw(".p2align 2\n.fill 64, 4, 0\nLcode_end:")
hdr = "".join(l for l in open("cdna_kernels/" + NAME + ".s.ref").readlines()[:18] if l.startswith(";") and "@launch" not in l)
if STAMP: hdr += "; stamps: " + ",".join(SEL) + "\n"
open(OUT, "w").write(k.text(hdr, 256, 256, LDS_BYTES))
print("instructions", k.nins, "nops", k.nnop)
```

```python
import re, copy
NAME = "sequential_preLN__ssm_conv_s4__swiglu_ffn__prompt"

_REG = re.compile(r"^[-|]*\s*(?:abs\()?([vas])(?:(\d+)|\[(\d+):(\d+)\])\)?\|?$")
TRANS = ("v_exp_f32", "v_log_f32", "v_rcp_f32", "v_rsq_f32", "v_sqrt_f32", "v_sin_f32", "v_cos_f32", "v_rcp_iflag_f32")

def regs_of(op):
    op = op.strip()
    if op in ("vcc", "vcc_lo", "vcc_hi"): return {"vcc"}
    if op in ("exec", "exec_lo", "exec_hi"): return {"exec"}
    if op == "m0": return {"m0"}
    m = _REG.match(op)
    if not m: return set()
    k = m.group(1)
    if m.group(2) is not None: return {f"{k}{m.group(2)}"}
    return {f"{k}{i}" for i in range(int(m.group(3)), int(m.group(4)) + 1)}

class Ins:
    __slots__ = ("text", "mn", "ops", "mods", "dst", "src", "cls", "passes", "srcc", "srcab", "tok")
    def __init__(self, text, tok=None):
        self.text = text; self.tok = tok
        body = text.split(";")[0].strip()
        parts = body.split(None, 1)
        mn = self.mn = parts[0]
        rest = parts[1] if len(parts) > 1 else ""
        ops, depth, cur = [], 0, ""
        for ch in rest:
            if ch in "[(": depth += 1
            if ch in "])": depth -= 1
            if ch == "," and depth == 0: ops.append(cur.strip()); cur = ""
            else: cur += ch
        if cur.strip(): ops.append(cur.strip())
        mods = ""
        if ops:
            last = ops[-1].split(None, 1)
            ops[-1] = last[0]
            mods = last[1] if len(last) > 1 else ""
        self.ops, self.mods = ops, mods
        R = [regs_of(o) for o in ops]
        allr = set().union(*R) if R else set()
        tail = set().union(*R[1:]) if len(R) > 1 else set()
        self.passes = 0; self.srcc = set(); self.srcab = set()
        if mn.startswith("v_mfma") or mn.startswith("v_smfmac"):
            self.cls = "mfma"; self.dst = R[0]; self.src = tail
            self.srcab = R[1] | R[2]; self.srcc = R[3] if len(R) > 3 else set()
            self.passes = 8 if "32x32" in mn else 4
        elif mn.startswith("v_"):
            self.cls = "valu"
            if "permlane" in mn and "swap" in mn: self.dst = allr; self.src = allr
            elif mn.startswith(("v_add_co", "v_sub_co", "v_addc_co", "v_subb_co", "v_subrev_co", "v_mad_u64_u32", "v_div_scale")):
                self.dst = R[0] | R[1]; self.src = set().union(*R[2:])
            elif mn.startswith(("v_fmac", "v_dot2c", "v_pk_fmac", "v_writelane")) or "dpp" in mn or "row_" in mods or "quad_perm" in mods or "UNUSED_PRESERVE" in mods:
                self.dst = R[0]; self.src = allr
            elif mn == "v_nop": self.dst = set(); self.src = set()
            else: self.dst = R[0]; self.src = tail
        elif mn.startswith("ds_"):
            self.cls = "ds"
            if mn.startswith(("ds_read", "ds_bpermute", "ds_permute", "ds_swizzle")) or "_rtn" in mn:
                self.dst = R[0]; self.src = tail
                if "d16" in mn: self.src = allr
            else: self.dst = set(); self.src = allr
            if "addtid" in mn: self.src = self.src | {"m0"}
        elif mn.startswith(("buffer_", "global_")):
            self.cls = "vmem"
            islds = mn.startswith("global_load_lds") or re.search(r"\blds\b", mods) is not None
            if islds: self.dst = set(); self.src = allr | {"m0"}
            elif "_load" in mn:
                self.dst = R[0]; self.src = allr if "d16" in mn else tail
            elif "atomic" in mn and "sc0" in mods: self.dst = R[0]; self.src = allr
            else: self.dst = set(); self.src = allr
        elif mn.startswith(("s_load", "s_buffer_load", "s_memtime", "s_memrealtime")):
            self.cls = "smem"; self.dst = R[0]; self.src = tail
        elif mn.startswith("s_"):
            self.cls = "salu"
            if mn.startswith(("s_cmp", "s_bitcmp", "s_waitcnt", "s_barrier", "s_branch", "s_cbranch", "s_nop", "s_setprio", "s_sleep", "s_endpgm", "s_setpc", "s_setreg")):
                self.dst = set(); self.src = allr
                if "vcc" in mn: self.src = {"vcc"}
            elif "saveexec" in mn: self.dst = R[0] | {"exec"}; self.src = tail | {"exec"}
            elif mn.startswith(("s_addk", "s_mulk", "s_cmov")): self.dst = R[0]; self.src = allr
            else: self.dst = R[0]; self.src = tail
        else:
            raise ValueError("unknown instruction: " + text)

class State:
    def __init__(self):
        self.vm = []
        self.lg = []
        self.sm = set()
        self.hist = []

class K:
    def __init__(self):
        self.out = []; self.st = State(); self.uid = 0; self.kernels = []; self.launches = []
        self.nins = 0; self.nnop = 0; self.marks = []
    def raw(self, s): self.out.append(s)
    def lab(self, base="L"):
        self.uid += 1; return f"{base}{self.uid}"
    def label(self, name): self.out.append(name + ":")
    def _age(self, n):
        h = [(i, a + n) for i, a in self.st.hist if a + n < 24]
        self.st.hist = h
    def _put(self, text, ins=None, states=1):
        self.out.append("    " + text); self.nins += 1
        self._age(states)
        if ins is not None: self.st.hist.append((ins, 0))
    def _need(self, q, regs, cap):
        idx = -1
        for i, e in enumerate(q):
            if e & regs: idx = i
        if idx < 0: return None
        return min(len(q) - 1 - idx, cap)
    def _wait(self, vm=None, lg=None):
        st = self.st; parts = []
        if vm is not None:
            parts.append(f"vmcnt({vm})"); st.vm = st.vm[len(st.vm) - vm:] if vm else []
        if lg is not None:
            parts.append(f"lgkmcnt({lg})"); st.lg = st.lg[len(st.lg) - lg:] if lg else []
            if lg == 0: st.sm = set()
        if parts: self._put("s_waitcnt " + " ".join(parts))
    def wait_tok(self, *toks):
        t = {"#" + x for x in toks}
        vm = self._need(self.st.vm, t, 63); lg = self._need(self.st.lg, t, 15)
        self._wait(vm, lg)
    def wait_all(self, vm=True, lg=True):
        self._wait(0 if vm else None, 0 if lg else None)
    def _hazard(self, c):
        need = 0
        touch = c.src | c.dst
        for p, age in self.st.hist:
            w = 0
            if p.cls == "valu":
                vd = {r for r in p.dst if r[0] in "va" and r != "vcc"}
                sd = p.dst - vd
                if vd & c.src:
                    if c.cls == "mfma": w = 2
                    elif c.cls == "valu":
                        if "permlane" in c.mn or "dpp" in c.mn or "row_" in c.mods or "quad_perm" in c.mods: w = 2
                        elif c.mn.startswith(("v_readlane", "v_readfirstlane")): w = 1
                        if p.mn.startswith(TRANS): w = max(w, 1)
                        if p.mn.startswith("v_dot2") and p.mn != c.mn: w = max(w, 3)
                        if "sdwa" in p.mn and "dst_sel:DWORD" not in p.mods: w = max(w, 1)
                if c.cls == "mfma" and p.mn.startswith(("v_pk_", "v_dot", "v_mov_b64")): w = max(w, 2)
                if sd & c.src:
                    if c.cls == "vmem": w = max(w, 5)
                    elif c.cls == "valu": w = max(w, 4 if "lane" in c.mn else 2)
                    elif c.cls == "salu" and "cbranch" not in c.mn: w = max(w, 1)
            elif p.cls == "mfma":
                big = p.passes == 8
                if c.cls == "mfma":
                    if p.dst & c.srcab: w = 12 if big else 8
                    if p.dst & c.srcc and not (p.dst == c.srcc and p.passes == c.passes): w = max(w, 10 if big else 6)
                    if p.dst & c.dst and not (p.dst == c.dst and p.passes == c.passes): w = max(w, 10 if big else 6)
                elif p.dst & touch: w = 12 if big else 8
                if c.cls == "valu" and p.srcc & c.dst: w = max(w, 7 if big else 3)
            elif p.cls == "salu":
                if "m0" in p.dst and "m0" in c.src and c.cls in ("ds", "vmem"): w = 1
            elif p.cls == "vmem":
                if ("store" in p.mn) and ("x3" in p.mn or "x4" in p.mn) and c.cls != "salu":
                    data = regs_of(p.ops[0]) if p.mn.startswith("buffer") else regs_of(p.ops[1])
                    if data & c.dst: w = 2
            need = max(need, w - age)
        return need
    def ins(self, text, tok=None):
        c = Ins(text, tok); st = self.st
        if c.mn == "s_waitcnt":
            vm = re.search(r"vmcnt\((\d+)\)", text); lg = re.search(r"lgkmcnt\((\d+)\)", text)
            vm = int(vm.group(1)) if vm else None; lg = int(lg.group(1)) if lg else None
            if vm is not None and vm > len(st.vm): st.vm = [set()] * (vm - len(st.vm)) + st.vm
            if lg is not None and lg > len(st.lg): st.lg = [set()] * (lg - len(st.lg)) + st.lg
            self._wait(vm, lg); return
        touch = c.src | c.dst
        vm = self._need(st.vm, touch, 63); lg = self._need(st.lg, touch, 15)
        if st.sm & touch: lg = 0
        self._wait(vm, lg)
        n = self._hazard(c)
        while n > 0:
            k = min(n, 16); self._put(f"s_nop {k-1}", None, k); self.nnop += 1; n -= k
        states = int(c.ops[0]) + 1 if c.mn == "s_nop" else 1
        self._put(text, c, states)
        e = set(c.dst) | ({"#" + tok} if tok else set())
        if c.cls == "vmem": st.vm.append(e)
        elif c.cls == "ds": st.lg.append(e)
        elif c.cls == "smem": st.sm |= (c.dst or {"?"})
    def __call__(self, s, tok=None):
        if isinstance(s, (list, tuple)):
            for x in s:
                if callable(x): x()
                elif isinstance(x, tuple): self(x[0], x[1])
                else: self(x)
            return
        for l in s.split("\n"):
            l = l.strip()
            if not l or l.startswith(";"): continue
            if l.endswith(":"): self.label(l[:-1])
            elif l.startswith("."): self.raw(l)
            else: self.ins(l, tok)
    def snap(self): return copy.deepcopy(self.st)
    def restore(self, s): self.st = copy.deepcopy(s)
    def merge(self, other):
        def mq(a, b):
            n = max(len(a), len(b)); pos = {}
            for q in (a, b):
                for i, e in enumerate(q):
                    k = len(q) - 1 - i
                    for r in e: pos[r] = min(pos.get(r, 1 << 30), k)
            out = [set() for _ in range(n)]
            for r, k in pos.items(): out[n - 1 - k].add(r)
            return out
        st = self.st
        st.vm = mq(st.vm, other.vm); st.lg = mq(st.lg, other.lg); st.sm |= other.sm
        st.hist = st.hist + other.hist
    def begin(self, name):
        self.out.append(f".globl {name}\n.p2align 8\n.type {name},@function\n{name}:"); self.st = State()
    def text(self, header, grid, block, lds, vgpr=512, accum=256, sgpr=102):
        n = NAME + "_kernel"
        o = [header.rstrip("\n"), f"; @launch grid=({grid},1,1) block=({block},1,1) lds={lds}",
             '.amdgcn_target "amdgcn-amd-amdhsa--gfx950"', ".text"] + self.out
        o.append(f""".section .rodata,"a"
.p2align 6
.amdhsa_kernel {n}
  .amdhsa_next_free_vgpr {vgpr}
  .amdhsa_next_free_sgpr {sgpr}
  .amdhsa_accum_offset {accum}
  .amdhsa_group_segment_fixed_size 0
  .amdhsa_kernarg_size 128
  .amdhsa_user_sgpr_count 2
  .amdhsa_user_sgpr_kernarg_segment_ptr 1
  .amdhsa_system_sgpr_workgroup_id_x 1
.end_amdhsa_kernel""")
        return "\n".join(o) + "\n"

def weave(main, fill, per=2, start=0):
    out = []; fill = list(fill)
    def cost(x):
        t = x[0] if isinstance(x, tuple) else x
        if callable(t): return 0
        return 2 if t.split()[0].startswith(TRANS) else 1
    for i, m in enumerate(main):
        out.append(m)
        if i < start: continue
        b = per
        while fill and cost(fill[0]) <= b:
            b -= cost(fill[0]); out.append(fill.pop(0))
    return out, fill
def v(a, n=1): return f"v{a}" if n == 1 else f"v[{a}:{a+n-1}]"
def ar(a, n=1): return f"a{a}" if n == 1 else f"a[{a}:{a+n-1}]"
def s(a, n=1): return f"s{a}" if n == 1 else f"s[{a}:{a+n-1}]"

def _txt(x): return x[0] if isinstance(x, tuple) else x
def _kind(x):
    t = _txt(x)
    if callable(t): return "call"
    m = t.split()[0]
    if m.startswith(("ds_", "buffer_", "global_")): return "mem"
    if m.startswith("s_"): return "salu"
    if m.startswith(TRANS): return "trans"
    return "valu"
def prewait(k, text):
    c = Ins(text); st = k.st; touch = c.src | c.dst
    vm = k._need(st.vm, touch, 63); lg = k._need(st.lg, touch, 15)
    n0 = k.nins; k._wait(vm, lg); return k.nins != n0
def weave2(k, mm, rd, fill, nxt=None, slots=2, start=0, minfill=0):
    rd = list(rd); n = len(mm)
    for i, m in enumerate(mm):
        k(m)
        nx = mm[i+1] if i+1 < n else nxt
        free_s = not (nx is not None and prewait(k, nx))
        b = slots; had_valu = False
        if i >= start:
            while fill and (_kind(fill[0]) == "call" or (_kind(fill[0]) == "salu" and free_s)):
                if _kind(fill[0]) == "salu": free_s = False
                n0 = k.nins; k([fill.pop(0)])
                if k.nins != n0: free_s = False
        q = -(-len(rd) // (n - i))
        for _ in range(q): k([rd.pop(0)]); b -= 1
        if i < start: continue
        b = max(b, minfill)
        while fill and b > 0:
            kd = _kind(fill[0])
            if kd == "call": break
            if kd == "mem" and had_valu: break
            c = 2 if kd == "trans" else 1
            if c > b: break
            if kd in ("valu", "trans"): had_valu = True
            k([fill.pop(0)]); b -= c
    assert not rd

def sched(k, mm, rd=(), urgent=(), normal=(), checks=(), slots=2, tail=True, slotf=None):
    rd = list(rd); U, N = [], []; n = len(mm); slots0 = slots; hold = [False]
    def q(): return U if (U and not hold[0]) else N
    def peek(j):
        a = N if hold[0] else U + N
        return _kind(a[j]) if j < len(a) else None
    for g_, it in urgent:
        if g_ < 0: k(list(it))
    while rd and rd[0][2] < 0: k([rd.pop(0)[3]])
    for i, m in enumerate(mm):
        k(m)
        for g_, fn in checks:
            if g_ == i: fn(U, N)
        for g_, it in urgent:
            if g_ == i: U += list(it)
        for g_, it in normal:
            if g_ == i: N += list(it)
        free_s = not (i+1 < n and prewait(k, mm[i+1]))
        held = hold[0]; hold[0] = False
        while (U or N) and (peek(0) == "call" or (peek(0) == "salu" and free_s)):
            n0 = k.nins; k([q().pop(0)])
            if k.nins != n0: free_s = False
        if U and N and _kind(U[0]) == 'salu' and not held: hold[0] = True
        slots = slotf(i) if slotf else slots0
        b = slots
        must = sum(1 for r in rd if r[2] <= i); avail = sum(1 for r in rd if r[0] <= i); nom = sum(1 for r in rd if r[1] <= i)
        p0, p1 = peek(0), peek(1)
        if p0 is None: nr = min(avail, max(nom, must)) if nom <= slots else max(slots, must)
        elif p0 == "trans": nr = max(must, min(avail, slots)) if (must or nom >= 2) else 0
        elif p1 == "trans" or p1 is None or (p0 == "valu" and p1 == "mem"): nr = max(must, min(avail, slots-1))
        else: nr = max(must, min(nom, slots-1 if nom < 3 else slots))
        for _ in range(nr): k([rd.pop(0)[3]]); b -= 1
        if U and not hold[0]: b = max(b, 1)
        had = False
        while b > 0:
            if U and N and not hold[0] and _kind(U[0]) == 'salu' and not held: hold[0] = True
            kd = peek(0)
            if kd is None: break
            if kd == "call" or (kd == "mem" and had): break
            c = 2 if kd == "trans" else 1
            if c > b: break
            if kd in ("valu", "trans"): had = True
            k([q().pop(0)]); b -= c
    assert not rd
    left = U + N
    if tail: k(left)
    return left
def spread(items, a, b, late=None):
    n = len(items); late = b-1 if late is None else late
    return [(a, a + (b-a)*j//n, late, x) for j, x in enumerate(items)]
```

```python
import sys, numpy as np
from gk import *
from gk import _kind

STAMP = "--stamp" in sys.argv
OUT = [a for a in sys.argv[1:] if a.endswith(".s")]
OUT = OUT[0] if OUT else "v3.s"
def opt(name, default):
    x = [a.split("=")[1] for a in sys.argv if a.startswith(f"--{name}=")]
    return int(x[0]) if x else default
NW1C = opt("w1conv", 39)
NW1G = opt("w1gap", 6)
NW2C3 = opt("w2c3", 35)
SLEEP = opt("sleep", 1)
DBG = opt("dbg", 0)
MB = opt("mb", 3)
XEARLY = opt("xearly", 2)
WARM = opt("warm", 1)

STP, STB = 0x18000, 0x20000
FB, RS = 0x40000, 4096
oH, oW2 = 0, 12
FA = FB + 16*RS
FF = FA + 64*128
oRDY, oW1 = FF - FB, FF - FB + 1024
CSP = 0x64000
CGS = 16512
XB, HT, ACT, W1P, W2P = 0x500000, 0x900000, 0xC00000, 0x1300000, 0x1700000
WS_BYTES = 0x10000000
OOB = 0x40000000
NCG = 214
TK, TKCH, CS = 0, 16640, 4160
UL, ULCH = 49920, 4608
XL = UL + 3 * ULCH
TAB, TABW, TROW, TOF = 77568, 17408, 272, 51000
PK = 129792
XS, XSP = 148224, 2592
LNS = 158592
PART = 122880
SLOT = [81920, 122880]
SC, PARK, NPARK = 0, 8192, 18
RED, RW = 81920, 5376
LDS_BYTES = 163840
SPIN = 1 << 15
LOG2E = 0x3fb8aa3b
INV640 = 0x3acccccd
pX, pAre, pAim, pBre, pBim, pCre, pCim, pLdt, pDsk, pBx, pWg, pWu, pWd, pOut, pDbg, pWs = [4 + 2 * i for i in range(16)]
WSR, OUTR = 36, 40
sTag, sWv, sMt, sNt, sHb, sN2 = 44, 45, 46, 47, 48, 49
sT = list(range(50, 64))
sXb = 64
sPkS, sPkF, sFl, sCnt = 66, 67, 68, 69
sStamp = 70
sHw = 3
sW1 = [6, 7, 8, 9]
sAct, sHsrc, sLd, sOut, sFa, sW2, sRep, sAin, sFAc = 10, 11, 12, 13, 14, 15, 16, 17, 18
ws = s(WSR, 4)

k = K()
SEL = [a[6:].split(",") for a in sys.argv if a.startswith("--sel=")]
SEL = SEL[0] if SEL else ["start"]
assert len(SEL) <= 16
def stamp(name):
    if STAMP and name in SEL: k(f"{'s_memtime' if opt('cyc', 0) else 's_memrealtime'} {s(sStamp + 2*SEL.index(name), 2)}")
def stampc(name): return lambda: stamp(name)
def lines(t): return [l.strip() for l in t.split("\n") if l.strip()]

vLane, vN, vG, vL16 = 1, 2, 3, 4
vTagv, vRep, vFl0 = 11, 30, 31

def tagtest(checks, vacc, ref):
    if len(checks) == 1:
        k(f"v_cmp_ne_u32 vcc, {s(ref)}, {v(checks[0])}"); return
    k(f"v_xor_b32 {v(vacc)}, {s(ref)}, {v(checks[0])}")
    for c in checks[1:]:
        k(f"v_bitop3_b32 {v(vacc)}, {v(vacc)}, {v(c)}, {s(ref)} bitop3:0xf6")
    k(f"v_cmp_ne_u32 vcc, 0, {v(vacc)}")
SLOW = []
def check(loads, checks, vacc, nl=64, cnt=0):
    L, E, D = k.lab("Lpoll"), k.lab("Lslow"), k.lab("Lgot")
    ref = sTag
    if cnt: ref = sT[0]; k(f"s_add_u32 {s(ref)}, {s(sTag)}, {cnt}")
    if 31 < nl < 64: k(f"s_bfm_b64 {s(sT[2],2)}, {nl}, 0")
    tagtest(checks, vacc, ref)
    if nl <= 31: k(f"s_and_b64 vcc, vcc, {hex((1 << nl) - 1)}\ns_cbranch_scc1 {E}")
    elif nl < 64: k(f"s_and_b64 vcc, vcc, {s(sT[2],2)}\ns_cbranch_scc1 {E}")
    else: k(f"s_cbranch_vccnz {E}")
    st = k.snap(); main_out = k.out; k.out = []
    k.label(E)
    k(f"s_mov_b32 {s(sCnt)}, 0")
    k.label(L)
    k("s_mov_b64 exec, vcc")
    if SLEEP: k(f"s_sleep {SLEEP}")
    k(loads)
    k("s_waitcnt vmcnt(0)")
    tagtest(checks, vacc, ref)
    k(f"""s_mov_b64 exec, -1
    s_cbranch_vccz {D}
    s_add_u32 {s(sCnt)}, {s(sCnt)}, 1
    s_cmp_lt_u32 {s(sCnt)}, {SPIN}
    s_cbranch_scc1 {L}
    s_branch {D}""")
    SLOW.extend(k.out); k.out = main_out
    k.label(D)
    k.merge(st)
def apoll(d, va, off, soff=None):
    return [f"v_mov_b32 {v(d)}, 0", f"buffer_atomic_add {v(d)}, {v(va)}, {ws}, {s(sRep if soff is None else soff)} offen offset:{off} sc0 sc1"]
vOne = 27
def flag(tok, soff, off=0, rep=True):
    return [lambda: k.wait_tok(tok), f"buffer_atomic_add {v(vOne)}, {v(vRep if rep else vFl0)}, {ws}, {s(soff)} offen offset:{off} sc1"]
def tagflag(tok, soff):
    return [lambda: k.wait_tok(tok), f"buffer_atomic_swap {v(vTagv)}, {v(vRep)}, {ws}, {s(soff)} offen sc1"]
def apoll2(d, va, off):
    return [f"v_mov_b32 {v(d)}, 0", f"v_mov_b32 {v(d+1)}, 0", f"buffer_atomic_add_x2 {v(d,2)}, {v(va)}, {ws}, {s(sRep)} offen offset:{off} sc0 sc1"]
def bar(): k("s_waitcnt lgkmcnt(0)\ns_barrier")
def cmul(d, a, b):
    return [f"v_pk_mul_f32 {v(d,2)}, {v(a,2)}, {v(b,2)} op_sel:[0,0] op_sel_hi:[0,1]",
            f"v_pk_fma_f32 {v(d,2)}, {v(a,2)}, {v(b,2)}, {v(d,2)} op_sel:[1,1,0] op_sel_hi:[1,0,1] neg_lo:[1,0,0]"]
def zipper(*ls):
    out = []; ls = [list(l) for l in ls]
    while any(ls):
        for l in ls:
            if l: out.append(l.pop(0))
    return out
def mf16(d, a, b, c=None):
    return f"v_mfma_f32_16x16x32_bf16 {d}, {a}, {b}, {d if c is None else c}"
def groups(d):
    out = []; g_ = []
    for x in d:
        g_.append(x)
        if _kind(x) == "mem": out.append(g_); g_ = []
    assert not g_
    return out

TAPS = [list(range(-3, 8)), [-3, -2, 0, 4, 6], [-3, 0, 4, 5], [-3, 0, 4, 5]]
def tapsrc(rho, tap):
    if rho == 0: return tap
    if rho == 1: return -3 if tap == -3 else -2 if tap == -2 else 0 if tap <= 2 else 4 if tap <= 5 else 6
    return -3 if tap == -3 else 0 if tap <= 3 else 4 if tap == 4 else 5
def rb(x):
    u = int(np.float32(x).view(np.uint32))
    return int(np.uint32(((u + 0x7FFF + ((u >> 16) & 1)) >> 16) << 16).view(np.float32))
H = list(range(8)) + [256,258,260,262,512,516,768,772,1024,1280,1536,1792,2048]
idx = {}
for i, h in enumerate(H):
    for j in range(32): idx.setdefault(h + 8*j, (i, j))
def kaddr(l):
    if l < 0: return 3072
    i, j = idx[rb(l)]
    return (4*(i >> 3) + (i & 3))*256 + ((i >> 2) & 1)*128 + 4*j
k.raw(".p2align 12\n.type Ltab,@object\nLtab:")
rows_ = []
for lane in range(64):
    row = []
    for rho in range(4):
        x = 64*rho + lane
        for tap in range(-3, 8): assert kaddr(8*x + tap) == kaddr(8*x + tapsrc(rho, tap)), (rho, lane, tap)
        row += [kaddr(8*x + tp) for tp in TAPS[rho]]
    rows_.append(row)
for part in range(3):
    for lane in range(64): k.raw(".short " + ",".join(map(str, rows_[lane][8*part:8*part+8])))
k.raw(".fill 64, 4, 0\n.size Ltab, .-Ltab")

k.begin(NAME + "_kernel")
stamp("start")
vTabl, vPar, vLdt, vDs = 44, 56, 74, 75
k(f"""
s_load_dwordx16 s[4:19], s[0:1], 0
s_load_dwordx16 s[20:35], s[0:1], 64
s_cmp_lt_u32 s2, 256
s_cbranch_scc1 Lstart
s_endpgm
Lstart:
s_getpc_b64 {s(sT[0],2)}
Lpc:
v_and_b32 {v(vN)}, 15, v0
s_lshr_b32 {s(sT[5])}, s2, 3
s_lshl_b32 {s(sT[4])}, {s(sT[5])}, 11
v_lshl_add_u32 v5, {v(vN)}, 7, {s(sT[4])}
v_min_u32 v5, Lcode_end-Lpc-4, v5
v_lshrrev_b32 v6, 6, v0
global_load_dword v172, v5, {s(sT[0],2)}
v_readfirstlane_b32 {s(sWv)}, v6
v_and_b32 {v(vLane)}, 63, v0
v_lshlrev_b32 {v(vL16)}, 4, {v(vLane)}
s_mul_i32 {s(sT[6])}, s2, 3
s_cmp_eq_u32 {s(sWv)}, 3
s_cselect_b32 {s(sT[7])}, 0, {s(sWv)}
s_cselect_b32 {s(sT[10])}, 255, s2
s_add_u32 {s(sT[6])}, {s(sT[6])}, {s(sT[7])}
s_min_u32 {s(sT[8])}, {s(sT[6])}, 639
s_mul_i32 {s(sT[9])}, {s(sT[8])}, 384
v_lshl_add_u32 v6, {v(vLane)}, 1, {s(sT[9])}
s_lshl_b32 {s(sT[9])}, {s(sT[8])}, 1
v_mov_b32 v7, {s(sT[9])}
""")
for i in range(9): k(f"v_mov_b64 {v(vPar+2*i,2)}, 0")
k(f"""
s_lshl2_add_u32 {s(sT[4])}, s2, {s(sWv)}
s_mul_i32 {s(sT[4])}, {s(sT[4])}, 2560
s_mul_i32 m0, {s(sWv)}, {XSP}
s_add_u32 m0, m0, {XS}
s_add_u32 {s(sXb)}, {s(pX)}, {s(sT[4])}
s_addc_u32 {s(sXb+1)}, {s(pX+1)}, 0
s_load_dword {s(sTag)}, {s(pWs,2)}, 0
""")
k(f"global_load_lds_dwordx4 {v(vL16)}, {s(sXb,2)}", tok="x")
k(f"global_load_lds_dwordx4 {v(vL16)}, {s(sXb,2)} offset:1024", tok="x")
k("s_mov_b32 exec_hi, 0")
k(f"global_load_lds_dwordx4 {v(vL16)}, {s(sXb,2)} offset:2048", tok="x")
k(f"s_mov_b32 exec_hi, -1\ns_cmp_ge_u32 {s(sT[10])}, {NCG}\ns_cbranch_scc1 Lother")
sDisp = k.snap()

vQ, vCgl, vXo, vSel, vSel3, vRo, vRo3, vLw, vLr = 150, 151, 152, 144, 147, 76, 77, 156, 157
vLa, vLb, vLr2, vM, vDI, vHc, vPt = 8, 9, 10, 12, 16, 28, 29
vW1a, vW1d = 22, 20
vFa, vFd = 23, 24
vRaw, vX, vS, vSq, vXr = 84, 100, 124, 126, 240
def common_setup(other=False):
    if STAMP:
        for i, nm in enumerate(SEL):
            if nm not in ("start", "iss"): k(f"s_mov_b32 {s(sStamp+2*i)}, 0")
    k(f"""
    s_mov_b32 {s(WSR)}, {s(pWs)}
    s_mov_b32 {s(WSR+1)}, {s(pWs+1)}
    s_mov_b32 {s(WSR+2)}, {WS_BYTES}
    s_mov_b32 {s(WSR+3)}, 0x20000
    """)
    if other:
        k(f"""v_lshlrev_b32 v63, 7, {v(vLane)}
        s_lshl_b32 {s(sT[9])}, s2, 7
        s_sub_u32 {s(sT[9])}, {16*RS}, {s(sT[9])}
        s_cmp_lt_u32 s2, 64
        s_cselect_b32 {s(sT[9])}, {s(sT[9])}, {OOB}
        v_writelane_b32 v63, {s(sT[9])}, 2
        v_cmp_gt_u32 vcc, 3, {v(vLane)}
        v_mov_b32 v6, {OOB}
        v_mov_b32 v5, 0
        v_cndmask_b32 v63, v6, v63, vcc
        v_lshlrev_b32 v62, 6, {v(vLane)}
        v_add_u32 v62, {FF - FB - 192}, v62
        v_cndmask_b32 v62, v62, v63, vcc
        v_cmp_gt_u32 vcc, 7, {v(vLane)}
        v_cndmask_b32 v62, v6, v62, vcc
        s_lshl_b32 {s(sT[12])}, s2, 8
        s_add_u32 {s(sT[12])}, {s(sT[12])}, {FB}
        s_cmp_eq_u32 {s(sWv)}, 3
        s_cselect_b32 {s(sT[12])}, {s(sT[12])}, {OOB}
        buffer_atomic_add v5, v62, {ws}, {s(sT[12])} offen sc1""")
    k(f"""
    s_mov_b32 {s(OUTR)}, {s(pOut)}
    s_mov_b32 {s(OUTR+1)}, {s(pOut+1)}
    s_mov_b32 {s(OUTR+2)}, 2621440
    s_mov_b32 {s(OUTR+3)}, 0x20000
    v_mov_b32 v6, {OOB}
    v_mov_b32 {v(vOne)}, 1
    v_and_b32 {v(vQ)}, 3, v0
    v_lshrrev_b32 {v(vCgl)}, 2, v0
    v_mul_u32_u24 v5, 6, {v(vCgl)}
    v_and_b32 v5, -4, v5
    v_mul_u32_u24 {v(vXo)}, {XSP}, {v(vQ)}
    v_add_u32 {v(vXo)}, {XS}, {v(vXo)}
    v_min_u32 {v(vXo+2)}, 120, v5
    v_add_u32 {v(vXo+2)}, 1152, {v(vXo+2)}
    v_add_u32 {v(vXo+2)}, {v(vXo+2)}, {v(vXo)}
    v_add_u32 {v(vXo)}, {v(vXo)}, v5
    v_add_u32 {v(vXo+1)}, 1280, {v(vXo)}
    v_add_u32 {v(vXo+3)}, 1280, {v(vXo+2)}
    s_and_b32 {s(sT[4])}, s2, 7
    s_lshr_b32 {s(sMt)}, {s(sT[4])}, 2
    s_lshr_b32 {s(sT[10])}, {s(sT[5])}, 2
    s_lshl3_add_u32 {s(sMt)}, {s(sMt)}, {s(sT[10])}
    s_and_b32 {s(sNt)}, {s(sT[4])}, 3
    s_and_b32 {s(sT[10])}, {s(sT[5])}, 3
    s_lshl2_add_u32 {s(sNt)}, {s(sNt)}, {s(sT[10])}
    s_lshr_b32 {s(sHb)}, {s(sNt)}, 3
    s_and_b32 {s(sN2)}, {s(sNt)}, 7
    s_and_b32 {s(sRep)}, {s(sT[5])}, 15
    s_mul_i32 {s(sRep)}, {s(sRep)}, {RS}
    s_add_u32 {s(sRep)}, {s(sRep)}, {FB}
    v_and_b32 v5, 1, {v(vCgl)}
    v_mul_u32_u24 v5, 0x0202, v5
    v_lshlrev_b32 v5, 16, v5
    v_add_u32 {v(vSel)}, 0x01000c0c, v5
    v_add_u32 {v(vSel+1)}, 0x03020c0c, v5
    v_add_u32 {v(vSel+2)}, 0x05040c0c, v5
    v_mov_b32 v5, 0x0c0c0c0c
    v_cmp_gt_u32 vcc, 21, {v(vCgl)}
    v_mul_u32_u24 {v(vRo)}, {CGS}, {v(vCgl)}
    v_lshl_add_u32 {v(vRo)}, {v(vQ)}, 4, {v(vRo)}
    v_cndmask_b32 {v(vSel3)}, v5, {v(vSel)}, vcc
    v_cndmask_b32 {v(vSel3+1)}, v5, {v(vSel+1)}, vcc
    v_cndmask_b32 {v(vSel3+2)}, v5, {v(vSel+2)}, vcc
    v_cmp_eq_u32 vcc, 21, {v(vCgl)}
    v_mov_b32 v5, 0x07060c0c
    v_lshrrev_b32 {v(vLw)}, 1, {v(vG)}
    v_cndmask_b32 {v(vSel3)}, {v(vSel3)}, v5, vcc
    v_cmp_gt_u32 vcc, 22, {v(vCgl)}
    v_and_b32 v5, 1, {v(vG)}
    v_lshl_add_u32 {v(vLw)}, v5, 1, {v(vLw)}
    v_cndmask_b32 {v(vRo3)}, v6, {v(vRo)}, vcc
    v_cmp_ne_u32 vcc, 0, {v(vLane)}
    v_lshlrev_b32 {v(vLw)}, 2, {v(vLw)}
    v_lshlrev_b32 {v(vLr)}, 6, {v(vQ)}
    v_cndmask_b32 {v(vFl0)}, 0, v6, vcc
    v_cmp_gt_u32 vcc, 16, {v(vLane)}
    v_mul_u32_u24 {v(vRep)}, {RS}, {v(vLane)}
    v_add_u32 {v(vLr)}, {LNS}, {v(vLr)}
    v_cndmask_b32 {v(vRep)}, v6, {v(vRep)}, vcc
    s_lshl_b32 {s(sT[4])}, {s(sWv)}, 4
    v_add3_u32 {v(vLw)}, {v(vLw)}, {v(vLr)}, {s(sT[4])}
    s_lshr_b32 {s(sT[9])}, {s(sNt)}, 1
    s_mul_i32 {s(sT[9])}, {s(sT[9])}, 320
    s_add_u32 {s(sT[9])}, {s(sT[9])}, {oW1}
    s_lshl_b32 {s(sT[10])}, {s(sWv)}, 10
    v_cmp_gt_u32 vcc, 40, {v(vLane)}
    v_lshl_add_u32 {v(vW1a)}, {v(vLane)}, 3, {s(sT[9])}
    v_lshl_add_u32 {v(vFa)}, {v(vLane)}, 7, {s(sT[10])}
    v_cndmask_b32 {v(vW1a)}, v6, {v(vW1a)}, vcc
    v_cmp_gt_u32 vcc, 8, {v(vLane)}
    v_cndmask_b32 {v(vFa)}, v6, {v(vFa)}, vcc
    s_lshl2_add_u32 {s(sT[9])}, {s(sNt)}, {s(sWv)}
    s_mul_i32 {s(sT[9])}, {s(sT[9])}, {20*3072}
    s_add_u32 {s(sT[9])}, {s(sT[9])}, {W1P}""")
    for e in range(4):
        k(f"s_xor_b32 {s(sW1[e])}, {s(sWv)}, {e}\ns_mul_i32 {s(sW1[e])}, {s(sW1[e])}, {5*3072}\ns_add_u32 {s(sW1[e])}, {s(sW1[e])}, {s(sT[9])}")
    k(f"""
    s_mul_i32 {s(sLd)}, {s(sWv)}, 10240
    s_mul_i32 {s(sHsrc)}, {s(sMt)}, 163840
    s_add_u32 {s(sHsrc)}, {s(sHsrc)}, {s(sLd)}
    s_add_u32 {s(sHsrc)}, {s(sHsrc)}, {HT}
    s_mul_i32 {s(sT[9])}, {s(sT[7])}, {TKCH}
    s_mul_i32 {s(sT[10])}, {s(sT[7])}, {ULCH}
    v_and_b32 v5, 3, {v(vN)}
    v_mul_u32_u24 {v(vLa)}, {CS}, v5
    v_lshrrev_b32 v5, 2, {v(vN)}
    v_lshlrev_b32 v6, 1, {v(vG)}
    v_sub_u32 v5, v5, v6
    v_add_u32 v5, 7, v5
    v_lshl_add_u32 {v(vLa)}, v5, 3, {v(vLa)}
    v_add_u32 {v(vLa)}, {s(sT[9])}, {v(vLa)}
    v_lshl_add_u32 {v(vLr2)}, {v(vN)}, 5, {s(sT[10])}
    v_lshl_add_u32 {v(vLb)}, {v(vG)}, 4, {v(vLr2)}
    v_add_u32 {v(vLb)}, {UL}, {v(vLb)}
    s_lshl_b32 {s(sT[9])}, {s(sT[7])}, 12
    s_add_u32 {s(sT[9])}, {s(sT[9])}, {PART}
    v_add_u32 {v(vPt)}, {s(sT[9])}, {v(vL16)}""")
def ln1(other):
    k(f"""s_add_u32 {s(sTag)}, {s(sTag)}, 0x9E3779B1
    v_mov_b32 {v(vTagv)}, {s(sTag)}
    s_lshl_b32 {s(sT[4])}, s2, 6
    s_add_u32 {s(sT[5])}, {s(sT[4])}, {XB}""")
    for rho in range(4): k(f"v_mov_b32 {v(vXr+4*rho+3)}, {s(sTag)}")
    if other:
        for j in range(4): k(f"v_mov_b32 {v(64+j)}, {s(sTag)}")
        k(f"buffer_store_dwordx4 v[64:67], v63, {ws}, {s(sT[12])} offen sc1", tok="init")
    stamp("ln0")
    k.wait_tok("x")
    k("s_barrier")
    for rho in range(4):
        for e in range(2):
            o = 96*rho if rho < 3 else 0
            k(f"ds_read2_b32 {v(vRaw + 4*rho + 2*e, 2)}, {v(vXo + e + (2 if rho == 3 else 0))} offset0:{o} offset1:{o+1}")
    for rho in range(4):
        for c in range(3):
            for e in range(2):
                r = vRaw + 4*rho + 2*e
                k(f"v_perm_b32 {v(vX + 6*rho + 2*c + e)}, {v(r+1)}, {v(r)}, {v((vSel if rho < 3 else vSel3) + c)}")
    for i in range(12):
        x = v(vX + 2*i, 2)
        if i == 0: k(f"v_pk_mul_f32 {v(vSq,2)}, {x}, {x}")
        else:
            k(f"v_pk_fma_f32 {v(vSq,2)}, {x}, {x}, {v(vSq,2)}")
            k(f"v_pk_add_f32 {v(vS,2)}, {v(vX,2) if i == 1 else v(vS,2)}, {x}")
    cv = [f"v_cvt_pk_bf16_f32 {v(vXr+4*(i//3)+i%3)}, {v(vX+2*i)}, {v(vX+2*i+1)}" for i in range(12)]
    k(cv[:1] + [f"v_permlane32_swap_b32 {v(vSq)}, {v(vSq+1)}", f"v_permlane32_swap_b32 {v(vS)}, {v(vS+1)}",
       f"v_add_f32 {v(vSq)}, {v(vSq)}, {v(vSq+1)}", f"v_add_f32 {v(vS)}, {v(vS)}, {v(vS+1)}"] + cv[1:3] +
      [f"v_permlane16_swap_b32 {v(vS)}, {v(vSq)}", f"v_add_f32 {v(vS)}, {v(vS)}, {v(vSq)}"] + cv[3:5] +
      [f"v_add_f32_dpp {v(vS)}, {v(vS)}, {v(vS)} row_ror:8 row_mask:0xf bank_mask:0xf"] + cv[5:7] +
      [f"v_add_f32_dpp {v(vS)}, {v(vS)}, {v(vS)} row_ror:4 row_mask:0xf bank_mask:0xf", f"ds_write_b32 {v(vLw)}, {v(vS)}"] + cv[7:])
    bar()
    stamp("lnb")
def x_stores():
    for rho in range(4):
        k(f"buffer_store_dwordx4 {v(vXr+4*rho,4)}, {v(vRo if rho < 3 else vRo3)}, {ws}, {s(sT[5])} offen sc1")
        if rho < 3: k(f"s_add_u32 {s(sT[5])}, {s(sT[5])}, {64*CGS}")
    stamp("xst")
w1poll = apoll2(vW1d, vW1a, 0)
rdypoll = apoll2(56, 61, 0) + apoll2(58, 61, 512)
def rdy_chk(): check(rdypoll, [56, 57, 58, 59], 5); stamp('rdy')
def w1_ready():
    check(w1poll, [vW1d, vW1d+1], 5, 40); stamp("wf1")
W1L = []
for kk in range(20):
    for t in range(3):
        e = kk & 3
        x = [f"s_add_u32 {s(sW1[e])}, {s(sW1[e])}, 3072"] if (t == 0 and kk >= 4) else []
        W1L.append(x + [f"buffer_load_dwordx4 {ar(12*kk+4*t,4)}, {v(vL16)}, {ws}, {s(sW1[e])} offen offset:{1024*t} sc1"])
def hflag_ld(stage): return apoll(vFd, vFa, oH + 4*stage)
def hflag_chk(stage):
    check(hflag_ld(stage), [vFd], 5, 8, 20); stamp("hf" + "ABC"[stage])
def h_dma(c):
    L = []
    for i in range(10):
        if i % 4 == 0:
            L += [f"s_add_u32 m0, {s(sLd)}, {SLOT[c % 2] + 1024*i}", f"s_add_u32 {s(sT[4])}, {s(sHsrc)}, {40960*c + 1024*i}"]
        L.append((f"buffer_load_dwordx4 {v(vL16)}, {ws}, {s(sT[4])} offen offset:{1024*(i % 4)} sc1 lds", f"h{c}"))
    return groups(L)

for t in range(3):
    for i, p in enumerate([pAre, pAim, pBre, pBim, pCre, pCim]):
        k(f"global_load_short_d16_hi {v(vPar + 6*t + i)}, v6, {s(p,2)} offset:{128*t}")
vPs, vPa, vPst = 36, 32, 34
assert all((p*2731) >> 16 == p // 24 for p in range(192))
k(f"""
s_sub_u32 {s(sT[2])}, {s(sT[0])}, Lpc-Ltab
s_subb_u32 {s(sT[3])}, {s(sT[1])}, 0
global_load_short_d16_hi {v(vLdt)}, v7, {s(pLdt,2)}
global_load_ushort {v(vDs)}, v7, {s(pDsk,2)}
global_load_dwordx4 {v(vTabl,4)}, {v(vL16)}, {s(sT[2],2)}
global_load_dwordx4 {v(vTabl+4,4)}, {v(vL16)}, {s(sT[2],2)} offset:1024
global_load_dwordx4 {v(vTabl+8,4)}, {v(vL16)}, {s(sT[2],2)} offset:2048
s_lshr_b32 {s(sT[9])}, {s(sT[8])}, 5
s_bfe_u32 {s(sT[10])}, {s(sT[8])}, 0x20003
s_and_b32 {s(sT[11])}, {s(sT[8])}, 7
s_lshl3_add_u32 {s(sT[12])}, {s(sT[9])}, {s(sT[10])}
s_mul_i32 {s(sT[12])}, {s(sT[12])}, {4*3072}
s_mul_i32 {s(sT[13])}, {s(sT[11])}, 384
s_add_u32 {s(sT[12])}, {s(sT[12])}, {s(sT[13])}""")
for e in range(3):
    k(f"""v_add_u32 v5, {64*e}, {v(vLane)}
    v_mul_u32_u24 v6, 2731, v5
    v_lshrrev_b32 v7, 18, v6
    v_lshrrev_b32 v6, 16, v6
    v_mul_u32_u24 v6, 2688, v6
    v_mul_u32_u24 v7, 36864, v7
    v_lshl_add_u32 v5, v5, 4, {s(sT[12])}
    v_add3_u32 {v(vPs+e)}, v5, v6, v7""")
k(f"s_mul_i32 {s(sT[13])}, {s(sWv)}, 6144\ns_add_u32 {s(sT[13])}, {s(sT[13])}, {PK}")
WD = opt("wd", 0)
def w1_dma():
    for mat in range(2):
        for e in range(3):
            k(f"s_add_u32 m0, {s(sHw)}, {mat*3072 + e*1024}")
            k(f"global_load_lds_dwordx4 {v(vPs+e)}, {s(pWg if mat == 0 else pWu, 2)}", tok="w1dma")
    if WD: k(f"s_sub_u32 m0, {s(sT[13])}, {TOF}")
k(f"s_mov_b32 {s(sHw)}, {s(sT[13])}")
if WD == 0: w1_dma()
stamp("iss")
vDt, vRdA, vAcc = 78, 82, 84
k(f"""
s_mul_i32 {s(sPkS)}, {s(sT[11])}, 160
s_add_u32 {s(sPkS)}, {s(sPkS)}, {s(sT[9])}
s_mul_i32 {s(sPkS)}, {s(sPkS)}, 3072
s_lshl_b32 {s(sT[10])}, {s(sT[10])}, 8
s_add_u32 {s(sPkS)}, {s(sPkS)}, {s(sT[10])}
s_add_u32 {s(sPkS)}, {s(sPkS)}, {W1P}
s_mul_i32 {s(sPkF)}, {s(sT[11])}, 80
s_lshr_b32 {s(sT[10])}, {s(sT[8])}, 3
s_add_u32 {s(sPkF)}, {s(sPkF)}, {s(sT[10])}
s_lshl_b32 {s(sPkF)}, {s(sPkF)}, 2
s_add_u32 {s(sPkF)}, {s(sPkF)}, {FB + oW1}
v_lshrrev_b32 {v(vG)}, 4, {v(vLane)}
v_bfe_u32 v5, {v(vLane)}, 1, 1
v_mul_u32_u24 {v(vPa)}, 3072, v5
v_bfe_u32 v5, {v(vLane)}, 2, 2
v_mul_u32_u24 v5, 384, v5
v_add3_u32 {v(vPa)}, {v(vPa)}, v5, {s(sT[13])}
v_mad_u32_u24 {v(vPa)}, {v(vG)}, 48, {v(vPa)}
v_and_b32 v5, 1, {v(vLane)}
v_lshl_add_u32 {v(vPa+1)}, v5, 3, {v(vPa)}
v_lshl_add_u32 {v(vPa)}, v5, 4, {v(vPa)}
v_mul_u32_u24 v6, {20*3072}, {v(vG)}
v_lshl_add_u32 {v(vPst)}, {v(vN)}, 4, v6
s_mul_i32 {s(sT[4])}, {s(sWv)}, {TABW}
s_add_u32 m0, {s(sT[4])}, {TAB - TOF}
s_add_u32 {s(sT[13])}, {s(sT[4])}, {TAB}
v_and_b32 v5, 31, {v(vLane)}
v_mul_u32_u24 {v(vRdA)}, {TROW}, v5
v_lshrrev_b32 v5, 5, {v(vLane)}
v_lshl_add_u32 {v(vRdA)}, v5, 4, {v(vRdA)}
v_add_u32 {v(vRdA)}, {s(sT[13])}, {v(vRdA)}
v_mov_b32 {v(vDt)}, {LOG2E}
v_mov_b32 {v(vDt+1)}, 0.15915494
v_mov_b32 v5, 0x3f80
ds_write_addtid_b32 v5 offset:{TOF}
""")
common_setup()
if WD == 3: w1_dma()
ln1(False)
if WD == 2: w1_dma()
if XEARLY == 1: x_stores()
vA, vC, vZ1, vZ2, vZ4, vZ8, vZ16, vZ256 = 100, 102, 104, 106, 108, 110, 112, 114
vE, vPkd, vF, vPd = 116, 140, 192, 144
k(f"""v_and_b32 {v(vLdt)}, 0xffff0000, {v(vLdt)}
v_mul_f32 {v(vLdt)}, {v(vLdt)}, {v(vDt)}
v_exp_f32 {v(vLdt)}, {v(vLdt)}""")
if XEARLY == 2: x_stores()
if WD == 1: w1_dma()
k(f"v_cvt_pk_bf16_f32 {v(vDt+2)}, 0, {v(vLdt)}")
def put(src, row):
    return [f"v_cvt_pk_bf16_f32 {v(vPkd+row-1)}, {v(src)}, {'-' if row >= 32 else ''}{v(src+1)}"]
def kg_mm(t):
    return [f"v_mfma_f32_32x32x16_bf16 {v(vAcc,16)}, {v(vF+8*kk,4)}, {v(vF+8*kk+4,4)}, {'0' if (t == 0 and kk == 0) else v(vAcc,16)}" for kk in range(8)]
PKT = opt("pkt", 1); PKF = opt("pkf", 9); XBAR = opt("xbar", 3)
for t in range(3):
    P = vPar + 6*t
    if t == PKT:
        k.wait_tok("w1dma")
        for a_ in range(2):
            for tt in range(3):
                for hf in range(2):
                    k(f"ds_read_b64_tr_b16 {v(vPd+12*a_+4*tt+2*hf,2)}, {v(vPa + (tt == 2))} offset:{1536*hf + 192*a_ + (8*tt if tt < 2 else 32)}")
    k(f"""v_pk_mul_f32 {v(vA,2)}, {v(P,2)}, {v(vDt+2,2)} op_sel_hi:[1,0]
    v_pk_mul_f32 {v(P+2,2)}, {v(P+2,2)}, {v(vDt+2,2)} op_sel_hi:[1,0]
    v_pk_mul_f32 {v(vA,2)}, {v(vA,2)}, {v(vDt,2)}""")
    cm = cmul(vC, P+4, P+2)
    k([cm[0], f"v_fract_f32 {v(vA+1)}, {v(vA+1)}", f"v_exp_f32 {v(vA)}, {v(vA)}", f"v_cos_f32 {v(vZ1)}, {v(vA+1)}", f"v_sin_f32 {v(vZ1+1)}, {v(vA+1)}", cm[1],
       f"v_pk_mul_f32 {v(vZ1,2)}, {v(vZ1,2)}, {v(vA,2)} op_sel_hi:[1,0]"])
    ev = [vE, vE+2]; od = [vE+4, vE+6]; h0 = [vE+8, vE+10]; hb = [vE+12, vE+14]; hx = [vE+16, vE+18, vE+20]
    cH = put(vC, 32); prev = vC
    for j in range(1, 8):
        d = h0[j % 2]; cH += cmul(d, prev, vZ1) + put(d, 32+j); prev = d
    sq = cmul(vZ2, vZ1, vZ1) + cmul(vZ4, vZ2, vZ2) + cmul(vZ8, vZ4, vZ4) + cmul(vZ16, vZ8, vZ8)
    k(zipper(sq, cH[:8])); cH = cH[8:]
    if t == PKT:
        for a_ in range(2):
            if a_: k(f"s_add_u32 {s(sPkS)}, {s(sPkS)}, {80*3072}")
            for tt in range(3):
                k(f"buffer_store_dwordx4 {v(vPd+12*a_+4*tt,4)}, {v(vPst)}, {ws}, {s(sPkS)} offen offset:{1024*tt} sc1", tok="w1st")
        stamp("pk1")
    cE = put(vZ16, 2); prev = vZ16; cut = None
    for j in range(4, 32, 2):
        d = ev[(j//2) % 2]; cE += cmul(d, prev, vZ16) + put(d, j); prev = d
        if j == 16: cE += cmul(vZ256, d, d); cut = len(cE)
    cO = put(vZ8, 1); prev = vZ8
    for j in range(3, 32, 2):
        d = od[(j//2) % 2]; cO += cmul(d, prev, vZ16) + put(d, j); prev = d
    cB = []; prev = vC
    rows = {1: 8, 2: 12, 3: 14, 4: 16, 5: 17, 6: 18, 7: 19, 8: 20}
    for j in range(1, 9):
        d = hb[j % 2]; cB += cmul(d, prev, vZ256) + put(d, 32+rows[j]); prev = d
        if j == 1:
            cB += cmul(hx[0], d, vZ2) + put(hx[0], 32+9) + cmul(hx[1], d, vZ4) + put(hx[1], 32+10) + cmul(hx[2], hx[0], vZ4) + put(hx[2], 32+11)
        elif j in (2, 3):
            cB += cmul(hx[0], d, vZ4) + put(hx[0], 32+rows[j]+1)
    if t == opt("pkh", 2): k(tagflag("w1st", sPkF)); stamp("pkf")
    k(zipper(cE[:cut], cH + cO[:10])); cO = cO[10:]
    k(zipper(cB, cO, cE[cut:]))
    if 2*t == XBAR: k("s_barrier")
    if t == opt("pkg", -1): k(tagflag("w1st", sPkF)); stamp("pkf")
    wr = [f"ds_write_addtid_b32 {v(vPkd+r-1)} offset:{TOF + r*TROW}" for r in range(1, 53)]
    if t == 0:
        if XEARLY == 0: x_stores()
        k(wr)
    else: weave2(k, kg_mm(t-1), wr, [], slots=6)
    for kk in range(8):
        k(f"ds_read_b128 {v(vF+8*kk,4)}, {v(vRdA)} offset:{32*TROW + 32*kk}")
        k(f"ds_read_b128 {v(vF+8*kk+4,4)}, {v(vRdA)} offset:{32*kk}")
    if t == PKF: k(tagflag("w1st", sPkF)); stamp("pkf")
    if 2*t + 1 == XBAR: k("s_barrier")
    stamp(f"kt{t}")
vG0, vO = 100, 128
fill = [f"v_add_u32_sdwa {v(vG0+i)}, {s(sT[13])}, {v(vTabl + i//2)} dst_sel:DWORD dst_unused:UNUSED_PAD src0_sel:DWORD src1_sel:WORD_{i & 1}" for i in range(24)]
fill += lines(f"""
v_and_b32 v5, 1, {v(vG)}
v_lshl_add_u32 {v(vLr2)}, v5, 4, {v(vLr2)}
v_cmp_gt_u32 vcc, 2, {v(vG)}
v_mov_b32 v6, {UL+512}
v_mov_b32 v7, {XL}
v_cndmask_b32 v6, v7, v6, vcc
v_add_u32 {v(vLr2)}, {v(vLr2)}, v6
v_mov_b32 v7, 0x3f80
v_cndmask_b32 v7, v7, {v(vDs)}, vcc
v_lshlrev_b32 v5, 3, v5
v_sub_u32 v5, {v(vN)}, v5
v_and_b32 v6, 1, v5
v_lshlrev_b32 v6, 4, v6
v_lshlrev_b32 v6, v6, v7
v_ashrrev_i32 v5, 1, v5
v_cmp_eq_u32 vcc, 0, v5
v_cmp_eq_u32 {s(sT[0],2)}, 1, v5
v_cmp_eq_u32 {s(sT[2],2)}, 2, v5
v_cndmask_b32 {v(vDI)}, 0, v6, vcc
v_cmp_eq_u32 vcc, 3, v5
v_cndmask_b32 {v(vDI+1)}, 0, v6, {s(sT[0],2)}
v_cndmask_b32 {v(vDI+2)}, 0, v6, {s(sT[2],2)}
v_cndmask_b32 {v(vDI+3)}, 0, v6, vcc
v_lshrrev_b32 v5, 2, {v(vLane)}
v_mul_u32_u24 v5, 163840, v5
v_and_b32 v6, 3, {v(vLane)}
s_bfe_u32 {s(sT[9])}, {s(sT[6])}, 0x10002
s_lshl_b32 {s(sT[9])}, {s(sT[9])}, 1
s_lshl_b32 {s(sT[10])}, {s(sT[6])}, 6
s_mul_i32 {s(sFl)}, {s(sT[6])}, 3277
s_lshr_b32 {s(sFl)}, {s(sFl)}, 16
s_lshl_b32 {s(sFl)}, {s(sFl)}, 7
s_add_u32 {s(sFl)}, {s(sFl)}, {FB + oH}
s_cmp_lt_u32 {s(sT[6])}, 640
s_cselect_b32 {s(sT[10])}, {s(sT[10])}, {OOB}
s_cselect_b32 {s(sFl)}, {s(sFl)}, {OOB}
v_xor_b32 v7, {s(sT[9])}, v6
v_lshl_add_u32 v7, v7, 4, v5
v_add_u32 {v(vHc)}, {s(sT[10])}, v7
s_mul_i32 {s(sT[4])}, {s(sWv)}, {TKCH}
v_add_u32 v7, {s(sT[4])}, {v(vL16)}
v_mov_b32 v6, 0""")
k(fill[:10])
sched(k, kg_mm(2), normal=[(0, fill[10:])], slots=6)
k(f"ds_write_addtid_b32 v6 offset:{TOF + 3072}")
for r in range(12): k(f"ds_write_addtid_b32 {v(vAcc+r)} offset:{TOF + 256*r}")
stamp("kg1")
k.raw(";WARM_BEGIN")
gi = {}
for rho in range(4):
    for tp in TAPS[rho]:
        gi[(rho, tp)] = len(gi)
        k(f"ds_read_b32 {v(vG0+gi[(rho,tp)])}, {v(vG0+gi[(rho,tp)])}")
for rho in range(4):
    g = lambda tap: v(vG0 + gi[(rho, tapsrc(rho, tap))])
    for sg in range(4):
        o = vO + 16*rho + 4*sg
        k(f"""v_cvt_pk_bf16_f32 {v(o)}, {g(sg)}, {g(sg-1)}
        v_cvt_pk_bf16_f32 {v(o+1)}, {g(sg-2)}, {g(sg-3)}
        v_cvt_pk_bf16_f32 {v(o+2)}, {g(sg+4)}, {g(sg+3)}
        v_cvt_pk_bf16_f32 {v(o+3)}, {g(sg+2)}, {g(sg+1)}""")
    for sg in range(4):
        k(f"ds_write_b128 v7, {v(vO+16*rho+4*sg,4)} offset:{TK + sg*CS + 32 + 1024*rho}")
stamp("tp1")

vCA, vFr, vRs, vPk = 32, 72, 232, 248
def h_out(prs, tok):
    L = []
    for pr in prs:
        p = vPk + 4*(pr % 2); a_ = vCA + 8*pr
        if pr >= 2: L += [f"v_pk_add_f32 {v(a_+2*j,2)}, {v(a_+2*j,2)}, {v(vRs+8*(pr-2)+2*j,2)}" for j in range(4)]
        L += [f"v_cvt_pk_bf16_f32 {v(p+j)}, {v(a_+2*j)}, {v(a_+2*j+1)}" for j in range(4)]
        L += [f"s_mov_b32 {s(sT[5])}, {HT + 40960*pr}", (f"buffer_store_dwordx4 {v(p,4)}, {v(vHc)}, {ws}, {s(sT[5])} offen sc1", tok)]
    return L
def conv_code(main):
    bar()
    stamp("cv0")
    if main: jobs = [(0, r, [0,1]) for r in range(8)] + [(0, r, [2,3]) for r in range(8)] + [(0, r, [4,5,6,7]) for r in range(6)]
    else: jobs = [(c, r, t) for c in range(3) for r, t in ((6, [4,5,6,7]), (7, [4,5,6,7]))]
    seq = []; ends = []; touched = set()
    for nb, (c, r, tiles) in enumerate(jobs):
        acc = (lambda i: vCA + 4*i) if main else (lambda i: vCA + 16*(c % 2) + 4*(i-4))
        grp = 0 if (main and nb < 16) else nb
        for _, i, p in sorted([(max(p, i-p), i, p) for i in tiles for p in range(i+1)]):
            if (c, i) not in touched:
                touched.add((c, i))
                if main: seq.append((acc(i), None, ("x", i), True))
                else: seq.append((acc(i), ("a", c, r, p, grp), ("b", c, r, i-p, grp), True)); continue
            seq.append((acc(i), ("a", c, r, p, grp), ("b", c, r, i-p, grp), False))
        ends.append(len(seq))
    first, lastu = {}, {}
    for n_, (_, ka, kb, _z) in enumerate(seq):
        for key in (kb, ka):
            if key is None: continue
            first.setdefault(key, n_); lastu[key] = n_
    home = {}; ring = [-1]*40; nr = 0; nk = 0; R = []
    for key in sorted(first, key=lambda q_: first[q_]):
        if main and key[0] != "x" and first[key] < ends[7]:
            reg = lambda o, n, b_=128 + 4*nk: ar(b_+o, n); nk += 1; early = -1
        else:
            sl = nr % 40; nr += 1; early = ring[sl]; ring[sl] = lastu[key]
            reg = lambda o, n, b_=vFr + 4*sl: v(b_+o, n)
        home[key] = reg(0, 4)
        due = max(first[key] - opt("la", 6), early)
        assert due < first[key]
        if key[0] == "x": T = [f"ds_read_b128 {reg(0,4)}, {v(vLr2)} offset:{512*key[1]}"]
        elif key[0] == "b": T = [f"ds_read_b128 {reg(0,4)}, {v(vLb)} offset:{key[1]*ULCH + 512 + 64*(8*key[3] - key[2]) - 32}"]
        else:
            o = TK + key[1]*TKCH + 64*(8*key[3] + key[2])
            T = [f"ds_read_b64 {reg(0,2)}, {v(vLa)} offset:{o+8}", f"ds_read_b64 {reg(2,2)}, {v(vLa)} offset:{o}"]
        R += [[early, due, x] for x in T]
    for j in range(1, len(R)): R[j][0] = max(R[j][0], R[j-1][0]); R[j][1] = max(R[j][1], R[j][0])
    nom = 1e9; rd = []
    for e_, d_, x in reversed(R):
        nom = min(d_ - opt("lb", 3), nom - opt("rr", 8)/10); rd.append((e_, max(e_, int(nom // 1)), d_, x))
    rd.reverse()
    mm = [mf16(v(a_,4), v(vDI,4) if ka is None else home[ka], home[kb], "0" if z else None) for a_, ka, kb, z in seq]
    n = len(mm); urgent = []; normal = []
    if main:
        for st_, e_ in enumerate((ends[7], ends[15])):
            urgent.append((e_ + 1, [stampc("cv" + "AB"[st_])] + h_out([st_], f"hs{st_}")))
            urgent.append((e_ + opt(f"dA{st_}", [44, 80][st_]), flag(f"hs{st_}", sFl, 4*st_)))
        gb = n - opt("dB", 56)
        urgent.append((gb, ["s_barrier"] + [f"ds_read_b128 {v(vRs+4*j,4)}, {v(vPt)} offset:{1024*j}" for j in range(4)]))
        urgent += [(min(n-1, gb + 2 + opt("dD", 4)*j), g_) for j, g_ in enumerate(h_dma(0))]
    else:
        for c in range(3):
            e_ = ends[2*c+1]
            wr = [f"ds_write_b128 {v(vPt)}, {v(vCA + 16*(c % 2) + 4*j,4)} offset:{4096*c + 1024*j}" for j in range(4)]
            if c < 2: urgent += [(e_ + 3 + 4*j, [wr[j]]) for j in range(4)]
            else: last = wr
    g0 = opt("w1s", 2); nw = NW1C if main else NW1C*opt("w3f", 80)//100
    pos = [g0 + ((gb if main else n) - 2 - g0)*j//nw for j in range(nw)]
    normal.append((100, g1setup))
    if main: assert NW1C <= 32 or pos[32] > ends[15]
    urgent += list(zip(pos, W1L))
    if DBG & 16: urgent = [(g_, [x for x in it if not (isinstance(x, str) and x.startswith('buffer_load'))]) for g_, it in urgent]
    if not main: urgent.append((n - opt("dP", 20), h0poll))
    urgent.sort(key=lambda e: e[0])
    sched(k, mm, rd, urgent, normal, [(j, (lambda nm: lambda U, N: stamp(nm))(f'v{j}')) for j in range(0, n, 20)])
    if main:
        stamp("cv1")
        k(h_out([2, 3], "hB"))
        for g_ in W1L[NW1C:NW1C+NW1G]: k(g_)
    else:
        k(last)
        check(h0poll[3:], [vFd], 5, 32, 20); stamp("hfA")
        bar()
        stamp("cv1")
        for g_ in h_dma(0) + W1L[nw:NW1C+NW1G]: k(g_)
h0poll = [f"v_lshlrev_b32 v25, 7, {v(vLane)}", f"v_lshrrev_b32 v26, 5, {v(vLane)}", "v_lshl_add_u32 v25, v26, 30, v25"] + apoll(vFd, 25, oH)
vOnes, vBa = 12, 64
g1setup = [f"v_mov_b32 {v(vOnes+i)}, 0x3f803f80" for i in range(4)] + lines(f"""
v_lshrrev_b32 v7, 2, {v(vLane)}
v_lshlrev_b32 v7, 6, v7
v_and_b32 v6, 3, {v(vLane)}
v_lshl_add_u32 v7, v6, 3, v7
v_and_b32 v6, 1, {v(vG)}
v_lshl_add_u32 v7, v6, 5, v7""")
for e in range(4):
    g1setup += lines(f"""s_xor_b32 {s(sT[7])}, {s(sWv)}, {e}
    s_mul_i32 {s(sT[7])}, {s(sT[7])}, 10240
    s_add_u32 {s(sT[7])}, {s(sT[7])}, {SLOT[0]}
    v_add_u32 {v(vBa+e)}, {s(sT[7])}, v7
    v_xor_b32 {v(vBa+4+e)}, 32, {v(vBa+e)}""")
conv_code(True)
k(hflag_ld(1)); k.wait_tok("h0")
k("s_branch Lconvd")
sConvMain = k.snap()

k.restore(sDisp)
k.raw(";WARM_OFF")
k.label("Lother")
k(f"v_lshrrev_b32 {v(vG)}, 4, {v(vLane)}\ns_mov_b32 {s(sFl)}, {OOB}")
common_setup(True)
ln1(True)
k(f"s_cmp_lg_u32 {s(sWv)}, 3\ns_cbranch_scc1 Lnostat")
s1 = k.snap()
vP, vT8 = 128, 116
for w in range(4): k(f"ds_read_b128 {v(vP+4*w,4)}, {v(vLr)} offset:{16*w}")
S_, Q_, t_ = vP, vP+2, vT8
k(f"""v_mov_b32 {v(t_+6)}, {INV640}
v_cmp_gt_u32 vcc, 4, {v(vLane)}
v_mov_b32 v6, {OOB}
s_add_u32 {s(sT[4])}, {s(sT[4])}, {STP}
v_cndmask_b32 v6, v6, {v(vL16)}, vcc
v_mov_b32 {v(t_+5)}, {s(sTag)}
v_pk_add_f32 {v(vP,2)}, {v(vP,2)}, {v(vP+4,2)}
v_pk_add_f32 {v(vP+2,2)}, {v(vP+2,2)}, {v(vP+6,2)}
v_pk_add_f32 {v(vP+8,2)}, {v(vP+8,2)}, {v(vP+12,2)}
v_pk_add_f32 {v(vP+10,2)}, {v(vP+10,2)}, {v(vP+14,2)}
v_pk_add_f32 {v(vP,2)}, {v(vP,2)}, {v(vP+8,2)}
v_pk_add_f32 {v(vP+2,2)}, {v(vP+2,2)}, {v(vP+10,2)}
v_pk_mul_f32 {v(S_,2)}, {v(S_,2)}, {v(t_+6,2)} op_sel_hi:[1,0]
v_pk_mul_f32 {v(Q_,2)}, {v(Q_,2)}, {v(t_+6,2)} op_sel_hi:[1,0]
v_pk_fma_f32 {v(Q_,2)}, {v(S_,2)}, {v(S_,2)}, {v(Q_,2)} neg_lo:[1,0,0] neg_hi:[1,0,0]
v_cvt_pk_bf16_f32 {v(t_+4)}, {v(S_)}, {v(S_+1)}
v_max_f32 {v(Q_)}, 0, {v(Q_)}
v_max_f32 {v(Q_+1)}, 0, {v(Q_+1)}
v_cvt_pk_bf16_f32 {v(Q_)}, 0, {v(Q_)}
v_cvt_pk_bf16_f32 {v(Q_+1)}, 0, {v(Q_+1)}
v_add_f32 {v(Q_)}, 0x3727c5ac, {v(Q_)}
v_add_f32 {v(Q_+1)}, 0x3727c5ac, {v(Q_+1)}
v_cvt_pk_bf16_f32 {v(Q_)}, 0, {v(Q_)}
v_cvt_pk_bf16_f32 {v(Q_+1)}, 0, {v(Q_+1)}
v_sqrt_f32 {v(Q_)}, {v(Q_)}
v_sqrt_f32 {v(Q_+1)}, {v(Q_+1)}
v_cvt_pk_bf16_f32 {v(Q_)}, 0, {v(Q_)}
v_cvt_pk_bf16_f32 {v(Q_+1)}, 0, {v(Q_+1)}
v_rcp_f32 {v(t_+2)}, {v(Q_)}
v_rcp_f32 {v(t_+3)}, {v(Q_+1)}
s_nop 0
buffer_store_dwordx4 {v(t_+2,4)}, v6, {ws}, {s(sT[4])} offen sc1
""")
k.label("Lnostat")
k.merge(s1)
x_stores()
k(f"""s_lshl_b32 {s(sT[9])}, s2, 2
s_add_u32 {s(sT[9])}, {s(sT[9])}, {FB + oRDY}
s_cmp_eq_u32 {s(sWv)}, 3
s_cselect_b32 {s(sT[9])}, {s(sT[9])}, {OOB}
v_lshlrev_b32 v61, 3, {v(vLane)}
v_add_u32 v61, {oRDY}, v61""")
k(tagflag("init", sT[9]))
if WARM:
    k(f"s_cmp_lg_u32 {s(sWv)}, 3\ns_cbranch_scc1 Lwarm_end\ns_mov_b64 exec, 0\ns_branch Lwarm0\nLwarm_ret:\ns_mov_b64 exec, -1\nLwarm_end:")
    stamp("wrm")
k(f"s_cmp_ge_u32 s2, {NCG}\ns_cbranch_scc1 Lhelp")
sHelp = k.snap()
k.raw(";WARM_BEGIN")
k(f"""v_mov_b32 v6, 0
v_mov_b32 v7, 0
v_lshlrev_b32 v60, 3, {v(vLane)}
v_lshrrev_b32 v80, 2, {v(vLane)}
v_min_u32 v80, 11, v80
v_mul_u32_u24 v80, {CS}, v80
v_and_b32 v81, 3, {v(vLane)}
v_lshl_add_u32 v80, v81, 3, v80
s_mul_i32 {s(sT[5])}, s2, {CGS}
s_add_u32 {s(sT[5])}, {s(sT[5])}, {XB}
s_mov_b32 m0, {UL}""")
for c in range(3): k(f"ds_write_b64 v60, v[6:7] offset:{UL + c*ULCH}")
k(f"ds_write_b64 v80, v[6:7] offset:{TK}")
vRx, vRt, vW = 84, 148, 212
def plane(dst, base, r0, r1):
    L = []
    for rho in range(r0, r1):
        if rho % 4 == 0: L.append(f"s_add_u32 {s(sT[4])}, {base}, {1024*rho}" if isinstance(base, str) else f"s_mov_b32 {s(sT[4])}, {base + 1024*rho}")
        L.append(f"buffer_load_dwordx4 {v(dst+4*rho,4)}, {v(vL16)}, {ws}, {s(sT[4])} offen offset:{1024*(rho % 4)} sc1")
    return L
if XBAR >= 0: k("s_barrier")
stamp("gx1")
LD = [plane(vRx, s(sT[5]), 4*q, 4*q+4) + plane(vRt, STP, 4*q, 4*q+4) for q in range(4)]
k(LD[0]); k(LD[1])
for r4 in range(4):
    if r4 < 2: k(LD[r4+2])
    if r4 == 1: k(rdypoll)
    if r4 == opt("wp", 2): k(w1poll)
    check(LD[r4], [b_ + 4*r + 3 for b_ in (vRx, vRt) for r in range(4*r4, 4*r4+4)], 5)
    if r4 == 0: stamp("rx1")
    if r4 == 3: stamp("rs1")
    ch = []
    for j in range(4):
        rho = 4*r4 + j; X = vRx + 4*rho; T = vRt + 4*rho; w_ = vW + 8*j
        L = [f"v_and_b32 {v(T+3)}, 0xffff0000, {v(T+2)}", f"v_lshlrev_b32 {v(T+2)}, 16, {v(T+2)}"]
        for c in range(3): L += [f"v_lshlrev_b32 {v(w_+2*c)}, 16, {v(X+c)}", f"v_and_b32 {v(w_+2*c+1)}, 0xffff0000, {v(X+c)}"]
        L += [f"v_pk_mul_f32 {v(T+2,2)}, {v(T+2,2)}, {v(T,2)}"]
        for c in range(3): L += [f"v_pk_fma_f32 {v(w_+2*c,2)}, {v(w_+2*c,2)}, {v(T,2)}, {v(T+2,2)} neg_lo:[0,0,1] neg_hi:[0,0,1]"]
        for c in range(3): L += [f"v_cvt_pk_bf16_f32 {v(T+c)}, {v(w_+2*c)}, {v(w_+2*c+1)}"]
        ch.append(L)
    k(zipper(*ch))
    for j in range(4):
        rho = 4*r4 + j
        for c in range(3):
            k(f"ds_write_addtid_b32 {v(vRt+4*rho+c)} offset:{512 + c*ULCH + 256*rho}")
            k(f"ds_write_addtid_b32 {v(vRx+4*rho+c)} offset:{XL - UL + c*ULCH + 256*rho}")
stamp("tp1")
rdy_chk(); w1_ready()
conv_code(False)
k(hflag_ld(1)); k.wait_tok("h0")
k("s_branch Lconvd")
sConv3 = k.snap()

k.restore(sHelp)
k.raw(";WARM_OFF")
k.label("Lhelp")
sStg = sT[11]; vPa2, vW2o, vPd2 = 62, 104, 148
k(f"""
s_sub_u32 {s(sHw)}, s2, {NCG}
s_add_u32 {s(sT[12])}, {s(sHw)}, 168
s_cmp_eq_u32 {s(sWv)}, 2
s_cselect_b32 {s(sT[12])}, {s(sT[12])}, 192
s_lshl2_add_u32 {s(sHw)}, {s(sHw)}, {s(sWv)}
s_mul_i32 {s(sStg)}, {s(sWv)}, 20480""")
def w2_dma(su, off):
    k(f"s_mul_i32 {s(sT[9])}, {s(su)}, 10240\nv_add_u32 v5, {s(sT[9])}, {v(vL16)}\nv_add_u32 v6, 4096, v5\nv_add_u32 v7, 8192, v5")
    for e in range(10):
        if e % 4 == 0: k(f"s_add_u32 m0, {s(sStg)}, {off + 1024*e}")
        k(f"global_load_lds_dwordx4 {v(5 + e//4)}, {s(pWd,2)} offset:{1024*(e % 4)}", tok="w2dma")
def w2_pack(su, off, sf):
    k(f"""s_lshr_b32 {s(sT[10])}, {s(su)}, 2
    s_and_b32 {s(sT[8])}, {s(su)}, 3
    s_mul_i32 {s(sf)}, {s(su)}, 10923
    s_lshr_b32 {s(sf)}, {s(sf)}, 16
    s_lshl_b32 {s(sf)}, {s(sf)}, 7
    s_add_u32 {s(sf)}, {s(sf)}, {FB + oW2}
    s_mul_i32 {s(sT[9])}, {s(sT[10])}, 5120
    s_lshl_b32 {s(sT[8])}, {s(sT[8])}, 8
    s_add_u32 {s(sT[9])}, {s(sT[9])}, {s(sT[8])}
    s_add_u32 {s(sT[9])}, {s(sT[9])}, {W2P}""")
    k.wait_tok("w2dma")
    stamp("hp0")
    for j in range(10):
        for hf in range(2):
            k(f"ds_read_b64_tr_b16 {v(vPd2+4*j+2*hf,2)}, {v(vPa2)} offset:{off + 5120*hf + 128*j}")
    for j in range(10):
        k(f"buffer_store_dwordx4 {v(vPd2+4*j,4)}, {v(vW2o+j)}, {ws}, {s(sT[9])} offen sc1", tok="w2st")
w2_dma(sHw, 0)
k(f"""v_bfe_u32 v5, {v(vLane)}, 2, 2
v_mul_u32_u24 {v(vPa2)}, 1280, v5
v_and_b32 v5, 3, {v(vLane)}
v_lshl_add_u32 {v(vPa2)}, v5, 3, {v(vPa2)}
v_lshl_add_u32 {v(vPa2)}, {v(vG)}, 5, {v(vPa2)}
v_add_u32 {v(vPa2)}, {s(sStg)}, {v(vPa2)}""")
assert all((p*13108) >> 16 == p // 5 for p in range(40))
for j in range(10):
    k(f"""v_add_u32 v5, {4*j}, {v(vG)}
    v_mul_u32_u24 v6, 13108, v5
    v_lshrrev_b32 v6, 16, v6
    v_mul_u32_u24 v6, {48*5120 - 5120}, v6
    v_lshl_add_u32 v6, v5, 10, v6
    v_lshl_add_u32 {v(vW2o+j)}, {v(vN)}, 4, v6""")
k(f"s_mov_b32 {s(sT[13])}, {OOB}\ns_cmp_ge_u32 {s(sT[12])}, 192\ns_cbranch_scc1 Lw2one")
s1 = k.snap()
w2_dma(sT[12], 10240)
w2_pack(sT[12], 10240, sT[13])
k.label("Lw2one")
k.merge(s1)
w2_pack(sHw, 0, sT[7])
stamp("hp1")
k(f"s_cmp_lg_u32 {s(sWv)}, 3\ns_cbranch_scc1 Lhnp")
s1 = k.snap()
k(rdypoll + w1poll); rdy_chk(); w1_ready()
k.label("Lhnp"); k.merge(s1)
k("s_barrier")
k(flag("w2st", sT[7]) + flag("w2st", sT[13]))
stamp("hp2")
k(g1setup)
for g_ in W1L[:NW1C+NW1G]: k(g_)
k(hflag_ld(0))
hflag_chk(0)
for g_ in h_dma(0): k(g_)
stamp("cv1")
k(hflag_ld(1)); k.wait_tok("h0")

k.label("Lconvd")
k.raw(";WARM_HERE")
k.merge(sConvMain); k.merge(sConv3)
vRa, vPark = 8, 10
vWo, vAo1, vF2, vAo2 = 16, 21, 22, 25
vScW = 28
vRes, vScR, vFAd, vPf, vRr, vRr4 = 32, 42, 43, 44, 46, 47
vSt = 48
vAc = 72
vFb = 120
vTm = 144
vCs = 180
sMk, sPark = 20, 19
MB = 3
setup2 = f"""
s_lshl_b32 {s(sT[5])}, {s(sHb)}, 5
v_xor_b32 v7, {s(sT[5])}, v7
s_mul_i32 {s(sT[6])}, {s(sN2)}, 5120
s_add_u32 {s(sT[6])}, {s(sT[6])}, {SLOT[0]}
s_lshl_b32 {s(sT[5])}, {s(sWv)}, 10
s_add_u32 {s(sT[5])}, {s(sT[5])}, {s(sT[6])}
v_add_u32 {v(vRa)}, {s(sT[5])}, v7
s_add_u32 {s(sT[6])}, {s(sT[6])}, 4096
v_add_u32 {v(vRa+1)}, {s(sT[6])}, v7
s_lshl2_add_u32 {s(sFAc)}, {s(sMt)}, {s(sWv)}
s_lshl_b32 {s(sFAc)}, {s(sFAc)}, 7
s_add_u32 {s(sFAc)}, {s(sFAc)}, {FA}
v_lshlrev_b32 {v(vScW)}, 4, v0
v_add_u32 {v(vScW+1)}, 4096, {v(vScW)}
s_mov_b32 {s(sMk)}, 0x22222222
s_mov_b32 {s(sMk+1)}, 0x22222222
s_mov_b32 {s(sMk+2)}, 0x44444444
s_mov_b32 {s(sMk+3)}, 0x44444444
s_mov_b32 {s(sMk+4)}, 0x88888888
s_mov_b32 {s(sMk+5)}, 0x88888888
v_lshrrev_b32 v7, 2, {v(vN)}
v_lshl_add_u32 v6, v7, 4, {v(vN)}
v_lshrrev_b32 v7, 1, {v(vG)}
v_lshl_add_u32 v6, v6, 1, v7
v_lshlrev_b32 {v(vScR)}, 3, v6
s_mul_i32 {s(sPark)}, {s(sWv)}, {NPARK*1024}
s_add_u32 {s(sPark)}, {s(sPark)}, {PARK}
v_add_u32 {v(vPark)}, {s(sPark)}, {v(vL16)}
v_mul_u32_u24 v7, 49152, v7
v_lshl_add_u32 v7, {v(vN)}, 4, v7
v_and_b32 v6, 1, {v(vG)}
v_lshl_add_u32 {v(vAo1)}, v6, 8, v7
v_lshl_add_u32 {v(vAo2)}, v6, 30, v7
s_lshl2_add_u32 {s(sFa)}, {s(sNt)}, {s(sWv)}
s_mul_i32 {s(sAct)}, {s(sFa)}, 768
s_mul_i32 {s(sT[5])}, {s(sMt)}, {2*49152}
s_add_u32 {s(sAct)}, {s(sAct)}, {s(sT[5])}
s_add_u32 {s(sAct)}, {s(sAct)}, {ACT}
s_lshr_b32 {s(sFa)}, {s(sNt)}, 2
s_lshl2_add_u32 {s(sFa)}, {s(sMt)}, {s(sFa)}
s_lshl_b32 {s(sFa)}, {s(sFa)}, 7
s_add_u32 {s(sFa)}, {s(sFa)}, {FA}
s_lshl2_add_u32 {s(sW2)}, {s(sN2)}, {s(sWv)}
s_mul_i32 {s(sW2)}, {s(sW2)}, {12*5120}
s_add_u32 {s(sW2)}, {s(sW2)}, {W2P}
v_add_u32 {v(vWo+4)}, 4096, {v(vL16)}
"""
for lam in range(4):
    setup2 += f"""s_xor_b32 {s(sT[6])}, {s(sWv)}, {lam}
    s_lshl_b32 {s(sT[6])}, {s(sT[6])}, 10
    v_add_u32 {v(vWo+lam)}, {s(sT[6])}, {v(vL16)}
    """
PFL = 480 >> MB
setup2 += f"""
s_lshl1_add_u32 {s(sT[6])}, {s(sMt)}, {s(sHb)}
s_mul_i32 {s(sAin)}, {s(sT[6])}, 49152
s_mul_i32 {s(sT[7])}, {s(sWv)}, 12288
s_add_u32 {s(sAin)}, {s(sAin)}, {s(sT[7])}
s_add_u32 {s(sAin)}, {s(sAin)}, {ACT}
s_and_b32 {s(sOut)}, {s(sMt)}, 3
s_lshl1_add_u32 {s(sOut)}, {s(sOut)}, {s(sHb)}
s_lshl_b32 {s(sOut)}, {s(sOut)}, 5
s_and_b32 {s(sT[7])}, {s(sMt)}, 12
s_add_u32 {s(sOut)}, {s(sOut)}, {s(sT[7])}
s_mul_i32 {s(sOut)}, {s(sOut)}, 1280
s_mul_i32 {s(sT[7])}, {s(sN2)}, 160
s_add_u32 {s(sOut)}, {s(sOut)}, {s(sT[7])}
v_min_u32 {v(vF2)}, {PFL//2-1}, {v(vLane)}
s_and_b32 {s(sT[6])}, {s(sMt)}, {(1<<MB)-1}
s_mul_i32 {s(sT[6])}, {s(sT[6])}, {PFL*128}
s_add_u32 {s(sT[6])}, {s(sT[6])}, {s(sW2)}
v_lshl_add_u32 {v(vF2)}, {v(vF2)}, 7, {s(sT[6])}
"""
def g1_reads(st):
    c, kk = divmod(st, 20); b = vFb + 8*(st % 3)
    return [f"ds_read_b64_tr_b16 {v(b+4*a+2*hf,2)}, {v(vBa+4*a+(kk&3))} offset:{(kk >> 2)*2048 + 1024*hf + 40960*(c % 2)}" for a in range(2) for hf in range(2)]
def g1_mm(st):
    c, kk = divmod(st, 20)
    b = vFb + 8*(st % 3); A = vAc + 24*(c % 2); z = "0" if kk == 0 else None
    L = [mf16(v(A+12*a+4*t,4), ar(12*kk+4*t,4), v(b+4*a,4), z) for a in range(2) for t in range(3)]
    if kk % 4 == 0:
        X = sum([[mf16(v(vSt+4*a,4), v(b+4*a,4), v(b+4*a,4), z), mf16(v(vSt+8+4*a,4), v(vOnes,4), v(b+4*a,4), z)] for a in range(2)], [])
        L = X + L if kk == 16 else L + X
    if c == 0: L += [mf16(v(vCs+4*t,4), ar(12*kk+4*t,4), v(vOnes,4), z) for t in range(3)]
    return L
def g1_statw(c):
    L = []
    for j in range(3):
        for a in range(2): L.append(f"v_cndmask_b32 {v(vSt+9+4*a)}, {v(vSt+4*a) if j == 0 else v(vSt+9+4*a)}, {v(vSt+4*a+1+j)}, {s(sMk+2*j,2)}")
    if opt("sw", 0): return L + [f"ds_write_b64 {v(vScW + c % 2)}, {v(vSt+8,2)}", f"ds_write_b64 {v(vScW + c % 2)}, {v(vSt+12,2)} offset:8"]
    return L + [f"ds_write2_b64 {v(vScW + c % 2)}, {v(vSt+8,2)}, {v(vSt+12,2)} offset0:0 offset1:1"]
S, Q, M, Z, S2 = vTm, vTm+1, vTm+8, vTm+10, vTm+12
def g1_statr(c):
    o = 8*(c % 2)
    return [f"ds_read2st64_b64 {v(vTm+4*w,4)}, {v(vScR)} offset0:{o+4*w} offset1:{o+4*w+2}" for w in range(2)]
def g1_epi(c, pk=False):
    A = vAc + 24*(c % 2)
    L = [f"v_add_f32 {v(S)}, {v(S)}, {v(S+2)}", f"v_add_f32 {v(Q)}, {v(Q)}, {v(Q+2)}", f"v_add_f32 {v(S+4)}, {v(S+4)}, {v(S+6)}", f"v_add_f32 {v(Q+4)}, {v(Q+4)}, {v(Q+6)}",
         f"v_add_f32 {v(S)}, {v(S)}, {v(S+4)}", f"v_add_f32 {v(Q)}, {v(Q)}, {v(Q+4)}",
         f"v_mul_f32 {v(S)}, {INV640}, {v(S)}", f"v_mul_f32 {v(Q)}, {INV640}, {v(Q)}",
         f"v_cvt_pk_bf16_f32 {v(M)}, 0, {v(S)}", f"v_cvt_pk_bf16_f32 {v(M+1)}, 0, {v(S)}",
         f"v_fma_f32 {v(Q)}, -{v(S)}, {v(S)}, {v(Q)}", f"v_max_f32 {v(Q)}, 0, {v(Q)}",
         f"v_permlane32_swap_b32 {v(M)}, {v(M+1)}",
         f"v_cvt_pk_bf16_f32 {v(Q)}, 0, {v(Q)}",
         f"v_add_f32 {v(Q)}, 0x3727c5ac, {v(Q)}", f"v_cvt_pk_bf16_f32 {v(Q)}, 0, {v(Q)}"]
    R = vTm + 16
    cen = [f"v_fma_f32 {v(A+12*a+j)}, -{v(vCs+j)}, {v(M+a)}, {v(A+12*a+j)}" for j in range(12) for a in range(2)]
    L += [f"v_sqrt_f32 {v(Q)}, {v(Q)}"] + cen[:2] + [f"v_cvt_pk_bf16_f32 {v(Q)}, 0, {v(Q)}"] + cen[2:3] + [f"v_rcp_f32 {v(Z)}, {v(Q)}", f"v_mul_f32 {v(S2)}, {v(Q)}, {v(Q)}"] + cen[3:4]
    L += [f"v_mul_f32 {v(Z)}, 0xbfb8aa3b, {v(Z)}"] + cen[4:]
    L += [f"v_permlane32_swap_b32 {v(A+j)}, {v(A+12+j)}" for j in range(12)]
    chains = []
    for j in range(6):
        g_, u_ = A+2*j, A+12+2*j
        z = vTm + 24 + 2*j
        if pk:
            ch = [f"v_pk_mul_f32 {v(z,2)}, {v(g_,2)}, {v(Z,2)} op_sel_hi:[1,0]",
                  f"v_exp_f32 {v(z)}, {v(z)}", f"v_exp_f32 {v(z+1)}, {v(z+1)}",
                  f"v_pk_mul_f32 {v(g_,2)}, {v(g_,2)}, {v(u_,2)}",
                  f"v_pk_fma_f32 {v(z,2)}, {v(z,2)}, {v(S2,2)}, {v(S2,2)} op_sel_hi:[1,0,0]",
                  f"v_rcp_f32 {v(z)}, {v(z)}", f"v_rcp_f32 {v(z+1)}, {v(z+1)}",
                  f"v_pk_mul_f32 {v(g_,2)}, {v(g_,2)}, {v(z,2)}"]
        else:
            ch = [f"v_mul_f32 {v(z)}, {v(g_)}, {v(Z)}", f"v_mul_f32 {v(z+1)}, {v(g_+1)}, {v(Z)}",
                  f"v_exp_f32 {v(z)}, {v(z)}", f"v_exp_f32 {v(z+1)}, {v(z+1)}", f"v_mul_f32 {v(g_)}, {v(g_)}, {v(u_)}", f"v_mul_f32 {v(g_+1)}, {v(g_+1)}, {v(u_+1)}",
                  f"v_fma_f32 {v(z)}, {v(z)}, {v(S2)}, {v(S2)}", f"v_fma_f32 {v(z+1)}, {v(z+1)}, {v(S2)}, {v(S2)}",
                  f"v_rcp_f32 {v(z)}, {v(z)}", f"v_rcp_f32 {v(z+1)}, {v(z+1)}",
                  f"v_mul_f32 {v(g_)}, {v(g_)}, {v(z)}", f"v_mul_f32 {v(g_+1)}, {v(g_+1)}, {v(z+1)}"]
        chains.append(ch + [f"v_cvt_pk_bf16_f32 {v(R+j)}, {v(g_)}, {v(g_+1)}"])
    sw = [f"v_permlane16_swap_b32 {v(R+4)}, {v(R+6)}", f"v_permlane16_swap_b32 {v(R+5)}, {v(R+7)}"]
    sw += [f"s_add_u32 {s(sT[5])}, {s(sAct)}, {32*49152*c}", (f"buffer_store_dwordx4 {v(R+4,4)}, {v(vAo2)}, {ws}, {s(sT[5])} offen offset:512 sc1", f"a{c}")]
    if pk:
        z01 = zipper(chains[0], chains[1])
        L += zipper(chains[4], chains[5]) + z01[:2] + sw + z01[2:] + zipper(chains[2], chains[3])
    else: L += chains[4] + chains[5] + chains[0][:2] + sw + chains[0][2:] + chains[1] + chains[2] + chains[3]
    L += [(f"buffer_store_dwordx4 {v(R,4)}, {v(vAo1)}, {ws}, {s(sT[5])} offen sc1", f"a{c}")]
    return L
w2fl = apoll(vFAd, vFa, oW2)
def w2_ready(): check(w2fl, [vFAd], 5, 8, 6)
def w2pf(j): return [f"buffer_load_dword {v(vPf+j)}, {v(vF2)}, {ws}, 0 offen offset:{PFL*64*j} sc1"]
NPRE = 20
NLATE = 60 - NPRE - NPARK
NA0 = opt("na0", 12)
def w2reg(j):
    if j < 16: return v(192 + 4*j, 4)
    if j < NPRE: return ar(240 + 4*(j-16), 4)
    if j < NPRE + NPARK: return ar(4*(NLATE + 12) + 4*(j - NPRE), 4)
    q = j - NPRE - NPARK
    return ar(4*q if q < NA0 else 4*q + 48, 4)
def w2seq(js):
    out = []; cur = None
    for j in js:
        ks, lam = divmod(j, 5)
        x = [] if ks == cur else [f"s_add_u32 {s(sT[8])}, {s(sW2)}, {5120*ks}"]
        cur = ks
        if NPRE <= j < NPRE + NPARK:
            out.append(x + [f"s_add_u32 m0, {s(sPark)}, {1024*(j - NPRE)}", (f"buffer_load_dwordx4 {v(vWo+lam)}, {ws}, {s(sT[8])} offen sc1 lds", "park")])
        else: out.append(x + [f"buffer_load_dwordx4 {w2reg(j)}, {v(vWo+lam)}, {ws}, {s(sT[8])} offen sc1"])
    return out
unpark = [f"ds_read_b128 {w2reg(NPRE+j)}, {v(vPark)} offset:{1024*j}" for j in range(NPARK)]
def aflag_ld(i): return apoll(vFAd, vFl0, 4*i, sFAc)
def aflag_chk(i): check(aflag_ld(i), [vFAd], 5, 1, 16)
def abuf(i, ks): return ar(4*NA0 + 4*ks, 4) if i % 3 == 0 else v(144 + 4*ks, 4) if i == 2 else v((72 if ks < 6 else 96) + 4*ks, 4)
def act_loads(i):
    L = []
    for ks in range(12):
        x = [f"s_add_u32 {s(sT[4])}, {s(sAin)}, {32*49152*i + 1024*ks}"] if ks % 4 == 0 else []
        L.append(x + [f"buffer_load_dwordx4 {abuf(i, ks)}, {v(vL16)}, {ws}, {s(sT[4])} offen offset:{1024*(ks%4)} sc1"])
    return L
late = w2seq(range(NPRE+NPARK, 60))
C3L = late[:NA0] + act_loads(0) + late[NA0:]
C3L[NA0] = [lambda: aflag_chk(0)] + C3L[NA0]
def res_reads(c):
    def f():
        k(f"ds_read_b64_tr_b16 {v(vRes+2*c,2)}, {v(vRa)} offset:{40960*(c % 2)}")
        Ls = k.lab("Lr4")
        k(f"s_cmp_lg_u32 {s(sWv)}, {c}\ns_cbranch_scc1 {Ls}")
        s1 = k.snap()
        k(f"ds_read_b64_tr_b16 {v(vRes+8,2)}, {v(vRa+1)} offset:{40960*(c % 2)}")
        k.label(Ls); k.merge(s1)
    return f
mm = []; cum = []
for st in range(80): cum.append(len(mm)); mm += g1_mm(st)
cum.append(len(mm))
G = lambda c, kk, d=0: cum[20*c + kk] + d
rd = [(-1, -1, -1, x) for x in g1_reads(0) + g1_reads(1)]
urgent = []; normal = []; checks = []
BG = opt('bg', 1)
def boundary(c):
    def f(U, N):
        stamp(f"b{c}a"); k(list(U)); U.clear(); stamp(f"b{c}b")
        if c < 3: k.wait_tok(f"h{c+1}")
        stamp(f"b{c}c")
        bar(); stamp(f"c{c+1}")
    return f
def flush(nm):
    def f(U, N):
        print(nm, "leftover", len(U), len(N)); stamp("f" + nm[-1] + "a"); k((U + N)[:-1]); stamp("f" + nm[-1] + "b"); k((U + N)[-1:]); stamp("f" + nm[-1] + "c"); U.clear(); N.clear()
    return f
for st in range(2, 80):
    c, kk = divmod(st, 20)
    if kk == 0: rd += spread(g1_reads(st), G(c-1, 18, BG), G(c-1, 19), G(c-1, 19))
    else: rd += spread(g1_reads(st), cum[st-2], cum[st-1], cum[st-1] - 1 if kk == 19 else cum[st-1] + 1)
for c in range(4):
    urgent.append((G(c, 6), [res_reads(c)]))
    urgent.append((G(c, 16, 7), g1_statw(c)))
    checks.append((G(c, 18, BG), boundary(c)))
    normal.append((G(c+1, 0, 1), g1_epi(c)))
    if c > 0: checks.append((G(c, 19, 1), flush(f"chunk {c}")))
    urgent.append((G(c, 19, 2), g1_statr(c)))
    if c >= 2: urgent.append((G(c, opt("fk", 6)), flag(f"a{c-2}", sFa, 4*(c-2), False)))
normal.append((0, lines(setup2)))
def noleft(U, N): assert not N
def pace(items, ga, gb):
    for j, g_ in enumerate(items): urgent.append((ga + (gb - ga)*j//len(items), g_))
rest = W1L[NW1C+NW1G:]
n0, n1_, p1 = opt("n0", 8), opt("n1", 14), opt("p1", 9)
hd = h_dma(1); hd[0] = [lambda: hflag_chk(1)] + hd[0]
w20 = w2seq(range(n0)); w20[0] = [w2_ready] + w2pf(0) + w20[0]
c0l = rest[:opt("r0", 6)] + hd + rest[opt("r0", 6):]
g_a = G(0, 19)*len(c0l)//(len(c0l) + n0)
pace(c0l, 1, g_a); pace(w20, g_a, G(0, 19))
checks.append((g_a, noleft))
urgent += [(G(0, 5), w2fl), (G(0, opt("hp2", 11)), hflag_ld(2))]
hd = h_dma(2); hd[0] = [lambda: hflag_chk(2)] + hd[0]
pace(hd + [w2pf(1)] + w2seq(list(range(NPRE, NPRE+p1)) + list(range(n0, n1_))), G(0, 19), G(1, 19))
pace(h_dma(3) + w2seq(list(range(NPRE+p1, NPRE+NPARK)) + list(range(n1_, NPRE))), G(1, 19), G(2, 19))
urgent.append((G(2, 19), aflag_ld(0)))
urgent.append((G(3, 14), aflag_ld(1)))
NW2C3 = min(NW2C3, len(C3L))
for j in range(NW2C3): urgent.append((max(G(3, j//3 + 1), G(3, 1) + (G(3, 19, 4) - G(3, 1))*j//NW2C3), C3L[j]))
for st in range(80): checks.append((cum[st], (lambda nm: lambda U, N: stamp(nm))(f'g{st}')))
assert NW2C3 == len(C3L)
vRw, vOo = [12, 13, 14, 15, 47], 16
vA2 = [48, 96]
assert all((p*6554) >> 16 == p // 10 for p in range(256))
g2b = ""
for lam in range(4):
    g2b += f"""s_xor_b32 {s(sT[7])}, {s(sWv)}, {lam}
    s_lshl_b32 {s(sT[7])}, {s(sT[7])}, 6
    s_sub_u32 {s(sT[7])}, {s(sT[7])}, 256
    v_add_u32 {v(vRw[lam])}, {s(sT[7])}, {v(vRw[4])}
    """
g2b += f"v_mov_b32 {v(vOo)}, v26"
normal.append((1, lines(f"""s_mul_i32 {s(sT[6])}, {s(sWv)}, {RW}
s_add_u32 {s(sT[6])}, {s(sT[6])}, {RED + 256}
v_mul_u32_u24 v6, 336, {v(vN)}
v_lshl_add_u32 v6, {v(vG)}, 4, v6
v_add_u32 {v(vRw[4])}, {s(sT[6])}, v6
v_min_u32 v7, 159, v0
v_mul_u32_u24 v6, 6554, v7
v_lshrrev_b32 v6, 16, v6
v_lshlrev_b32 {v(vRr)}, 5, v7
v_lshl_add_u32 {v(vRr)}, v6, 4, {v(vRr)}
v_add_u32 {v(vRr)}, {RED}, {v(vRr)}
v_mul_u32_u24 v26, 10, v6
v_sub_u32 v26, v7, v26
v_sub_u32 v7, v0, v7
v_min_u32 v7, 1, v7
v_lshlrev_b32 v26, 4, v26
v_lshl_add_u32 v26, v7, 30, v26
v_and_b32 v7, 3, v6
v_mul_u32_u24 v7, 1280, v7
v_add_u32 v26, v26, v7
v_bfe_u32 v7, v6, 2, 1
v_mul_u32_u24 v7, {256*1280}, v7
v_add_u32 v26, v26, v7
v_lshrrev_b32 v7, 3, v6
v_mul_u32_u24 v7, {16*1280}, v7
v_add_u32 v26, v26, v7""")))
def g2_init(i):
    A = vA2[i % 2]; r = vRes + 2*i
    def sel(): k(f"s_cmp_eq_u32 {s(sWv)}, {i}\ns_cselect_b32 {s(sT[9])}, 0x01000c0c, {s(sT[12])}\ns_cselect_b32 {s(sT[10])}, 0xffff0000, 0")
    return [f"s_mov_b32 {s(sT[12])}, 0x0c0c0c0c", sel,
            f"v_lshlrev_b32 {v(A)}, 16, {v(r)}", f"v_and_b32 {v(A+1)}, 0xffff0000, {v(r)}", f"v_lshlrev_b32 {v(A+2)}, 16, {v(r+1)}", f"v_and_b32 {v(A+3)}, 0xffff0000, {v(r+1)}",
            f"v_perm_b32 {v(A+16)}, {v(vRes+8)}, {v(vRes+8)}, {s(sT[9])}", f"v_and_b32 {v(A+17)}, {s(sT[10])}, {v(vRes+8)}",
            f"v_perm_b32 {v(A+18)}, {v(vRes+9)}, {v(vRes+9)}, {s(sT[9])}", f"v_and_b32 {v(A+19)}, {s(sT[10])}, {v(vRes+9)}"]
def g2_write(i, lam): return f"ds_write_b128 {v(vRw[lam])}, {v(vA2[i % 2]+4*lam,4)} offset:{4*RW*(i % 2)}"
OF = {0: "", 1: " sc1", 2: " nt", 3: " sc0 sc1"}[opt("of", 0)]
def g2_tmp(i):
    A = vA2[i % 2]; return [[A, A+4], [A+8, A+12], [A+16, 116], [20, 68]]
def g2_rd(i): return [f"ds_read_b128 {v(g2_tmp(i)[w][h_],4)}, {v(vRr)} offset:{4*RW*(i % 2) + RW*w + 16*h_}" for w in range(4) for h_ in range(2)]
def fin(i, pk=False):
    P = g2_tmp(i); L = []
    for d, x in ((0, 1), (2, 3), (0, 2)):
        for h_ in range(2):
            if pk: L += [f"v_pk_add_f32 {v(P[d][h_]+2*j,2)}, {v(P[d][h_]+2*j,2)}, {v(P[x][h_]+2*j,2)}" for j in range(2)]
            else: L += [f"v_add_f32 {v(P[d][h_]+j)}, {v(P[d][h_]+j)}, {v(P[x][h_]+j)}" for j in range(4)]
    L += [f"v_cvt_pk_bf16_f32 {v(68+j)}, {v(P[0][0]+2*j)}, {v(P[0][0]+2*j+1)}" for j in range(4)]
    return L + [f"buffer_store_dwordx4 {v(68,4)}, {v(vOo)}, {s(OUTR,4)}, {s(sOut)} offen{OF}"]
T0 = len(mm); AP = opt("ap", 4); KL = opt("kl", 6)
urgent.append((G(3, 19, 3), g2_init(0)))
checks.append((T0 - 1, flush("pre tile 0")))
for i in range(4):
    A = vA2[i % 2]; b_ = T0 + 60*i
    order = [(ks, lam) for ks in range(12) for lam in (1, 2, 3, 0, 4)]
    if i == 3: order = order[:60-5*KL] + [(ks, lam) for lam in (4, 1, 2, 3, 0) for ks in range(12-KL, 12)]
    mm += [mf16(v(A+4*lam,4), w2reg(5*ks+lam), abuf(i, ks), "0" if (ks == 0 and lam in (1, 2, 3)) else None) for ks, lam in order]
    checks.append((b_, (lambda nm: lambda U, N: stamp(nm))(f"t{i}")))
    if i < 3:
        g0 = b_ + opt(f"ac{i+1}", [0, 4, 24][i])
        if i: urgent.append((g0 - opt(f"pa{i+1}", [0, 28, 34][i]), aflag_ld(i+1)))
        urgent.append((g0, [(lambda j: lambda: aflag_chk(j))(i+1)]))
        urgent += [(g0 + (AP if i < 2 else opt('ap3', 3))*j, g_) for j, g_ in enumerate(act_loads(i+1))]
    if i:
        urgent += [(b_ + 2 + 3*j, [g2_write(i-1, lam)]) for j, lam in enumerate((1, 2, 3, 0, 4))] + [(b_ + opt("gb", 20), [bar] + g2_rd(i-1))]
        normal.append((b_ + opt("gb", 20) + 8, fin(i-1) + [f"s_add_u32 {s(sOut)}, {s(sOut)}, {512*1280}"] + (g2_init(i+1) if i < 3 else [])))
    checks.append((b_ + (59 if i < 3 else 59 - KL), flush(f"tile {i}")))
normal.append((T0 + 2, [stampc("g1e")] + lines(g2b) + g2_init(1)))
rd += [(T0-1, T0 + j*12//NPARK, T0 + 8 + j, x) for j, x in enumerate(unpark)]
checks.append((T0 - 1, lambda U, N: k.wait_tok("park")))
urgent += [(T0 + opt("f2", 12), flag("a2", sFa, 8, False)), (T0 + opt("f3", 80), flag("a3", sFa, 12, False) + [stampc("afl")])]
urgent.append((opt("fB", 20), flag("hB", sFl, 8)))
e3 = T0 + 240
urgent += [(e3 - 4*KL + 2 + KL*j, [g2_write(3, lam)]) for j, lam in enumerate((4, 1, 2, 3))]
for j in range(0, 240, 10): checks.append((T0 + j, (lambda nm: lambda U, N: stamp(nm))(f'm{j}')))
urgent.sort(key=lambda e: e[0])
bar()
stamp("c0")
sched(k, mm, rd, urgent, normal, checks, slotf=lambda i: opt("s0", 4) if T0 <= i < T0 + 60 else 2)
stamp("t4")
k(g2_write(3, 0))
bar()
k(g2_rd(3))
k(fin(3, True))
stamp("g2e")
k(f"""s_or_b32 {s(sT[4])}, s2, {s(sWv)}
s_cmp_lg_u32 {s(sT[4])}, 0
s_cselect_b32 {s(sT[4])}, {OOB}, 0
buffer_store_dword {v(vTagv)}, {v(vFl0)}, {ws}, {s(sT[4])} offen""")
if STAMP:
    k("s_waitcnt vmcnt(0)")
    stamp("end")
    k(f"""s_lshl2_add_u32 {s(sT[4])}, s2, {s(sWv)}
    s_lshl_b32 {s(sT[4])}, {s(sT[4])}, 7
    s_add_u32 {s(sT[4])}, {s(sT[4])}, {STB}""")
    for i in range(len(SEL)):
        k(f"v_mov_b32 v5, {s(sStamp+2*i)}\nbuffer_store_dword v5, {v(vFl0)}, {ws}, {s(sT[4])} offen offset:{4*i}")
k("s_endpgm")
k.raw(";WARM_END")
k.out += SLOW
k.raw(".p2align 2\n.fill 64, 4, 0\nLcode_end:")
hdr = "".join(l for l in open("cdna_kernels/" + NAME + ".s.ref").readlines()[:18] if l.startswith(";") and "@launch" not in l)
if STAMP: hdr += "; stamps: " + ",".join(SEL) + "\n"
def add_warm():
    import subprocess, re, tempfile, os
    d = tempfile.mkdtemp()
    open(d + "/t.s", "w").write(k.text(hdr, 256, 256, LDS_BYTES).replace(";WARM_HERE", "Lwarm0:"))
    subprocess.run(["clang", "-x", "assembler", "-target", "amdgcn-amd-amdhsa", "-mcpu=gfx950", "-c", d + "/t.s", "-o", d + "/t.o"], check=True)
    dis = subprocess.run(["llvm-objdump", "-d", "--mcpu=gfx950", d + "/t.o"], capture_output=True, text=True).stdout
    dis = dis[dis.index("_kernel>:"):]
    sizes = [4*len(m.group(1).split()) for m in re.finditer(r"// [0-9A-F]+: ([0-9A-F ]+?)(?: <.*)?$", dis, re.M)]
    out = []; pos = 0; n = 0; on = False; want = False; links = 0; started = False; STEP = opt("wstep", 4096)
    for l in k.out:
        if l.endswith("_kernel:"): started = True
        if l == ";WARM_BEGIN": on = True; continue
        if l in (";WARM_OFF", ";WARM_END"): on = False; want = False; continue
        if l == ";WARM_HERE":
            on = True; out.append(f"Lwarm{links}:\n    s_cbranch_execz Lwarm{links+1}"); links += 1; pos += 4; want = False; continue
        out.append(l)
        if not (started and l.startswith("    ")): continue
        p0 = pos; pos += sizes[n]; n += 1
        if on and pos // STEP != p0 // STEP: want = True
        if want and (l.startswith("    v_mfma") or pos % STEP >= 40) and "exec" not in l:
            out.append(f"Lwarm{links}:\n    s_cbranch_execz Lwarm{links+1}"); links += 1; pos += 4; want = False
    k.out = [x.replace(f"Lwarm{links}", "Lwarm_ret") if x.endswith(f"Lwarm{links}") else x for x in out]
    print("warm links", links, "code bytes", pos)
if WARM: add_warm()
open(OUT, "w").write(k.text(hdr, 256, 256, LDS_BYTES))
print("instructions", k.nins, "nops", k.nnop)
```

```python
import sys, numpy as np
from gk import *
from gk import _kind

STAMP = "--stamp" in sys.argv
OUT = [a for a in sys.argv[1:] if a.endswith(".s")]
OUT = OUT[0] if OUT else "v3.s"
def opt(name, default):
    x = [a.split("=")[1] for a in sys.argv if a.startswith(f"--{name}=")]
    return int(x[0]) if x else default
NW1C = opt("w1conv", 30)
NW1G = opt("w1gap", 6)
NW2C3 = opt("w2c3", 35)
SLEEP = opt("sleep", 1)
DBG = opt("dbg", 0)
MB = opt("mb", 3)
XEARLY = opt("xearly", 2)
WARM = opt("warm", 1)
WIN = opt("win", 0)

STP, STB = 0x18000, 0x20000
LS = 128
FB, RS = 0x40000, opt("rs", 1152)
oH, oW2, oW1 = 0, 12, 16
FA = FB + 16*RS
RDY = FA + 64*LS
CGS = 16512
XB, HT, ACT, W1P, W2P = 0x500000, 0x900000, 0xC00000, 0x1300000, 0x1700000
WS_BYTES = 0x10000000
OOB = 0x40000000
NCG = 214
TK, TKCH, CS = 0, 16640, 4160
UL, ULCH = 49920, 4608
XL = UL + 3 * ULCH
TAB, TABW, TROW, TOF = 77568, 17408, 272, 51000
PK = 129792
XS, XSP = 148224, 2592
LNS = 158592
PART = 122880
AG = 2*CS + 2304
SLOT = [81920, 122880]
SC, PARK, NPARK = 0, 8192, 18
RED, RW = 81920, 5376
LDS_BYTES = 163840
SPIN = 1 << 15
LOG2E = 0x3fb8aa3b
INV640 = 0x3acccccd
pX, pAre, pAim, pBre, pBim, pCre, pCim, pLdt, pDsk, pBx, pWg, pWu, pWd, pOut, pDbg, pWs = [4 + 2 * i for i in range(16)]
WSR, OUTR = 36, 40
sTag, sWv, sMt, sNt, sHb, sN2 = 44, 45, 46, 47, 48, 49
sT = list(range(50, 64))
sXb = 64
sPkS, sPkF, sFl, sCnt = 66, 67, 68, 69
sStamp = 70
sHw = 3
sW1 = [6, 7, 8, 9]
sAct, sHsrc, sLd, sOut, sFa, sW2, sRep, sAin, sFAc = 10, 11, 12, 13, 14, 15, 16, 17, 18
ws = s(WSR, 4)

k = K()
SEL = [a[6:].split(",") for a in sys.argv if a.startswith("--sel=")]
SEL = SEL[0] if SEL else ["start"]
assert len(SEL) <= 16
def stamp(name):
    if STAMP and name in SEL: k(f"{'s_memtime' if opt('cyc', 0) else 's_memrealtime'} {s(sStamp + 2*SEL.index(name), 2)}")
def stampc(name): return lambda: stamp(name)
def lines(t): return [l.strip() for l in t.split("\n") if l.strip()]

vLane, vN, vG, vL16 = 1, 2, 3, 4
vTagv, vRep, vFl0 = 11, 30, 31

def tagtest(checks, vacc, ref):
    if len(checks) == 1:
        k(f"v_cmp_ne_u32 vcc, {s(ref)}, {v(checks[0])}"); return
    k(f"v_xor_b32 {v(vacc)}, {s(ref)}, {v(checks[0])}")
    for c in checks[1:]:
        k(f"v_bitop3_b32 {v(vacc)}, {v(vacc)}, {v(c)}, {s(ref)} bitop3:0xf6")
    k(f"v_cmp_ne_u32 vcc, 0, {v(vacc)}")
SLOW = []
def check(loads, checks, vacc, nl=64, cnt=0):
    L, E, D = k.lab("Lpoll"), k.lab("Lslow"), k.lab("Lgot")
    ref = sTag
    if cnt: ref = sT[0]; k(f"s_add_u32 {s(ref)}, {s(sTag)}, {cnt}")
    if 31 < nl < 64: k(f"s_bfm_b64 {s(sT[2],2)}, {nl}, 0")
    tagtest(checks, vacc, ref)
    if nl <= 31: k(f"s_and_b64 vcc, vcc, {hex((1 << nl) - 1)}\ns_cbranch_scc1 {E}")
    elif nl < 64: k(f"s_and_b64 vcc, vcc, {s(sT[2],2)}\ns_cbranch_scc1 {E}")
    else: k(f"s_cbranch_vccnz {E}")
    st = k.snap(); main_out = k.out; k.out = []
    k.label(E)
    k(f"s_mov_b32 {s(sCnt)}, 0")
    k.label(L)
    k("s_mov_b64 exec, vcc")
    if SLEEP: k(f"s_sleep {SLEEP}")
    k(loads)
    k("s_waitcnt vmcnt(0)")
    tagtest(checks, vacc, ref)
    k(f"""s_mov_b64 exec, -1
    s_cbranch_vccz {D}
    s_add_u32 {s(sCnt)}, {s(sCnt)}, 1
    s_cmp_lt_u32 {s(sCnt)}, {SPIN}
    s_cbranch_scc1 {L}
    s_branch {D}""")
    SLOW.extend(k.out); k.out = main_out
    k.label(D)
    k.merge(st)
def apoll(d, va, off, soff=None):
    return [f"v_mov_b32 {v(d)}, 0", f"buffer_atomic_add {v(d)}, {v(va)}, {ws}, {s(sRep if soff is None else soff)} offen offset:{off} sc0 sc1"]
vOne = 27
def flag(tok, soff, off=0, rep=True):
    return [lambda: k.wait_tok(tok), f"buffer_atomic_add {v(vOne)}, {v(vRep if rep else vFl0)}, {ws}, {s(soff)} offen offset:{off} sc1"]
def rdy_ld(d): return [f"s_mov_b32 {s(sT[1])}, {RDY}", f"v_lshlrev_b32 {v(d)}, 2, {v(vN)}", f"buffer_load_dword {v(d)}, {v(d)}, {ws}, {s(sT[1])} offen sc1"]
def rdy_chk(d): check(rdy_ld(d), [d], 5); stamp("rdy")
vAg, vInc, vAt = 21, 25, 26
def hflag(tok, st):
    return ([lambda: k.wait_tok(tok), f"ds_add_rtn_u32 {v(vAt)}, {v(vAg)}, {v(vOne)} offset:{256*st}"],
            [f"v_xor_b32 {v(vAt)}, 2, {v(vAt)}", f"v_lshl_add_u32 {v(vAt)}, {v(vAt)}, 29, {v(vRep)}",
             f"buffer_atomic_add {v(vInc)}, {v(vAt)}, {ws}, {s(sFl)} offen offset:{oH + 4*st} sc1"])
def bar(): k("s_waitcnt lgkmcnt(0)\ns_barrier")
def cmul(d, a, b):
    return [f"v_pk_mul_f32 {v(d,2)}, {v(a,2)}, {v(b,2)} op_sel:[0,0] op_sel_hi:[0,1]",
            f"v_pk_fma_f32 {v(d,2)}, {v(a,2)}, {v(b,2)}, {v(d,2)} op_sel:[1,1,0] op_sel_hi:[1,0,1] neg_lo:[1,0,0]"]
def zipper(*ls):
    out = []; ls = [list(l) for l in ls]
    while any(ls):
        for l in ls:
            if l: out.append(l.pop(0))
    return out
def mf16(d, a, b, c=None):
    return f"v_mfma_f32_16x16x32_bf16 {d}, {a}, {b}, {d if c is None else c}"
def groups(d):
    out = []; g_ = []
    for x in d:
        g_.append(x)
        if _kind(x) == "mem": out.append(g_); g_ = []
    assert not g_
    return out

TAPS = [list(range(-3, 8)), [-3, -2, 0, 4, 6]]
def tapsrc(rho, tap):
    if rho == 0: return tap
    return -3 if tap == -3 else -2 if tap == -2 else 0 if tap <= 2 else 4 if tap <= 5 else 6
def rb(x):
    u = int(np.float32(x).view(np.uint32))
    return int(np.uint32(((u + 0x7FFF + ((u >> 16) & 1)) >> 16) << 16).view(np.float32))
H = list(range(8)) + [256,258,260,262,512,516,768,772,1024,1280,1536,1792,2048]
idx = {}
for i, h in enumerate(H):
    for j in range(32): idx.setdefault(h + 8*j, (i, j))
def kaddr(l):
    if l < 0: return 3072
    i, j = idx[rb(l)]
    return (4*(i >> 3) + (i & 3))*256 + ((i >> 2) & 1)*128 + 4*j
TABTXT = [".p2align 7\n.type Ltab,@object\nLtab:"]
rows_ = []
for j in range(64, 128):
    assert all(rb(16*j + l) == 16*j + 8 for l in range(5, 12)) and all(rb(16*j + l) == 16*j + 16 for l in range(12, 21))
for lane in range(64):
    row = []; n_, g_ = lane & 15, lane >> 4
    for rho in range(2):
        x = 64*rho + lane
        for tap in range(-3, 8): assert kaddr(8*x + tap) == kaddr(8*x + tapsrc(rho, tap)), (rho, lane, tap)
        row += [kaddr(8*x + tp) for tp in TAPS[rho]]
    row += [kaddr(l if l <= 1028 else -1) for l in (1040 + n_ - 8*g_ - j for j in range(8))]
    row += [kaddr(1024 + 16*lane + 8), kaddr(1024 + 16*lane + 16)] + [0]*6
    row += [0x3f80 if 5 <= n_ - (8*g_ + j - 16) <= 11 else 0 for j in range(8)]
    row += [0x3f80 if 12 <= n_ - (8*g_ + j - 24) <= 20 else 0 for j in range(8)]
    rows_.append(row)
for part in range(6):
    for lane in range(64): TABTXT.append(".short " + ",".join(map(str, rows_[lane][8*part:8*part+8])))
TABTXT.append(".size Ltab, .-Ltab")
if opt("low", 1): k.raw(".p2align 8\n.type Lpad,@object\nLpad:\n.fill 128, 4, 0\n.size Lpad, .-Lpad")
else: k.raw(".p2align 12\n.type Lpad,@object\nLpad:\n.fill 832, 4, 0\n.size Lpad, .-Lpad")

k.begin(NAME + "_kernel")
stamp("start")
vTabl, vPar, vLdt, vDs = 42, 56, 74, 75
k(f"""
s_load_dwordx16 s[4:19], s[0:1], 0
s_load_dwordx16 s[20:35], s[0:1], 64
s_cmp_lt_u32 s2, 256
s_cbranch_scc1 Lstart
s_endpgm
Lstart:
s_getpc_b64 {s(sT[0],2)}
Lpc:
v_and_b32 {v(vN)}, 15, v0
s_lshr_b32 {s(sT[5])}, s2, 3
s_lshl_b32 {s(sT[4])}, {s(sT[5])}, 11
v_lshl_add_u32 v5, {v(vN)}, 7, {s(sT[4])}
v_min_u32 v5, Lcode_end-Lpc-4, v5
v_lshrrev_b32 v6, 6, v0
global_load_dword v172, v5, {s(sT[0],2)}
v_readfirstlane_b32 {s(sWv)}, v6
v_and_b32 {v(vLane)}, 63, v0
v_lshlrev_b32 {v(vL16)}, 4, {v(vLane)}
s_mul_i32 {s(sT[6])}, s2, 3
s_cmp_eq_u32 {s(sWv)}, 3
s_cselect_b32 {s(sT[7])}, 0, {s(sWv)}
s_cselect_b32 {s(sT[10])}, 255, s2
s_add_u32 {s(sT[6])}, {s(sT[6])}, {s(sT[7])}
s_min_u32 {s(sT[8])}, {s(sT[6])}, 639
s_mul_i32 {s(sT[9])}, {s(sT[8])}, 384
v_lshl_add_u32 v6, {v(vLane)}, 1, {s(sT[9])}
s_lshl_b32 {s(sT[9])}, {s(sT[8])}, 1
v_mov_b32 v7, {s(sT[9])}
""")
for i in range(9): k(f"v_mov_b64 {v(vPar+2*i,2)}, 0")
k(f"""
s_lshl2_add_u32 {s(sT[4])}, s2, {s(sWv)}
s_mul_i32 {s(sT[4])}, {s(sT[4])}, 2560
s_mul_i32 m0, {s(sWv)}, {XSP}
s_add_u32 m0, m0, {XS}
s_add_u32 {s(sXb)}, {s(pX)}, {s(sT[4])}
s_addc_u32 {s(sXb+1)}, {s(pX+1)}, 0
s_load_dword {s(sTag)}, {s(pWs,2)}, 0
s_add_u32 {s(pDbg)}, {s(sT[0])}, Ltab-Lpc+2048
s_addc_u32 {s(pDbg+1)}, {s(sT[1])}, 0
""")
k(f"global_load_lds_dwordx4 {v(vL16)}, {s(sXb,2)}", tok="x")
k(f"global_load_lds_dwordx4 {v(vL16)}, {s(sXb,2)} offset:1024", tok="x")
k("s_mov_b32 exec_hi, 0")
k(f"global_load_lds_dwordx4 {v(vL16)}, {s(sXb,2)} offset:2048", tok="x")
if opt("b0", 1): k("s_barrier")
k(f"s_mov_b32 exec_hi, -1\ns_cmp_ge_u32 {s(sT[10])}, {NCG}\ns_cbranch_scc1 Lother")
sDisp = k.snap()
stamp("xi")

vQ, vCgl, vXo, vSel, vSel3, vRo, vRo3, vLw, vLr = 150, 151, 152, 144, 147, 76, 77, 156, 157
vLa, vLb, vLr2, vM, vDI, vHc, vPt = 8, 9, 10, 12, 16, 28, 29
vW1a, vW1d = 22, 24
vFa, vFd = 23, 24
vRaw, vX, vS, vSq, vXr = 84, 100, 124, 126, 240
def srd_setup(other=False):
    if STAMP:
        for i, nm in enumerate(SEL):
            if nm not in ("start", "iss", "xi"): k(f"s_mov_b32 {s(sStamp+2*i)}, 0")
    k(f"""
    s_mov_b32 {s(WSR)}, {s(pWs)}
    s_mov_b32 {s(WSR+1)}, {s(pWs+1)}
    s_mov_b32 {s(WSR+2)}, {WS_BYTES}
    s_mov_b32 {s(WSR+3)}, 0x20000
    """)
    if other:
        k(f"""s_cmp_eq_u32 {s(sWv)}, 2
        s_cselect_b32 {s(sT[12])}, s2, 0
        s_cmp_lt_u32 {s(sT[12])}, 240
        s_cbranch_scc1 Lnoinit""")
        st_ = k.snap()
        k(f"""s_sub_u32 {s(sT[12])}, s2, 240
        s_lshl_b32 {s(sT[13])}, {s(sT[12])}, 2
        s_add_u32 {s(sT[13])}, {s(sT[13])}, {RDY}
        v_min_u32 v62, 1, {v(vLane)}
        v_lshlrev_b32 v62, 30, v62
        v_mov_b32 v5, 0
        buffer_atomic_add v5, v62, {ws}, {s(sT[13])} offen sc1
        v_lshrrev_b32 v63, 5, {v(vLane)}
        v_lshl_add_u32 v63, v63, 30, {v(vL16)}
        s_mul_i32 {s(sT[9])}, {s(sT[12])}, {RS}
        s_add_u32 {s(sT[9])}, {s(sT[9])}, {FB}
        s_lshl_b32 {s(sT[12])}, {s(sT[12])}, 9
        s_add_u32 {s(sT[12])}, {s(sT[12])}, {FA}
        s_add_u32 {s(sT[10])}, {s(sTag)}, 0x9E3779B1
        v_mov_b32 v64, {s(sT[10])}
        v_mov_b32 v65, {s(sT[10])}
        v_mov_b32 v66, {s(sT[10])}
        v_mov_b32 v67, {s(sT[10])}
        buffer_store_dwordx4 v[64:67], {v(vL16)}, {ws}, {s(sT[9])} offen sc1
        buffer_store_dwordx4 v[64:67], v63, {ws}, {s(sT[12])} offen sc1
        s_mov_b32 {s(sT[12])}, 240""")
        k.label("Lnoinit"); k.merge(st_)
def common_setup(other=False):
    k(f"""
    s_mov_b32 {s(OUTR)}, {s(pOut)}
    s_mov_b32 {s(OUTR+1)}, {s(pOut+1)}
    s_mov_b32 {s(OUTR+2)}, 2621440
    s_mov_b32 {s(OUTR+3)}, 0x20000
    v_mov_b32 v6, {OOB}
    v_mov_b32 {v(vOne)}, 1
    s_and_b32 {s(sT[4])}, s2, 7
    s_lshr_b32 {s(sMt)}, {s(sT[4])}, 2
    s_lshr_b32 {s(sT[10])}, {s(sT[5])}, 2
    s_lshl3_add_u32 {s(sMt)}, {s(sMt)}, {s(sT[10])}
    s_and_b32 {s(sNt)}, {s(sT[4])}, 3
    s_and_b32 {s(sT[10])}, {s(sT[5])}, 3
    s_lshl2_add_u32 {s(sNt)}, {s(sNt)}, {s(sT[10])}
    s_lshr_b32 {s(sHb)}, {s(sNt)}, 3
    s_and_b32 {s(sN2)}, {s(sNt)}, 7
    s_and_b32 {s(sRep)}, {s(sT[5])}, 15
    s_mul_i32 {s(sRep)}, {s(sRep)}, {RS}
    s_add_u32 {s(sRep)}, {s(sRep)}, {FB}
    v_cmp_ne_u32 vcc, 0, {v(vLane)}
    v_cndmask_b32 {v(vFl0)}, 0, v6, vcc
    v_cmp_gt_u32 vcc, 16, {v(vLane)}
    v_mul_u32_u24 {v(vRep)}, {RS}, {v(vLane)}
    v_cndmask_b32 {v(vRep)}, v6, {v(vRep)}, vcc
    s_lshr_b32 {s(sT[9])}, {s(sNt)}, 1
    s_lshl_b32 {s(sT[9])}, {s(sT[9])}, 7
    s_and_b32 {s(sT[10])}, {s(sMt)}, 3
    s_mul_i32 {s(sT[10])}, {s(sT[10])}, {RS}
    s_add_u32 {s(sT[9])}, {s(sT[9])}, {s(sT[10])}
    s_add_u32 {s(sT[9])}, {s(sT[9])}, {FB}
    s_lshl_b32 {s(sT[10])}, {s(sWv)}, 8
    s_max_u32 {s(sT[10])}, {s(sT[10])}, 128
    s_sub_u32 {s(sT[10])}, {s(sT[10])}, 128
    v_cmp_gt_u32 vcc, 4, {v(vLane)}
    v_lshl_add_u32 {v(vW1a)}, {v(vRep)}, 2, {s(sT[9])}
    v_lshl_add_u32 {v(vFa)}, {v(vLane)}, 7, {s(sT[10])}
    v_cndmask_b32 {v(vW1a)}, v6, {v(vW1a)}, vcc
    v_cndmask_b32 v39, v6, {v(vRep)}, vcc
    v_cmp_gt_u32 vcc, 3, {v(vLane)}
    s_cmp_eq_u32 s2, {NCG-1}
    s_cselect_b32 {s(sT[10])}, 3, 1
    v_cndmask_b32 {v(vFa)}, v6, {v(vFa)}, vcc
    v_mov_b32 {v(vInc)}, {s(sT[10])}
    v_lshlrev_b32 {v(vAg)}, 2, {v(vLane)}
    v_add_u32 {v(vAg)}, {AG + (768 if other else 0)}, {v(vAg)}
    s_lshl2_add_u32 {s(sT[9])}, {s(sNt)}, {s(sWv)}
    s_mul_i32 {s(sT[9])}, {s(sT[9])}, {20*3072}
    s_add_u32 {s(sT[9])}, {s(sT[9])}, {W1P}""")
    for e in range(4):
        k(f"s_xor_b32 {s(sW1[e])}, {s(sWv)}, {e}\ns_mul_i32 {s(sW1[e])}, {s(sW1[e])}, {5*3072}\ns_add_u32 {s(sW1[e])}, {s(sW1[e])}, {s(sT[9])}")
    k(f"""
    s_mul_i32 {s(sLd)}, {s(sWv)}, 10240
    s_mul_i32 {s(sHsrc)}, {s(sMt)}, 163840
    s_add_u32 {s(sHsrc)}, {s(sHsrc)}, {s(sLd)}
    s_add_u32 {s(sHsrc)}, {s(sHsrc)}, {HT}
    s_mul_i32 {s(sT[9])}, {s(sT[7])}, {TKCH}
    s_mul_i32 {s(sT[10])}, {s(sT[7])}, {ULCH}
    v_and_b32 v5, 3, {v(vN)}
    v_mul_u32_u24 {v(vLa)}, {CS}, v5
    v_lshrrev_b32 v5, 2, {v(vN)}
    v_lshlrev_b32 v6, 1, {v(vG)}
    v_sub_u32 v5, v5, v6
    v_add_u32 v5, 7, v5
    v_lshl_add_u32 {v(vLa)}, v5, 3, {v(vLa)}
    v_add_u32 {v(vLa)}, {s(sT[9])}, {v(vLa)}
    v_lshl_add_u32 {v(vLr2)}, {v(vN)}, 5, {s(sT[10])}
    v_lshl_add_u32 {v(vLb)}, {v(vG)}, 4, {v(vLr2)}
    v_add_u32 {v(vLb)}, {UL}, {v(vLb)}
    s_lshl_b32 {s(sT[9])}, {s(sT[7])}, 12
    s_add_u32 {s(sT[9])}, {s(sT[9])}, {PART}
    v_add_u32 {v(vPt)}, {s(sT[9])}, {v(vL16)}""")
def x_landed():
    k(f"s_add_u32 {s(sTag)}, {s(sTag)}, 0x9E3779B1\nv_mov_b32 {v(vTagv)}, {s(sTag)}")
    stamp("ln0")
    k.wait_tok("x")
    k("s_barrier")
    stamp("lx")
def norm(X, T, w_):
    L = [f"v_and_b32 {v(T+3)}, 0xffff0000, {v(T+2)}", f"v_lshlrev_b32 {v(T+2)}, 16, {v(T+2)}"]
    for c in range(3): L += [f"v_lshlrev_b32 {v(w_+2*c)}, 16, {v(X+c)}", f"v_and_b32 {v(w_+2*c+1)}, 0xffff0000, {v(X+c)}"]
    L += [f"v_pk_mul_f32 {v(T+2,2)}, {v(T+2,2)}, {v(T,2)}"]
    for c in range(3): L += [f"v_pk_fma_f32 {v(w_+2*c,2)}, {v(w_+2*c,2)}, {v(T,2)}, {v(T+2,2)} neg_lo:[0,0,1] neg_hi:[0,0,1]"]
    for c in range(3): L += [f"v_cvt_pk_bf16_f32 {v(T+c)}, {v(w_+2*c)}, {v(w_+2*c+1)}"]
    return L
def rec_loads(X, T, n, sx, st_, o):
    L = []
    for d, b_ in ((X, sx), (T, st_)):
        L.append(f"s_add_u32 {s(sT[4])}, {s(b_)}, {1024*o}")
        L += [f"buffer_load_dwordx4 {v(d+4*j,4)}, {v(vL16)}, {ws}, {s(sT[4])} offen offset:{1024*j} sc1" for j in range(n)]
    return L
def rec_work(LD, X, T, n, w_, o):
    check(LD, [b_ + 4*j + 3 for b_ in (X, T) for j in range(n)], 5)
    k(zipper(*[norm(X+4*j, T+4*j, w_+8*j) for j in range(n)]))
    for j in range(n):
        for c in range(3):
            k(f"ds_write_addtid_b32 {v(T+4*j+c)} offset:{512 + c*ULCH + 256*(o+j)}")
            k(f"ds_write_addtid_b32 {v(X+4*j+c)} offset:{XL - UL + c*ULCH + 256*(o+j)}")
RK = opt("rk", 3); R3 = 16 - 3*RK
w1poll = [f"v_mov_b32 {v(vW1d)}, 0", f"buffer_atomic_add {v(vW1d)}, {v(vW1a)}, {ws}, 0 offen offset:{oW1} sc0 sc1"]
def w1_ready():
    check(w1poll, [vW1d], 5, 4, 20); stamp("wf1")
W1L = []
for kk in range(20):
    for t in range(3):
        e = kk & 3
        x = [f"s_add_u32 {s(sW1[e])}, {s(sW1[e])}, 3072"] if (t == 0 and kk >= 4) else []
        W1L.append(x + [f"buffer_load_dwordx4 {ar(12*kk+4*t,4)}, {v(vL16)}, {ws}, {s(sW1[e])} offen offset:{1024*t} sc1"])
def hflag_ld(stage): return apoll(vFd, vFa, oH + 4*stage)
def hflag_chk(stage):
    check(hflag_ld(stage), [vFd], 5, 3, 27); stamp("hf" + "ABC"[stage])
def h_dma(c):
    L = []
    for i in range(10):
        if i % 4 == 0:
            L += [f"s_add_u32 m0, {s(sLd)}, {SLOT[c % 2] + 1024*i}", f"s_add_u32 {s(sT[4])}, {s(sHsrc)}, {40960*c + 1024*i}"]
        L.append((f"buffer_load_dwordx4 {v(vL16)}, {ws}, {s(sT[4])} offen offset:{1024*(i % 4)} sc1 lds", f"h{c}"))
    return groups(L)

for t in range(3):
    for i, p in enumerate([pAre, pAim, pBre, pBim, pCre, pCim]):
        k(f"global_load_short_d16_hi {v(vPar + 6*t + i)}, v6, {s(p,2)} offset:{128*t}")
def tab_loads():
    for j in range(3): k(f"global_load_dwordx4 {v(vTabl+4*j,4)}, {v(vL16)}, {s(pDbg,2)} offset:{1024*j - 2048}")
    k(f"""global_load_dword {v(vTabl+12)}, {v(vL16)}, {s(pDbg,2)} offset:1024
    global_load_dwordx4 a[120:123], {v(vL16)}, {s(pDbg,2)} offset:2048
    global_load_dwordx4 a[124:127], {v(vL16)}, {s(pDbg,2)} offset:3072""")
k(f"""
global_load_short_d16_hi {v(vLdt)}, v7, {s(pLdt,2)}
global_load_ushort {v(vDs)}, v7, {s(pDsk,2)}""")
TL = opt("tl", -1)
if TL == -1: tab_loads()
stamp("iss")
vDt, vRdA, vAcc = 78, 82, 84
k(f"""
v_lshrrev_b32 {v(vG)}, 4, {v(vLane)}
s_mul_i32 {s(sT[4])}, {s(sWv)}, {TABW}
s_add_u32 m0, {s(sT[4])}, {TAB - TOF}
s_add_u32 {s(sT[13])}, {s(sT[4])}, {TAB}
v_and_b32 v5, 31, {v(vLane)}
v_mul_u32_u24 {v(vRdA)}, {TROW}, v5
v_lshrrev_b32 v5, 5, {v(vLane)}
v_lshl_add_u32 {v(vRdA)}, v5, 4, {v(vRdA)}
v_add_u32 {v(vRdA)}, {s(sT[13])}, {v(vRdA)}
v_mov_b32 {v(vDt)}, {LOG2E}
v_mov_b32 {v(vDt+1)}, 0.15915494
v_mov_b32 v5, 0x3f80
ds_write_addtid_b32 v5 offset:{TOF}
""")
srd_setup()
common_setup()
if TL == -2: tab_loads()
if WARM:
    k(f"""s_mov_b64 exec, 0
    s_cmp_eq_u32 {s(sWv)}, 0
    s_cbranch_scc1 Lwarm0
    s_cmp_eq_u32 {s(sWv)}, 1
    s_cbranch_scc1 Lwarm1
    s_branch Lwarm2
    Lwarm_ret:
    s_mov_b64 exec, -1
    s_cmp_ge_u32 s2, {NCG}
    s_cbranch_scc1 Lwarm_reth""")
    stamp("wrm")
x_landed()
vA, vC, vZ1, vZ2, vZ4, vZ8, vZ16, vZ256 = 100, 102, 104, 106, 108, 110, 112, 114
vE, vPkd, vF, vPd = 116, 140, 192, 144
k(f"""v_and_b32 {v(vLdt)}, 0xffff0000, {v(vLdt)}
v_mul_f32 {v(vLdt)}, {v(vLdt)}, {v(vDt)}
v_exp_f32 {v(vLdt)}, {v(vLdt)}""")
k(f"v_cvt_pk_bf16_f32 {v(vDt+2)}, 0, {v(vLdt)}")
def put(src, row):
    return [f"v_cvt_pk_bf16_f32 {v(vPkd+row-1)}, {v(src)}, {'-' if row >= 32 else ''}{v(src+1)}"]
def kg_mm(t):
    return [f"v_mfma_f32_32x32x16_bf16 {v(vAcc,16)}, {v(vF+8*kk,4)}, {v(vF+8*kk+4,4)}, {'0' if (t == 0 and kk == 0) else v(vAcc,16)}" for kk in range(8)]
vKx, vKt, vKw = 160, 176, 224
KLD = rec_loads(vKx, vKt, RK, sXb, sXb+1, 0)
XBAR = opt("xb", -1)
def point(p):
    if p == TL: tab_loads()
    if p == XBAR: k("s_barrier")
    if p == opt("kl_", 14) and RK:
        k(f"""s_mul_i32 {s(sXb+1)}, {s(sWv)}, {1024*RK}
        s_add_u32 {s(sXb+1)}, {s(sXb+1)}, {1024*R3}
        s_mul_i32 {s(sXb)}, s2, {CGS}
        s_add_u32 {s(sXb)}, {s(sXb)}, {s(sXb+1)}
        s_add_u32 {s(sXb)}, {s(sXb)}, {XB}
        s_add_u32 {s(sXb+1)}, {s(sXb+1)}, {STP}""")
        k(KLD)
for t in range(3):
    P = vPar + 6*t
    point(5*t)
    k(f"""v_pk_mul_f32 {v(vA,2)}, {v(P,2)}, {v(vDt+2,2)} op_sel_hi:[1,0]
    v_pk_mul_f32 {v(P+2,2)}, {v(P+2,2)}, {v(vDt+2,2)} op_sel_hi:[1,0]
    v_pk_mul_f32 {v(vA,2)}, {v(vA,2)}, {v(vDt,2)}""")
    cm = cmul(vC, P+4, P+2)
    k([cm[0], f"v_fract_f32 {v(vA+1)}, {v(vA+1)}", f"v_exp_f32 {v(vA)}, {v(vA)}", f"v_cos_f32 {v(vZ1)}, {v(vA+1)}", f"v_sin_f32 {v(vZ1+1)}, {v(vA+1)}", cm[1],
       f"v_pk_mul_f32 {v(vZ1,2)}, {v(vZ1,2)}, {v(vA,2)} op_sel_hi:[1,0]"])
    ev = [vE, vE+2]; od = [vE+4, vE+6]; h0 = [vE+8, vE+10]; hb = [vE+12, vE+14]; hx = [vE+16, vE+18, vE+20]
    cH = put(vC, 32); prev = vC
    for j in range(1, 8):
        d = h0[j % 2]; cH += cmul(d, prev, vZ1) + put(d, 32+j); prev = d
    sq = cmul(vZ2, vZ1, vZ1) + cmul(vZ4, vZ2, vZ2) + cmul(vZ8, vZ4, vZ4) + cmul(vZ16, vZ8, vZ8)
    k(zipper(sq, cH[:8])); cH = cH[8:]
    point(5*t+1)
    cE = put(vZ16, 2); prev = vZ16; cut = None
    for j in range(4, 32, 2):
        d = ev[(j//2) % 2]; cE += cmul(d, prev, vZ16) + put(d, j); prev = d
        if j == 16: cE += cmul(vZ256, d, d); cut = len(cE)
    cO = put(vZ8, 1); prev = vZ8
    for j in range(3, 32, 2):
        d = od[(j//2) % 2]; cO += cmul(d, prev, vZ16) + put(d, j); prev = d
    cB = []; prev = vC
    rows = {1: 8, 2: 12, 3: 14, 4: 16, 5: 17, 6: 18, 7: 19, 8: 20}
    for j in range(1, 9):
        d = hb[j % 2]; cB += cmul(d, prev, vZ256) + put(d, 32+rows[j]); prev = d
        if j == 1:
            cB += cmul(hx[0], d, vZ2) + put(hx[0], 32+9) + cmul(hx[1], d, vZ4) + put(hx[1], 32+10) + cmul(hx[2], hx[0], vZ4) + put(hx[2], 32+11)
        elif j in (2, 3):
            cB += cmul(hx[0], d, vZ4) + put(hx[0], 32+rows[j]+1)
    k(zipper(cE[:cut], cH + cO[:10])); cO = cO[10:]
    point(5*t+2)
    k(zipper(cB, cO, cE[cut:]))
    point(5*t+3)
    wr = [f"ds_write_addtid_b32 {v(vPkd+r-1)} offset:{TOF + r*TROW}" for r in range(1, 53)]
    if t == 0: k(wr)
    else: weave2(k, kg_mm(t-1), wr, [], slots=6)
    for kk in range(8):
        k(f"ds_read_b128 {v(vF+8*kk,4)}, {v(vRdA)} offset:{32*TROW + 32*kk}")
        k(f"ds_read_b128 {v(vF+8*kk+4,4)}, {v(vRdA)} offset:{32*kk}")
    point(5*t+4)
    stamp(f"kt{t}")
vG0, vO, vTf, vWg, vEd = 100, 128, 20, 184, 216
fill = [f"v_add_u32_sdwa {v(vG0+i)}, {s(sT[13])}, {v(vTabl + i//2)} dst_sel:DWORD dst_unused:UNUSED_PAD src0_sel:DWORD src1_sel:WORD_{i & 1}" for i in range(26)]
fill += lines(f"""
v_and_b32 v5, 1, {v(vG)}
v_lshl_add_u32 {v(vLr2)}, v5, 4, {v(vLr2)}
v_cmp_gt_u32 vcc, 2, {v(vG)}
v_mov_b32 v6, {UL+512}
v_mov_b32 v7, {XL}
v_cndmask_b32 v6, v7, v6, vcc
v_add_u32 {v(vLr2)}, {v(vLr2)}, v6
v_mov_b32 v7, 0x3f80
v_cndmask_b32 v7, v7, {v(vDs)}, vcc
v_lshlrev_b32 v5, 3, v5
v_sub_u32 v5, {v(vN)}, v5
v_and_b32 v6, 1, v5
v_lshlrev_b32 v6, 4, v6
v_lshlrev_b32 v6, v6, v7
v_ashrrev_i32 v5, 1, v5
v_cmp_eq_u32 vcc, 0, v5
v_cmp_eq_u32 {s(sT[0],2)}, 1, v5
v_cmp_eq_u32 {s(sT[2],2)}, 2, v5
v_cndmask_b32 {v(vDI)}, 0, v6, vcc
v_cmp_eq_u32 vcc, 3, v5
v_cndmask_b32 {v(vDI+1)}, 0, v6, {s(sT[0],2)}
v_cndmask_b32 {v(vDI+2)}, 0, v6, {s(sT[2],2)}
v_cndmask_b32 {v(vDI+3)}, 0, v6, vcc
v_lshrrev_b32 v5, 2, {v(vLane)}
v_mul_u32_u24 v5, 163840, v5
v_and_b32 v6, 3, {v(vLane)}
s_bfe_u32 {s(sT[9])}, {s(sT[6])}, 0x10002
s_lshl_b32 {s(sT[9])}, {s(sT[9])}, 1
s_lshl_b32 {s(sT[10])}, {s(sT[6])}, 6
s_mul_i32 {s(sFl)}, s2, 2428
s_lshr_b32 {s(sFl)}, {s(sFl)}, 16
s_lshl_b32 {s(sFl)}, {s(sFl)}, {LS.bit_length()-1}
s_add_u32 {s(sFl)}, {s(sFl)}, {FB}
s_cmp_lt_u32 {s(sT[6])}, 640
s_cselect_b32 {s(sT[10])}, {s(sT[10])}, {OOB}
v_xor_b32 v7, {s(sT[9])}, v6
v_lshl_add_u32 v7, v7, 4, v5
v_add_u32 {v(vHc)}, {s(sT[10])}, v7
s_mul_i32 {s(sT[4])}, {s(sWv)}, {TKCH}
v_add_u32 v7, {s(sT[4])}, {v(vL16)}
v_lshl_add_u32 v5, {v(vLane)}, 2, {s(sT[4])}
v_lshlrev_b32 v6, 2, {v(vG)}
v_sub_u32 v6, {v(vN)}, v6
s_add_u32 {s(sT[4])}, {s(sT[4])}, {TK + 3136 - 12}
v_lshl_add_u32 {v(vTf)}, v6, 2, {s(sT[4])}
v_mov_b32 v6, 0""")
k(fill[:10])
sched(k, kg_mm(2), normal=[(0, fill[10:])], slots=6)
k(f"ds_write_addtid_b32 v6 offset:{TOF + 3072}")
for r in range(12): k(f"ds_write_addtid_b32 {v(vAcc+r)} offset:{TOF + 256*r}")
point(15)
stamp("kg1")
k.raw(";WARM_BEGIN")
gi = {}
for rho in range(2):
    for tp in TAPS[rho]: gi[(rho, tp)] = len(gi)
k(f"ds_write_b32 v5, v6 offset:{TK + 3136 - 256}")
for i in range(26): k(f"ds_read_b32 {v(vG0+i)}, {v(vG0+i)}")
for rho in range(2):
    g = lambda tap: v(vG0 + gi[(rho, tapsrc(rho, tap))])
    for sg in range(4):
        o = vO + 16*rho + 4*sg
        k(f"""v_cvt_pk_bf16_f32 {v(o)}, {g(sg)}, {g(sg-1)}
        v_cvt_pk_bf16_f32 {v(o+1)}, {g(sg-2)}, {g(sg-3)}
        v_cvt_pk_bf16_f32 {v(o+2)}, {g(sg+4)}, {g(sg+3)}
        v_cvt_pk_bf16_f32 {v(o+3)}, {g(sg+2)}, {g(sg+1)}""")
    if rho: k(f"v_cvt_pk_bf16_f32 v6, {v(vG0+24)}, {v(vG0+25)}")
    for sg in range(4):
        k(f"ds_write_b128 v7, {v(vO+16*rho+4*sg,4)} offset:{TK + sg*CS + 32 + 1024*rho}")
k(f"ds_write_b32 v5, v6 offset:{TK + 3136}")
for j in range(4): k(f"v_cvt_pk_bf16_f32 {v(vEd+j)}, {v(vG0+16+2*j)}, {v(vG0+17+2*j)}")
stamp("tp0")
if RK:
    k(f"s_mul_i32 m0, {s(sWv)}, {256*RK}\ns_add_u32 m0, m0, {UL + 256*R3}")
    rec_work(KLD, vKx, vKt, RK, vKw, 0)
stamp("tp1")

vCA, vFr, vRs, vPk = 32, 72, 232, 248
def h_out(prs, tok):
    L = []
    for pr in prs:
        p = vPk + 4*(pr % 2); a_ = vCA + 8*pr
        if pr >= 2: L += [f"v_pk_add_f32 {v(a_+2*j,2)}, {v(a_+2*j,2)}, {v(vRs+8*(pr-2)+2*j,2)}" for j in range(4)]
        L += [f"v_cvt_pk_bf16_f32 {v(p+j)}, {v(a_+2*j)}, {v(a_+2*j+1)}" for j in range(4)]
        L += [f"s_mov_b32 {s(sT[5])}, {HT + 40960*pr}", (f"buffer_store_dwordx4 {v(p,4)}, {v(vHc)}, {ws}, {s(sT[5])} offen sc1", tok)]
    return L
def conv_code(main):
    bar()
    stamp("cv0")
    SH = opt("sh", 2)
    if main: jobs = [(0, r, [0,1]) for r in range(8)] + [(0, r, [2,3]) for r in range(8)] + [(0, r, [4,5,6,7]) for r in range(5)] + [[(0, 5, [4,5,6,7])], [(0, 5, [4,5])], []][SH]
    else: jobs = [(c, r, t) for c in range(3) for r, t in [(6, [4,5,6,7]), (7, [4,5,6,7])] + [[], [(5, [6,7])], [(5, [4,5,6,7])]][SH]]
    JPC = len(jobs) // 3
    seq = []; ends = []; touched = set(); wgen = []
    for nb, (c, r, tiles) in enumerate(jobs):
        acc = (lambda i: vCA + 4*i) if main else (lambda i: vCA + 16*(c % 2) + 4*(i-4))
        grp = 0 if (main and nb < 16) else nb
        if main and nb == 16:
            for q in range(4):
                seq.append((vWg + 8*q, ("b", c, 0, q, grp), "a[120:123]", True))
                seq.append((vWg + 8*q + 4, ("u", q), "a[124:127]", True))
                wgen.append(len(seq))
        if tiles[0] < 4: order = [(i, p) for _, i, p in sorted([(max(p, i-p), i, p) for i in tiles for p in range(i+1)])]
        elif opt("ch", 0): order = [(i, p) for i in tiles for p in (3, 2, 1, 0)]
        else: order = [(i, p) for _, p, i in sorted([(i-p, -p, i) for i in tiles for p in range(4)])]; order = [(i, -p) for i, p in order]
        for i, p in order:
            if (c, i) not in touched:
                touched.add((c, i))
                if main: seq.append((acc(i), v(vDI,4), ("x", i), True))
                else: seq.append((acc(i), ("a", c, r, p, grp), ("b", c, r, i-p, grp), True)); continue
                if i >= 4: seq.append((acc(i), v(vEd,4), ("b", c, 0, i-4, grp), False))
            seq.append((acc(i), ("a", c, r, p, grp), ("b", c, r, i-p, grp), False))
        if main and nb == 17:
            for dl in range(4, 8):
                for i in range(dl, 8): seq.append((acc(i), v(vWg + 8*(i-dl), 4), ("t", dl), False))
        ends.append(len(seq))
    first, lastu = {}, {}
    for n_, (_, ka, kb, _z) in enumerate(seq):
        for key in (kb, ka):
            if isinstance(key, str): continue
            first.setdefault(key, n_); lastu[key] = n_
    home = {}; ring = [-1]*28; nr = 0; nk = 0; R = []
    for key in sorted(first, key=lambda q_: first[q_]):
        if main and key[0] != "x" and first[key] < ends[7]:
            reg = lambda o, n, b_=128 + 4*nk: ar(b_+o, n); nk += 1; early = -1
        else:
            sl = nr % 28; nr += 1; early = ring[sl]; ring[sl] = lastu[key]
            reg = lambda o, n, b_=vFr + 4*sl: v(b_+o, n)
        home[key] = reg(0, 4)
        due = max(first[key] - opt("la", 6), early)
        assert due < first[key]
        if key[0] == "x": T = [f"ds_read_b128 {reg(0,4)}, {v(vLr2)} offset:{512*key[1]}"]
        elif key[0] == "u": T = [f"ds_read_b128 {reg(0,4)}, {v(vLb)} offset:{512 + 512*key[1] - 48}"]
        elif key[0] == "t": T = [f"ds_read2_b32 {reg(2*h_,2)}, {v(vTf)} offset0:{16*(key[1]-4) + 3 - 2*h_} offset1:{16*(key[1]-4) + 2 - 2*h_}" for h_ in range(2)]
        elif key[0] == "b": T = [f"ds_read_b128 {reg(0,4)}, {v(vLb)} offset:{key[1]*ULCH + 512 + 64*(8*key[3] - key[2]) - 32}"]
        else:
            o = TK + key[1]*TKCH + 64*(8*key[3] + key[2])
            T = [f"ds_read_b64 {reg(0,2)}, {v(vLa)} offset:{o+8}", f"ds_read_b64 {reg(2,2)}, {v(vLa)} offset:{o}"]
        R += [[early, due, x] for x in T]
    for j in range(1, len(R)): R[j][0] = max(R[j][0], R[j-1][0]); R[j][1] = max(R[j][1], R[j][0])
    nom = 1e9; rd = []
    for e_, d_, x in reversed(R):
        nom = min(d_ - opt("lb", 3), nom - opt("rr", 8)/10); rd.append((e_, max(e_, int(nom // 1)), d_, x))
    rd.reverse()
    mm = [mf16(v(a_,4), home.get(ka, ka), home.get(kb, kb), "0" if z else None) for a_, ka, kb, z in seq]
    n = len(mm); urgent = []; normal = []
    print("conv mfma", n, "reads", len(rd))
    for q, e_ in enumerate(wgen):
        normal.append((wgen[-1] + 6, [f"v_cvt_pk_bf16_f32 {v(vWg+8*q+j)}, {v(vWg+8*q+j)}, {v(vWg+8*q+4+j)}" for j in range(4)]))
    if main:
        for st_, e_ in enumerate((ends[7], ends[15])):
            urgent.append((e_ + 1, [stampc("cv" + "AB"[st_])] + h_out([st_], f"hs{st_}")))
            f1, f2 = hflag(f"hs{st_}", st_); g_ = e_ + opt(f"dA{st_}", [32, 44][st_])
            urgent += [(g_, f1), (g_ + 6, f2 + [stampc(f"fl{st_}")])]
        gb = n - opt("dB", 26)
        urgent.append((gb, ["s_barrier"] + [f"ds_read_b128 {v(vRs+4*j,4)}, {v(vPt)} offset:{1024*j}" for j in range(4)]))
        urgent += [(min(n-1, gb + 2 + opt("dD", 2)*j), g_) for j, g_ in enumerate(h_dma(0))]
    else:
        for c in range(3):
            e_ = ends[JPC*c + JPC-1]
            wr = [f"ds_write_b128 {v(vPt)}, {v(vCA + 16*(c % 2) + 4*j,4)} offset:{4096*c + 1024*j}" for j in range(4)]
            if c < 2: urgent += [(e_ + 3 + 4*j, [wr[j]]) for j in range(4)]
            else: last = wr
    if WIN: urgent += [(WIN - opt("wq", 34), w1poll), (WIN, [w1_ready])]
    g0 = max(opt("w1s", 2), WIN); nw = NW1C if main else NW1C*opt("w3f", 80)//100
    pos = [g0 + ((gb if main else n) - 2 - g0)*j//nw for j in range(nw)]
    normal.append((40, g1setup))
    if main: assert NW1C <= 30 or pos[30] > wgen[-1]
    extra = [(ends[17] - 12, lambda U, N: (k(U + N), U.clear(), N.clear()))] if main else []
    if opt("w1pf", 0):
        urgent.append((0, lines(f"""s_and_b32 {s(sT[9])}, {s(sMt)}, 7
        s_lshl2_add_u32 {s(sT[10])}, {s(sNt)}, {s(sWv)}
        s_lshl3_add_u32 {s(sT[9])}, {s(sT[10])}, {s(sT[9])}
        s_mul_i32 {s(sT[9])}, {s(sT[9])}, 7680
        s_add_u32 {s(sT[9])}, {s(sT[9])}, {W1P}
        v_min_u32 v220, 59, {v(vLane)}
        v_lshlrev_b32 v220, 7, v220
        buffer_load_dword v220, v220, {ws}, {s(sT[9])} offen sc1""")))
    urgent += list(zip(pos, W1L))
    if DBG & 16: urgent = [(g_, [x for x in it if not (isinstance(x, str) and x.startswith('buffer_load'))]) for g_, it in urgent]
    if not main: urgent.append((n - opt("dP", 20), h0poll))
    urgent.sort(key=lambda e: e[0])
    sched(k, mm, rd, urgent, normal, extra + [(j, (lambda nm: lambda U, N: stamp(nm))(f'v{j}')) for j in range(0, n, 20)])
    if main:
        stamp("cv1")
        k(h_out([2, 3], "hB"))
        for g_ in W1L[NW1C:NW1C+NW1G]: k(g_)
    else:
        k(last)
        stamp("w3e")
        check(h0poll[4:], [vFd], 5, 8, 27); stamp("hfA")
        bar()
        stamp("cv1")
        for g_ in h_dma(0) + W1L[nw:NW1C+NW1G]: k(g_)
h0poll = [f"v_lshrrev_b32 v26, 3, {v(vLane)}", "v_min_u32 v26, 1, v26", f"v_lshlrev_b32 v26, 23, v26", f"v_add_lshl_u32 v26, v26, {v(vLane)}, 7"] + apoll(vFd, 26, oH)
vOnes, vBa = 12, 64
g1setup = [f"v_mov_b32 {v(vOnes+i)}, 0x3f803f80" for i in range(4)] + lines(f"""
v_lshrrev_b32 v7, 2, {v(vLane)}
v_lshlrev_b32 v7, 6, v7
v_and_b32 v6, 3, {v(vLane)}
v_lshl_add_u32 v7, v6, 3, v7
v_and_b32 v6, 1, {v(vG)}
v_lshl_add_u32 v7, v6, 5, v7""")
for e in range(4):
    g1setup += lines(f"""s_xor_b32 {s(sT[7])}, {s(sWv)}, {e}
    s_mul_i32 {s(sT[7])}, {s(sT[7])}, 10240
    s_add_u32 {s(sT[7])}, {s(sT[7])}, {SLOT[0]}
    v_add_u32 {v(vBa+e)}, {s(sT[7])}, v7
    v_xor_b32 {v(vBa+4+e)}, 32, {v(vBa+e)}""")
conv_code(True)
k(hflag_ld(1)); k.wait_tok("h0")
k("s_branch Lconvd")
sConvMain = k.snap()

k.restore(sDisp)
k.raw(";WARM_OFF")
k.label("Lother")
k(f"v_lshrrev_b32 {v(vG)}, 4, {v(vLane)}\ns_mov_b32 {s(sFl)}, {OOB}")
srd_setup(True)
k(f"s_cmp_eq_u32 {s(sWv)}, 3\ns_cbranch_scc1 Lw3")
s1 = k.snap()
sStg, sUb = 66, 67; vPa2, vW2o, vPd2 = 61, 104, 148
def w2_dma(su, off):
    k(f"s_mul_i32 {s(sT[9])}, {s(su)}, 10240\nv_add_u32 v5, {s(sT[9])}, {v(vL16)}\nv_add_u32 v6, 4096, v5\nv_add_u32 v7, 8192, v5")
    for e in range(10):
        if e % 4 == 0: k(f"s_add_u32 m0, {s(sStg)}, {off + 1024*e}")
        k(f"global_load_lds_dwordx4 {v(5 + e//4)}, {s(pWd,2)} offset:{1024*(e % 4)}", tok="w2dma")
x_landed()
k(f"s_cmp_lt_u32 {s(sT[12])}, 240\ns_cbranch_scc1 Lnostat")
s2_ = k.snap()
k(f"s_waitcnt vmcnt(0)\nbuffer_store_dword v64, v62, {ws}, {s(sT[13])} offen sc1")
stamp("ini")
k("s_branch Lnostat")
s3_ = k.snap()
k.restore(s1)
k.label("Lw3")
vQ, vCgl, vXo, vSel, vSel3, vRo, vRo3, vLw, vLr = 32, 33, 34, 40, 43, 46, 47, 48, 49
vS, vSq, vX, vRaw, vXr = 50, 52, 56, 84, 140
k(f"""
v_and_b32 {v(vQ)}, 3, {v(vLane)}
v_lshrrev_b32 {v(vCgl)}, 2, {v(vLane)}
v_mul_u32_u24 v5, 6, {v(vCgl)}
v_and_b32 v5, -4, v5
v_mul_u32_u24 {v(vXo)}, {XSP}, {v(vQ)}
v_add_u32 {v(vXo)}, {XS}, {v(vXo)}
v_min_u32 {v(vXo+4)}, 24, v5
v_add_u32 {v(vXo+4)}, 1248, {v(vXo+4)}
v_add_u32 {v(vXo+4)}, {v(vXo+4)}, {v(vXo)}
v_add_u32 {v(vXo)}, {v(vXo)}, v5
v_add_u32 {v(vXo+1)}, 1280, {v(vXo)}
v_add_u32 {v(vXo+2)}, 960, {v(vXo)}
v_add_u32 {v(vXo+3)}, 2240, {v(vXo)}
v_add_u32 {v(vXo+5)}, 1280, {v(vXo+4)}
v_and_b32 v5, 1, {v(vCgl)}
v_mul_u32_u24 v5, 0x0202, v5
v_lshlrev_b32 v5, 16, v5
v_add_u32 {v(vSel)}, 0x01000c0c, v5
v_add_u32 {v(vSel+1)}, 0x03020c0c, v5
v_add_u32 {v(vSel+2)}, 0x05040c0c, v5
v_mov_b32 v5, 0x0c0c0c0c
v_cmp_gt_u32 vcc, 5, {v(vCgl)}
v_mul_u32_u24 {v(vRo)}, {CGS}, {v(vCgl)}
v_lshl_add_u32 {v(vRo)}, {v(vQ)}, 4, {v(vRo)}
v_cndmask_b32 {v(vSel3)}, v5, {v(vSel)}, vcc
v_cndmask_b32 {v(vSel3+1)}, v5, {v(vSel+1)}, vcc
v_cndmask_b32 {v(vSel3+2)}, v5, {v(vSel+2)}, vcc
v_cmp_eq_u32 vcc, 5, {v(vCgl)}
v_mov_b32 v5, 0x07060c0c
v_lshrrev_b32 {v(vLw)}, 1, {v(vG)}
v_cndmask_b32 {v(vSel3)}, {v(vSel3)}, v5, vcc
v_cmp_gt_u32 vcc, 6, {v(vCgl)}
v_and_b32 v5, 1, {v(vG)}
v_mov_b32 v6, {OOB}
v_cndmask_b32 {v(vRo3)}, v6, {v(vRo)}, vcc
v_lshl_add_u32 {v(vLw)}, v5, 1, {v(vLw)}
v_lshlrev_b32 {v(vLr)}, 4, {v(vQ)}
v_add_u32 {v(vLr)}, {LNS}, {v(vLr)}
v_lshl_add_u32 {v(vLw)}, {v(vLw)}, 2, {v(vLr)}
s_lshl_b32 {s(sT[4])}, s2, 6
s_add_u32 {s(sT[9])}, {s(sT[4])}, {XB}
s_add_u32 {s(sT[10])}, {s(sTag)}, 0x9E3779B1""")
vPs, vPa, vPst, vPd = 196, 200, 202, 84
sPS, sPF = [66, 67, 3], [22, 23, 64]
assert all((p*2731) >> 16 == p // 24 for p in range(192))
def w1_dma():
    k(f"s_cmp_ge_u32 s2, {NCG}\ns_cbranch_scc1 Lnodma")
    st_ = k.snap()
    for e in range(3):
        k(f"""v_add_u32 v5, {64*e}, {v(vLane)}
        v_mul_u32_u24 v6, 2731, v5
        v_lshrrev_b32 v7, 18, v6
        v_lshrrev_b32 v6, 16, v6
        v_mul_u32_u24 v6, 2688, v6
        v_mul_u32_u24 v7, 36864, v7
        v_lshlrev_b32 v5, 4, v5
        v_add3_u32 {v(vPs+e)}, v5, v6, v7""")
    kk_, g_, cp_, t_ = sT[0], sT[1], sT[2], sT[3]
    for u in range(3):
        k(f"""s_add_u32 {s(sT[11])}, {s(sT[6])}, {u}
        s_min_u32 {s(t_)}, {s(sT[11])}, 639
        s_lshr_b32 {s(kk_)}, {s(t_)}, 5
        s_bfe_u32 {s(g_)}, {s(t_)}, 0x20003
        s_and_b32 {s(cp_)}, {s(t_)}, 7
        s_lshl3_add_u32 {s(t_)}, {s(kk_)}, {s(g_)}
        s_lshl_b32 {s(t_)}, {s(t_)}, 5
        s_add_u32 {s(t_)}, {s(t_)}, {s(cp_)}
        s_mul_i32 {s(t_)}, {s(t_)}, 384""")
        for e in range(3): k(f"v_add_u32 {v(5+e)}, {s(t_)}, {v(vPs+e)}")
        extra = lines(f"""s_mul_i32 {s(sPS[u])}, {s(cp_)}, 160
        s_add_u32 {s(sPS[u])}, {s(sPS[u])}, {s(kk_)}
        s_mul_i32 {s(sPS[u])}, {s(sPS[u])}, 12
        s_add_u32 {s(sPS[u])}, {s(sPS[u])}, {s(g_)}
        s_lshl_b32 {s(sPS[u])}, {s(sPS[u])}, 8
        s_add_u32 {s(sPS[u])}, {s(sPS[u])}, {W1P}""")
        for mat in range(2):
            for e in range(3):
                k(f"s_mov_b32 m0, {PK + 6144*u + mat*3072 + e*1024}")
                k(extra.pop(0))
                k(f"global_load_lds_dwordx4 {v(5+e)}, {s(pWg if mat == 0 else pWu, 2)}", tok="w1dma")
        k(f"""s_mul_i32 {s(g_)}, {s(g_)}, {4*RS}
        s_lshl_b32 {s(sPF[u])}, {s(cp_)}, 7
        s_add_u32 {s(sPF[u])}, {s(sPF[u])}, {s(g_)}
        s_add_u32 {s(sPF[u])}, {s(sPF[u])}, {FB + oW1}
        s_cmp_lt_u32 {s(sT[11])}, 640
        s_cselect_b32 {s(sPF[u])}, {s(sPF[u])}, {OOB}""")
    k("s_waitcnt vmcnt(18)")
    k.label("Lnodma")
    st2 = k.snap(); k.restore(st_); k.st.vm = []; k.merge(st2)
for rho in range(14): k(f"v_mov_b32 {v(vXr+4*rho+3)}, {s(sT[10])}")
k(f"s_cmp_lt_u32 s2, {NCG}\ns_cbranch_scc1 Lhasdma\ns_waitcnt vmcnt(0)\nLhasdma:")
w1_dma()
x_landed()
if opt("w2p", 0):
    k(f"""v_min_u32 v5, 59, {v(vLane)}
    s_mul_i32 {s(sT[11])}, s2, 7680
    v_lshl_add_u32 v5, v5, 7, {s(sT[11])}
    global_load_dword v203, v5, {s(pWd,2)}""")
def xrd(rho): return [f"ds_read2_b32 {v(vRaw + 4*rho + 2*e, 2)}, {v(vXo + e + (0 if rho < 10 else 2 if rho < 13 else 4))} offset0:{o} offset1:{o+1}" for e in range(2) for o in [24*rho if rho < 10 else 24*(rho-10) if rho < 13 else 0]]
for rho in range(14): k(xrd(rho))
for rho in range(14):
    X = vX + 6*(rho % 2)
    for c in range(3):
        for e in range(2):
            r = vRaw + 4*rho + 2*e
            k(f"v_perm_b32 {v(X + 2*c + e)}, {v(r+1)}, {v(r)}, {v((vSel if rho < 13 else vSel3) + c)}")
    for c in range(3):
        x = v(X + 2*c, 2)
        if rho == 0 and c == 0: k(f"v_pk_mul_f32 {v(vSq,2)}, {x}, {x}")
        else: k(f"v_pk_fma_f32 {v(vSq,2)}, {x}, {x}, {v(vSq,2)}\nv_pk_add_f32 {v(vS,2)}, {v(X,2) if (rho, c) == (0, 1) else v(vS,2)}, {x}")
        k(f"v_cvt_pk_bf16_f32 {v(vXr+4*rho+c)}, {v(X+2*c)}, {v(X+2*c+1)}")
XST = []
for rho in range(14):
    XST.append([f"buffer_store_dwordx4 {v(vXr+4*rho,4)}, {v(vRo if rho < 13 else vRo3)}, {ws}, {s(sT[9])} offen sc1"] + ([f"s_add_u32 {s(sT[9])}, {s(sT[9])}, {16*CGS}"] if rho < 13 else []))
k(f"""v_permlane32_swap_b32 {v(vSq)}, {v(vSq+1)}
v_permlane32_swap_b32 {v(vS)}, {v(vS+1)}
v_add_f32 {v(vSq)}, {v(vSq)}, {v(vSq+1)}
v_add_f32 {v(vS)}, {v(vS)}, {v(vS+1)}
v_permlane16_swap_b32 {v(vS)}, {v(vSq)}
v_add_f32 {v(vS)}, {v(vS)}, {v(vSq)}
v_add_f32_dpp {v(vS)}, {v(vS)}, {v(vS)} row_ror:8 row_mask:0xf bank_mask:0xf
v_add_f32_dpp {v(vS)}, {v(vS)}, {v(vS)} row_ror:4 row_mask:0xf bank_mask:0xf
ds_write_b32 {v(vLw)}, {v(vS)}""")
vP, vT8 = 68, 72
k(f"ds_read_b128 {v(vP,4)}, {v(vLr)}")
for g_ in XST[:opt("xs0", 4)]: k(g_)
S_, Q_, t_ = vP, vP+2, vT8
k(f"""v_mov_b32 {v(t_+6)}, {INV640}
v_cmp_gt_u32 vcc, 4, {v(vLane)}
v_mov_b32 v6, {OOB}
s_add_u32 {s(sT[4])}, {s(sT[4])}, {STP}
v_cndmask_b32 v6, v6, {v(vL16)}, vcc
v_mov_b32 {v(t_+5)}, {s(sTag)}
v_pk_mul_f32 {v(S_,2)}, {v(S_,2)}, {v(t_+6,2)} op_sel_hi:[1,0]
v_pk_mul_f32 {v(Q_,2)}, {v(Q_,2)}, {v(t_+6,2)} op_sel_hi:[1,0]
v_pk_fma_f32 {v(Q_,2)}, {v(S_,2)}, {v(S_,2)}, {v(Q_,2)} neg_lo:[1,0,0] neg_hi:[1,0,0]
v_cvt_pk_bf16_f32 {v(t_+4)}, {v(S_)}, {v(S_+1)}
v_max_f32 {v(Q_)}, 0, {v(Q_)}
v_max_f32 {v(Q_+1)}, 0, {v(Q_+1)}
v_cvt_pk_bf16_f32 {v(Q_)}, 0, {v(Q_)}
v_cvt_pk_bf16_f32 {v(Q_+1)}, 0, {v(Q_+1)}
v_add_f32 {v(Q_)}, 0x3727c5ac, {v(Q_)}
v_add_f32 {v(Q_+1)}, 0x3727c5ac, {v(Q_+1)}
v_cvt_pk_bf16_f32 {v(Q_)}, 0, {v(Q_)}
v_cvt_pk_bf16_f32 {v(Q_+1)}, 0, {v(Q_+1)}
v_sqrt_f32 {v(Q_)}, {v(Q_)}
v_sqrt_f32 {v(Q_+1)}, {v(Q_+1)}
v_cvt_pk_bf16_f32 {v(Q_)}, 0, {v(Q_)}
v_cvt_pk_bf16_f32 {v(Q_+1)}, 0, {v(Q_+1)}
v_rcp_f32 {v(t_+2)}, {v(Q_)}
v_rcp_f32 {v(t_+3)}, {v(Q_+1)}
s_nop 0
buffer_store_dwordx4 {v(t_+2,4)}, v6, {ws}, {s(sT[4])} offen sc1
""")
stamp("lnb")
for g_ in XST[opt("xs0", 4):]: k(g_)
stamp("xst")
k.label("Lnostat")
k.merge(s2_); k.merge(s3_)
common_setup(True)
k(f"s_cmp_ge_u32 s2, {NCG}\ns_cbranch_scc1 Lhelp")
sHelp = k.snap()
k.raw(";WARM_BEGIN")
k(f"""v_mov_b32 v6, 0
v_mov_b32 v7, 0
v_lshlrev_b32 v60, 3, {v(vLane)}
v_lshrrev_b32 v80, 2, {v(vLane)}
v_min_u32 v80, 11, v80
v_mul_u32_u24 v80, {CS}, v80
v_and_b32 v81, 3, {v(vLane)}
v_lshl_add_u32 v80, v81, 3, v80
s_mul_i32 {s(sT[5])}, s2, {CGS}
s_add_u32 {s(sT[5])}, {s(sT[5])}, {XB}
s_mov_b32 m0, {UL}""")
for c in range(3): k(f"ds_write_b64 v60, v[6:7] offset:{UL + c*ULCH}")
k(f"ds_write_b64 v80, v[6:7] offset:{TK}\nds_write_b64 v60, v[6:7] offset:{AG}\nds_write_b64 v60, v[6:7] offset:{AG+512}")
vRx, vRt, vW = 84, 148, 212
k(f"""v_bfe_u32 v5, {v(vLane)}, 1, 1
v_mul_u32_u24 {v(vPa)}, 3072, v5
v_bfe_u32 v5, {v(vLane)}, 2, 2
v_mul_u32_u24 v5, 384, v5
v_add_u32 v5, {PK}, v5
v_add_u32 {v(vPa)}, {v(vPa)}, v5
v_mad_u32_u24 {v(vPa)}, {v(vG)}, 48, {v(vPa)}
v_and_b32 v5, 1, {v(vLane)}
v_lshl_add_u32 {v(vPa+1)}, v5, 3, {v(vPa)}
v_lshl_add_u32 {v(vPa)}, v5, 4, {v(vPa)}
v_mul_u32_u24 v5, {20*3072}, {v(vG)}
v_lshl_add_u32 {v(vPst)}, {v(vN)}, 4, v5""")
k.wait_tok("w1dma")
stamp("pk0")
for u in range(3):
    for a_ in range(2):
        for tt in range(3):
            for hf in range(2):
                k(f"ds_read_b64_tr_b16 {ar(24*u+12*a_+4*tt+2*hf,2)}, {v(vPa + (tt == 2))} offset:{6144*u + 1536*hf + 192*a_ + (8*tt if tt < 2 else 32)}")
for u in range(3):
    for a_ in range(2):
        if a_: k(f"s_add_u32 {s(sPS[u])}, {s(sPS[u])}, {80*3072}")
        for tt in range(3):
            k(f"buffer_store_dwordx4 {ar(24*u+12*a_+4*tt,4)}, {v(vPst)}, {ws}, {s(sPS[u])} offen offset:{1024*tt} sc1", tok="w1st")
k(rdy_ld(40))
stamp("pk1")
def w1sig():
    rdy_chk(40)
    k.wait_tok("w1st")
    for u in range(3): k(f"buffer_atomic_add {v(vOne)}, v39, {ws}, {s(sPF[u])} offen sc1")
    stamp("pkf")
if opt("sf", 1): w1sig()
k(f"s_mov_b32 {s(sT[9])}, {STP}")
if XBAR >= 0: k("s_barrier")
stamp("gx1")
grp = [(o, min(4, R3 - o)) for o in range(0, R3, 4)]
LD = [rec_loads(vRx+4*o, vRt+4*o, n_, sT[5], sT[9], o) for o, n_ in grp]
for L_ in LD[:2]: k(L_)
if not opt("sf", 1): w1sig()
for q, (o, n_) in enumerate(grp):
    if q + 2 < len(grp): k(LD[q+2])
    if not WIN and q == min(opt("wp", 1), len(grp)-1): k(w1poll)
    rec_work(LD[q], vRx+4*o, vRt+4*o, n_, vW, o)
    if q == 0: stamp("rx1")
stamp("tp1")
if not WIN: w1_ready()
conv_code(False)
k(hflag_ld(1)); k.wait_tok("h0")
k("s_branch Lconvd")
sConv3 = k.snap()

k.restore(sHelp)
k.raw(";WARM_OFF")
k.label("Lhelp")
if WARM:
    k(f"""s_cmp_eq_u32 {s(sWv)}, 3
    s_cbranch_scc1 Lwarm_reth
    s_mov_b64 exec, 0
    s_cmp_eq_u32 {s(sWv)}, 0
    s_cbranch_scc1 Lwarm0
    s_cmp_eq_u32 {s(sWv)}, 1
    s_cbranch_scc1 Lwarm1
    s_branch Lwarm2
    Lwarm_reth:""")
def w2_pack(su, off, sf):
    k(f"""s_lshr_b32 {s(sT[10])}, {s(su)}, 2
    s_and_b32 {s(sT[8])}, {s(su)}, 3
    s_mul_i32 {s(sf)}, {s(su)}, 2731
    s_lshr_b32 {s(sf)}, {s(sf)}, 16
    s_lshl_b32 {s(sf)}, {s(sf)}, {LS.bit_length()-1}
    s_add_u32 {s(sf)}, {s(sf)}, {FB + oW2}
    s_mul_i32 {s(sT[9])}, {s(sT[10])}, 5120
    s_lshl_b32 {s(sT[8])}, {s(sT[8])}, 8
    s_add_u32 {s(sT[9])}, {s(sT[9])}, {s(sT[8])}
    s_add_u32 {s(sT[9])}, {s(sT[9])}, {W2P}""")
    k.wait_tok("w2dma")
    stamp("hp0")
    for j in range(10):
        for hf in range(2):
            k(f"ds_read_b64_tr_b16 {v(vPd2+4*j+2*hf,2)}, {v(vPa2)} offset:{off + 5120*hf + 128*j}")
    for j in range(10):
        k(f"buffer_store_dwordx4 {v(vPd2+4*j,4)}, {v(vW2o+j)}, {ws}, {s(sT[9])} offen sc1", tok="w2st")
k(f"""s_sub_u32 {s(sHw)}, s2, {NCG}
s_add_u32 {s(sUb)}, {s(sHw)}, 168
s_cmp_eq_u32 {s(sWv)}, 0
s_cselect_b32 {s(sUb)}, {s(sUb)}, 192
s_lshl2_add_u32 {s(sHw)}, {s(sHw)}, {s(sWv)}
s_mul_i32 {s(sStg)}, {s(sWv)}, 20480
s_mov_b32 {s(sT[13])}, {OOB}
s_barrier""")
w2_dma(sHw, 0)
k(f"s_cmp_ge_u32 {s(sUb)}, 192\ns_cbranch_scc1 Lw2a")
st_ = k.snap()
w2_dma(sUb, 10240)
k.label("Lw2a"); k.merge(st_)
k(f"""v_bfe_u32 v5, {v(vLane)}, 2, 2
v_mul_u32_u24 {v(vPa2)}, 1280, v5
v_and_b32 v5, 3, {v(vLane)}
v_lshl_add_u32 {v(vPa2)}, v5, 3, {v(vPa2)}
v_lshl_add_u32 {v(vPa2)}, {v(vG)}, 5, {v(vPa2)}
v_add_u32 {v(vPa2)}, {s(sStg)}, {v(vPa2)}""")
assert all((p*13108) >> 16 == p // 5 for p in range(40))
for j in range(10):
    k(f"""v_add_u32 v5, {4*j}, {v(vG)}
    v_mul_u32_u24 v6, 13108, v5
    v_lshrrev_b32 v6, 16, v6
    v_mul_u32_u24 v6, {48*5120 - 5120}, v6
    v_lshl_add_u32 v6, v5, 10, v6
    v_lshl_add_u32 {v(vW2o+j)}, {v(vN)}, 4, v6""")
k(g1setup)
PE = opt("pe", 2)
def packB():
    k(f"s_cmp_ge_u32 {s(sUb)}, 192\ns_cbranch_scc1 Lw2one")
    s1 = k.snap()
    w2_pack(sUb, 10240, sT[13])
    k.label("Lw2one")
    k.merge(s1)
if PE >= 1: w2_pack(sHw, 0, sT[11])
if PE >= 2: packB()
k(f"s_cmp_lg_u32 {s(sWv)}, 3\ns_cbranch_scc1 Lhnp")
s1 = k.snap()
k(w1poll); w1_ready()
k.label("Lhnp"); k.merge(s1)
k("s_barrier")
HW = opt("hw", NW1C + NW1G)
for g_ in W1L[:HW]: k(g_)
if PE < 2: packB()
if PE < 1: w2_pack(sHw, 0, sT[11])
stamp("hp1")
for g_ in W1L[HW:NW1C+NW1G]: k(g_)
k(hflag_ld(0))
k(flag("w2st", sT[11]) + flag("w2st", sT[13]))
stamp("hp2")
hflag_chk(0)
for g_ in h_dma(0): k(g_)
stamp("cv1")
k(hflag_ld(1)); k.wait_tok("h0")

k.label("Lconvd")
k.raw(";WARM_HERE")
k.merge(sConvMain); k.merge(sConv3)
vRa, vPark = 8, 10
vWo, vAo1, vF2, vAo2, vF2a = 16, 158, 22, 159, 155
vScW = 28
vRes, vScR, vFAd, vPf, vRr, vRr4 = 32, 42, 43, 44, 46, 47
vSt = 48
vAc = 72
vFb = 120
vTm = 144
vCs = 180
sMk, sPark = 20, 19
MB = 3
setup2 = f"""
v_lshrrev_b32 v6, 1, {v(vLane)}
v_min_u32 v6, 1, v6
v_lshl_add_u32 v6, v6, 23, {v(vLane)}
s_lshl_b32 {s(sT[5])}, {s(sWv)}, 8
v_lshl_add_u32 {v(vF2a)}, v6, 7, {s(sT[5])}
s_lshl_b32 {s(sT[5])}, {s(sHb)}, 5
v_xor_b32 v7, {s(sT[5])}, v7
s_mul_i32 {s(sT[6])}, {s(sN2)}, 5120
s_add_u32 {s(sT[6])}, {s(sT[6])}, {SLOT[0]}
s_lshl_b32 {s(sT[5])}, {s(sWv)}, 10
s_add_u32 {s(sT[5])}, {s(sT[5])}, {s(sT[6])}
v_add_u32 {v(vRa)}, {s(sT[5])}, v7
s_add_u32 {s(sT[6])}, {s(sT[6])}, 4096
v_add_u32 {v(vRa+1)}, {s(sT[6])}, v7
s_lshl2_add_u32 {s(sFAc)}, {s(sMt)}, {s(sWv)}
s_lshl_b32 {s(sFAc)}, {s(sFAc)}, {LS.bit_length()-1}
s_add_u32 {s(sFAc)}, {s(sFAc)}, {FA}
v_lshlrev_b32 {v(vScW)}, 4, v0
v_add_u32 {v(vScW+1)}, 4096, {v(vScW)}
s_mov_b32 {s(sMk)}, 0x22222222
s_mov_b32 {s(sMk+1)}, 0x22222222
s_mov_b32 {s(sMk+2)}, 0x44444444
s_mov_b32 {s(sMk+3)}, 0x44444444
s_mov_b32 {s(sMk+4)}, 0x88888888
s_mov_b32 {s(sMk+5)}, 0x88888888
v_lshrrev_b32 v7, 2, {v(vN)}
v_lshl_add_u32 v6, v7, 4, {v(vN)}
v_lshrrev_b32 v7, 1, {v(vG)}
v_lshl_add_u32 v6, v6, 1, v7
v_lshlrev_b32 {v(vScR)}, 3, v6
s_mul_i32 {s(sPark)}, {s(sWv)}, {NPARK*1024}
s_add_u32 {s(sPark)}, {s(sPark)}, {PARK}
v_add_u32 {v(vPark)}, {s(sPark)}, {v(vL16)}
v_mul_u32_u24 v7, 49152, v7
v_lshl_add_u32 v7, {v(vN)}, 4, v7
v_and_b32 v6, 1, {v(vG)}
v_lshl_add_u32 {v(vAo1)}, v6, 8, v7
v_lshl_add_u32 {v(vAo2)}, v6, 30, v7
s_lshl2_add_u32 {s(sFa)}, {s(sNt)}, {s(sWv)}
s_mul_i32 {s(sAct)}, {s(sFa)}, 768
s_mul_i32 {s(sT[5])}, {s(sMt)}, {2*49152}
s_add_u32 {s(sAct)}, {s(sAct)}, {s(sT[5])}
s_add_u32 {s(sAct)}, {s(sAct)}, {ACT}
s_lshr_b32 {s(sFa)}, {s(sNt)}, 2
s_lshl2_add_u32 {s(sFa)}, {s(sMt)}, {s(sFa)}
s_lshl_b32 {s(sFa)}, {s(sFa)}, {LS.bit_length()-1}
s_add_u32 {s(sFa)}, {s(sFa)}, {FA}
s_lshl2_add_u32 {s(sW2)}, {s(sN2)}, {s(sWv)}
s_mul_i32 {s(sW2)}, {s(sW2)}, {12*5120}
s_add_u32 {s(sW2)}, {s(sW2)}, {W2P}
v_add_u32 {v(vWo+4)}, 4096, {v(vL16)}
"""
for lam in range(4):
    setup2 += f"""s_xor_b32 {s(sT[6])}, {s(sWv)}, {lam}
    s_lshl_b32 {s(sT[6])}, {s(sT[6])}, 10
    v_add_u32 {v(vWo+lam)}, {s(sT[6])}, {v(vL16)}
    """
PFL = 480 >> MB
setup2 += f"""
s_lshl1_add_u32 {s(sT[6])}, {s(sMt)}, {s(sHb)}
s_mul_i32 {s(sAin)}, {s(sT[6])}, 49152
s_mul_i32 {s(sT[7])}, {s(sWv)}, 12288
s_add_u32 {s(sAin)}, {s(sAin)}, {s(sT[7])}
s_add_u32 {s(sAin)}, {s(sAin)}, {ACT}
s_and_b32 {s(sOut)}, {s(sMt)}, 3
s_lshl1_add_u32 {s(sOut)}, {s(sOut)}, {s(sHb)}
s_lshl_b32 {s(sOut)}, {s(sOut)}, 5
s_and_b32 {s(sT[7])}, {s(sMt)}, 12
s_add_u32 {s(sOut)}, {s(sOut)}, {s(sT[7])}
s_mul_i32 {s(sOut)}, {s(sOut)}, 1280
s_mul_i32 {s(sT[7])}, {s(sN2)}, 160
s_add_u32 {s(sOut)}, {s(sOut)}, {s(sT[7])}
v_min_u32 {v(vF2)}, {PFL//2-1}, {v(vLane)}
s_and_b32 {s(sT[6])}, {s(sMt)}, {(1<<MB)-1}
s_mul_i32 {s(sT[6])}, {s(sT[6])}, {PFL*128}
s_add_u32 {s(sT[6])}, {s(sT[6])}, {s(sW2)}
v_lshl_add_u32 {v(vF2)}, {v(vF2)}, 7, {s(sT[6])}
"""
def g1_reads(st):
    c, kk = divmod(st, 20); b = vFb + 8*(st % 3)
    return [f"ds_read_b64_tr_b16 {v(b+4*a+2*hf,2)}, {v(vBa+4*a+(kk&3))} offset:{(kk >> 2)*2048 + 1024*hf + 40960*(c % 2)}" for a in range(2) for hf in range(2)]
def g1_mm(st):
    c, kk = divmod(st, 20)
    b = vFb + 8*(st % 3); A = vAc + 24*(c % 2); z = "0" if kk == 0 else None
    L = [mf16(v(A+12*a+4*t,4), ar(12*kk+4*t,4), v(b+4*a,4), z) for a, t in ([(a, t) for t in range(3) for a in range(2)] if opt("ab", 1) else [(a, t) for a in range(2) for t in range(3)])]
    if kk % 4 == 0:
        X = sum([[mf16(v(vSt+4*a,4), v(b+4*a,4), v(b+4*a,4), z), mf16(v(vSt+8+4*a,4), v(vOnes,4), v(b+4*a,4), z)] for a in range(2)], [])
        L = X + L if kk == 16 else L + X
    if c == 0: L += [mf16(v(vCs+4*t,4), ar(12*kk+4*t,4), v(vOnes,4), z) for t in range(3)]
    return L
def g1_statw(c):
    L = []
    for j in range(3):
        for a in range(2): L.append(f"v_cndmask_b32 {v(vSt+9+4*a)}, {v(vSt+4*a) if j == 0 else v(vSt+9+4*a)}, {v(vSt+4*a+1+j)}, {s(sMk+2*j,2)}")
    if opt("sw", 0): return L + [f"ds_write_b64 {v(vScW + c % 2)}, {v(vSt+8,2)}", f"ds_write_b64 {v(vScW + c % 2)}, {v(vSt+12,2)} offset:8"]
    return L + [f"ds_write2_b64 {v(vScW + c % 2)}, {v(vSt+8,2)}, {v(vSt+12,2)} offset0:0 offset1:1"]
S, Q, M, Z, S2 = vTm, vTm+1, vTm+8, vTm+10, vTm+12
def g1_statr(c):
    o = 8*(c % 2)
    return [f"ds_read2st64_b64 {v(vTm+4*w,4)}, {v(vScR)} offset0:{o+4*w} offset1:{o+4*w+2}" for w in range(2)]
def g1_epi(c, pk=False):
    A = vAc + 24*(c % 2)
    L = [f"v_add_f32 {v(S)}, {v(S)}, {v(S+2)}", f"v_add_f32 {v(Q)}, {v(Q)}, {v(Q+2)}", f"v_add_f32 {v(S+4)}, {v(S+4)}, {v(S+6)}", f"v_add_f32 {v(Q+4)}, {v(Q+4)}, {v(Q+6)}",
         f"v_add_f32 {v(S)}, {v(S)}, {v(S+4)}", f"v_add_f32 {v(Q)}, {v(Q)}, {v(Q+4)}",
         f"v_mul_f32 {v(S)}, {INV640}, {v(S)}", f"v_mul_f32 {v(Q)}, {INV640}, {v(Q)}",
         f"v_cvt_pk_bf16_f32 {v(M)}, 0, {v(S)}", f"v_cvt_pk_bf16_f32 {v(M+1)}, 0, {v(S)}",
         f"v_fma_f32 {v(Q)}, -{v(S)}, {v(S)}, {v(Q)}", f"v_max_f32 {v(Q)}, 0, {v(Q)}",
         f"v_permlane32_swap_b32 {v(M)}, {v(M+1)}",
         f"v_cvt_pk_bf16_f32 {v(Q)}, 0, {v(Q)}",
         f"v_add_f32 {v(Q)}, 0x3727c5ac, {v(Q)}", f"v_cvt_pk_bf16_f32 {v(Q)}, 0, {v(Q)}"]
    R = vTm + 16
    cen = [f"v_fma_f32 {v(A+12*a+j)}, -{v(vCs+j)}, {v(M+a)}, {v(A+12*a+j)}" for j in range(12) for a in range(2)]
    L += [f"v_sqrt_f32 {v(Q)}, {v(Q)}"] + cen[:2] + [f"v_cvt_pk_bf16_f32 {v(Q)}, 0, {v(Q)}"] + cen[2:3] + [f"v_rcp_f32 {v(Z)}, {v(Q)}", f"v_mul_f32 {v(S2)}, {v(Q)}, {v(Q)}"] + cen[3:4]
    L += [f"v_mul_f32 {v(Z)}, 0xbfb8aa3b, {v(Z)}"] + cen[4:]
    L += [f"v_permlane32_swap_b32 {v(A+j)}, {v(A+12+j)}" for j in range(12)]
    chains = []
    for j in range(6):
        g_, u_ = A+2*j, A+12+2*j
        z = vTm + 24 + 2*j
        if pk:
            ch = [f"v_pk_mul_f32 {v(z,2)}, {v(g_,2)}, {v(Z,2)} op_sel_hi:[1,0]",
                  f"v_exp_f32 {v(z)}, {v(z)}", f"v_exp_f32 {v(z+1)}, {v(z+1)}",
                  f"v_pk_mul_f32 {v(g_,2)}, {v(g_,2)}, {v(u_,2)}",
                  f"v_pk_fma_f32 {v(z,2)}, {v(z,2)}, {v(S2,2)}, {v(S2,2)} op_sel_hi:[1,0,0]",
                  f"v_rcp_f32 {v(z)}, {v(z)}", f"v_rcp_f32 {v(z+1)}, {v(z+1)}",
                  f"v_pk_mul_f32 {v(g_,2)}, {v(g_,2)}, {v(z,2)}"]
        else:
            ch = [f"v_mul_f32 {v(z)}, {v(g_)}, {v(Z)}", f"v_mul_f32 {v(z+1)}, {v(g_+1)}, {v(Z)}",
                  f"v_exp_f32 {v(z)}, {v(z)}", f"v_exp_f32 {v(z+1)}, {v(z+1)}", f"v_mul_f32 {v(g_)}, {v(g_)}, {v(u_)}", f"v_mul_f32 {v(g_+1)}, {v(g_+1)}, {v(u_+1)}",
                  f"v_fma_f32 {v(z)}, {v(z)}, {v(S2)}, {v(S2)}", f"v_fma_f32 {v(z+1)}, {v(z+1)}, {v(S2)}, {v(S2)}",
                  f"v_rcp_f32 {v(z)}, {v(z)}", f"v_rcp_f32 {v(z+1)}, {v(z+1)}",
                  f"v_mul_f32 {v(g_)}, {v(g_)}, {v(z)}", f"v_mul_f32 {v(g_+1)}, {v(g_+1)}, {v(z+1)}"]
        chains.append(ch + [f"v_cvt_pk_bf16_f32 {v(R+j)}, {v(g_)}, {v(g_+1)}"])
    sw = [f"v_permlane16_swap_b32 {v(R+4)}, {v(R+6)}", f"v_permlane16_swap_b32 {v(R+5)}, {v(R+7)}"]
    sw += [f"s_add_u32 {s(sT[5])}, {s(sAct)}, {32*49152*c}", (f"buffer_store_dwordx4 {v(R+4,4)}, {v(vAo2)}, {ws}, {s(sT[5])} offen offset:512 sc1", f"a{c}")]
    if pk:
        z01 = zipper(chains[0], chains[1])
        L += zipper(chains[4], chains[5]) + z01[:2] + sw + z01[2:] + zipper(chains[2], chains[3])
    else: L += chains[4] + chains[5] + chains[0][:2] + sw + chains[0][2:] + chains[1] + chains[2] + chains[3]
    L += [(f"buffer_store_dwordx4 {v(R,4)}, {v(vAo1)}, {ws}, {s(sT[5])} offen sc1", f"a{c}")]
    return L
w2fl = apoll(vFAd, vF2a, oW2)
def w2_ready(): check(w2fl, [vFAd], 5, 2, 24)
def w2pf(j): return [f"buffer_load_dword {v(vPf+j)}, {v(vF2)}, {ws}, 0 offen offset:{PFL*64*j} sc1"]
NPRE = 20
NLATE = 60 - NPRE - NPARK
NA0 = opt("na0", 12)
def w2reg(j):
    if j < 16: return v(192 + 4*j, 4)
    if j < NPRE: return ar(240 + 4*(j-16), 4)
    if j < NPRE + NPARK: return ar(4*(NLATE + 12) + 4*(j - NPRE), 4)
    q = j - NPRE - NPARK
    return ar(4*q if q < NA0 else 4*q + 48, 4)
def w2seq(js):
    out = []; cur = None
    for j in js:
        ks, lam = divmod(j, 5)
        x = [] if ks == cur else [f"s_add_u32 {s(sT[8])}, {s(sW2)}, {5120*ks}"]
        cur = ks
        if NPRE <= j < NPRE + NPARK:
            out.append(x + [f"s_add_u32 m0, {s(sPark)}, {1024*(j - NPRE)}", (f"buffer_load_dwordx4 {v(vWo+lam)}, {ws}, {s(sT[8])} offen sc1 lds", "park")])
        else: out.append(x + [f"buffer_load_dwordx4 {w2reg(j)}, {v(vWo+lam)}, {ws}, {s(sT[8])} offen sc1"])
    return out
unpark = [f"ds_read_b128 {w2reg(NPRE+j)}, {v(vPark)} offset:{1024*j}" for j in range(NPARK)]
def aflag_ld(i): return apoll(vFAd, vFl0, 4*i, sFAc)
def aflag_chk(i): check(aflag_ld(i), [vFAd], 5, 1, 16)
def abuf(i, ks): return ar(4*NA0 + 4*ks, 4) if i % 3 == 0 else v(144 + 4*ks, 4) if i == 2 else v((72 if ks < 6 else 96) + 4*ks, 4)
def act_loads(i):
    L = []
    for ks in range(12):
        x = [f"s_add_u32 {s(sT[4])}, {s(sAin)}, {32*49152*i + 1024*ks}"] if ks % 4 == 0 else []
        L.append(x + [f"buffer_load_dwordx4 {abuf(i, ks)}, {v(vL16)}, {ws}, {s(sT[4])} offen offset:{1024*(ks%4)} sc1"])
    return L
late = w2seq(range(NPRE+NPARK, 60))
C3L = late[:NA0] + act_loads(0) + late[NA0:]
C3L[NA0] = [lambda: aflag_chk(0)] + C3L[NA0]
def res_reads(c):
    def f():
        k(f"ds_read_b64_tr_b16 {v(vRes+2*c,2)}, {v(vRa)} offset:{40960*(c % 2)}")
        Ls = k.lab("Lr4")
        k(f"s_cmp_lg_u32 {s(sWv)}, {c}\ns_cbranch_scc1 {Ls}")
        s1 = k.snap()
        k(f"ds_read_b64_tr_b16 {v(vRes+8,2)}, {v(vRa+1)} offset:{40960*(c % 2)}")
        k.label(Ls); k.merge(s1)
    return f
mm = []; cum = []
for st in range(80): cum.append(len(mm)); mm += g1_mm(st)
cum.append(len(mm))
G = lambda c, kk, d=0: cum[20*c + kk] + d
rd = [(-1, -1, -1, x) for x in g1_reads(0) + g1_reads(1)]
urgent = []; normal = []; checks = []
BG = opt('bg', 1)
def boundary(c):
    def f(U, N):
        stamp(f"b{c}a"); k(list(U)); U.clear(); stamp(f"b{c}b")
        if c < 3: k.wait_tok(f"h{c+1}")
        stamp(f"b{c}c")
        bar(); stamp(f"c{c+1}")
    return f
def flush(nm):
    def f(U, N):
        print(nm, "leftover", len(U), len(N)); stamp("f" + nm[-1] + "a"); k((U + N)[:-1]); stamp("f" + nm[-1] + "b"); k((U + N)[-1:]); stamp("f" + nm[-1] + "c"); U.clear(); N.clear()
    return f
for st in range(2, 80):
    c, kk = divmod(st, 20)
    if kk == 0: rd += spread(g1_reads(st), G(c-1, 18, BG), G(c-1, 19), G(c-1, 19))
    else: rd += spread(g1_reads(st), cum[st-2], cum[st-1], cum[st-1] - 1 if kk == 19 else cum[st-1] + 1)
for c in range(4):
    urgent.append((G(c, 6), [res_reads(c)]))
    urgent.append((G(c, 16, 7), g1_statw(c)))
    checks.append((G(c, 18, BG), boundary(c)))
    normal.append((G(c+1, 0, 1), g1_epi(c)))
    if c > 0: checks.append((G(c, 19, 1), flush(f"chunk {c}")))
    urgent.append((G(c, 19, 2), g1_statr(c)))
    if c >= 2: urgent.append((G(c, opt("fk", 6)), flag(f"a{c-2}", sFa, 4*(c-2), False)))
normal.append((0, lines(setup2)))
def noleft(U, N): assert not N
def pace(items, ga, gb):
    for j, g_ in enumerate(items): urgent.append((ga + (gb - ga)*j//len(items), g_))
rest = W1L[NW1C+NW1G:]
n0, n1_, p1 = opt("n0", 6), opt("n1", 13), opt("p1", 9)
hd = h_dma(1); hd[0] = [lambda: hflag_chk(1)] + hd[0]
w20 = w2seq(range(n0)); w20[0] = [w2_ready] + w2pf(0) + w20[0]
c0l = rest[:opt("r0", 12)] + hd + rest[opt("r0", 12):]
g_a = G(0, 19)*len(c0l)//(len(c0l) + n0)
pace(c0l, 1, g_a); pace(w20, g_a, G(0, 19))
checks.append((g_a, noleft))
urgent += [(g_a - opt('w2q', 50), w2fl), (G(0, opt("hp2", 11)), hflag_ld(2))]
hd = h_dma(2); hd[0] = [lambda: hflag_chk(2)] + hd[0]
pace(hd + [w2pf(1)] + w2seq(list(range(NPRE, NPRE+p1)) + list(range(n0, n1_))), G(0, 19), G(1, 19))
pace(h_dma(3) + w2seq(list(range(NPRE+p1, NPRE+NPARK)) + list(range(n1_, NPRE))), G(1, 19), G(2, 19))
urgent.append((G(2, 19), aflag_ld(0)))
urgent.append((G(3, 14), aflag_ld(1)))
NW2C3 = min(NW2C3, len(C3L))
for j in range(NW2C3): urgent.append((max(G(3, j//3 + 1), G(3, 1) + (G(3, 19, 4) - G(3, 1))*j//NW2C3), C3L[j]))
for st in range(80): checks.append((cum[st], (lambda nm: lambda U, N: stamp(nm))(f'g{st}')))
assert NW2C3 == len(C3L)
vRw, vOo = [12, 13, 14, 15, 47], 16
vA2 = [48, 96]
assert all((p*6554) >> 16 == p // 10 for p in range(256))
g2b = ""
for lam in range(4):
    g2b += f"""s_xor_b32 {s(sT[7])}, {s(sWv)}, {lam}
    s_lshl_b32 {s(sT[7])}, {s(sT[7])}, 6
    s_sub_u32 {s(sT[7])}, {s(sT[7])}, 256
    v_add_u32 {v(vRw[lam])}, {s(sT[7])}, {v(vRw[4])}
    """
g2b += f"v_mov_b32 {v(vOo)}, v157"
normal.append((1, lines(f"""s_mul_i32 {s(sT[6])}, {s(sWv)}, {RW}
s_add_u32 {s(sT[6])}, {s(sT[6])}, {RED + 256}
v_mul_u32_u24 v6, 336, {v(vN)}
v_lshl_add_u32 v6, {v(vG)}, 4, v6
v_add_u32 {v(vRw[4])}, {s(sT[6])}, v6
v_min_u32 v7, 159, v0
v_mul_u32_u24 v6, 6554, v7
v_lshrrev_b32 v6, 16, v6
v_lshlrev_b32 {v(vRr)}, 5, v7
v_lshl_add_u32 {v(vRr)}, v6, 4, {v(vRr)}
v_add_u32 {v(vRr)}, {RED}, {v(vRr)}
v_mul_u32_u24 v157, 10, v6
v_sub_u32 v157, v7, v157
v_sub_u32 v7, v0, v7
v_min_u32 v7, 1, v7
v_lshlrev_b32 v157, 4, v157
v_lshl_add_u32 v157, v7, 30, v157
v_and_b32 v7, 3, v6
v_mul_u32_u24 v7, 1280, v7
v_add_u32 v157, v157, v7
v_bfe_u32 v7, v6, 2, 1
v_mul_u32_u24 v7, {256*1280}, v7
v_add_u32 v157, v157, v7
v_lshrrev_b32 v7, 3, v6
v_mul_u32_u24 v7, {16*1280}, v7
v_add_u32 v157, v157, v7""")))
def g2_init(i):
    A = vA2[i % 2]; r = vRes + 2*i
    def sel(): k(f"s_cmp_eq_u32 {s(sWv)}, {i}\ns_cselect_b32 {s(sT[9])}, 0x01000c0c, {s(sT[12])}\ns_cselect_b32 {s(sT[10])}, 0xffff0000, 0")
    return [f"s_mov_b32 {s(sT[12])}, 0x0c0c0c0c", sel,
            f"v_lshlrev_b32 {v(A)}, 16, {v(r)}", f"v_and_b32 {v(A+1)}, 0xffff0000, {v(r)}", f"v_lshlrev_b32 {v(A+2)}, 16, {v(r+1)}", f"v_and_b32 {v(A+3)}, 0xffff0000, {v(r+1)}",
            f"v_perm_b32 {v(A+16)}, {v(vRes+8)}, {v(vRes+8)}, {s(sT[9])}", f"v_and_b32 {v(A+17)}, {s(sT[10])}, {v(vRes+8)}",
            f"v_perm_b32 {v(A+18)}, {v(vRes+9)}, {v(vRes+9)}, {s(sT[9])}", f"v_and_b32 {v(A+19)}, {s(sT[10])}, {v(vRes+9)}"]
def g2_write(i, lam): return f"ds_write_b128 {v(vRw[lam])}, {v(vA2[i % 2]+4*lam,4)} offset:{4*RW*(i % 2)}"
OF = {0: "", 1: " sc1", 2: " nt", 3: " sc0 sc1"}[opt("of", 2)]
def g2_tmp(i):
    A = vA2[i % 2]; return [[A, A+4], [A+8, A+12], [A+16, 116], [20, 68]]
def g2_rd(i): return [f"ds_read_b128 {v(g2_tmp(i)[w][h_],4)}, {v(vRr)} offset:{4*RW*(i % 2) + RW*w + 16*h_}" for w in range(4) for h_ in range(2)]
def fin(i, pk=False):
    P = g2_tmp(i); L = []
    for d, x in ((0, 1), (2, 3), (0, 2)):
        for h_ in range(2):
            if pk: L += [f"v_pk_add_f32 {v(P[d][h_]+2*j,2)}, {v(P[d][h_]+2*j,2)}, {v(P[x][h_]+2*j,2)}" for j in range(2)]
            else: L += [f"v_add_f32 {v(P[d][h_]+j)}, {v(P[d][h_]+j)}, {v(P[x][h_]+j)}" for j in range(4)]
    L += [f"v_cvt_pk_bf16_f32 {v(68+j)}, {v(P[0][0]+2*j)}, {v(P[0][0]+2*j+1)}" for j in range(4)]
    return L + [f"buffer_store_dwordx4 {v(68,4)}, {v(vOo)}, {s(OUTR,4)}, {s(sOut)} offen{OF}"]
T0 = len(mm); AP = opt("ap", 4); KL = opt("kl", 6)
urgent.append((G(3, 19, 3), g2_init(0)))
checks.append((T0 - 1, flush("pre tile 0")))
for i in range(4):
    A = vA2[i % 2]; b_ = T0 + 60*i
    CH = opt("ch2", 3)
    order = [(ks, lam) for k0 in range(0, 12, CH) for lam in (1, 2, 3, 0, 4) for ks in range(k0, k0+CH)]
    if i == 3: order = order[:60-5*KL] + [(ks, lam) for lam in (4, 1, 2, 3, 0) for ks in range(12-KL, 12)]
    mm += [mf16(v(A+4*lam,4), w2reg(5*ks+lam), abuf(i, ks), "0" if (ks == 0 and lam in (1, 2, 3)) else None) for ks, lam in order]
    checks.append((b_, (lambda nm: lambda U, N: stamp(nm))(f"t{i}")))
    if i < 3:
        g0 = b_ + opt(f"ac{i+1}", [0, 10, 18][i])
        if i: urgent.append((g0 - opt(f"pa{i+1}", [0, 28, 34][i]), aflag_ld(i+1)))
        urgent.append((g0, [(lambda j: lambda: aflag_chk(j))(i+1)]))
        urgent += [(g0 + (AP if i < 2 else opt('ap3', 3))*j, g_) for j, g_ in enumerate(act_loads(i+1))]
    if i:
        urgent += [(b_ + 2 + 3*j, [g2_write(i-1, lam)]) for j, lam in enumerate((1, 2, 3, 0, 4))] + [(b_ + opt("gb", 20), [bar] + g2_rd(i-1))]
        normal.append((b_ + opt("gb", 20) + 8, fin(i-1) + [f"s_add_u32 {s(sOut)}, {s(sOut)}, {512*1280}"] + (g2_init(i+1) if i < 3 else [])))
    checks.append((b_ + (59 if i < 3 else 59 - KL), flush(f"tile {i}")))
normal.append((T0 + 2, [stampc("g1e")] + lines(g2b) + g2_init(1)))
rd += [(T0-1, T0 + j*9//NPARK, T0 + 4 + j//2, x) for j, x in enumerate(unpark)]
checks.append((T0 - 1, lambda U, N: k.wait_tok("park")))
urgent += [(T0 + opt("f2", 22), flag("a2", sFa, 8, False)), (T0 + opt("f3", 74), flag("a3", sFa, 12, False) + [stampc("afl")])]
f1, f2 = hflag("hB", 2)
urgent += [(opt("fB", 20), f1), (opt("fB", 20) + 6, f2)]
e3 = T0 + 240
urgent += [(e3 - 4*KL + 2 + KL*j, [g2_write(3, lam)]) for j, lam in enumerate((4, 1, 2, 3))]
for j in range(0, 240, 10): checks.append((T0 + j, (lambda nm: lambda U, N: stamp(nm))(f'm{j}')))
urgent.sort(key=lambda e: e[0])
bar()
stamp("c0")
sched(k, mm, rd, urgent, normal, checks, slotf=lambda i: opt("s0", 4) if T0 <= i < T0 + 60 else 2)
stamp("t4")
k(g2_write(3, 0))
bar()
k(g2_rd(3))
k(fin(3, True))
stamp("g2e")
k(f"""s_or_b32 {s(sT[4])}, s2, {s(sWv)}
s_cmp_lg_u32 {s(sT[4])}, 0
s_cselect_b32 {s(sT[4])}, {OOB}, 0
buffer_store_dword {v(vTagv)}, {v(vFl0)}, {ws}, {s(sT[4])} offen""")
if STAMP:
    k("s_waitcnt vmcnt(0)")
    stamp("end")
    k(f"""s_lshl2_add_u32 {s(sT[4])}, s2, {s(sWv)}
    s_lshl_b32 {s(sT[4])}, {s(sT[4])}, 7
    s_add_u32 {s(sT[4])}, {s(sT[4])}, {STB}""")
    for i in range(len(SEL)):
        k(f"v_mov_b32 v5, {s(sStamp+2*i)}\nbuffer_store_dword v5, {v(vFl0)}, {ws}, {s(sT[4])} offen offset:{4*i}")
k("s_endpgm")
k.raw(";WARM_END")
k.out += SLOW
k.out += TABTXT
k.raw("Lcode_end:")
hdr = "".join(l for l in open("cdna_kernels/" + NAME + ".s.ref").readlines()[:18] if l.startswith(";") and "@launch" not in l)
if STAMP: hdr += "; stamps: " + ",".join(SEL) + "\n"
def add_warm():
    import subprocess, re, tempfile, os
    d = tempfile.mkdtemp()
    open(d + "/t.s", "w").write(k.text(hdr, 256, 256, LDS_BYTES).replace(";WARM_HERE", "Lwarm0:\nLwarm1:\nLwarm2:"))
    subprocess.run(["clang", "-x", "assembler", "-target", "amdgcn-amd-amdhsa", "-mcpu=gfx950", "-c", d + "/t.s", "-o", d + "/t.o"], check=True)
    dis = subprocess.run(["llvm-objdump", "-d", "--mcpu=gfx950", d + "/t.o"], capture_output=True, text=True).stdout
    dis = dis[dis.index("_kernel>:"):]
    sizes = [4*len(m.group(1).split()) for m in re.finditer(r"// [0-9A-F]+: ([0-9A-F ]+?)(?: <.*)?$", dis, re.M)]
    out = []; pos = 0; n = 0; on = False; want = False; links = 0; started = False; STEP = opt("wstep", 4096)
    for l in k.out:
        if l.endswith("_kernel:"): started = True
        if l == ";WARM_BEGIN": on = True; continue
        if l in (";WARM_OFF", ";WARM_END"): on = False; want = False; continue
        if l == ";WARM_HERE":
            on = True; out.append(f"Lwarm{links}:\n    s_cbranch_execz Lwarm{links+3}"); links += 1; pos += 4; want = False; continue
        out.append(l)
        if not (started and l.startswith("    ")): continue
        p0 = pos; pos += sizes[n]; n += 1
        if on and pos // STEP != p0 // STEP: want = True
        if want and (l.startswith("    v_mfma") or pos % STEP >= 40) and "exec" not in l:
            out.append(f"Lwarm{links}:\n    s_cbranch_execz Lwarm{links+3}"); links += 1; pos += 4; want = False
    k.out = [re.sub(r"execz Lwarm(\d+)$", lambda m: m.group(0) if int(m.group(1)) < links else "execz Lwarm_ret", x) for x in out]
    print("warm links", links, "code bytes", pos)
if WARM: add_warm()
open(OUT, "w").write(k.text(hdr, 256, 256, LDS_BYTES))
print("instructions", k.nins, "nops", k.nnop)
```

```python
import re, copy
NAME = "sequential_preLN__ssm_conv_s4__swiglu_ffn__prompt"

_REG = re.compile(r"^[-|]*\s*(?:abs\()?([vas])(?:(\d+)|\[(\d+):(\d+)\])\)?\|?$")
TRANS = ("v_exp_f32", "v_log_f32", "v_rcp_f32", "v_rsq_f32", "v_sqrt_f32", "v_sin_f32", "v_cos_f32", "v_rcp_iflag_f32")

def regs_of(op):
    op = op.strip()
    if op in ("vcc", "vcc_lo", "vcc_hi"): return {"vcc"}
    if op in ("exec", "exec_lo", "exec_hi"): return {"exec"}
    if op == "m0": return {"m0"}
    m = _REG.match(op)
    if not m: return set()
    k = m.group(1)
    if m.group(2) is not None: return {f"{k}{m.group(2)}"}
    return {f"{k}{i}" for i in range(int(m.group(3)), int(m.group(4)) + 1)}

class Ins:
    __slots__ = ("text", "mn", "ops", "mods", "dst", "src", "cls", "passes", "srcc", "srcab", "tok")
    def __init__(self, text, tok=None):
        self.text = text; self.tok = tok
        body = text.split(";")[0].strip()
        parts = body.split(None, 1)
        mn = self.mn = parts[0]
        rest = parts[1] if len(parts) > 1 else ""
        ops, depth, cur = [], 0, ""
        for ch in rest:
            if ch in "[(": depth += 1
            if ch in "])": depth -= 1
            if ch == "," and depth == 0: ops.append(cur.strip()); cur = ""
            else: cur += ch
        if cur.strip(): ops.append(cur.strip())
        mods = ""
        if ops:
            last = ops[-1].split(None, 1)
            ops[-1] = last[0]
            mods = last[1] if len(last) > 1 else ""
        self.ops, self.mods = ops, mods
        R = [regs_of(o) for o in ops]
        allr = set().union(*R) if R else set()
        tail = set().union(*R[1:]) if len(R) > 1 else set()
        self.passes = 0; self.srcc = set(); self.srcab = set()
        if mn.startswith("v_mfma") or mn.startswith("v_smfmac"):
            self.cls = "mfma"; self.dst = R[0]; self.src = tail
            self.srcab = R[1] | R[2]; self.srcc = R[3] if len(R) > 3 else set()
            self.passes = 8 if "32x32" in mn else 4
        elif mn.startswith("v_"):
            self.cls = "valu"
            if "permlane" in mn and "swap" in mn: self.dst = allr; self.src = allr
            elif mn.startswith(("v_add_co", "v_sub_co", "v_addc_co", "v_subb_co", "v_subrev_co", "v_mad_u64_u32", "v_div_scale")):
                self.dst = R[0] | R[1]; self.src = set().union(*R[2:])
            elif mn.startswith(("v_fmac", "v_dot2c", "v_pk_fmac", "v_writelane")) or "dpp" in mn or "row_" in mods or "quad_perm" in mods or "UNUSED_PRESERVE" in mods:
                self.dst = R[0]; self.src = allr
            elif mn == "v_nop": self.dst = set(); self.src = set()
            else: self.dst = R[0]; self.src = tail
        elif mn.startswith("ds_"):
            self.cls = "ds"
            if mn.startswith(("ds_read", "ds_bpermute", "ds_permute", "ds_swizzle")) or "_rtn" in mn:
                self.dst = R[0]; self.src = tail
                if "d16" in mn: self.src = allr
            else: self.dst = set(); self.src = allr
            if "addtid" in mn: self.src = self.src | {"m0"}
        elif mn.startswith(("buffer_", "global_")):
            self.cls = "vmem"
            islds = mn.startswith("global_load_lds") or re.search(r"\blds\b", mods) is not None
            if islds: self.dst = set(); self.src = allr | {"m0"}
            elif "_load" in mn:
                self.dst = R[0]; self.src = allr if "d16" in mn else tail
            elif "atomic" in mn and "sc0" in mods: self.dst = R[0]; self.src = allr
            else: self.dst = set(); self.src = allr
        elif mn.startswith(("s_load", "s_buffer_load", "s_memtime", "s_memrealtime")):
            self.cls = "smem"; self.dst = R[0]; self.src = tail
        elif mn.startswith("s_"):
            self.cls = "salu"
            if mn.startswith(("s_cmp", "s_bitcmp", "s_waitcnt", "s_barrier", "s_branch", "s_cbranch", "s_nop", "s_setprio", "s_sleep", "s_endpgm", "s_setpc", "s_setreg")):
                self.dst = set(); self.src = allr
                if "vcc" in mn: self.src = {"vcc"}
            elif "saveexec" in mn: self.dst = R[0] | {"exec"}; self.src = tail | {"exec"}
            elif mn.startswith(("s_addk", "s_mulk", "s_cmov")): self.dst = R[0]; self.src = allr
            else: self.dst = R[0]; self.src = tail
        else:
            raise ValueError("unknown instruction: " + text)

class State:
    def __init__(self):
        self.vm = []
        self.lg = []
        self.sm = set()
        self.hist = []

class K:
    def __init__(self):
        self.out = []; self.st = State(); self.uid = 0; self.kernels = []; self.launches = []
        self.nins = 0; self.nnop = 0; self.marks = []; self.tokn = {}
    def raw(self, s): self.out.append(s)
    def lab(self, base="L"):
        self.uid += 1; return f"{base}{self.uid}"
    def label(self, name): self.out.append(name + ":")
    def _age(self, n):
        h = [(i, a + n) for i, a in self.st.hist if a + n < 24]
        self.st.hist = h
    def _put(self, text, ins=None, states=1):
        self.out.append("    " + text); self.nins += 1
        self._age(states)
        if ins is not None: self.st.hist.append((ins, 0))
    def _need(self, q, regs, cap):
        idx = -1
        for i, e in enumerate(q):
            if e & regs: idx = i
        if idx < 0: return None
        return min(len(q) - 1 - idx, cap)
    def _wait(self, vm=None, lg=None):
        st = self.st; parts = []
        if vm is not None:
            parts.append(f"vmcnt({vm})"); st.vm = st.vm[len(st.vm) - vm:] if vm else []
        if lg is not None:
            parts.append(f"lgkmcnt({lg})"); st.lg = st.lg[len(st.lg) - lg:] if lg else []
            if lg == 0: st.sm = set()
        if parts: self._put("s_waitcnt " + " ".join(parts))
    def wait_tok(self, *toks, n=1):
        for x in toks: assert self.tokn.get(x, 0) >= n, (x, self.tokn.get(x, 0), n)
        t = {"#" + x for x in toks}
        vm = self._need(self.st.vm, t, 63); lg = self._need(self.st.lg, t, 15)
        self._wait(vm, lg)
    def wait_all(self, vm=True, lg=True):
        self._wait(0 if vm else None, 0 if lg else None)
    def _hazard(self, c):
        need = 0
        touch = c.src | c.dst
        for p, age in self.st.hist:
            w = 0
            if p.cls == "valu":
                vd = {r for r in p.dst if r[0] in "va" and r != "vcc"}
                sd = p.dst - vd
                if vd & c.src:
                    if c.cls == "mfma": w = 2
                    elif c.cls == "valu":
                        if "permlane" in c.mn or "dpp" in c.mn or "row_" in c.mods or "quad_perm" in c.mods: w = 2
                        elif c.mn.startswith(("v_readlane", "v_readfirstlane")): w = 1
                        if p.mn.startswith(TRANS): w = max(w, 1)
                        if p.mn.startswith("v_dot2") and p.mn != c.mn: w = max(w, 3)
                        if "sdwa" in p.mn and "dst_sel:DWORD" not in p.mods: w = max(w, 1)
                if c.cls == "mfma" and p.mn.startswith(("v_pk_", "v_dot", "v_mov_b64")): w = max(w, 2)
                if sd & c.src:
                    if c.cls == "vmem": w = max(w, 5)
                    elif c.cls == "valu": w = max(w, 4 if "lane" in c.mn else 2)
                    elif c.cls == "salu" and "cbranch" not in c.mn: w = max(w, 1)
            elif p.cls == "mfma":
                big = p.passes == 8
                if c.cls == "mfma":
                    if p.dst & c.srcab: w = 12 if big else 8
                    if p.dst & c.srcc and not (p.dst == c.srcc and p.passes == c.passes): w = max(w, 10 if big else 6)
                    if p.dst & c.dst and not (p.dst == c.dst and p.passes == c.passes): w = max(w, 10 if big else 6)
                elif p.dst & touch: w = 12 if big else 8
                if c.cls == "valu" and p.srcc & c.dst: w = max(w, 7 if big else 3)
            elif p.cls == "salu":
                if "m0" in p.dst and "m0" in c.src and c.cls in ("ds", "vmem"): w = 1
            elif p.cls == "vmem":
                if ("store" in p.mn) and ("x3" in p.mn or "x4" in p.mn) and c.cls != "salu":
                    data = regs_of(p.ops[0]) if p.mn.startswith("buffer") else regs_of(p.ops[1])
                    if data & c.dst: w = 2
            need = max(need, w - age)
        return need
    def ins(self, text, tok=None):
        c = Ins(text, tok); st = self.st
        if c.mn == "s_waitcnt":
            vm = re.search(r"vmcnt\((\d+)\)", text); lg = re.search(r"lgkmcnt\((\d+)\)", text)
            vm = int(vm.group(1)) if vm else None; lg = int(lg.group(1)) if lg else None
            if vm is not None and vm > len(st.vm): st.vm = [set()] * (vm - len(st.vm)) + st.vm
            if lg is not None and lg > len(st.lg): st.lg = [set()] * (lg - len(st.lg)) + st.lg
            self._wait(vm, lg); return
        touch = c.src | c.dst
        vm = self._need(st.vm, touch, 63); lg = self._need(st.lg, touch, 15)
        if st.sm & touch: lg = 0
        self._wait(vm, lg)
        n = self._hazard(c)
        while n > 0:
            k = min(n, 16); self._put(f"s_nop {k-1}", None, k); self.nnop += 1; n -= k
        states = int(c.ops[0]) + 1 if c.mn == "s_nop" else 1
        self._put(text, c, states)
        if tok: self.tokn[tok] = self.tokn.get(tok, 0) + 1
        e = set(c.dst) | ({"#" + tok} if tok else set())
        if c.cls == "vmem": st.vm.append(e)
        elif c.cls == "ds": st.lg.append(e)
        elif c.cls == "smem": st.sm |= (c.dst or {"?"})
    def __call__(self, s, tok=None):
        if isinstance(s, (list, tuple)):
            for x in s:
                if callable(x): x()
                elif isinstance(x, tuple): self(x[0], x[1])
                else: self(x)
            return
        for l in s.split("\n"):
            l = l.strip()
            if not l or l.startswith(";"): continue
            if l.endswith(":"): self.label(l[:-1])
            elif l.startswith("."): self.raw(l)
            else: self.ins(l, tok)
    def snap(self): return copy.deepcopy(self.st)
    def restore(self, s): self.st = copy.deepcopy(s)
    def merge(self, other):
        def mq(a, b):
            n = max(len(a), len(b)); pos = {}
            for q in (a, b):
                for i, e in enumerate(q):
                    k = len(q) - 1 - i
                    for r in e: pos[r] = min(pos.get(r, 1 << 30), k)
            out = [set() for _ in range(n)]
            for r, k in pos.items(): out[n - 1 - k].add(r)
            return out
        st = self.st
        st.vm = mq(st.vm, other.vm); st.lg = mq(st.lg, other.lg); st.sm |= other.sm
        st.hist = st.hist + other.hist
    def begin(self, name):
        self.out.append(f".globl {name}\n.p2align 8\n.type {name},@function\n{name}:"); self.st = State()
    def text(self, header, grid, block, lds, vgpr=512, accum=256, sgpr=102):
        n = NAME + "_kernel"
        o = [header.rstrip("\n"), f"; @launch grid=({grid},1,1) block=({block},1,1) lds={lds}",
             '.amdgcn_target "amdgcn-amd-amdhsa--gfx950"', ".text"] + self.out
        o.append(f""".section .rodata,"a"
.p2align 6
.amdhsa_kernel {n}
  .amdhsa_next_free_vgpr {vgpr}
  .amdhsa_next_free_sgpr {sgpr}
  .amdhsa_accum_offset {accum}
  .amdhsa_group_segment_fixed_size 0
  .amdhsa_kernarg_size 128
  .amdhsa_user_sgpr_count 2
  .amdhsa_user_sgpr_kernarg_segment_ptr 1
  .amdhsa_system_sgpr_workgroup_id_x 1
.end_amdhsa_kernel""")
        return "\n".join(o) + "\n"

def weave(main, fill, per=2, start=0):
    out = []; fill = list(fill)
    def cost(x):
        t = x[0] if isinstance(x, tuple) else x
        if callable(t): return 0
        return 2 if t.split()[0].startswith(TRANS) else 1
    for i, m in enumerate(main):
        out.append(m)
        if i < start: continue
        b = per
        while fill and cost(fill[0]) <= b:
            b -= cost(fill[0]); out.append(fill.pop(0))
    return out, fill
def v(a, n=1): return f"v{a}" if n == 1 else f"v[{a}:{a+n-1}]"
def ar(a, n=1): return f"a{a}" if n == 1 else f"a[{a}:{a+n-1}]"
def s(a, n=1): return f"s{a}" if n == 1 else f"s[{a}:{a+n-1}]"

def _txt(x): return x[0] if isinstance(x, tuple) else x
def _kind(x):
    t = _txt(x)
    if callable(t): return "call"
    m = t.split()[0]
    if m.startswith(("ds_", "buffer_", "global_")): return "mem"
    if m.startswith("s_"): return "salu"
    if m.startswith(TRANS): return "trans"
    return "valu"
def prewait(k, text):
    c = Ins(text); st = k.st; touch = c.src | c.dst
    vm = k._need(st.vm, touch, 63); lg = k._need(st.lg, touch, 15)
    n0 = k.nins; k._wait(vm, lg); return k.nins != n0
def weave2(k, mm, rd, fill, nxt=None, slots=2, start=0, minfill=0):
    rd = list(rd); n = len(mm)
    for i, m in enumerate(mm):
        k(m)
        nx = mm[i+1] if i+1 < n else nxt
        free_s = not (nx is not None and prewait(k, nx))
        b = slots; had_valu = False
        if i >= start:
            while fill and (_kind(fill[0]) == "call" or (_kind(fill[0]) == "salu" and free_s)):
                if _kind(fill[0]) == "salu": free_s = False
                n0 = k.nins; k([fill.pop(0)])
                if k.nins != n0: free_s = False
        q = -(-len(rd) // (n - i))
        for _ in range(q): k([rd.pop(0)]); b -= 1
        if i < start: continue
        b = max(b, minfill)
        while fill and b > 0:
            kd = _kind(fill[0])
            if kd == "call": break
            if kd == "mem" and had_valu: break
            c = 2 if kd == "trans" else 1
            if c > b: break
            if kd in ("valu", "trans"): had_valu = True
            k([fill.pop(0)]); b -= c
    assert not rd

def sched(k, mm, rd=(), urgent=(), normal=(), checks=(), slots=2, tail=True, slotf=None):
    rd = list(rd); U, N = [], []; n = len(mm); slots0 = slots; hold = [False]
    def q(): return U if (U and not hold[0]) else N
    def peek(j):
        a = N if hold[0] else U + N
        return _kind(a[j]) if j < len(a) else None
    for g_, it in urgent:
        if g_ < 0: k(list(it))
    while rd and rd[0][2] < 0: k([rd.pop(0)[3]])
    for i, m in enumerate(mm):
        k(m)
        for g_, fn in checks:
            if g_ == i: fn(U, N)
        for g_, it in urgent:
            if g_ == i: U += list(it)
        for g_, it in normal:
            if g_ == i: N += list(it)
        free_s = not (i+1 < n and prewait(k, mm[i+1]))
        held = hold[0]; hold[0] = False
        while (U or N) and (peek(0) == "call" or (peek(0) == "salu" and free_s)):
            n0 = k.nins; k([q().pop(0)])
            if k.nins != n0: free_s = False
        if U and N and _kind(U[0]) == 'salu' and not held: hold[0] = True
        slots = slotf(i) if slotf else slots0
        b = slots
        must = sum(1 for r in rd if r[2] <= i); avail = sum(1 for r in rd if r[0] <= i); nom = sum(1 for r in rd if r[1] <= i)
        p0, p1 = peek(0), peek(1)
        if p0 is None: nr = min(avail, max(nom, must)) if nom <= slots else max(slots, must)
        elif p0 == "trans": nr = max(must, min(avail, slots)) if (must or nom >= 2) else 0
        elif p1 == "trans" or p1 is None or (p0 == "valu" and p1 == "mem"): nr = max(must, min(avail, slots-1))
        else: nr = max(must, min(nom, slots-1 if nom < 3 else slots))
        for _ in range(nr): k([rd.pop(0)[3]]); b -= 1
        if U and not hold[0]: b = max(b, 1)
        had = False
        while b > 0:
            if U and N and not hold[0] and _kind(U[0]) == 'salu' and not held: hold[0] = True
            kd = peek(0)
            if kd is None: break
            if kd == "call" or (kd == "mem" and had): break
            c = 2 if kd == "trans" else 1
            if c > b: break
            if kd in ("valu", "trans"): had = True
            k([q().pop(0)]); b -= c
    assert not rd
    left = U + N
    if tail: k(left)
    return left
def spread(items, a, b, late=None):
    n = len(items); late = b-1 if late is None else late
    return [(a, a + (b-a)*j//n, late, x) for j, x in enumerate(items)]
```

```python
import sys, numpy as np
from gk import *
from gk import _kind

STAMP = "--stamp" in sys.argv
OUT = [a for a in sys.argv[1:] if a.endswith(".s")]
OUT = OUT[0] if OUT else "v3.s"
def opt(name, default):
    x = [a.split("=")[1] for a in sys.argv if a.startswith(f"--{name}=")]
    return int(x[0]) if x else default
NW1C = opt("w1conv", 30)
NW1G = opt("w1gap", 6)
NW2C3 = opt("w2c3", 35)
SLEEP = opt("sleep", 1)
DBG = opt("dbg", 0)
MB = opt("mb", 3)
XEARLY = opt("xearly", 2)
WARM = opt("warm", 1)
WIN = opt("win", 0)
KCS = opt("kcs", 6)
def gap_cs():
    for kk in range(KCS):
        for t in range(3): k(mf16(v(180+4*t,4), ar(12*kk+4*t,4), v(12,4), "0" if kk == 0 else None))

STP, STB = 0x18000, 0x20000
LS = 128
FB, RS = 0x40000, opt("rs", 1152)
oH, oW2, oW1 = 0, 12, 16
FA = FB + 16*RS
RDY = FA + 64*LS
CGS = 16512
XB, HT, ACT, W1P, W2P = 0x500000, 0x900000, 0xC00000, 0x1300000, 0x1700000
WS_BYTES = 0x10000000
OOB = 0x40000000
NCG = 214
TK, TKCH, CS = 0, 16640, 4160
UL, ULCH = 49920, 4608
XL = UL + 3 * ULCH
TAB, TABW, TROW, TOF = 77568, 17408, 272, 51000
PK = 129792
XS, XSP = 148224, 2592
LNS = 158592
PART = 122880
AG = 2*CS + 2304
SLOT = [81920, 122880]
SC, PARK, NPARK = 0, 8192, 18
RED, RW = 77824, 5376
LDS_BYTES = 163840
SPIN = 1 << 15
LOG2E = 0x3fb8aa3b
INV640 = 0x3acccccd
pX, pAre, pAim, pBre, pBim, pCre, pCim, pLdt, pDsk, pBx, pWg, pWu, pWd, pOut, pDbg, pWs = [4 + 2 * i for i in range(16)]
WSR, OUTR = 36, 40
sTag, sWv, sMt, sNt, sHb, sN2 = 44, 45, 46, 47, 48, 49
sT = list(range(50, 64))
sXb = 64
sPkS, sPkF, sFl, sCnt = 66, 67, 68, 69
sStamp = 70
sHw = 3
sXr = 4
sW1 = [6, 7, 8, 9]
sAct, sHsrc, sLd, sOut, sFa, sW2, sRep, sAin, sFAc = 10, 11, 12, 13, 14, 15, 16, 17, 18
ws = s(WSR, 4)

k = K()
SEL = [a[6:].split(",") for a in sys.argv if a.startswith("--sel=")]
SEL = SEL[0] if SEL else ["start"]
assert len(SEL) <= 16
def stamp(name):
    if STAMP and name in SEL: k(f"{'s_memtime' if opt('cyc', 0) else 's_memrealtime'} {s(sStamp + 2*SEL.index(name), 2)}")
def stampc(name): return lambda: stamp(name)
def lines(t): return [l.strip() for l in t.split("\n") if l.strip()]

vLane, vN, vG, vL16 = 1, 2, 3, 4
vTagv, vRep, vFl0 = 11, 30, 31

def tagtest(checks, vacc, ref):
    if len(checks) == 1:
        k(f"v_cmp_ne_u32 vcc, {s(ref)}, {v(checks[0])}"); return
    k(f"v_xor_b32 {v(vacc)}, {s(ref)}, {v(checks[0])}")
    for c in checks[1:]:
        k(f"v_bitop3_b32 {v(vacc)}, {v(vacc)}, {v(c)}, {s(ref)} bitop3:0xf6")
    k(f"v_cmp_ne_u32 vcc, 0, {v(vacc)}")
SLOW = []
def check(loads, checks, vacc, nl=64, cnt=0):
    L, E, D = k.lab("Lpoll"), k.lab("Lslow"), k.lab("Lgot")
    ref = sTag
    if cnt: ref = sT[0]; k(f"s_add_u32 {s(ref)}, {s(sTag)}, {cnt}")
    if 31 < nl < 64: k(f"s_bfm_b64 {s(sT[2],2)}, {nl}, 0")
    tagtest(checks, vacc, ref)
    if nl <= 31: k(f"s_and_b64 vcc, vcc, {hex((1 << nl) - 1)}\ns_cbranch_scc1 {E}")
    elif nl < 64: k(f"s_and_b64 vcc, vcc, {s(sT[2],2)}\ns_cbranch_scc1 {E}")
    else: k(f"s_cbranch_vccnz {E}")
    st = k.snap(); main_out = k.out; k.out = []
    k.label(E)
    k(f"s_mov_b32 {s(sCnt)}, 0")
    k.label(L)
    k("s_mov_b64 exec, vcc")
    if SLEEP: k(f"s_sleep {SLEEP}")
    k(loads)
    k("s_waitcnt vmcnt(0)")
    tagtest(checks, vacc, ref)
    k(f"""s_mov_b64 exec, -1
    s_cbranch_vccz {D}
    s_add_u32 {s(sCnt)}, {s(sCnt)}, 1
    s_cmp_lt_u32 {s(sCnt)}, {SPIN}
    s_cbranch_scc1 {L}
    s_branch {D}""")
    SLOW.extend(k.out); k.out = main_out
    k.label(D)
    k.merge(st)
def check2(d, va, off, soff, nl, cnt, ra, rb):
    L, E, D = k.lab("Lpoll"), k.lab("Lslow"), k.lab("Lgot")
    ref = sT[0]; m = hex((1 << nl) - 1)
    k(f"s_add_u32 {s(ref)}, {s(sTag)}, {cnt}\nv_cmp_ne_u32 vcc, {s(ref)}, {v(d)}\ns_and_b64 vcc, vcc, {m}\ns_cbranch_scc1 {E}")
    st = k.snap(); main_out = k.out; k.out = []
    k.label(E)
    k(f"s_mov_b32 {s(sCnt)}, 0")
    k(apoll(ra, va, off, soff))
    k(f"s_sleep {opt('ps', 4)}")
    k.label(L)
    for cur, oth in ((ra, rb), (rb, ra)):
        k.st.vm = []
        k(apoll(oth, va, off, soff))
        k.st.vm = []
        k.raw("    s_waitcnt vmcnt(1)")
        k(f"v_cmp_ne_u32 vcc, {s(ref)}, {v(cur)}\ns_and_b64 vcc, vcc, {m}\ns_cbranch_scc0 {D}")
    k(f"""s_add_u32 {s(sCnt)}, {s(sCnt)}, 1
    s_cmp_lt_u32 {s(sCnt)}, {SPIN}
    s_cbranch_scc1 {L}
    s_branch {D}""")
    SLOW.extend(k.out); k.out = main_out
    k.label(D)
    k.st.vm = []
    k.merge(st)
def apoll(d, va, off, soff=None):
    return [f"v_mov_b32 {v(d)}, 0", f"buffer_atomic_add {v(d)}, {v(va)}, {ws}, {s(sRep if soff is None else soff)} offen offset:{off} sc0 sc1"]
vOne = 27
def flag(tok, soff, off=0, rep=True):
    return [lambda: k.wait_tok(tok, n=2), f"buffer_atomic_add {v(vOne)}, {v(vRep if rep else vFl0)}, {ws}, {s(soff)} offen offset:{off} sc1"]
def rdy_ld(d): return [f"s_mov_b32 {s(sT[1])}, {RDY}", f"v_lshlrev_b32 {v(d)}, 2, {v(vN)}", f"buffer_load_dword {v(d)}, {v(d)}, {ws}, {s(sT[1])} offen sc1"]
def rdy_chk(d): check(rdy_ld(d), [d], 5); stamp("rdy")
vAg, vInc, vAt = 21, 25, 26
def hflag(tok, st):
    return ([lambda: k.wait_tok(tok), f"ds_add_rtn_u32 {v(vAt)}, {v(vAg)}, {v(vOne)} offset:{256*st}"],
            [f"v_xor_b32 {v(vAt)}, 2, {v(vAt)}", f"v_lshl_add_u32 {v(vAt)}, {v(vAt)}, 29, {v(vRep)}",
             f"buffer_atomic_add {v(vInc)}, {v(vAt)}, {ws}, {s(sFl)} offen offset:{oH + 4*st} sc1"])
def bar(): k("s_waitcnt lgkmcnt(0)\ns_barrier")
def cmul(d, a, b):
    return [f"v_pk_mul_f32 {v(d,2)}, {v(a,2)}, {v(b,2)} op_sel:[0,0] op_sel_hi:[0,1]",
            f"v_pk_fma_f32 {v(d,2)}, {v(a,2)}, {v(b,2)}, {v(d,2)} op_sel:[1,1,0] op_sel_hi:[1,0,1] neg_lo:[1,0,0]"]
def zipper(*ls):
    out = []; ls = [list(l) for l in ls]
    while any(ls):
        for l in ls:
            if l: out.append(l.pop(0))
    return out
def mf16(d, a, b, c=None):
    return f"v_mfma_f32_16x16x32_bf16 {d}, {a}, {b}, {d if c is None else c}"
def groups(d):
    out = []; g_ = []
    for x in d:
        g_.append(x)
        if _kind(x) == "mem": out.append(g_); g_ = []
    assert not g_
    return out

TAPS = [list(range(-3, 8)), [-3, -2, 0, 4, 6]]
def tapsrc(rho, tap):
    if rho == 0: return tap
    return -3 if tap == -3 else -2 if tap == -2 else 0 if tap <= 2 else 4 if tap <= 5 else 6
def rb(x):
    u = int(np.float32(x).view(np.uint32))
    return int(np.uint32(((u + 0x7FFF + ((u >> 16) & 1)) >> 16) << 16).view(np.float32))
H = list(range(8)) + [256,258,260,262,512,516,768,772,1024,1280,1536,1792,2048]
idx = {}
for i, h in enumerate(H):
    for j in range(32): idx.setdefault(h + 8*j, (i, j))
def kaddr(l):
    if l < 0: return 3072
    i, j = idx[rb(l)]
    return (4*(i >> 3) + (i & 3))*256 + ((i >> 2) & 1)*128 + 4*j
TABTXT = [".p2align 7\n.type Ltab,@object\nLtab:"]
rows_ = []
for j in range(64, 128):
    assert all(rb(16*j + l) == 16*j + 8 for l in range(5, 12)) and all(rb(16*j + l) == 16*j + 16 for l in range(12, 21))
for lane in range(64):
    row = []; n_, g_ = lane & 15, lane >> 4
    for rho in range(2):
        x = 64*rho + lane
        for tap in range(-3, 8): assert kaddr(8*x + tap) == kaddr(8*x + tapsrc(rho, tap)), (rho, lane, tap)
        row += [kaddr(8*x + tp) for tp in TAPS[rho]]
    row += [kaddr(l if l <= 1028 else -1) for l in (1040 + n_ - 8*g_ - j for j in range(8))]
    row += [kaddr(1024 + 16*lane + 8), kaddr(1024 + 16*lane + 16)] + [0]*6
    row += [0x3f80 if 5 <= n_ - (8*g_ + j - 16) <= 11 else 0 for j in range(8)]
    row += [0x3f80 if 12 <= n_ - (8*g_ + j - 24) <= 20 else 0 for j in range(8)]
    rows_.append(row)
for part in range(6):
    for lane in range(64): TABTXT.append(".short " + ",".join(map(str, rows_[lane][8*part:8*part+8])))
TABTXT.append(".size Ltab, .-Ltab")
if opt("low", 1): k.raw(".p2align 8\n.type Lpad,@object\nLpad:\n.fill 128, 4, 0\n.size Lpad, .-Lpad")
else: k.raw(".p2align 12\n.type Lpad,@object\nLpad:\n.fill 832, 4, 0\n.size Lpad, .-Lpad")

k.begin(NAME + "_kernel")
stamp("start")
vTabl, vPar, vLdt, vDs = 42, 56, 74, 75
k(f"""
s_load_dwordx16 s[4:19], s[0:1], 0
s_load_dwordx16 s[20:35], s[0:1], 64
s_cmp_lt_u32 s2, 256
s_cbranch_scc1 Lstart
s_endpgm
Lstart:
s_getpc_b64 {s(sT[0],2)}
Lpc:
v_and_b32 {v(vN)}, 15, v0
s_lshr_b32 {s(sT[5])}, s2, 3
s_lshl_b32 {s(sT[4])}, {s(sT[5])}, 11
v_lshl_add_u32 v5, {v(vN)}, 7, {s(sT[4])}
v_min_u32 v5, Lcode_end-Lpc-4, v5
v_lshrrev_b32 v6, 6, v0
global_load_dword v172, v5, {s(sT[0],2)}
v_readfirstlane_b32 {s(sWv)}, v6
v_and_b32 {v(vLane)}, 63, v0
v_lshlrev_b32 {v(vL16)}, 4, {v(vLane)}
s_mul_i32 {s(sT[6])}, s2, 3
s_cmp_eq_u32 {s(sWv)}, 3
s_cselect_b32 {s(sT[7])}, 0, {s(sWv)}
s_cselect_b32 {s(sT[10])}, 255, s2
s_add_u32 {s(sT[6])}, {s(sT[6])}, {s(sT[7])}
s_min_u32 {s(sT[8])}, {s(sT[6])}, 639
s_mul_i32 {s(sT[9])}, {s(sT[8])}, 384
v_lshl_add_u32 v6, {v(vLane)}, 1, {s(sT[9])}
s_lshl_b32 {s(sT[9])}, {s(sT[8])}, 1
v_mov_b32 v7, {s(sT[9])}
""")
for i in range(9): k(f"v_mov_b64 {v(vPar+2*i,2)}, 0")
k(f"""
s_lshl2_add_u32 {s(sT[4])}, s2, {s(sWv)}
s_mul_i32 {s(sT[4])}, {s(sT[4])}, 2560
s_mul_i32 m0, {s(sWv)}, {XSP}
s_add_u32 m0, m0, {XS}
s_add_u32 {s(sXb)}, {s(pX)}, {s(sT[4])}
s_addc_u32 {s(sXb+1)}, {s(pX+1)}, 0
s_load_dword {s(sTag)}, {s(pWs,2)}, 0
s_add_u32 {s(pDbg)}, {s(sT[0])}, Ltab-Lpc+2048
s_addc_u32 {s(pDbg+1)}, {s(sT[1])}, 0
""")
k(f"global_load_lds_dwordx4 {v(vL16)}, {s(sXb,2)}", tok="x")
k(f"global_load_lds_dwordx4 {v(vL16)}, {s(sXb,2)} offset:1024", tok="x")
k("s_mov_b32 exec_hi, 0")
k(f"global_load_lds_dwordx4 {v(vL16)}, {s(sXb,2)} offset:2048", tok="x")
if opt("b0", 1): k("s_barrier")
k(f"s_mov_b32 exec_hi, -1\ns_cmp_ge_u32 {s(sT[10])}, {NCG}\ns_cbranch_scc1 Lother")
sDisp = k.snap()
stamp("xi")

vQ, vCgl, vXo, vSel, vSel3, vRo, vRo3, vLw, vLr = 150, 151, 152, 144, 147, 76, 77, 156, 157
vLa, vLb, vLr2, vM, vDI, vHc, vPt = 8, 9, 10, 12, 16, 28, 29
vW1a, vW1d = 22, 24
vFa, vFd = 23, 24
vRaw, vX, vS, vSq, vXr = 84, 100, 124, 126, 240
def srd_setup(other=False):
    if STAMP:
        for i, nm in enumerate(SEL):
            if nm not in ("start", "iss", "xi"): k(f"s_mov_b32 {s(sStamp+2*i)}, 0")
    k(f"""
    s_mov_b32 {s(WSR)}, {s(pWs)}
    s_mov_b32 {s(WSR+1)}, {s(pWs+1)}
    s_mov_b32 {s(WSR+2)}, {WS_BYTES}
    s_mov_b32 {s(WSR+3)}, 0x20000
    """)
    if other:
        k(f"""s_cmp_eq_u32 {s(sWv)}, 2
        s_cselect_b32 {s(sT[12])}, s2, 0
        s_cmp_lt_u32 {s(sT[12])}, 240
        s_cbranch_scc1 Lnoinit""")
        st_ = k.snap()
        k(f"""s_sub_u32 {s(sT[12])}, s2, 240
        s_lshl_b32 {s(sT[13])}, {s(sT[12])}, 2
        s_add_u32 {s(sT[13])}, {s(sT[13])}, {RDY}
        v_min_u32 v62, 1, {v(vLane)}
        v_lshlrev_b32 v62, 30, v62
        v_mov_b32 v5, 0
        buffer_atomic_add v5, v62, {ws}, {s(sT[13])} offen sc1
        v_lshrrev_b32 v63, 5, {v(vLane)}
        v_lshl_add_u32 v63, v63, 30, {v(vL16)}
        s_mul_i32 {s(sT[9])}, {s(sT[12])}, {RS}
        s_add_u32 {s(sT[9])}, {s(sT[9])}, {FB}
        s_lshl_b32 {s(sT[12])}, {s(sT[12])}, 9
        s_add_u32 {s(sT[12])}, {s(sT[12])}, {FA}
        s_add_u32 {s(sT[10])}, {s(sTag)}, 0x9E3779B1
        v_mov_b32 v64, {s(sT[10])}
        v_mov_b32 v65, {s(sT[10])}
        v_mov_b32 v66, {s(sT[10])}
        v_mov_b32 v67, {s(sT[10])}
        buffer_store_dwordx4 v[64:67], {v(vL16)}, {ws}, {s(sT[9])} offen sc1
        buffer_store_dwordx4 v[64:67], v63, {ws}, {s(sT[12])} offen sc1
        s_mov_b32 {s(sT[12])}, 240""")
        k.label("Lnoinit"); k.merge(st_)
def common_setup(other=False):
    k(f"""
    s_mov_b32 {s(OUTR)}, {s(pOut)}
    s_mov_b32 {s(OUTR+1)}, {s(pOut+1)}
    s_mov_b32 {s(OUTR+2)}, 2621440
    s_mov_b32 {s(OUTR+3)}, 0x20000
    v_mov_b32 v6, {OOB}
    v_mov_b32 {v(vOne)}, 1
    s_and_b32 {s(sT[4])}, s2, 7
    s_lshr_b32 {s(sMt)}, {s(sT[4])}, 2
    s_lshr_b32 {s(sT[10])}, {s(sT[5])}, 2
    s_lshl3_add_u32 {s(sMt)}, {s(sMt)}, {s(sT[10])}
    s_and_b32 {s(sNt)}, {s(sT[4])}, 3
    s_and_b32 {s(sT[10])}, {s(sT[5])}, 3
    s_lshl2_add_u32 {s(sNt)}, {s(sNt)}, {s(sT[10])}
    s_and_b32 {s(sXr)}, {s(sMt)}, {opt("xr", 0)}
    s_xor_b32 {s(sXr)}, {s(sXr)}, {s(sWv)}
    s_lshr_b32 {s(sHb)}, {s(sNt)}, 3
    s_and_b32 {s(sN2)}, {s(sNt)}, 7
    s_and_b32 {s(sRep)}, {s(sT[5])}, 15
    s_mul_i32 {s(sRep)}, {s(sRep)}, {RS}
    s_add_u32 {s(sRep)}, {s(sRep)}, {FB}
    v_cmp_ne_u32 vcc, 0, {v(vLane)}
    v_cndmask_b32 {v(vFl0)}, 0, v6, vcc
    v_cmp_gt_u32 vcc, 16, {v(vLane)}
    v_mul_u32_u24 {v(vRep)}, {RS}, {v(vLane)}
    v_cndmask_b32 {v(vRep)}, v6, {v(vRep)}, vcc
    s_lshr_b32 {s(sT[9])}, {s(sNt)}, 1
    s_lshl_b32 {s(sT[9])}, {s(sT[9])}, 7
    s_and_b32 {s(sT[10])}, {s(sMt)}, 3
    s_mul_i32 {s(sT[10])}, {s(sT[10])}, {RS}
    s_add_u32 {s(sT[9])}, {s(sT[9])}, {s(sT[10])}
    s_add_u32 {s(sT[9])}, {s(sT[9])}, {FB}
    s_lshl_b32 {s(sT[10])}, {s(sWv)}, 8
    s_max_u32 {s(sT[10])}, {s(sT[10])}, 128
    s_sub_u32 {s(sT[10])}, {s(sT[10])}, 128
    v_cmp_gt_u32 vcc, 4, {v(vLane)}
    v_lshl_add_u32 {v(vW1a)}, {v(vRep)}, 2, {s(sT[9])}
    v_lshl_add_u32 {v(vFa)}, {v(vLane)}, 7, {s(sT[10])}
    v_cndmask_b32 {v(vW1a)}, v6, {v(vW1a)}, vcc
    v_cndmask_b32 v39, v6, {v(vRep)}, vcc
    v_cmp_gt_u32 vcc, 3, {v(vLane)}
    s_cmp_eq_u32 s2, {NCG-1}
    s_cselect_b32 {s(sT[10])}, 3, 1
    v_cndmask_b32 {v(vFa)}, v6, {v(vFa)}, vcc
    v_mov_b32 {v(vInc)}, {s(sT[10])}
    v_lshlrev_b32 {v(vAg)}, 2, {v(vLane)}
    v_add_u32 {v(vAg)}, {AG + (768 if other else 0)}, {v(vAg)}
    s_lshl2_add_u32 {s(sT[9])}, {s(sNt)}, {s(sWv)}
    s_mul_i32 {s(sT[9])}, {s(sT[9])}, {20*3072}
    s_add_u32 {s(sT[9])}, {s(sT[9])}, {W1P}""")
    for e in range(4):
        k(f"s_xor_b32 {s(sW1[e])}, {s(sXr)}, {e}\ns_mul_i32 {s(sW1[e])}, {s(sW1[e])}, {5*3072}\ns_add_u32 {s(sW1[e])}, {s(sW1[e])}, {s(sT[9])}")
    k(f"""
    s_mul_i32 {s(sLd)}, {s(sWv)}, 10240
    s_mul_i32 {s(sHsrc)}, {s(sMt)}, 163840
    s_add_u32 {s(sHsrc)}, {s(sHsrc)}, {s(sLd)}
    s_add_u32 {s(sHsrc)}, {s(sHsrc)}, {HT}
    s_mul_i32 {s(sT[9])}, {s(sT[7])}, {TKCH}
    s_mul_i32 {s(sT[10])}, {s(sT[7])}, {ULCH}
    v_and_b32 v5, 3, {v(vN)}
    v_mul_u32_u24 {v(vLa)}, {CS}, v5
    v_lshrrev_b32 v5, 2, {v(vN)}
    v_lshlrev_b32 v6, 1, {v(vG)}
    v_sub_u32 v5, v5, v6
    v_add_u32 v5, 7, v5
    v_lshl_add_u32 {v(vLa)}, v5, 3, {v(vLa)}
    v_add_u32 {v(vLa)}, {s(sT[9])}, {v(vLa)}
    v_lshl_add_u32 {v(vLr2)}, {v(vN)}, 5, {s(sT[10])}
    v_lshl_add_u32 {v(vLb)}, {v(vG)}, 4, {v(vLr2)}
    v_add_u32 {v(vLb)}, {UL}, {v(vLb)}
    s_lshl_b32 {s(sT[9])}, {s(sT[7])}, 12
    s_add_u32 {s(sT[9])}, {s(sT[9])}, {PART}
    v_add_u32 {v(vPt)}, {s(sT[9])}, {v(vL16)}""")
def x_landed():
    k(f"s_add_u32 {s(sTag)}, {s(sTag)}, 0x9E3779B1\nv_mov_b32 {v(vTagv)}, {s(sTag)}")
    stamp("ln0")
    k.wait_tok("x")
    k("s_barrier")
    stamp("lx")
def norm(X, T, w_):
    L = [f"v_and_b32 {v(T+3)}, 0xffff0000, {v(T+2)}", f"v_lshlrev_b32 {v(T+2)}, 16, {v(T+2)}"]
    for c in range(3): L += [f"v_lshlrev_b32 {v(w_+2*c)}, 16, {v(X+c)}", f"v_and_b32 {v(w_+2*c+1)}, 0xffff0000, {v(X+c)}"]
    L += [f"v_pk_mul_f32 {v(T+2,2)}, {v(T+2,2)}, {v(T,2)}"]
    for c in range(3): L += [f"v_pk_fma_f32 {v(w_+2*c,2)}, {v(w_+2*c,2)}, {v(T,2)}, {v(T+2,2)} neg_lo:[0,0,1] neg_hi:[0,0,1]"]
    for c in range(3): L += [f"v_cvt_pk_bf16_f32 {v(T+c)}, {v(w_+2*c)}, {v(w_+2*c+1)}"]
    return L
def rec_loads(X, T, n, sx, st_, o):
    L = []
    for d, b_ in ((X, sx), (T, st_)):
        L.append(f"s_add_u32 {s(sT[4])}, {s(b_)}, {1024*o}")
        L += [f"buffer_load_dwordx4 {v(d+4*j,4)}, {v(vL16)}, {ws}, {s(sT[4])} offen offset:{1024*j} sc1" for j in range(n)]
    return L
def rec_work(LD, X, T, n, w_, o):
    check(LD, [b_ + 4*j + 3 for b_ in (X, T) for j in range(n)], 5)
    k(zipper(*[norm(X+4*j, T+4*j, w_+8*j) for j in range(n)]))
    for j in range(n):
        for c in range(3):
            k(f"ds_write_addtid_b32 {v(T+4*j+c)} offset:{512 + c*ULCH + 256*(o+j)}")
            k(f"ds_write_addtid_b32 {v(X+4*j+c)} offset:{XL - UL + c*ULCH + 256*(o+j)}")
RK = opt("rk", 3); R3 = 16 - 3*RK
w1poll = [f"v_mov_b32 {v(vW1d)}, 0", f"buffer_atomic_add {v(vW1d)}, {v(vW1a)}, {ws}, 0 offen offset:{oW1} sc0 sc1"]
def w1_ready():
    if opt("p2", 0) & 4: k(f"s_mov_b32 {s(sT[1])}, 0"); check2(vW1d, vW1a, oW1, sT[1], 4, 20, 222, 223)
    else: check(w1poll, [vW1d], 5, 4, 20)
    stamp("wf1")
W1L = []
for kk in range(20):
    for t in range(3):
        e = kk // 5
        x = [f"s_add_u32 {s(sW1[e])}, {s(sW1[e])}, 3072"] if (t == 0 and kk % 5) else []
        W1L.append(x + [f"buffer_load_dwordx4 {ar(12*kk+4*t,4)}, {v(vL16)}, {ws}, {s(sW1[e])} offen offset:{1024*t} sc1"])
def hflag_ld(stage): return apoll(vFd, vFa, oH + 4*stage)
def hflag_chk(stage):
    check(hflag_ld(stage), [vFd], 5, 3, 27); stamp("hf" + "ABC"[stage])
def h_dma(c):
    L = []
    for i in range(10):
        if i % 4 == 0:
            L += [f"s_add_u32 m0, {s(sLd)}, {SLOT[c % 2] + 1024*i}", f"s_add_u32 {s(sT[4])}, {s(sHsrc)}, {40960*c + 1024*i}"]
        L.append((f"buffer_load_dwordx4 {v(vL16)}, {ws}, {s(sT[4])} offen offset:{1024*(i % 4)} sc1 lds", f"h{c}" if c else f"h0{i//2}"))
    return groups(L)

for t in range(3):
    for i, p in enumerate([pAre, pAim, pBre, pBim, pCre, pCim]):
        k(f"global_load_short_d16_hi {v(vPar + 6*t + i)}, v6, {s(p,2)} offset:{128*t}")
def tab_loads():
    for j in range(3): k(f"global_load_dwordx4 {v(vTabl+4*j,4)}, {v(vL16)}, {s(pDbg,2)} offset:{1024*j - 2048}")
    k(f"""global_load_dword {v(vTabl+12)}, {v(vL16)}, {s(pDbg,2)} offset:1024
    global_load_dwordx4 a[120:123], {v(vL16)}, {s(pDbg,2)} offset:2048
    global_load_dwordx4 a[124:127], {v(vL16)}, {s(pDbg,2)} offset:3072""")
k(f"""
global_load_short_d16_hi {v(vLdt)}, v7, {s(pLdt,2)}
global_load_ushort {v(vDs)}, v7, {s(pDsk,2)}""")
TL = opt("tl", -1)
if TL == -1: tab_loads()
stamp("iss")
vDt, vRdA, vAcc = 78, 82, 84
k(f"""
v_lshrrev_b32 {v(vG)}, 4, {v(vLane)}
s_mul_i32 {s(sT[4])}, {s(sWv)}, {TABW}
s_add_u32 m0, {s(sT[4])}, {TAB - TOF}
s_add_u32 {s(sT[13])}, {s(sT[4])}, {TAB}
v_and_b32 v5, 31, {v(vLane)}
v_mul_u32_u24 {v(vRdA)}, {TROW}, v5
v_lshrrev_b32 v5, 5, {v(vLane)}
v_lshl_add_u32 {v(vRdA)}, v5, 4, {v(vRdA)}
v_add_u32 {v(vRdA)}, {s(sT[13])}, {v(vRdA)}
v_mov_b32 {v(vDt)}, {LOG2E}
v_mov_b32 {v(vDt+1)}, 0.15915494
v_mov_b32 v5, 0x3f80
ds_write_addtid_b32 v5 offset:{TOF}
""")
srd_setup()
common_setup()
if TL == -2: tab_loads()
if WARM:
    k(f"""s_mov_b64 exec, 0
    s_cmp_eq_u32 {s(sWv)}, 0
    s_cbranch_scc1 Lwarm0
    s_cmp_eq_u32 {s(sWv)}, 1
    s_cbranch_scc1 Lwarm1
    s_branch Lwarm2
    Lwarm_ret:
    s_mov_b64 exec, -1
    s_cmp_ge_u32 s2, {NCG}
    s_cbranch_scc1 Lwarm_reth""")
    stamp("wrm")
x_landed()
vA, vC, vZ1, vZ2, vZ4, vZ8, vZ16, vZ256 = 100, 102, 104, 106, 108, 110, 112, 114
vE, vPkd, vF, vPd = 116, 140, 192, 144
k(f"""v_and_b32 {v(vLdt)}, 0xffff0000, {v(vLdt)}
v_mul_f32 {v(vLdt)}, {v(vLdt)}, {v(vDt)}
v_exp_f32 {v(vLdt)}, {v(vLdt)}""")
k(f"v_cvt_pk_bf16_f32 {v(vDt+2)}, 0, {v(vLdt)}")
def put(src, row):
    return [f"v_cvt_pk_bf16_f32 {v(vPkd+row-1)}, {v(src)}, {'-' if row >= 32 else ''}{v(src+1)}"]
def kg_mm(t):
    return [f"v_mfma_f32_32x32x16_bf16 {v(vAcc,16)}, {v(vF+8*kk,4)}, {v(vF+8*kk+4,4)}, {'0' if (t == 0 and kk == 0) else v(vAcc,16)}" for kk in range(8)]
vKx, vKt, vKw = 160, 176, 224
KLD = rec_loads(vKx, vKt, RK, sXb, sXb+1, 0)
XBAR = opt("xb", -1)
def point(p):
    if p == TL: tab_loads()
    if p == XBAR: k("s_barrier")
    if p == opt("kl_", 14) and RK:
        k(f"""s_mul_i32 {s(sXb+1)}, {s(sWv)}, {1024*RK}
        s_add_u32 {s(sXb+1)}, {s(sXb+1)}, {1024*R3}
        s_mul_i32 {s(sXb)}, s2, {CGS}
        s_add_u32 {s(sXb)}, {s(sXb)}, {s(sXb+1)}
        s_add_u32 {s(sXb)}, {s(sXb)}, {XB}
        s_add_u32 {s(sXb+1)}, {s(sXb+1)}, {STP}""")
        k(KLD)
for t in range(3):
    P = vPar + 6*t
    point(5*t)
    k(f"""v_pk_mul_f32 {v(vA,2)}, {v(P,2)}, {v(vDt+2,2)} op_sel_hi:[1,0]
    v_pk_mul_f32 {v(P+2,2)}, {v(P+2,2)}, {v(vDt+2,2)} op_sel_hi:[1,0]
    v_pk_mul_f32 {v(vA,2)}, {v(vA,2)}, {v(vDt,2)}""")
    cm = cmul(vC, P+4, P+2)
    k([cm[0], f"v_fract_f32 {v(vA+1)}, {v(vA+1)}", f"v_exp_f32 {v(vA)}, {v(vA)}", f"v_cos_f32 {v(vZ1)}, {v(vA+1)}", f"v_sin_f32 {v(vZ1+1)}, {v(vA+1)}", cm[1],
       f"v_pk_mul_f32 {v(vZ1,2)}, {v(vZ1,2)}, {v(vA,2)} op_sel_hi:[1,0]"])
    ev = [vE, vE+2]; od = [vE+4, vE+6]; h0 = [vE+8, vE+10]; hb = [vE+12, vE+14]; hx = [vE+16, vE+18, vE+20]
    cH = put(vC, 32); prev = vC
    for j in range(1, 8):
        d = h0[j % 2]; cH += cmul(d, prev, vZ1) + put(d, 32+j); prev = d
    sq = cmul(vZ2, vZ1, vZ1) + cmul(vZ4, vZ2, vZ2) + cmul(vZ8, vZ4, vZ4) + cmul(vZ16, vZ8, vZ8)
    k(zipper(sq, cH[:8])); cH = cH[8:]
    point(5*t+1)
    cE = put(vZ16, 2); prev = vZ16; cut = None
    for j in range(4, 32, 2):
        d = ev[(j//2) % 2]; cE += cmul(d, prev, vZ16) + put(d, j); prev = d
        if j == 16: cE += cmul(vZ256, d, d); cut = len(cE)
    cO = put(vZ8, 1); prev = vZ8
    for j in range(3, 32, 2):
        d = od[(j//2) % 2]; cO += cmul(d, prev, vZ16) + put(d, j); prev = d
    cB = []; prev = vC
    rows = {1: 8, 2: 12, 3: 14, 4: 16, 5: 17, 6: 18, 7: 19, 8: 20}
    for j in range(1, 9):
        d = hb[j % 2]; cB += cmul(d, prev, vZ256) + put(d, 32+rows[j]); prev = d
        if j == 1:
            cB += cmul(hx[0], d, vZ2) + put(hx[0], 32+9) + cmul(hx[1], d, vZ4) + put(hx[1], 32+10) + cmul(hx[2], hx[0], vZ4) + put(hx[2], 32+11)
        elif j in (2, 3):
            cB += cmul(hx[0], d, vZ4) + put(hx[0], 32+rows[j]+1)
    k(zipper(cE[:cut], cH + cO[:10])); cO = cO[10:]
    point(5*t+2)
    k(zipper(cB, cO, cE[cut:]))
    point(5*t+3)
    wr = [f"ds_write_addtid_b32 {v(vPkd+r-1)} offset:{TOF + r*TROW}" for r in range(1, 53)]
    if t == 0: k(wr)
    else: weave2(k, kg_mm(t-1), wr, [], slots=6)
    for kk in range(8):
        k(f"ds_read_b128 {v(vF+8*kk,4)}, {v(vRdA)} offset:{32*TROW + 32*kk}")
        k(f"ds_read_b128 {v(vF+8*kk+4,4)}, {v(vRdA)} offset:{32*kk}")
    point(5*t+4)
    stamp(f"kt{t}")
vG0, vO, vTf, vWg, vEd = 100, 128, 20, 184, 216
fill = [f"v_add_u32_sdwa {v(vG0+i)}, {s(sT[13])}, {v(vTabl + i//2)} dst_sel:DWORD dst_unused:UNUSED_PAD src0_sel:DWORD src1_sel:WORD_{i & 1}" for i in range(26)]
fill += lines(f"""
v_and_b32 v5, 1, {v(vG)}
v_lshl_add_u32 {v(vLr2)}, v5, 4, {v(vLr2)}
v_cmp_gt_u32 vcc, 2, {v(vG)}
v_mov_b32 v6, {UL+512}
v_mov_b32 v7, {XL}
v_cndmask_b32 v6, v7, v6, vcc
v_add_u32 {v(vLr2)}, {v(vLr2)}, v6
v_mov_b32 v7, 0x3f80
v_cndmask_b32 v7, v7, {v(vDs)}, vcc
v_lshlrev_b32 v5, 3, v5
v_sub_u32 v5, {v(vN)}, v5
v_and_b32 v6, 1, v5
v_lshlrev_b32 v6, 4, v6
v_lshlrev_b32 v6, v6, v7
v_ashrrev_i32 v5, 1, v5
v_cmp_eq_u32 vcc, 0, v5
v_cmp_eq_u32 {s(sT[0],2)}, 1, v5
v_cmp_eq_u32 {s(sT[2],2)}, 2, v5
v_cndmask_b32 {v(vDI)}, 0, v6, vcc
v_cmp_eq_u32 vcc, 3, v5
v_cndmask_b32 {v(vDI+1)}, 0, v6, {s(sT[0],2)}
v_cndmask_b32 {v(vDI+2)}, 0, v6, {s(sT[2],2)}
v_cndmask_b32 {v(vDI+3)}, 0, v6, vcc
v_lshrrev_b32 v5, 2, {v(vLane)}
v_mul_u32_u24 v5, 163840, v5
v_and_b32 v6, 3, {v(vLane)}
s_bfe_u32 {s(sT[9])}, {s(sT[6])}, 0x10002
s_lshl_b32 {s(sT[9])}, {s(sT[9])}, 1
s_lshl_b32 {s(sT[10])}, {s(sT[6])}, 6
s_mul_i32 {s(sFl)}, s2, 2428
s_lshr_b32 {s(sFl)}, {s(sFl)}, 16
s_lshl_b32 {s(sFl)}, {s(sFl)}, {LS.bit_length()-1}
s_add_u32 {s(sFl)}, {s(sFl)}, {FB}
s_cmp_lt_u32 {s(sT[6])}, 640
s_cselect_b32 {s(sT[10])}, {s(sT[10])}, {OOB}
v_xor_b32 v7, {s(sT[9])}, v6
v_lshl_add_u32 v7, v7, 4, v5
v_add_u32 {v(vHc)}, {s(sT[10])}, v7
s_mul_i32 {s(sT[4])}, {s(sWv)}, {TKCH}
v_add_u32 v7, {s(sT[4])}, {v(vL16)}
v_lshl_add_u32 v5, {v(vLane)}, 2, {s(sT[4])}
v_lshlrev_b32 v6, 2, {v(vG)}
v_sub_u32 v6, {v(vN)}, v6
s_add_u32 {s(sT[4])}, {s(sT[4])}, {TK + 3136 - 12}
v_lshl_add_u32 {v(vTf)}, v6, 2, {s(sT[4])}
v_mov_b32 v6, 0""")
k(fill[:10])
sched(k, kg_mm(2), normal=[(0, fill[10:])], slots=6)
k(f"ds_write_addtid_b32 v6 offset:{TOF + 3072}")
for r in range(12): k(f"ds_write_addtid_b32 {v(vAcc+r)} offset:{TOF + 256*r}")
point(15)
stamp("kg1")
k.raw(";WARM_BEGIN")
gi = {}
for rho in range(2):
    for tp in TAPS[rho]: gi[(rho, tp)] = len(gi)
k(f"ds_write_b32 v5, v6 offset:{TK + 3136 - 256}")
for i in range(26): k(f"ds_read_b32 {v(vG0+i)}, {v(vG0+i)}")
for rho in range(2):
    g = lambda tap: v(vG0 + gi[(rho, tapsrc(rho, tap))])
    for sg in range(4):
        o = vO + 16*rho + 4*sg
        k(f"""v_cvt_pk_bf16_f32 {v(o)}, {g(sg)}, {g(sg-1)}
        v_cvt_pk_bf16_f32 {v(o+1)}, {g(sg-2)}, {g(sg-3)}
        v_cvt_pk_bf16_f32 {v(o+2)}, {g(sg+4)}, {g(sg+3)}
        v_cvt_pk_bf16_f32 {v(o+3)}, {g(sg+2)}, {g(sg+1)}""")
    if rho: k(f"v_cvt_pk_bf16_f32 v6, {v(vG0+24)}, {v(vG0+25)}")
    for sg in range(4):
        k(f"ds_write_b128 v7, {v(vO+16*rho+4*sg,4)} offset:{TK + sg*CS + 32 + 1024*rho}")
k(f"ds_write_b32 v5, v6 offset:{TK + 3136}")
for j in range(4): k(f"v_cvt_pk_bf16_f32 {v(vEd+j)}, {v(vG0+16+2*j)}, {v(vG0+17+2*j)}")
stamp("tp0")
if RK:
    k(f"s_mul_i32 m0, {s(sWv)}, {256*RK}\ns_add_u32 m0, m0, {UL + 256*R3}")
    rec_work(KLD, vKx, vKt, RK, vKw, 0)
stamp("tp1")

vCA, vFr, vRs, vPk = 32, 72, 232, 248
def h_out(prs, tok):
    L = []
    for pr in prs:
        p = vPk + 4*(pr % 2); a_ = vCA + 8*pr
        if pr >= 2: L += [f"v_pk_add_f32 {v(a_+2*j,2)}, {v(a_+2*j,2)}, {v(vRs+8*(pr-2)+2*j,2)}" for j in range(4)]
        L += [f"v_cvt_pk_bf16_f32 {v(p+j)}, {v(a_+2*j)}, {v(a_+2*j+1)}" for j in range(4)]
        L += [f"s_mov_b32 {s(sT[5])}, {HT + 40960*pr}", (f"buffer_store_dwordx4 {v(p,4)}, {v(vHc)}, {ws}, {s(sT[5])} offen sc1", tok)]
    return L
def conv_code(main):
    bar()
    stamp("cv0")
    SH = opt("sh", 2)
    if main: jobs = [(0, r, [0,1]) for r in range(8)] + [(0, r, [2,3]) for r in range(8)] + [(0, r, [4,5,6,7]) for r in range(5)] + [[(0, 5, [4,5,6,7])], [(0, 5, [4,5])], []][SH]
    else: jobs = [(c, r, t) for c in range(3) for r, t in [(6, [4,5,6,7]), (7, [4,5,6,7])] + [[], [(5, [6,7])], [(5, [4,5,6,7])]][SH]]
    JPC = len(jobs) // 3
    seq = []; ends = []; touched = set(); wgen = []
    for nb, (c, r, tiles) in enumerate(jobs):
        acc = (lambda i: vCA + 4*i) if main else (lambda i: vCA + 16*(c % 2) + 4*(i-4))
        grp = 0 if (main and nb < 16) else nb
        if main and nb == 16:
            for q in range(4):
                seq.append((vWg + 8*q, ("b", c, 0, q, grp), "a[120:123]", True))
                seq.append((vWg + 8*q + 4, ("u", q), "a[124:127]", True))
                wgen.append(len(seq))
        if tiles[0] < 4: order = [(i, p) for _, i, p in sorted([(max(p, i-p), i, p) for i in tiles for p in range(i+1)])]
        elif opt("ch", 0): order = [(i, p) for i in tiles for p in (3, 2, 1, 0)]
        else: order = [(i, p) for _, p, i in sorted([(i-p, -p, i) for i in tiles for p in range(4)])]; order = [(i, -p) for i, p in order]
        for i, p in order:
            if (c, i) not in touched:
                touched.add((c, i))
                if main: seq.append((acc(i), v(vDI,4), ("x", i), True))
                else: seq.append((acc(i), ("a", c, r, p, grp), ("b", c, r, i-p, grp), True)); continue
                if i >= 4: seq.append((acc(i), v(vEd,4), ("b", c, 0, i-4, grp), False))
            seq.append((acc(i), ("a", c, r, p, grp), ("b", c, r, i-p, grp), False))
        if main and nb == 17:
            for dl in range(4, 8):
                for i in range(dl, 8): seq.append((acc(i), v(vWg + 8*(i-dl), 4), ("t", dl), False))
        ends.append(len(seq))
    first, lastu = {}, {}
    for n_, (_, ka, kb, _z) in enumerate(seq):
        for key in (kb, ka):
            if isinstance(key, str): continue
            first.setdefault(key, n_); lastu[key] = n_
    home = {}; ring = [-1]*28; nr = 0; nk = 0; R = []
    for key in sorted(first, key=lambda q_: first[q_]):
        if main and key[0] != "x" and first[key] < ends[7]:
            reg = lambda o, n, b_=128 + 4*nk: ar(b_+o, n); nk += 1; early = -1
        else:
            sl = nr % 28; nr += 1; early = ring[sl]; ring[sl] = lastu[key]
            reg = lambda o, n, b_=vFr + 4*sl: v(b_+o, n)
        home[key] = reg(0, 4)
        due = max(first[key] - opt("la", 6), early)
        assert due < first[key]
        if key[0] == "x": T = [f"ds_read_b128 {reg(0,4)}, {v(vLr2)} offset:{512*key[1]}"]
        elif key[0] == "u": T = [f"ds_read_b128 {reg(0,4)}, {v(vLb)} offset:{512 + 512*key[1] - 48}"]
        elif key[0] == "t": T = [f"ds_read2_b32 {reg(2*h_,2)}, {v(vTf)} offset0:{16*(key[1]-4) + 3 - 2*h_} offset1:{16*(key[1]-4) + 2 - 2*h_}" for h_ in range(2)]
        elif key[0] == "b": T = [f"ds_read_b128 {reg(0,4)}, {v(vLb)} offset:{key[1]*ULCH + 512 + 64*(8*key[3] - key[2]) - 32}"]
        else:
            o = TK + key[1]*TKCH + 64*(8*key[3] + key[2])
            T = [f"ds_read_b64 {reg(0,2)}, {v(vLa)} offset:{o+8}", f"ds_read_b64 {reg(2,2)}, {v(vLa)} offset:{o}"]
        R += [[early, due, x] for x in T]
    for j in range(1, len(R)): R[j][0] = max(R[j][0], R[j-1][0]); R[j][1] = max(R[j][1], R[j][0])
    nom = 1e9; rd = []
    for e_, d_, x in reversed(R):
        nom = min(d_ - opt("lb", 3), nom - opt("rr", 8)/10); rd.append((e_, max(e_, int(nom // 1)), d_, x))
    rd.reverse()
    mm = [mf16(v(a_,4), home.get(ka, ka), home.get(kb, kb), "0" if z else None) for a_, ka, kb, z in seq]
    n = len(mm); urgent = []; normal = []
    print("conv mfma", n, "reads", len(rd))
    for q, e_ in enumerate(wgen):
        normal.append((wgen[-1] + 6, [f"v_cvt_pk_bf16_f32 {v(vWg+8*q+j)}, {v(vWg+8*q+j)}, {v(vWg+8*q+4+j)}" for j in range(4)]))
    if main:
        for st_, e_ in enumerate((ends[7], ends[15])):
            urgent.append((e_ + 1, [stampc("cv" + "AB"[st_])] + h_out([st_], f"hs{st_}")))
            f1, f2 = hflag(f"hs{st_}", st_); g_ = e_ + opt(f"dA{st_}", [32, 44][st_])
            urgent += [(g_, f1), (g_ + 6, f2 + [stampc(f"fl{st_}")])]
        gb = n - opt("dB", 26)
        urgent.append((gb, ["s_barrier"] + [f"ds_read_b128 {v(vRs+4*j,4)}, {v(vPt)} offset:{1024*j}" for j in range(4)]))
        urgent += [(min(n-1, gb + 2 + opt("dD", 2)*j), g_) for j, g_ in enumerate(h_dma(0))]
    else:
        for c in range(3):
            e_ = ends[JPC*c + JPC-1]
            wr = [f"ds_write_b128 {v(vPt)}, {v(vCA + 16*(c % 2) + 4*j,4)} offset:{4096*c + 1024*j}" for j in range(4)]
            if c < 2: urgent += [(e_ + 3 + 4*j, [wr[j]]) for j in range(4)]
            else: last = wr
    if WIN: urgent += [(WIN - opt("wq", 34), w1poll), (WIN, [w1_ready])]
    g0 = max(opt("w1s", 2), WIN); nw = NW1C if main else min(NW1C-2, NW1C*opt("w3f", 100)//100)
    pos = [g0 + ((gb if main else n) - 2 - g0)*j//nw for j in range(nw)]
    normal.append((40, g1setup))
    if main: assert NW1C <= 30 or pos[30] > wgen[-1]
    extra = [(ends[17] - 12, lambda U, N: (k(U + N), U.clear(), N.clear()))] if main else []
    if opt("w1pf", 0):
        urgent.append((0, lines(f"""s_and_b32 {s(sT[9])}, {s(sMt)}, 7
        s_lshl2_add_u32 {s(sT[10])}, {s(sNt)}, {s(sWv)}
        s_lshl3_add_u32 {s(sT[9])}, {s(sT[10])}, {s(sT[9])}
        s_mul_i32 {s(sT[9])}, {s(sT[9])}, 7680
        s_add_u32 {s(sT[9])}, {s(sT[9])}, {W1P}
        v_min_u32 v220, 59, {v(vLane)}
        v_lshlrev_b32 v220, 7, v220
        buffer_load_dword v220, v220, {ws}, {s(sT[9])} offen sc1""")))
    urgent += list(zip(pos, W1L))
    if DBG & 16: urgent = [(g_, [x for x in it if not (isinstance(x, str) and x.startswith('buffer_load'))]) for g_, it in urgent]
    if not main: urgent.append((n - opt("dP", 20), h0poll))
    urgent.sort(key=lambda e: e[0])
    sched(k, mm, rd, urgent, normal, extra + [(j, (lambda nm: lambda U, N: stamp(nm))(f'v{j}')) for j in range(0, n, 20)])
    if main:
        stamp("cv1")
        k(h_out([2, 3], "hB"))
        for g_ in W1L[NW1C:NW1C+NW1G]: k(g_)
    else:
        k(last)
        for g_ in W1L[nw:NW1C-2]: k(g_)
        stamp("w3e")
        if opt("p2", 0) & 1: check2(vFd, 26, oH, None, 8, 27, 220, 221)
        else: check(h0poll[4:], [vFd], 5, 8, 27)
        stamp("hfA")
        bar()
        stamp("cv1")
        for g_ in h_dma(0) + W1L[NW1C-2:NW1C+NW1G]: k(g_)
h0poll = [f"v_lshrrev_b32 v26, 3, {v(vLane)}", "v_min_u32 v26, 1, v26", f"v_lshlrev_b32 v26, 23, v26", f"v_add_lshl_u32 v26, v26, {v(vLane)}, 7"] + apoll(vFd, 26, oH)
vOnes, vBa = 12, 64
g1setup = [f"v_mov_b32 {v(vOnes+i)}, 0x3f803f80" for i in range(4)] + lines(f"""
v_lshrrev_b32 v7, 2, {v(vLane)}
v_lshlrev_b32 v7, 6, v7
v_and_b32 v6, 3, {v(vLane)}
v_lshl_add_u32 v7, v6, 3, v7
v_and_b32 v6, 1, {v(vG)}
v_lshl_add_u32 v7, v6, 5, v7""")
for e in range(4):
    g1setup += lines(f"""s_xor_b32 {s(sT[7])}, {s(sXr)}, {e}
    s_mul_i32 {s(sT[7])}, {s(sT[7])}, 10240
    s_add_u32 {s(sT[7])}, {s(sT[7])}, {SLOT[0]}
    v_add_u32 {v(vBa+e)}, {s(sT[7])}, v7
    v_xor_b32 {v(vBa+4+e)}, 32, {v(vBa+e)}""")
conv_code(True)
k(hflag_ld(1)); gap_cs()
k("s_branch Lconvd")
sConvMain = k.snap()

k.restore(sDisp)
k.raw(";WARM_OFF")
k.label("Lother")
k(f"v_lshrrev_b32 {v(vG)}, 4, {v(vLane)}\ns_mov_b32 {s(sFl)}, {OOB}")
srd_setup(True)
k(f"s_cmp_eq_u32 {s(sWv)}, 3\ns_cbranch_scc1 Lw3")
s1 = k.snap()
sStg, sUb = 66, 67; vPa2, vW2o, vPd2 = 61, 104, 148
def w2_dma(su, off):
    k(f"s_mul_i32 {s(sT[9])}, {s(su)}, 10240\nv_add_u32 v5, {s(sT[9])}, {v(vL16)}\nv_add_u32 v6, 4096, v5\nv_add_u32 v7, 8192, v5")
    for e in range(10):
        if e % 4 == 0: k(f"s_add_u32 m0, {s(sStg)}, {off + 1024*e}")
        k(f"global_load_lds_dwordx4 {v(5 + e//4)}, {s(pWd,2)} offset:{1024*(e % 4)}", tok="w2dma")
HE = opt("he", 0)
w2sel = f"""s_sub_u32 {s(sHw)}, s2, {NCG}
s_add_u32 {s(sUb)}, {s(sHw)}, 168
s_cmp_eq_u32 {s(sWv)}, 0
s_cselect_b32 {s(sUb)}, {s(sUb)}, 192
s_lshl2_add_u32 {s(sHw)}, {s(sHw)}, {s(sWv)}
s_mul_i32 {s(sStg)}, {s(sWv)}, 20480"""
k(f"s_waitcnt vmcnt(0)\ns_cmp_lt_u32 {s(sT[12])}, 240\ns_cbranch_scc1 Lnordy")
s2_ = k.snap()
k(f"buffer_store_dword v64, v62, {ws}, {s(sT[13])} offen sc1")
stamp("ini")
k.label("Lnordy"); k.merge(s2_)
x_landed()
if HE: k(w2sel); w2_dma(sHw, 0)
k("s_branch Lnostat")
s2_ = s3_ = k.snap()
k.restore(s1)
k.label("Lw3")
vQ, vCgl, vXo, vSel, vSel3, vRo, vRo3, vLw, vLr = 32, 33, 34, 40, 43, 46, 47, 48, 49
vS, vSq, vX, vRaw, vXr = 50, 52, 56, 84, 140
k(f"""
v_and_b32 {v(vQ)}, 3, {v(vLane)}
v_lshrrev_b32 {v(vCgl)}, 2, {v(vLane)}
v_mul_u32_u24 v5, 6, {v(vCgl)}
v_and_b32 v5, -4, v5
v_mul_u32_u24 {v(vXo)}, {XSP}, {v(vQ)}
v_add_u32 {v(vXo)}, {XS}, {v(vXo)}
v_min_u32 {v(vXo+4)}, 24, v5
v_add_u32 {v(vXo+4)}, 1248, {v(vXo+4)}
v_add_u32 {v(vXo+4)}, {v(vXo+4)}, {v(vXo)}
v_add_u32 {v(vXo)}, {v(vXo)}, v5
v_add_u32 {v(vXo+1)}, 1280, {v(vXo)}
v_add_u32 {v(vXo+2)}, 960, {v(vXo)}
v_add_u32 {v(vXo+3)}, 2240, {v(vXo)}
v_add_u32 {v(vXo+5)}, 1280, {v(vXo+4)}
v_and_b32 v5, 1, {v(vCgl)}
v_mul_u32_u24 v5, 0x0202, v5
v_lshlrev_b32 v5, 16, v5
v_add_u32 {v(vSel)}, 0x01000c0c, v5
v_add_u32 {v(vSel+1)}, 0x03020c0c, v5
v_add_u32 {v(vSel+2)}, 0x05040c0c, v5
v_mov_b32 v5, 0x0c0c0c0c
v_cmp_gt_u32 vcc, 5, {v(vCgl)}
v_mul_u32_u24 {v(vRo)}, {CGS}, {v(vCgl)}
v_lshl_add_u32 {v(vRo)}, {v(vQ)}, 4, {v(vRo)}
v_cndmask_b32 {v(vSel3)}, v5, {v(vSel)}, vcc
v_cndmask_b32 {v(vSel3+1)}, v5, {v(vSel+1)}, vcc
v_cndmask_b32 {v(vSel3+2)}, v5, {v(vSel+2)}, vcc
v_cmp_eq_u32 vcc, 5, {v(vCgl)}
v_mov_b32 v5, 0x07060c0c
v_lshrrev_b32 {v(vLw)}, 1, {v(vG)}
v_cndmask_b32 {v(vSel3)}, {v(vSel3)}, v5, vcc
v_cmp_gt_u32 vcc, 6, {v(vCgl)}
v_and_b32 v5, 1, {v(vG)}
v_mov_b32 v6, {OOB}
v_cndmask_b32 {v(vRo3)}, v6, {v(vRo)}, vcc
v_lshl_add_u32 {v(vLw)}, v5, 1, {v(vLw)}
v_lshlrev_b32 {v(vLr)}, 4, {v(vQ)}
v_add_u32 {v(vLr)}, {LNS}, {v(vLr)}
v_lshl_add_u32 {v(vLw)}, {v(vLw)}, 2, {v(vLr)}
s_lshl_b32 {s(sT[4])}, s2, 6
s_add_u32 {s(sT[9])}, {s(sT[4])}, {XB}
s_add_u32 {s(sT[10])}, {s(sTag)}, 0x9E3779B1""")
vPs, vPa, vPst, vPd = 196, 200, 202, 84
sPS, sPF = [66, 67, 3], [22, 23, 64]
assert all((p*2731) >> 16 == p // 24 for p in range(192))
def w1_dma():
    k(f"s_cmp_ge_u32 s2, {NCG}\ns_cbranch_scc1 Lnodma")
    st_ = k.snap()
    for e in range(3):
        k(f"""v_add_u32 v5, {64*e}, {v(vLane)}
        v_mul_u32_u24 v6, 2731, v5
        v_lshrrev_b32 v7, 18, v6
        v_lshrrev_b32 v6, 16, v6
        v_mul_u32_u24 v6, 2688, v6
        v_mul_u32_u24 v7, 36864, v7
        v_lshlrev_b32 v5, 4, v5
        v_add3_u32 {v(vPs+e)}, v5, v6, v7""")
    kk_, g_, cp_, t_ = sT[0], sT[1], sT[2], sT[3]
    for u in range(3):
        k(f"""s_add_u32 {s(sT[11])}, {s(sT[6])}, {u}
        s_min_u32 {s(t_)}, {s(sT[11])}, 639
        s_lshr_b32 {s(kk_)}, {s(t_)}, 5
        s_bfe_u32 {s(g_)}, {s(t_)}, 0x20003
        s_and_b32 {s(cp_)}, {s(t_)}, 7
        s_lshl3_add_u32 {s(t_)}, {s(kk_)}, {s(g_)}
        s_lshl_b32 {s(t_)}, {s(t_)}, 5
        s_add_u32 {s(t_)}, {s(t_)}, {s(cp_)}
        s_mul_i32 {s(t_)}, {s(t_)}, 384""")
        for e in range(3): k(f"v_add_u32 {v(5+e)}, {s(t_)}, {v(vPs+e)}")
        extra = lines(f"""s_mul_i32 {s(sPS[u])}, {s(cp_)}, 160
        s_add_u32 {s(sPS[u])}, {s(sPS[u])}, {s(kk_)}
        s_mul_i32 {s(sPS[u])}, {s(sPS[u])}, 12
        s_add_u32 {s(sPS[u])}, {s(sPS[u])}, {s(g_)}
        s_lshl_b32 {s(sPS[u])}, {s(sPS[u])}, 8
        s_add_u32 {s(sPS[u])}, {s(sPS[u])}, {W1P}""")
        for mat in range(2):
            for e in range(3):
                k(f"s_mov_b32 m0, {PK + 6144*u + mat*3072 + e*1024}")
                k(extra.pop(0))
                k(f"global_load_lds_dwordx4 {v(5+e)}, {s(pWg if mat == 0 else pWu, 2)}", tok="w1dma")
        k(f"""s_mul_i32 {s(g_)}, {s(g_)}, {4*RS}
        s_lshl_b32 {s(sPF[u])}, {s(cp_)}, 7
        s_add_u32 {s(sPF[u])}, {s(sPF[u])}, {s(g_)}
        s_add_u32 {s(sPF[u])}, {s(sPF[u])}, {FB + oW1}
        s_cmp_lt_u32 {s(sT[11])}, 640
        s_cselect_b32 {s(sPF[u])}, {s(sPF[u])}, {OOB}""")
    k("s_waitcnt vmcnt(18)")
    k.label("Lnodma")
    st2 = k.snap(); k.restore(st_); k.st.vm = []; k.merge(st2)
for rho in range(14): k(f"v_mov_b32 {v(vXr+4*rho+3)}, {s(sT[10])}")
k(f"s_cmp_lt_u32 s2, {NCG}\ns_cbranch_scc1 Lhasdma\ns_waitcnt vmcnt(0)\nLhasdma:")
w1_dma()
x_landed()
if opt("w2p", 0):
    k(f"""v_min_u32 v5, 59, {v(vLane)}
    s_mul_i32 {s(sT[11])}, s2, 7680
    v_lshl_add_u32 v5, v5, 7, {s(sT[11])}
    global_load_dword v203, v5, {s(pWd,2)}""")
def xrd(rho): return [f"ds_read2_b32 {v(vRaw + 4*rho + 2*e, 2)}, {v(vXo + e + (0 if rho < 10 else 2 if rho < 13 else 4))} offset0:{o} offset1:{o+1}" for e in range(2) for o in [24*rho if rho < 10 else 24*(rho-10) if rho < 13 else 0]]
for rho in range(14): k(xrd(rho))
for rho in range(14):
    X = vX + 6*(rho % 2)
    for c in range(3):
        for e in range(2):
            r = vRaw + 4*rho + 2*e
            k(f"v_perm_b32 {v(X + 2*c + e)}, {v(r+1)}, {v(r)}, {v((vSel if rho < 13 else vSel3) + c)}")
    for c in range(3):
        x = v(X + 2*c, 2)
        if rho == 0 and c == 0: k(f"v_pk_mul_f32 {v(vSq,2)}, {x}, {x}")
        else: k(f"v_pk_fma_f32 {v(vSq,2)}, {x}, {x}, {v(vSq,2)}\nv_pk_add_f32 {v(vS,2)}, {v(X,2) if (rho, c) == (0, 1) else v(vS,2)}, {x}")
        k(f"v_cvt_pk_bf16_f32 {v(vXr+4*rho+c)}, {v(X+2*c)}, {v(X+2*c+1)}")
XST = []
for rho in range(14):
    XST.append([f"buffer_store_dwordx4 {v(vXr+4*rho,4)}, {v(vRo if rho < 13 else vRo3)}, {ws}, {s(sT[9])} offen sc1"] + ([f"s_add_u32 {s(sT[9])}, {s(sT[9])}, {16*CGS}"] if rho < 13 else []))
k(f"""v_permlane32_swap_b32 {v(vSq)}, {v(vSq+1)}
v_permlane32_swap_b32 {v(vS)}, {v(vS+1)}
v_add_f32 {v(vSq)}, {v(vSq)}, {v(vSq+1)}
v_add_f32 {v(vS)}, {v(vS)}, {v(vS+1)}
v_permlane16_swap_b32 {v(vS)}, {v(vSq)}
v_add_f32 {v(vS)}, {v(vS)}, {v(vSq)}
v_add_f32_dpp {v(vS)}, {v(vS)}, {v(vS)} row_ror:8 row_mask:0xf bank_mask:0xf
v_add_f32_dpp {v(vS)}, {v(vS)}, {v(vS)} row_ror:4 row_mask:0xf bank_mask:0xf
ds_write_b32 {v(vLw)}, {v(vS)}""")
vP, vT8 = 68, 72
k(f"ds_read_b128 {v(vP,4)}, {v(vLr)}")
for g_ in XST[:opt("xs0", 4)]: k(g_)
S_, Q_, t_ = vP, vP+2, vT8
k(f"""v_mov_b32 {v(t_+6)}, {INV640}
v_cmp_gt_u32 vcc, 4, {v(vLane)}
v_mov_b32 v6, {OOB}
s_add_u32 {s(sT[4])}, {s(sT[4])}, {STP}
v_cndmask_b32 v6, v6, {v(vL16)}, vcc
v_mov_b32 {v(t_+5)}, {s(sTag)}
v_pk_mul_f32 {v(S_,2)}, {v(S_,2)}, {v(t_+6,2)} op_sel_hi:[1,0]
v_pk_mul_f32 {v(Q_,2)}, {v(Q_,2)}, {v(t_+6,2)} op_sel_hi:[1,0]
v_pk_fma_f32 {v(Q_,2)}, {v(S_,2)}, {v(S_,2)}, {v(Q_,2)} neg_lo:[1,0,0] neg_hi:[1,0,0]
v_cvt_pk_bf16_f32 {v(t_+4)}, {v(S_)}, {v(S_+1)}
v_max_f32 {v(Q_)}, 0, {v(Q_)}
v_max_f32 {v(Q_+1)}, 0, {v(Q_+1)}
v_cvt_pk_bf16_f32 {v(Q_)}, 0, {v(Q_)}
v_cvt_pk_bf16_f32 {v(Q_+1)}, 0, {v(Q_+1)}
v_add_f32 {v(Q_)}, 0x3727c5ac, {v(Q_)}
v_add_f32 {v(Q_+1)}, 0x3727c5ac, {v(Q_+1)}
v_cvt_pk_bf16_f32 {v(Q_)}, 0, {v(Q_)}
v_cvt_pk_bf16_f32 {v(Q_+1)}, 0, {v(Q_+1)}
v_sqrt_f32 {v(Q_)}, {v(Q_)}
v_sqrt_f32 {v(Q_+1)}, {v(Q_+1)}
v_cvt_pk_bf16_f32 {v(Q_)}, 0, {v(Q_)}
v_cvt_pk_bf16_f32 {v(Q_+1)}, 0, {v(Q_+1)}
v_rcp_f32 {v(t_+2)}, {v(Q_)}
v_rcp_f32 {v(t_+3)}, {v(Q_+1)}
s_nop 0
buffer_store_dwordx4 {v(t_+2,4)}, v6, {ws}, {s(sT[4])} offen sc1
""")
stamp("lnb")
for g_ in XST[opt("xs0", 4):]: k(g_)
stamp("xst")
k.label("Lnostat")
k.merge(s2_); k.merge(s3_)
common_setup(True)
k(f"s_cmp_ge_u32 s2, {NCG}\ns_cbranch_scc1 Lhelp")
sHelp = k.snap()
k.raw(";WARM_BEGIN")
k(f"""v_mov_b32 v6, 0
v_mov_b32 v7, 0
v_lshlrev_b32 v60, 3, {v(vLane)}
v_lshrrev_b32 v80, 2, {v(vLane)}
v_min_u32 v80, 11, v80
v_mul_u32_u24 v80, {CS}, v80
v_and_b32 v81, 3, {v(vLane)}
v_lshl_add_u32 v80, v81, 3, v80
s_mul_i32 {s(sT[5])}, s2, {CGS}
s_add_u32 {s(sT[5])}, {s(sT[5])}, {XB}
s_mov_b32 m0, {UL}""")
for c in range(3): k(f"ds_write_b64 v60, v[6:7] offset:{UL + c*ULCH}")
k(f"ds_write_b64 v80, v[6:7] offset:{TK}\nds_write_b64 v60, v[6:7] offset:{AG}\nds_write_b64 v60, v[6:7] offset:{AG+512}")
vRx, vRt, vW = 84, 148, 212
k(f"""v_bfe_u32 v5, {v(vLane)}, 1, 1
v_mul_u32_u24 {v(vPa)}, 3072, v5
v_bfe_u32 v5, {v(vLane)}, 2, 2
v_mul_u32_u24 v5, 384, v5
v_add_u32 v5, {PK}, v5
v_add_u32 {v(vPa)}, {v(vPa)}, v5
v_mad_u32_u24 {v(vPa)}, {v(vG)}, 48, {v(vPa)}
v_and_b32 v5, 1, {v(vLane)}
v_lshl_add_u32 {v(vPa+1)}, v5, 3, {v(vPa)}
v_lshl_add_u32 {v(vPa)}, v5, 4, {v(vPa)}
v_mul_u32_u24 v5, {20*3072}, {v(vG)}
v_lshl_add_u32 {v(vPst)}, {v(vN)}, 4, v5""")
k.wait_tok("w1dma")
stamp("pk0")
for u in range(3):
    for a_ in range(2):
        for tt in range(3):
            for hf in range(2):
                k(f"ds_read_b64_tr_b16 {ar(24*u+12*a_+4*tt+2*hf,2)}, {v(vPa + (tt == 2))} offset:{6144*u + 1536*hf + 192*a_ + (8*tt if tt < 2 else 32)}")
for u in range(3):
    for a_ in range(2):
        if a_: k(f"s_add_u32 {s(sPS[u])}, {s(sPS[u])}, {80*3072}")
        for tt in range(3):
            k(f"buffer_store_dwordx4 {ar(24*u+12*a_+4*tt,4)}, {v(vPst)}, {ws}, {s(sPS[u])} offen offset:{1024*tt} sc1", tok="w1st")
k(rdy_ld(40))
stamp("pk1")
def w1sig():
    rdy_chk(40)
    k.wait_tok("w1st")
    for u in range(3): k(f"buffer_atomic_add {v(vOne)}, v39, {ws}, {s(sPF[u])} offen sc1")
    stamp("pkf")
if opt("sf", 1): w1sig()
k(f"s_mov_b32 {s(sT[9])}, {STP}")
if XBAR >= 0: k("s_barrier")
stamp("gx1")
grp = [(o, min(4, R3 - o)) for o in range(0, R3, 4)]
LD = [rec_loads(vRx+4*o, vRt+4*o, n_, sT[5], sT[9], o) for o, n_ in grp]
for L_ in LD[:2]: k(L_)
if not opt("sf", 1): w1sig()
for q, (o, n_) in enumerate(grp):
    if q + 2 < len(grp): k(LD[q+2])
    if not WIN and q == min(opt("wp", 1), len(grp)-1): k(w1poll)
    rec_work(LD[q], vRx+4*o, vRt+4*o, n_, vW, o)
    if q == 0: stamp("rx1")
stamp("tp1")
if not WIN: w1_ready()
conv_code(False)
k(hflag_ld(1)); gap_cs()
k("s_branch Lconvd")
sConv3 = k.snap()

k.restore(sHelp)
k.raw(";WARM_OFF")
k.label("Lhelp")
if WARM:
    k(f"""s_cmp_eq_u32 {s(sWv)}, 3
    s_cbranch_scc1 Lwarm_reth
    s_mov_b64 exec, 0
    s_cmp_eq_u32 {s(sWv)}, 0
    s_cbranch_scc1 Lwarm0
    s_cmp_eq_u32 {s(sWv)}, 1
    s_cbranch_scc1 Lwarm1
    s_branch Lwarm2
    Lwarm_reth:""")
def w2_pack(su, off, sf):
    k(f"""s_lshr_b32 {s(sT[10])}, {s(su)}, 2
    s_and_b32 {s(sT[8])}, {s(su)}, 3
    s_mul_i32 {s(sf)}, {s(su)}, 2731
    s_lshr_b32 {s(sf)}, {s(sf)}, 16
    s_lshl_b32 {s(sf)}, {s(sf)}, {LS.bit_length()-1}
    s_add_u32 {s(sf)}, {s(sf)}, {FB + oW2}
    s_mul_i32 {s(sT[9])}, {s(sT[10])}, 5120
    s_lshl_b32 {s(sT[8])}, {s(sT[8])}, 8
    s_add_u32 {s(sT[9])}, {s(sT[9])}, {s(sT[8])}
    s_add_u32 {s(sT[9])}, {s(sT[9])}, {W2P}""")
    k.wait_tok("w2dma")
    stamp("hp0")
    for j in range(10):
        for hf in range(2):
            k(f"ds_read_b64_tr_b16 {v(vPd2+4*j+2*hf,2)}, {v(vPa2)} offset:{off + 5120*hf + 128*j}")
    for j in range(10):
        k(f"buffer_store_dwordx4 {v(vPd2+4*j,4)}, {v(vW2o+j)}, {ws}, {s(sT[9])} offen sc1", tok="w2st")
k(w2sel)
k(f"s_mov_b32 {s(sT[13])}, {OOB}\ns_barrier")
if HE: k(f"s_cmp_lg_u32 {s(sWv)}, 3\ns_cbranch_scc1 Lw2z")
st_ = k.snap()
w2_dma(sHw, 0)
if HE: k.label("Lw2z"); k.merge(st_)
k(f"s_cmp_ge_u32 {s(sUb)}, 192\ns_cbranch_scc1 Lw2a")
st_ = k.snap()
w2_dma(sUb, 10240)
k.label("Lw2a"); k.merge(st_)
k(f"""v_bfe_u32 v5, {v(vLane)}, 2, 2
v_mul_u32_u24 {v(vPa2)}, 1280, v5
v_and_b32 v5, 3, {v(vLane)}
v_lshl_add_u32 {v(vPa2)}, v5, 3, {v(vPa2)}
v_lshl_add_u32 {v(vPa2)}, {v(vG)}, 5, {v(vPa2)}
v_add_u32 {v(vPa2)}, {s(sStg)}, {v(vPa2)}""")
assert all((p*13108) >> 16 == p // 5 for p in range(40))
for j in range(10):
    k(f"""v_add_u32 v5, {4*j}, {v(vG)}
    v_mul_u32_u24 v6, 13108, v5
    v_lshrrev_b32 v6, 16, v6
    v_mul_u32_u24 v6, {48*5120 - 5120}, v6
    v_lshl_add_u32 v6, v5, 10, v6
    v_lshl_add_u32 {v(vW2o+j)}, {v(vN)}, 4, v6""")
k(g1setup)
PE = opt("pe", 2)
def packB():
    k(f"s_cmp_ge_u32 {s(sUb)}, 192\ns_cbranch_scc1 Lw2one")
    s1 = k.snap()
    w2_pack(sUb, 10240, sT[13])
    k.label("Lw2one")
    k.merge(s1)
if PE >= 1: w2_pack(sHw, 0, sT[11])
if PE >= 2: packB()
k(f"s_cmp_lg_u32 {s(sWv)}, 3\ns_cbranch_scc1 Lhnp")
s1 = k.snap()
k(w1poll); w1_ready()
k.label("Lhnp"); k.merge(s1)
k("s_barrier")
HW = NW1C - 2
for g_ in W1L[:HW]: k(g_)
if PE < 2: packB()
if PE < 1: w2_pack(sHw, 0, sT[11])
stamp("hp1")
k(hflag_ld(0))
k(flag("w2st", sT[11]) + flag("w2st", sT[13]))
stamp("hp2")
hflag_chk(0)
for g_ in h_dma(0) + W1L[HW:NW1C+NW1G]: k(g_)
stamp("cv1")
k(hflag_ld(1)); gap_cs()

k.label("Lconvd")
k.raw(";WARM_HERE")
k.merge(sConvMain); k.merge(sConv3)
vRa, vPark = 8, 10
vWo, vAo1, vF2, vAo2, vF2a = 16, 158, 22, 159, 155
vScW = 28
vRes, vScR, vFAd, vPf, vRr, vRr4 = 32, 42, 43, 44, 46, 47
vSt = 48
vAc = 72
vFb = 120
vTm = 144
vCs = 180
sMk, sPark = 20, 19
MB = 3
setup2 = f"""
v_lshrrev_b32 v6, 1, {v(vLane)}
v_min_u32 v6, 1, v6
v_lshl_add_u32 v6, v6, 23, {v(vLane)}
s_lshl_b32 {s(sT[5])}, {s(sWv)}, 8
v_lshl_add_u32 {v(vF2a)}, v6, 7, {s(sT[5])}
s_lshl_b32 {s(sT[5])}, {s(sHb)}, 5
v_xor_b32 v7, {s(sT[5])}, v7
s_mul_i32 {s(sT[6])}, {s(sN2)}, 5120
s_add_u32 {s(sT[6])}, {s(sT[6])}, {SLOT[0]}
s_lshl_b32 {s(sT[5])}, {s(sWv)}, 10
s_add_u32 {s(sT[5])}, {s(sT[5])}, {s(sT[6])}
v_add_u32 {v(vRa)}, {s(sT[5])}, v7
s_add_u32 {s(sT[6])}, {s(sT[6])}, 4096
v_add_u32 {v(vRa+1)}, {s(sT[6])}, v7
s_lshl2_add_u32 {s(sFAc)}, {s(sMt)}, {s(sWv)}
s_lshl_b32 {s(sFAc)}, {s(sFAc)}, {LS.bit_length()-1}
s_add_u32 {s(sFAc)}, {s(sFAc)}, {FA}
v_lshlrev_b32 {v(vScW)}, 4, v0
v_add_u32 {v(vScW+1)}, 4096, {v(vScW)}
s_mov_b32 {s(sMk)}, 0x22222222
s_mov_b32 {s(sMk+1)}, 0x22222222
s_mov_b32 {s(sMk+2)}, 0x44444444
s_mov_b32 {s(sMk+3)}, 0x44444444
s_mov_b32 {s(sMk+4)}, 0x88888888
s_mov_b32 {s(sMk+5)}, 0x88888888
v_lshrrev_b32 v7, 2, {v(vN)}
v_lshl_add_u32 v6, v7, 4, {v(vN)}
v_lshrrev_b32 v7, 1, {v(vG)}
v_lshl_add_u32 v6, v6, 1, v7
v_lshlrev_b32 {v(vScR)}, 3, v6
s_mul_i32 {s(sPark)}, {s(sWv)}, {NPARK*1024}
s_add_u32 {s(sPark)}, {s(sPark)}, {PARK}
v_add_u32 {v(vPark)}, {s(sPark)}, {v(vL16)}
v_mul_u32_u24 v7, 49152, v7
v_lshl_add_u32 v7, {v(vN)}, 4, v7
v_and_b32 v6, 1, {v(vG)}
v_lshl_add_u32 {v(vAo1)}, v6, 8, v7
v_lshl_add_u32 {v(vAo2)}, v6, 30, v7
s_lshl2_add_u32 {s(sFa)}, {s(sNt)}, {s(sWv)}
s_mul_i32 {s(sAct)}, {s(sFa)}, 768
s_mul_i32 {s(sT[5])}, {s(sMt)}, {2*49152}
s_add_u32 {s(sAct)}, {s(sAct)}, {s(sT[5])}
s_add_u32 {s(sAct)}, {s(sAct)}, {ACT}
s_lshr_b32 {s(sFa)}, {s(sNt)}, 2
s_lshl2_add_u32 {s(sFa)}, {s(sMt)}, {s(sFa)}
s_lshl_b32 {s(sFa)}, {s(sFa)}, {LS.bit_length()-1}
s_add_u32 {s(sFa)}, {s(sFa)}, {FA}
s_lshl2_add_u32 {s(sW2)}, {s(sN2)}, {s(sWv)}
s_mul_i32 {s(sW2)}, {s(sW2)}, {12*5120}
s_add_u32 {s(sW2)}, {s(sW2)}, {W2P}
v_add_u32 {v(vWo+4)}, 4096, {v(vL16)}
"""
for lam in range(4):
    setup2 += f"""s_xor_b32 {s(sT[6])}, {s(sWv)}, {lam}
    s_lshl_b32 {s(sT[6])}, {s(sT[6])}, 10
    v_add_u32 {v(vWo+lam)}, {s(sT[6])}, {v(vL16)}
    """
PFL = 480 >> MB
setup2 += f"""
s_lshl1_add_u32 {s(sT[6])}, {s(sMt)}, {s(sHb)}
s_mul_i32 {s(sAin)}, {s(sT[6])}, 49152
s_mul_i32 {s(sT[7])}, {s(sWv)}, 12288
s_add_u32 {s(sAin)}, {s(sAin)}, {s(sT[7])}
s_add_u32 {s(sAin)}, {s(sAin)}, {ACT}
s_and_b32 {s(sOut)}, {s(sMt)}, 3
s_lshl1_add_u32 {s(sOut)}, {s(sOut)}, {s(sHb)}
s_lshl_b32 {s(sOut)}, {s(sOut)}, 5
s_and_b32 {s(sT[7])}, {s(sMt)}, 12
s_add_u32 {s(sOut)}, {s(sOut)}, {s(sT[7])}
s_mul_i32 {s(sOut)}, {s(sOut)}, 1280
s_mul_i32 {s(sT[7])}, {s(sN2)}, 160
s_add_u32 {s(sOut)}, {s(sOut)}, {s(sT[7])}
v_min_u32 {v(vF2)}, {PFL//2-1}, {v(vLane)}
s_and_b32 {s(sT[6])}, {s(sMt)}, {(1<<MB)-1}
s_mul_i32 {s(sT[6])}, {s(sT[6])}, {PFL*128}
s_add_u32 {s(sT[6])}, {s(sT[6])}, {s(sW2)}
v_lshl_add_u32 {v(vF2)}, {v(vF2)}, 7, {s(sT[6])}
"""
sW2g, sAg = [26, 27, 28], [29, 30, 31]
setup2 += f"""
s_add_u32 {s(sT[6])}, {s(sMt)}, {s(sN2)}
s_mul_i32 {s(sT[7])}, {s(sT[6])}, 21846
s_lshr_b32 {s(sT[7])}, {s(sT[7])}, 16
s_mul_i32 {s(sT[7])}, {s(sT[7])}, 3
s_sub_u32 {s(sT[6])}, {s(sT[6])}, {s(sT[7])}
s_mul_i32 {s(sT[6])}, {s(sT[6])}, {opt("r2", 1)}
"""
for a_ in range(3):
    setup2 += f"""s_mul_i32 {s(sW2g[a_])}, {s(sT[6])}, {4*5120}
    s_add_u32 {s(sW2g[a_])}, {s(sW2g[a_])}, {s(sW2)}
    s_lshl_b32 {s(sAg[a_])}, {s(sT[6])}, 12
    s_add_u32 {s(sAg[a_])}, {s(sAg[a_])}, {s(sAin)}
    s_lshl_b32 {s(sT[6])}, {s(sT[6])}, 1
    s_lshr_b32 {s(sT[6])}, 9, {s(sT[6])}
    s_and_b32 {s(sT[6])}, {s(sT[6])}, 3
    """
def g1_reads(st):
    c, kk = divmod(st, 20); b = vFb + 8*(st % 3)
    return [f"ds_read_b64_tr_b16 {v(b+4*a+2*hf,2)}, {v(vBa+4*a+kk//5)} offset:{(kk % 5)*2048 + 1024*hf + 40960*(c % 2)}" for a in range(2) for hf in range(2)]
SE = opt('se', 1)
def g1_mm(st):
    c, kk = divmod(st, 20)
    b = vFb + 8*(st % 3); A = vAc + 24*(c % 2); z = "0" if kk == 0 else None
    L = [mf16(v(A+12*a+4*t,4), ar(12*kk+4*t,4), v(b+4*a,4), z) for a, t in ([(a, t) for t in range(3) for a in range(2)] if opt("ab", 1) else [(a, t) for a in range(2) for t in range(3)])]
    if kk // 5 == SE:
        z_ = "0" if kk % 5 == 0 else None
        L += sum([[mf16(v(vSt+4*a,4), v(b+4*a,4), v(b+4*a,4), z_), mf16(v(vSt+8+4*a,4), v(vOnes,4), v(b+4*a,4), z_)] for a in range(2)], [])
    if c == 0 and kk >= KCS: L += [mf16(v(vCs+4*t,4), ar(12*kk+4*t,4), v(vOnes,4), z) for t in range(3)]
    return L
def g1_statw(c):
    L = []
    for j in range(3):
        for a in range(2): L.append(f"v_cndmask_b32 {v(vSt+9+4*a)}, {v(vSt+4*a) if j == 0 else v(vSt+9+4*a)}, {v(vSt+4*a+1+j)}, {s(sMk+2*j,2)}")
    if opt("sw", 0): return L + [f"ds_write_b64 {v(vScW + c % 2)}, {v(vSt+8,2)}", f"ds_write_b64 {v(vScW + c % 2)}, {v(vSt+12,2)} offset:8"]
    return L + [f"ds_write2_b64 {v(vScW + c % 2)}, {v(vSt+8,2)}, {v(vSt+12,2)} offset0:0 offset1:1"]
S, Q, M, Z, S2 = vTm, vTm+1, vTm+8, vTm+10, vTm+12
def g1_statr(c):
    o = 8*(c % 2)
    return [f"ds_read2st64_b64 {v(vTm+4*w,4)}, {v(vScR)} offset0:{o+4*w} offset1:{o+4*w+2}" for w in range(2)]
def g1_epi(c, pk=False):
    A = vAc + 24*(c % 2)
    L = [f"v_add_f32 {v(S)}, {v(S)}, {v(S+2)}", f"v_add_f32 {v(Q)}, {v(Q)}, {v(Q+2)}", f"v_add_f32 {v(S+4)}, {v(S+4)}, {v(S+6)}", f"v_add_f32 {v(Q+4)}, {v(Q+4)}, {v(Q+6)}",
         f"v_add_f32 {v(S)}, {v(S)}, {v(S+4)}", f"v_add_f32 {v(Q)}, {v(Q)}, {v(Q+4)}",
         f"v_mul_f32 {v(S)}, {INV640}, {v(S)}", f"v_mul_f32 {v(Q)}, {INV640}, {v(Q)}",
         f"v_cvt_pk_bf16_f32 {v(M)}, 0, {v(S)}", f"v_cvt_pk_bf16_f32 {v(M+1)}, 0, {v(S)}",
         f"v_fma_f32 {v(Q)}, -{v(S)}, {v(S)}, {v(Q)}", f"v_max_f32 {v(Q)}, 0, {v(Q)}",
         f"v_permlane32_swap_b32 {v(M)}, {v(M+1)}",
         f"v_cvt_pk_bf16_f32 {v(Q)}, 0, {v(Q)}",
         f"v_add_f32 {v(Q)}, 0x3727c5ac, {v(Q)}", f"v_cvt_pk_bf16_f32 {v(Q)}, 0, {v(Q)}"]
    R = vTm + 16
    cen = [f"v_fma_f32 {v(A+12*a+j)}, -{v(vCs+j)}, {v(M+a)}, {v(A+12*a+j)}" for j in range(12) for a in range(2)]
    L += [f"v_sqrt_f32 {v(Q)}, {v(Q)}"] + cen[:2] + [f"v_cvt_pk_bf16_f32 {v(Q)}, 0, {v(Q)}"] + cen[2:3] + [f"v_rcp_f32 {v(Z)}, {v(Q)}", f"v_mul_f32 {v(S2)}, {v(Q)}, {v(Q)}"] + cen[3:4]
    L += [f"v_mul_f32 {v(Z)}, 0xbfb8aa3b, {v(Z)}"] + cen[4:]
    L += [f"v_permlane32_swap_b32 {v(A+j)}, {v(A+12+j)}" for j in range(12)]
    chains = []
    for j in range(6):
        g_, u_ = A+2*j, A+12+2*j
        z = vTm + 24 + 2*j
        if pk:
            ch = [f"v_pk_mul_f32 {v(z,2)}, {v(g_,2)}, {v(Z,2)} op_sel_hi:[1,0]",
                  f"v_exp_f32 {v(z)}, {v(z)}", f"v_exp_f32 {v(z+1)}, {v(z+1)}",
                  f"v_pk_mul_f32 {v(g_,2)}, {v(g_,2)}, {v(u_,2)}",
                  f"v_pk_fma_f32 {v(z,2)}, {v(z,2)}, {v(S2,2)}, {v(S2,2)} op_sel_hi:[1,0,0]",
                  f"v_rcp_f32 {v(z)}, {v(z)}", f"v_rcp_f32 {v(z+1)}, {v(z+1)}",
                  f"v_pk_mul_f32 {v(g_,2)}, {v(g_,2)}, {v(z,2)}"]
        else:
            ch = [f"v_mul_f32 {v(z)}, {v(g_)}, {v(Z)}", f"v_mul_f32 {v(z+1)}, {v(g_+1)}, {v(Z)}",
                  f"v_exp_f32 {v(z)}, {v(z)}", f"v_exp_f32 {v(z+1)}, {v(z+1)}", f"v_mul_f32 {v(g_)}, {v(g_)}, {v(u_)}", f"v_mul_f32 {v(g_+1)}, {v(g_+1)}, {v(u_+1)}",
                  f"v_fma_f32 {v(z)}, {v(z)}, {v(S2)}, {v(S2)}", f"v_fma_f32 {v(z+1)}, {v(z+1)}, {v(S2)}, {v(S2)}",
                  f"v_rcp_f32 {v(z)}, {v(z)}", f"v_rcp_f32 {v(z+1)}, {v(z+1)}",
                  f"v_mul_f32 {v(g_)}, {v(g_)}, {v(z)}", f"v_mul_f32 {v(g_+1)}, {v(g_+1)}, {v(z+1)}"]
        chains.append(ch + [f"v_cvt_pk_bf16_f32 {v(R+j)}, {v(g_)}, {v(g_+1)}"])
    sw = [f"v_permlane16_swap_b32 {v(R+4)}, {v(R+6)}", f"v_permlane16_swap_b32 {v(R+5)}, {v(R+7)}"]
    sw += [f"s_add_u32 {s(sT[5])}, {s(sAct)}, {32*49152*c}", (f"buffer_store_dwordx4 {v(R+4,4)}, {v(vAo2)}, {ws}, {s(sT[5])} offen offset:512 sc1", f"a{c}")]
    if pk:
        z01 = zipper(chains[0], chains[1])
        L += zipper(chains[4], chains[5]) + z01[:2] + sw + z01[2:] + zipper(chains[2], chains[3])
    else: L += chains[4] + chains[5] + chains[0][:2] + sw + chains[0][2:] + chains[1] + chains[2] + chains[3]
    L += [(f"buffer_store_dwordx4 {v(R,4)}, {v(vAo1)}, {ws}, {s(sT[5])} offen sc1", f"a{c}")]
    return L
w2fl = apoll(vFAd, vF2a, oW2)
def w2_ready(): check(w2fl, [vFAd], 5, 2, 24)
def w2pf(j): return ["s_nop 0"] if not opt("pf2", 0) else [f"buffer_load_dword {v(vPf+j)}, {v(vF2)}, {ws}, 0 offen offset:{PFL*64*j} sc1"]
NPRE = 20
NLATE = 60 - NPRE - NPARK
NA0 = opt("na0", 12)
def w2reg(j):
    if j < 16: return v(192 + 4*j, 4)
    if j < NPRE: return ar(240 + 4*(j-16), 4)
    if j < NPRE + NPARK: return ar(4*(NLATE + 12) + 4*(j - NPRE), 4)
    q = j - NPRE - NPARK
    return ar(4*q if q < NA0 else 4*q + 48, 4)
def w2seq(js):
    out = []; cur = None
    for j in js:
        ks, lam = divmod(j, 5)
        x = [] if ks == cur else [f"s_add_u32 {s(sT[8])}, {s(sW2g[ks//4])}, {5120*(ks % 4)}"]
        cur = ks
        if NPRE <= j < NPRE + NPARK:
            out.append(x + [f"s_add_u32 m0, {s(sPark)}, {1024*(j - NPRE)}", (f"buffer_load_dwordx4 {v(vWo+lam)}, {ws}, {s(sT[8])} offen sc1 lds", "park")])
        else: out.append(x + [f"buffer_load_dwordx4 {w2reg(j)}, {v(vWo+lam)}, {ws}, {s(sT[8])} offen sc1"])
    return out
unpark = [f"ds_read_b128 {w2reg(NPRE+j)}, {v(vPark)} offset:{1024*j}" for j in range(NPARK)]
def aflag_ld(i): return apoll(vFAd, vFl0, 4*i, sFAc)
def aflag_chk(i):
    if opt("p2", 0) & 2: check2(vFAd, vFl0, 4*i, sFAc, 1, 16, 44, 45)
    else: check(aflag_ld(i), [vFAd], 5, 1, 16)
def abuf(i, ks): return ar(4*NA0 + 4*ks, 4) if i % 3 == 0 else v(144 + 4*ks, 4) if i == 2 else v((72 if ks < 6 else 96) + 4*ks, 4)
def act_loads(i):
    L = []
    for ks in range(12):
        x = [f"s_add_u32 {s(sT[4])}, {s(sAg[ks//4])}, {32*49152*i}"] if ks % 4 == 0 else []
        L.append(x + [f"buffer_load_dwordx4 {abuf(i, ks)}, {v(vL16)}, {ws}, {s(sT[4])} offen offset:{1024*(ks%4)} sc1"])
    return L
late = w2seq(range(NPRE+NPARK, 60))
C3L = late[:NA0] + act_loads(0) + late[NA0:]
C3L[NA0] = [lambda: aflag_chk(0)] + C3L[NA0]
def res_reads(c):
    def f():
        k(f"ds_read_b64_tr_b16 {v(vRes+2*c,2)}, {v(vRa)} offset:{40960*(c % 2)}")
        Ls = k.lab("Lr4")
        k(f"s_cmp_lg_u32 {s(sWv)}, {c}\ns_cbranch_scc1 {Ls}")
        s1 = k.snap()
        k(f"ds_read_b64_tr_b16 {v(vRes+8,2)}, {v(vRa+1)} offset:{40960*(c % 2)}")
        k.label(Ls); k.merge(s1)
    return f
mm = []; cum = []
for st in range(80): cum.append(len(mm)); mm += g1_mm(st)
cum.append(len(mm))
G = lambda c, kk, d=0: cum[20*c + kk] + d
assert opt("xr", 0) == 0
rd = []
urgent = []; normal = []; checks = []
BG = opt('bg', 1)
def boundary(c):
    def f(U, N):
        stamp(f"b{c}a"); k(list(U)); U.clear(); stamp(f"b{c}b")
        if c < 3: k.wait_tok(f"h{c+1}", n=10)
        stamp(f"b{c}c")
        bar(); stamp(f"c{c+1}")
    return f
def flush(nm):
    def f(U, N):
        print(nm, "leftover", len(U), len(N)); stamp("f" + nm[-1] + "a"); k((U + N)[:-1]); stamp("f" + nm[-1] + "b"); k((U + N)[-1:]); stamp("f" + nm[-1] + "c"); U.clear(); N.clear()
    return f
for st in range(2, 80):
    c, kk = divmod(st, 20)
    if kk == 0: rd += spread(g1_reads(st), G(c-1, 18, BG), G(c-1, 19), G(c-1, 19))
    else: rd += spread(g1_reads(st), cum[st-2], cum[st-1], cum[st-1] - 1 if kk == 19 else cum[st-1] + 1)
for c in range(4):
    urgent.append((G(c, 6), [res_reads(c)]))
    urgent.append((G(c, opt('sw_', 16), 3), g1_statw(c)))
    checks.append((G(c, 18, BG), boundary(c)))
    normal.append((G(c+1, 0, 1), g1_epi(c)))
    if c > 0: checks.append((G(c, 19, opt("fl", 5) if c < 3 else 1), flush(f"chunk {c}")))
    urgent.append((G(c, 19, 2), g1_statr(c)))
    if c >= 2: urgent.append((G(c, opt("fk", 6)), flag(f"a{c-2}", sFa, 4*(c-2), False)))
normal.append((0, lines(setup2)))
def noleft(U, N): assert not N
def pace(items, ga, gb):
    for j, g_ in enumerate(items): urgent.append((ga + (gb - ga)*j//len(items), g_))
rest = W1L[NW1C+NW1G:]
n0, n1_, p1 = opt("n0", 6), opt("n1", 13), opt("p1", 9)
hd = h_dma(1); hd[0] = [lambda: hflag_chk(1)] + hd[0]
w20 = w2seq(range(n0)); w20[0] = [w2_ready] + w2pf(0) + w20[0]
c0l = rest[:opt("r0", 12)] + hd + rest[opt("r0", 12):]
g_a = G(0, 19)*len(c0l)//(len(c0l) + n0)
pace(c0l, 1, g_a); pace(w20, g_a, G(0, 19))
H1POS = 1 + (g_a - 1)*opt('r0', 12)//len(c0l)
checks.append((g_a, noleft))
urgent += [(g_a - opt('w2q', 50), w2fl), (G(0, opt("hp2", 11)), hflag_ld(2))]
hd = h_dma(2); hd[0] = [lambda: hflag_chk(2)] + hd[0]
pace(hd + [w2pf(1)] + w2seq(list(range(NPRE, NPRE+p1)) + list(range(n0, n1_))), G(0, 19), G(1, 19))
pace(h_dma(3) + w2seq(list(range(NPRE+p1, NPRE+NPARK)) + list(range(n1_, NPRE))), G(1, 19), G(2, 19))
urgent.append((G(2, 19), aflag_ld(0)))
urgent.append((G(3, 14), aflag_ld(1)))
NW2C3 = min(NW2C3, len(C3L))
for j in range(NW2C3): urgent.append((max(G(3, j//3 + 1), G(3, 1) + (G(3, 19, 4) - G(3, 1))*j//NW2C3), C3L[j]))
for st in range(80): checks.append((cum[st], (lambda nm: lambda U, N: stamp(nm))(f'g{st}')))
assert NW2C3 == len(C3L)
vRw = [12, 13, 14, 15, 47]
vA2 = [48, 96]
assert all((p*6554) >> 16 == p // 10 for p in range(256))
g2b = ""
for lam in range(4):
    g2b += f"""s_xor_b32 {s(sT[7])}, {s(sWv)}, {lam}
    s_lshl_b32 {s(sT[7])}, {s(sT[7])}, 6
    s_sub_u32 {s(sT[7])}, {s(sT[7])}, 256
    v_add_u32 {v(vRw[lam])}, {s(sT[7])}, {v(vRw[4])}
    """
normal.append((1, lines(f"""s_sub_u32 {s(sT[6])}, 3, {s(sWv)}
s_mul_i32 {s(sT[6])}, {s(sT[6])}, {4*RW}
s_add_u32 {s(sT[6])}, {s(sT[6])}, {RED + 256}
v_mul_u32_u24 v6, 336, {v(vN)}
v_lshl_add_u32 v6, {v(vG)}, 4, v6
v_add_u32 {v(vRw[4])}, {s(sT[6])}, v6""")))
vRr, vOo = [16, 17, 18], [19, 20, 21]
g2c = lines(f"""v_min_u32 v22, 239, v0
v_mul_u32_u24 v23, 6554, v22
v_lshrrev_b32 v23, 16, v23
v_lshlrev_b32 v6, 5, v22
v_lshl_add_u32 v6, v23, 4, v6
v_add_u32 {v(vRr[0])}, {RED}, v6
v_add_u32 {v(vRr[1])}, {RED + 24*336}, v6
v_min_u32 v6, {RW - 48}, v6
v_add_u32 {v(vRr[2])}, {RED + 48*336}, v6
v_mul_u32_u24 v6, 10, v23
v_sub_u32 v22, v22, v6
v_lshlrev_b32 v22, 4, v22""")
for r_, (r0, lim) in enumerate(((0, 240), (24, 240), (48, 160))):
    o = vOo[r_]
    g2c += lines(f"""v_add_u32 v6, {r0}, v23
    v_and_b32 {v(o)}, 3, v6
    v_bfe_u32 v7, v6, 2, 1
    v_lshl_add_u32 {v(o)}, v7, 8, {v(o)}
    v_bfe_u32 v7, v6, 3, 1
    v_lshl_add_u32 {v(o)}, v7, 4, {v(o)}
    v_lshrrev_b32 v7, 4, v6
    v_lshl_add_u32 {v(o)}, v7, 9, {v(o)}
    v_mul_u32_u24 {v(o)}, 1280, {v(o)}
    v_add_u32 v7, {256 - lim}, v0
    v_lshrrev_b32 v7, 8, v7
    v_lshl_add_u32 v7, v7, 30, v22
    v_add_u32 {v(o)}, {v(o)}, v7""")
def g2_init(i):
    A = vA2[i % 2]; r = vRes + 2*i
    def sel(): k(f"s_cmp_eq_u32 {s(sWv)}, {i}\ns_cselect_b32 {s(sT[9])}, 0x01000c0c, {s(sT[12])}\ns_cselect_b32 {s(sT[10])}, 0xffff0000, 0")
    return [f"s_mov_b32 {s(sT[12])}, 0x0c0c0c0c", sel,
            f"v_lshlrev_b32 {v(A)}, 16, {v(r)}", f"v_and_b32 {v(A+1)}, 0xffff0000, {v(r)}", f"v_lshlrev_b32 {v(A+2)}, 16, {v(r+1)}", f"v_and_b32 {v(A+3)}, 0xffff0000, {v(r+1)}",
            f"v_perm_b32 {v(A+16)}, {v(vRes+8)}, {v(vRes+8)}, {s(sT[9])}", f"v_and_b32 {v(A+17)}, {s(sT[10])}, {v(vRes+8)}",
            f"v_perm_b32 {v(A+18)}, {v(vRes+9)}, {v(vRes+9)}, {s(sT[9])}", f"v_and_b32 {v(A+19)}, {s(sT[10])}, {v(vRes+9)}"]
def g2_write(i, lam): return f"ds_write_b128 {v(vRw[lam])}, {v(vA2[i % 2]+4*lam,4)} offset:{RW*i}"
OF = {0: "", 1: " sc1", 2: " nt", 3: " sc0 sc1"}[opt("of", 2)]
def g2_rd(r_): return [f"ds_read_b128 {v(120 + 32*(r_ % 2) + 8*w + 4*h_,4)}, {v(vRr[r_])} offset:{4*RW*w + 16*h_}" for w in range(4) for h_ in range(2)]
def fin(r_, pk=False):
    P = 120 + 32*(r_ % 2); L = []
    for d, x in ((0, 1), (2, 3), (0, 2)):
        if pk: L += [f"v_pk_add_f32 {v(P+8*d+2*j,2)}, {v(P+8*d+2*j,2)}, {v(P+8*x+2*j,2)}" for j in range(4)]
        else: L += [f"v_add_f32 {v(P+8*d+j)}, {v(P+8*d+j)}, {v(P+8*x+j)}" for j in range(8)]
    L += [f"v_cvt_pk_bf16_f32 {v(72+4*r_+j)}, {v(P+2*j)}, {v(P+2*j+1)}" for j in range(4)]
    return L + [f"buffer_store_dwordx4 {v(72+4*r_,4)}, {v(vOo[r_])}, {s(OUTR,4)}, {s(sOut)} offen{OF}"]
T0 = len(mm); AP = opt("ap", 4); KL = opt("kl", 6)
urgent.append((G(3, 19, 3), g2_init(0)))
checks.append((T0 - 1, flush("pre tile 0")))
for i in range(4):
    A = vA2[i % 2]; b_ = T0 + 60*i
    CH = opt("ch2", 3)
    order = [(ks, lam) for k0 in range(0, 12, CH) for lam in (1, 2, 3, 0, 4) for ks in range(k0, k0+CH)]
    if i == 3: order = order[:60-5*KL] + [(ks, lam) for lam in (4, 1, 2, 3, 0) for ks in range(12-KL, 12)]
    mm += [mf16(v(A+4*lam,4), w2reg(5*ks+lam), abuf(i, ks), "0" if (ks == 0 and lam in (1, 2, 3)) else None) for ks, lam in order]
    checks.append((b_, (lambda nm: lambda U, N: stamp(nm))(f"t{i}")))
    if i < 3:
        g0 = b_ + opt(f"ac{i+1}", [0, 10, 18][i])
        if i: urgent.append((g0 - opt(f"pa{i+1}", [0, 28, 34][i]), aflag_ld(i+1)))
        urgent.append((g0, [(lambda j: lambda: aflag_chk(j))(i+1)]))
        urgent += [(g0 + (AP if i < 2 else opt('ap3', 3))*j, g_) for j, g_ in enumerate(act_loads(i+1))]
    if i:
        wsp = 2 if i == 3 else 4
        urgent += [(b_ + 1 + wsp*j, [g2_write(i-1, lam)]) for j, lam in enumerate((1, 2, 3, 0, 4))]
        if i < 3: normal.append((b_ + 24, g2_init(i+1) + (g2c if i == 1 else [])))
    if i == 3:
        gb = b_ + opt("gb", 13)
        urgent.append((gb, [bar] + g2_rd(0)))
        normal += [(gb + 7, fin(0)[:8] + g2_rd(1) + fin(0)[8:] + fin(1))]
    checks.append((b_ + 59, flush(f"tile {i}")))
normal.append((T0 + 2, [stampc("g1e")] + lines(g2b) + g2_init(1)))
rd += [(T0-1, T0 + j*9//NPARK, T0 + 4 + j//2, x) for j, x in enumerate(unpark)]
checks.append((T0 - 1, lambda U, N: k.wait_tok("park", n=NPARK)))
urgent += [(T0 + opt("f2", 22), flag("a2", sFa, 8, False)), (T0 + opt("f3", 68), flag("a3", sFa, 12, False) + [stampc("afl")])]
f1, f2 = hflag("hB", 2)
urgent += [(opt("fB", 20), f1), (opt("fB", 20) + 6, f2)]
e3 = T0 + 240
urgent += [(e3 - 4*KL + 2 + KL*j, [g2_write(3, lam)]) for j, lam in enumerate((4, 1, 2, 3))]
for j in range(0, 240, 10): checks.append((T0 + j, (lambda nm: lambda U, N: stamp(nm))(f'm{j}')))
def _t(x): return x[0] if isinstance(x, tuple) else x if isinstance(x, str) else ""
if DBG & 1: urgent = [(g_, [x for x in it if not (g_ < G(3, 0) and _t(x).startswith("buffer_load_dwordx4") and f", {s(sT[8])} offen" in _t(x))]) for g_, it in urgent]
if DBG & 2: urgent = [(g_, [x for x in it if not (g_ < G(1, 0) and _t(x).startswith("buffer_load_dwordx4 a["))]) for g_, it in urgent]
if DBG & 4: urgent = [(g_, [x for x in it if not (G(3, 0) <= g_ < T0 and _t(x).startswith("buffer_load_dwordx4"))]) for g_, it in urgent]
if DBG & 8: normal = [(g_, [x for x in it if not (g_ < T0 and _t(x).startswith("buffer_store"))]) for g_, it in normal]
urgent.sort(key=lambda e: e[0])
EARLY = opt("early", 0)
if EARLY:
    for j in range(2, 5): checks.append((cum[j-2], (lambda j: lambda U, N: k.wait_tok(f"h0{j}"))(j)))
    checks.append((cum[3], lambda U, N: (bar(), stamp("c0b"))))
    assert H1POS > cum[3]
    k.wait_tok("h00")
    stamp("c0")
    k(g1_reads(0)); k.wait_tok("h01"); k(g1_reads(1))
else:
    k.wait_tok("h04"); bar(); stamp("c0"); k(g1_reads(0) + g1_reads(1))
sched(k, mm, rd, urgent, normal, checks, slotf=lambda i: opt("s0", 5) if T0 <= i < T0 + 60 else 2)
stamp("t4")
k(g2_write(3, 0))
bar()
k(g2_rd(2))
k(fin(2, True))
stamp("g2e")
k(f"""s_or_b32 {s(sT[4])}, s2, {s(sWv)}
s_cmp_lg_u32 {s(sT[4])}, 0
s_cselect_b32 {s(sT[4])}, {OOB}, 0
buffer_store_dword {v(vTagv)}, {v(vFl0)}, {ws}, {s(sT[4])} offen""")
if STAMP:
    k("s_waitcnt vmcnt(0)")
    stamp("end")
    k(f"""s_lshl2_add_u32 {s(sT[4])}, s2, {s(sWv)}
    s_lshl_b32 {s(sT[4])}, {s(sT[4])}, 7
    s_add_u32 {s(sT[4])}, {s(sT[4])}, {STB}""")
    for i in range(len(SEL)):
        k(f"v_mov_b32 v5, {s(sStamp+2*i)}\nbuffer_store_dword v5, {v(vFl0)}, {ws}, {s(sT[4])} offen offset:{4*i}")
k("s_endpgm")
k.raw(";WARM_END")
k.out += SLOW
k.out += TABTXT
k.raw("Lcode_end:")
hdr = "".join(l for l in open("cdna_kernels/" + NAME + ".s.ref").readlines()[:18] if l.startswith(";") and "@launch" not in l)
if STAMP: hdr += "; stamps: " + ",".join(SEL) + "\n"
def add_warm():
    import subprocess, re, tempfile, os
    d = tempfile.mkdtemp()
    open(d + "/t.s", "w").write(k.text(hdr, 256, 256, LDS_BYTES).replace(";WARM_HERE", "Lwarm0:\nLwarm1:\nLwarm2:"))
    subprocess.run(["clang", "-x", "assembler", "-target", "amdgcn-amd-amdhsa", "-mcpu=gfx950", "-c", d + "/t.s", "-o", d + "/t.o"], check=True)
    dis = subprocess.run(["llvm-objdump", "-d", "--mcpu=gfx950", d + "/t.o"], capture_output=True, text=True).stdout
    dis = dis[dis.index("_kernel>:"):]
    sizes = [4*len(m.group(1).split()) for m in re.finditer(r"// [0-9A-F]+: ([0-9A-F ]+?)(?: <.*)?$", dis, re.M)]
    out = []; pos = 0; n = 0; on = False; want = False; links = 0; started = False; STEP = opt("wstep", 4096)
    for l in k.out:
        if l.endswith("_kernel:"): started = True
        if l == ";WARM_BEGIN": on = True; continue
        if l in (";WARM_OFF", ";WARM_END"): on = False; want = False; continue
        if l == ";WARM_HERE":
            on = True; out.append(f"Lwarm{links}:\n    s_cbranch_execz Lwarm{links+3}"); links += 1; pos += 4; want = False; continue
        out.append(l)
        if not (started and l.startswith("    ")): continue
        p0 = pos; pos += sizes[n]; n += 1
        if on and pos // STEP != p0 // STEP: want = True
        if want and (l.startswith("    v_mfma") or pos % STEP >= 40) and "exec" not in l:
            out.append(f"Lwarm{links}:\n    s_cbranch_execz Lwarm{links+3}"); links += 1; pos += 4; want = False
    k.out = [re.sub(r"execz Lwarm(\d+)$", lambda m: m.group(0) if int(m.group(1)) < links else "execz Lwarm_ret", x) for x in out]
    print("warm links", links, "code bytes", pos)
if WARM: add_warm()
open(OUT, "w").write(k.text(hdr, 256, 256, LDS_BYTES))
print("instructions", k.nins, "nops", k.nnop)
```

```python
import re, copy
NAME = "sequential_preLN__ssm_conv_s4__swiglu_ffn__prompt"

_REG = re.compile(r"^[-|]*\s*(?:abs\()?([vas])(?:(\d+)|\[(\d+):(\d+)\])\)?\|?$")
TRANS = ("v_exp_f32", "v_log_f32", "v_rcp_f32", "v_rsq_f32", "v_sqrt_f32", "v_sin_f32", "v_cos_f32", "v_rcp_iflag_f32")

def regs_of(op):
    op = op.strip()
    if op in ("vcc", "vcc_lo", "vcc_hi"): return {"vcc"}
    if op in ("exec", "exec_lo", "exec_hi"): return {"exec"}
    if op == "m0": return {"m0"}
    m = _REG.match(op)
    if not m: return set()
    k = m.group(1)
    if m.group(2) is not None: return {f"{k}{m.group(2)}"}
    return {f"{k}{i}" for i in range(int(m.group(3)), int(m.group(4)) + 1)}

class Ins:
    __slots__ = ("text", "mn", "ops", "mods", "dst", "src", "cls", "passes", "srcc", "srcab", "tok")
    def __init__(self, text, tok=None):
        self.text = text; self.tok = tok
        body = text.split(";")[0].strip()
        parts = body.split(None, 1)
        mn = self.mn = parts[0]
        rest = parts[1] if len(parts) > 1 else ""
        ops, depth, cur = [], 0, ""
        for ch in rest:
            if ch in "[(": depth += 1
            if ch in "])": depth -= 1
            if ch == "," and depth == 0: ops.append(cur.strip()); cur = ""
            else: cur += ch
        if cur.strip(): ops.append(cur.strip())
        mods = ""
        if ops:
            last = ops[-1].split(None, 1)
            ops[-1] = last[0]
            mods = last[1] if len(last) > 1 else ""
        self.ops, self.mods = ops, mods
        R = [regs_of(o) for o in ops]
        allr = set().union(*R) if R else set()
        tail = set().union(*R[1:]) if len(R) > 1 else set()
        self.passes = 0; self.srcc = set(); self.srcab = set()
        if mn.startswith("v_mfma") or mn.startswith("v_smfmac"):
            self.cls = "mfma"; self.dst = R[0]; self.src = tail
            self.srcab = R[1] | R[2]; self.srcc = R[3] if len(R) > 3 else set()
            self.passes = 8 if "32x32" in mn else 4
        elif mn.startswith("v_"):
            self.cls = "valu"
            if "permlane" in mn and "swap" in mn: self.dst = allr; self.src = allr
            elif mn.startswith(("v_add_co", "v_sub_co", "v_addc_co", "v_subb_co", "v_subrev_co", "v_mad_u64_u32", "v_div_scale")):
                self.dst = R[0] | R[1]; self.src = set().union(*R[2:])
            elif mn.startswith(("v_fmac", "v_dot2c", "v_pk_fmac", "v_writelane")) or "dpp" in mn or "row_" in mods or "quad_perm" in mods or "UNUSED_PRESERVE" in mods:
                self.dst = R[0]; self.src = allr
            elif mn == "v_nop": self.dst = set(); self.src = set()
            else: self.dst = R[0]; self.src = tail
        elif mn.startswith("ds_"):
            self.cls = "ds"
            if mn.startswith(("ds_read", "ds_bpermute", "ds_permute", "ds_swizzle")) or "_rtn" in mn:
                self.dst = R[0]; self.src = tail
                if "d16" in mn: self.src = allr
            else: self.dst = set(); self.src = allr
            if "addtid" in mn: self.src = self.src | {"m0"}
        elif mn.startswith(("buffer_", "global_")):
            self.cls = "vmem"
            islds = mn.startswith("global_load_lds") or re.search(r"\blds\b", mods) is not None
            if islds: self.dst = set(); self.src = allr | {"m0"}
            elif "_load" in mn:
                self.dst = R[0]; self.src = allr if "d16" in mn else tail
            elif "atomic" in mn and "sc0" in mods: self.dst = R[0]; self.src = allr
            else: self.dst = set(); self.src = allr
        elif mn.startswith(("s_load", "s_buffer_load", "s_memtime", "s_memrealtime")):
            self.cls = "smem"; self.dst = R[0]; self.src = tail
        elif mn.startswith("s_"):
            self.cls = "salu"
            if mn.startswith(("s_cmp", "s_bitcmp", "s_waitcnt", "s_barrier", "s_branch", "s_cbranch", "s_nop", "s_setprio", "s_sleep", "s_endpgm", "s_setpc", "s_setreg")):
                self.dst = set(); self.src = allr
                if "vcc" in mn: self.src = {"vcc"}
            elif "saveexec" in mn: self.dst = R[0] | {"exec"}; self.src = tail | {"exec"}
            elif mn.startswith(("s_addk", "s_mulk", "s_cmov")): self.dst = R[0]; self.src = allr
            else: self.dst = R[0]; self.src = tail
        else:
            raise ValueError("unknown instruction: " + text)

class State:
    def __init__(self):
        self.vm = []
        self.lg = []
        self.sm = set()
        self.hist = []

class K:
    def __init__(self):
        self.out = []; self.st = State(); self.uid = 0; self.kernels = []; self.launches = []
        self.nins = 0; self.nnop = 0; self.marks = []; self.tokn = {}; self.poison = set()
    def raw(self, s): self.out.append(s)
    def lab(self, base="L"):
        self.uid += 1; return f"{base}{self.uid}"
    def label(self, name): self.out.append(name + ":")
    def _age(self, n):
        h = [(i, a + n) for i, a in self.st.hist if a + n < 24]
        self.st.hist = h
    def _put(self, text, ins=None, states=1):
        self.out.append("    " + text); self.nins += 1
        self._age(states)
        if ins is not None: self.st.hist.append((ins, 0))
    def _need(self, q, regs, cap):
        idx = -1
        for i, e in enumerate(q):
            if e & regs: idx = i
        if idx < 0: return None
        return min(len(q) - 1 - idx, cap)
    def _wait(self, vm=None, lg=None):
        st = self.st; parts = []
        if vm is not None:
            parts.append(f"vmcnt({vm})"); st.vm = st.vm[len(st.vm) - vm:] if vm else []
        if lg is not None:
            parts.append(f"lgkmcnt({lg})"); st.lg = st.lg[len(st.lg) - lg:] if lg else []
            if lg == 0: st.sm = set()
        if parts: self._put("s_waitcnt " + " ".join(parts))
    def wait_tok(self, *toks, n=1):
        for x in toks: assert self.tokn.get(x, 0) >= n, (x, self.tokn.get(x, 0), n)
        t = {"#" + x for x in toks}
        vm = self._need(self.st.vm, t, 63); lg = self._need(self.st.lg, t, 15)
        self._wait(vm, lg)
    def wait_all(self, vm=True, lg=True):
        self._wait(0 if vm else None, 0 if lg else None)
    def _hazard(self, c):
        need = 0
        touch = c.src | c.dst
        for p, age in self.st.hist:
            w = 0
            if p.cls == "valu":
                vd = {r for r in p.dst if r[0] in "va" and r != "vcc"}
                sd = p.dst - vd
                if vd & c.src:
                    if c.cls == "mfma": w = 2
                    elif c.cls == "valu":
                        if "permlane" in c.mn or "dpp" in c.mn or "row_" in c.mods or "quad_perm" in c.mods: w = 2
                        elif c.mn.startswith(("v_readlane", "v_readfirstlane")): w = 1
                        if p.mn.startswith(TRANS): w = max(w, 1)
                        if p.mn.startswith("v_dot2") and p.mn != c.mn: w = max(w, 3)
                        if "sdwa" in p.mn and "dst_sel:DWORD" not in p.mods: w = max(w, 1)
                if c.cls == "mfma" and p.mn.startswith(("v_pk_", "v_dot", "v_mov_b64")): w = max(w, 2)
                if sd & c.src:
                    if c.cls == "vmem": w = max(w, 5)
                    elif c.cls == "valu": w = max(w, 4 if "lane" in c.mn else 2)
                    elif c.cls == "salu" and "cbranch" not in c.mn: w = max(w, 1)
            elif p.cls == "mfma":
                big = p.passes == 8
                if c.cls == "mfma":
                    if p.dst & c.srcab: w = 12 if big else 8
                    if p.dst & c.srcc and not (p.dst == c.srcc and p.passes == c.passes): w = max(w, 10 if big else 6)
                    if p.dst & c.dst and not (p.dst == c.dst and p.passes == c.passes): w = max(w, 10 if big else 6)
                elif p.dst & touch: w = 12 if big else 8
                if c.cls == "valu" and p.srcc & c.dst: w = max(w, 7 if big else 3)
            elif p.cls == "salu":
                if "m0" in p.dst and "m0" in c.src and c.cls in ("ds", "vmem"): w = 1
            elif p.cls == "vmem":
                if ("store" in p.mn) and ("x3" in p.mn or "x4" in p.mn) and c.cls != "salu":
                    data = regs_of(p.ops[0]) if p.mn.startswith("buffer") else regs_of(p.ops[1])
                    if data & c.dst: w = 2
            need = max(need, w - age)
        return need
    def ins(self, text, tok=None):
        c = Ins(text, tok); st = self.st
        if c.mn == "s_waitcnt":
            vm = re.search(r"vmcnt\((\d+)\)", text); lg = re.search(r"lgkmcnt\((\d+)\)", text)
            vm = int(vm.group(1)) if vm else None; lg = int(lg.group(1)) if lg else None
            if vm is not None and vm > len(st.vm): st.vm = [set()] * (vm - len(st.vm)) + st.vm
            if lg is not None and lg > len(st.lg): st.lg = [set()] * (lg - len(st.lg)) + st.lg
            self._wait(vm, lg); return
        assert not (c.src & self.poison), (text, c.src & self.poison)
        self.poison -= c.dst
        touch = c.src | c.dst
        vm = self._need(st.vm, touch, 63); lg = self._need(st.lg, touch, 15)
        if st.sm & touch: lg = 0
        self._wait(vm, lg)
        n = self._hazard(c)
        while n > 0:
            k = min(n, 16); self._put(f"s_nop {k-1}", None, k); self.nnop += 1; n -= k
        states = int(c.ops[0]) + 1 if c.mn == "s_nop" else 1
        self._put(text, c, states)
        if tok: self.tokn[tok] = self.tokn.get(tok, 0) + 1
        e = set(c.dst) | ({"#" + tok} if tok else set())
        if c.cls == "vmem": st.vm.append(e)
        elif c.cls == "ds": st.lg.append(e)
        elif c.cls == "smem": st.sm |= (c.dst or {"?"})
    def __call__(self, s, tok=None):
        if isinstance(s, (list, tuple)):
            for x in s:
                if callable(x): x()
                elif isinstance(x, tuple): self(x[0], x[1])
                else: self(x)
            return
        for l in s.split("\n"):
            l = l.strip()
            if not l or l.startswith(";"): continue
            if l.endswith(":"): self.label(l[:-1])
            elif l.startswith("."): self.raw(l)
            else: self.ins(l, tok)
    def snap(self): return copy.deepcopy(self.st)
    def restore(self, s): self.st = copy.deepcopy(s)
    def merge(self, other):
        def mq(a, b):
            n = max(len(a), len(b)); pos = {}
            for q in (a, b):
                for i, e in enumerate(q):
                    k = len(q) - 1 - i
                    for r in e: pos[r] = min(pos.get(r, 1 << 30), k)
            out = [set() for _ in range(n)]
            for r, k in pos.items(): out[n - 1 - k].add(r)
            return out
        st = self.st
        st.vm = mq(st.vm, other.vm); st.lg = mq(st.lg, other.lg); st.sm |= other.sm
        st.hist = st.hist + other.hist
    def begin(self, name):
        self.out.append(f".globl {name}\n.p2align 8\n.type {name},@function\n{name}:"); self.st = State()
    def text(self, header, grid, block, lds, vgpr=512, accum=256, sgpr=102):
        n = NAME + "_kernel"
        o = [header.rstrip("\n"), f"; @launch grid=({grid},1,1) block=({block},1,1) lds={lds}",
             '.amdgcn_target "amdgcn-amd-amdhsa--gfx950"', ".text"] + self.out
        o.append(f""".section .rodata,"a"
.p2align 6
.amdhsa_kernel {n}
  .amdhsa_next_free_vgpr {vgpr}
  .amdhsa_next_free_sgpr {sgpr}
  .amdhsa_accum_offset {accum}
  .amdhsa_group_segment_fixed_size 0
  .amdhsa_kernarg_size 128
  .amdhsa_user_sgpr_count 2
  .amdhsa_user_sgpr_kernarg_segment_ptr 1
  .amdhsa_system_sgpr_workgroup_id_x 1
.end_amdhsa_kernel""")
        return "\n".join(o) + "\n"

def weave(main, fill, per=2, start=0):
    out = []; fill = list(fill)
    def cost(x):
        t = x[0] if isinstance(x, tuple) else x
        if callable(t): return 0
        return 2 if t.split()[0].startswith(TRANS) else 1
    for i, m in enumerate(main):
        out.append(m)
        if i < start: continue
        b = per
        while fill and cost(fill[0]) <= b:
            b -= cost(fill[0]); out.append(fill.pop(0))
    return out, fill
def v(a, n=1): return f"v{a}" if n == 1 else f"v[{a}:{a+n-1}]"
def ar(a, n=1): return f"a{a}" if n == 1 else f"a[{a}:{a+n-1}]"
def s(a, n=1): return f"s{a}" if n == 1 else f"s[{a}:{a+n-1}]"

def _txt(x): return x[0] if isinstance(x, tuple) else x
def _kind(x):
    t = _txt(x)
    if callable(t): return "call"
    m = t.split()[0]
    if m.startswith(("ds_", "buffer_", "global_")): return "mem"
    if m.startswith("s_"): return "salu"
    if m.startswith(TRANS): return "trans"
    return "valu"
def prewait(k, text):
    c = Ins(text); st = k.st; touch = c.src | c.dst
    vm = k._need(st.vm, touch, 63); lg = k._need(st.lg, touch, 15)
    n0 = k.nins; k._wait(vm, lg); return k.nins != n0
def weave2(k, mm, rd, fill, nxt=None, slots=2, start=0, minfill=0):
    rd = list(rd); n = len(mm)
    for i, m in enumerate(mm):
        k(m)
        nx = mm[i+1] if i+1 < n else nxt
        free_s = not (nx is not None and prewait(k, nx))
        b = slots; had_valu = False
        if i >= start:
            while fill and (_kind(fill[0]) == "call" or (_kind(fill[0]) == "salu" and free_s)):
                if _kind(fill[0]) == "salu": free_s = False
                n0 = k.nins; k([fill.pop(0)])
                if k.nins != n0: free_s = False
        q = -(-len(rd) // (n - i))
        for _ in range(q): k([rd.pop(0)]); b -= 1
        if i < start: continue
        b = max(b, minfill)
        while fill and b > 0:
            kd = _kind(fill[0])
            if kd == "call": break
            if kd == "mem" and had_valu: break
            c = 2 if kd == "trans" else 1
            if c > b: break
            if kd in ("valu", "trans"): had_valu = True
            k([fill.pop(0)]); b -= c
    assert not rd

VCOST = 1
def sched(k, mm, rd=(), urgent=(), normal=(), checks=(), slots=2, tail=True, slotf=None):
    rd = list(rd); U, N = [], []; n = len(mm); slots0 = slots; hold = [False]
    def q(): return U if (U and not hold[0]) else N
    def peek(j):
        a = N if hold[0] else U + N
        return _kind(a[j]) if j < len(a) else None
    for g_, it in urgent:
        if g_ < 0: k(list(it))
    while rd and rd[0][2] < 0: k([rd.pop(0)[3]])
    for i, m in enumerate(mm):
        k(m)
        for g_, fn in checks:
            if g_ == i: fn(U, N)
        for g_, it in urgent:
            if g_ == i: U += list(it)
        for g_, it in normal:
            if g_ == i: N += list(it)
        free_s = not (i+1 < n and prewait(k, mm[i+1]))
        held = hold[0]; hold[0] = False
        while (U or N) and (peek(0) == "call" or (peek(0) == "salu" and free_s)):
            n0 = k.nins; k([q().pop(0)])
            if k.nins != n0: free_s = False
        if U and N and _kind(U[0]) == 'salu' and not held: hold[0] = True
        slots = slotf(i) if slotf else slots0
        b = slots
        must = sum(1 for r in rd if r[2] <= i); avail = sum(1 for r in rd if r[0] <= i); nom = sum(1 for r in rd if r[1] <= i)
        p0, p1 = peek(0), peek(1)
        big = lambda x: VCOST > 1 and not callable(x) and _txt(x).startswith(("buffer_", "global_"))
        if p0 == "mem" and big(q()[0]): p0 = "trans"
        if p0 is None: nr = min(avail, max(nom, must)) if nom <= slots else max(slots, must)
        elif p0 == "trans": nr = max(must, min(avail, slots)) if (must or nom >= 2) else 0
        elif p1 == "trans" or p1 is None or (p0 == "valu" and p1 == "mem"): nr = max(must, min(avail, slots-1))
        else: nr = max(must, min(nom, slots-1 if nom < 3 else slots))
        for _ in range(nr): k([rd.pop(0)[3]]); b -= 1
        if U and not hold[0]: b = max(b, 1)
        had = False
        while b > 0:
            if U and N and not hold[0] and _kind(U[0]) == 'salu' and not held: hold[0] = True
            kd = peek(0)
            if kd is None: break
            if kd == "call" or (kd == "mem" and had): break
            c = 2 if kd == "trans" else 1
            if c > b: break
            if kd == "mem" and big(q()[0]): c = 2
            if kd in ("valu", "trans"): had = True
            k([q().pop(0)]); b -= c
    assert not rd
    left = U + N
    if tail: k(left)
    return left
def spread(items, a, b, late=None):
    n = len(items); late = b-1 if late is None else late
    return [(a, a + (b-a)*j//n, late, x) for j, x in enumerate(items)]
```

```python
import sys, numpy as np
import gk
from gk import *
from gk import _kind

STAMP = "--stamp" in sys.argv
OUT = [a for a in sys.argv[1:] if a.endswith(".s")]
OUT = OUT[0] if OUT else "v3.s"
def opt(name, default):
    x = [a.split("=")[1] for a in sys.argv if a.startswith(f"--{name}=")]
    return int(x[0]) if x else default
NW1C = opt("w1conv", 30)
NW1G = opt("w1gap", 6)
NW2C3 = opt("w2c3", 35)
SLEEP = opt("sleep", 0)
DBG = opt("dbg", 0)
MB = opt("mb", 3)
XEARLY = opt("xearly", 2)
WARM = opt("warm", 1)
W3L = opt("w3l", 5)
gk.VCOST = opt("vc", 1)
WIN = opt("win", 0)
KCS = opt("kcs", 6)
def gap_cs():
    for kk in range(KCS):
        for t in range(3): k(mf16(v(180+4*t,4), ar(12*kk+4*t,4), v(12,4), "0" if kk == 0 else None))

STP, STB = 0x18000, 0x20000
LS = 128
FB, RS = 0x40000, opt("rs", 1152)
oH, oW2, oW1 = 0, 12, 16
FA = FB + 16*RS
RDY = FA + 64*LS
CGS = 16384 + opt("pc", 128)
HTM = 163840 + opt("ph", 0)
ATS = 49152 + opt("pa", 0)
W1S = 61440 + opt("pw", 0)
W2S = 245760 + opt("pv", 0)
_sz = dict(X=214*CGS + 0x1000 & ~0xfff, H=16*HTM, G=64*W1S, D=8*W2S, A=128*ATS)
_at = {}; _p = 0x80000 + opt("o0", 0)
for _c in ["XHGDA", "XGHDA", "XGDHA", "GXHDA", "XHAGD", "HXGDA", "AXHGD", "XAHGD"][opt("lay", 1)]:
    _at[_c] = _p; _p += _sz[_c] + opt("og", 0)
XB, HT, W1P, W2P, ACT = (_at[c_] for c_ in "XHGDA")
WS_BYTES = 0x10000000
OOB = 0x40000000
NCG = 214
TK, TKCH, CS = 0, 16640, 4160
UL, ULCH = 49920, 4608
XL = UL + 3 * ULCH
TAB, TABW, TROW, TOF = 77568, 17408, 272, 51000
PK = 129792
XS, XSP = 148224, 2592
LNS = 158592
PART = 122880
AG = 2*CS + 2304
SLOT = [81920, 122880]
SC, PARK, NPARK = 0, 8192, 18
RED, RW = 77824, 5376
LDS_BYTES = 163840
SPIN = 1 << 15
LOG2E = 0x3fb8aa3b
INV640 = 0x3acccccd
pX, pAre, pAim, pBre, pBim, pCre, pCim, pLdt, pDsk, pBx, pWg, pWu, pWd, pOut, pDbg, pWs = [4 + 2 * i for i in range(16)]
WSR, OUTR = 36, 40
sTag, sWv, sMt, sNt, sHb, sN2 = 44, 45, 46, 47, 48, 49
sT = list(range(50, 64))
sXb = 64
sPkS, sPkF, sFl, sCnt = 66, 67, 68, 69
sStamp = 70
sHw = 3
sXr = 4
sW1 = [6, 7, 8, 9]
sAct, sHsrc, sLd, sOut, sFa, sW2, sRep, sAin, sFAc = 10, 11, 12, 13, 14, 15, 16, 17, 18
ws = s(WSR, 4)

k = K()
SEL = [a[6:].split(",") for a in sys.argv if a.startswith("--sel=")]
SEL = SEL[0] if SEL else ["start"]
assert len(SEL) <= 16
def stamp(name):
    if STAMP and name in SEL: k(f"{'s_memtime' if opt('cyc', 0) else 's_memrealtime'} {s(sStamp + 2*SEL.index(name), 2)}")
def stampc(name): return lambda: stamp(name)
def lines(t): return [l.strip() for l in t.split("\n") if l.strip()]

vLane, vN, vG, vL16 = 1, 2, 3, 4
vTagv, vRep, vFl0 = 11, 30, 31

def tagtest(checks, vacc, ref):
    if len(checks) == 1:
        k(f"v_cmp_ne_u32 vcc, {s(ref)}, {v(checks[0])}"); return
    k(f"v_xor_b32 {v(vacc)}, {s(ref)}, {v(checks[0])}")
    for c in checks[1:]:
        k(f"v_bitop3_b32 {v(vacc)}, {v(vacc)}, {v(c)}, {s(ref)} bitop3:0xf6")
    k(f"v_cmp_ne_u32 vcc, 0, {v(vacc)}")
SLOW = []
def check(loads, checks, vacc, nl=64, cnt=0):
    L, E, D = k.lab("Lpoll"), k.lab("Lslow"), k.lab("Lgot")
    ref = sTag
    if cnt: ref = sT[0]; k(f"s_add_u32 {s(ref)}, {s(sTag)}, {cnt}")
    if 31 < nl < 64: k(f"s_bfm_b64 {s(sT[2],2)}, {nl}, 0")
    tagtest(checks, vacc, ref)
    if nl <= 31: k(f"s_and_b64 vcc, vcc, {hex((1 << nl) - 1)}\ns_cbranch_scc1 {E}")
    elif nl < 64: k(f"s_and_b64 vcc, vcc, {s(sT[2],2)}\ns_cbranch_scc1 {E}")
    else: k(f"s_cbranch_vccnz {E}")
    st = k.snap(); main_out = k.out; k.out = []
    k.label(E)
    k(f"s_mov_b32 {s(sCnt)}, 0")
    k.label(L)
    k("s_mov_b64 exec, vcc")
    if SLEEP: k(f"s_sleep {SLEEP}")
    k(loads)
    k("s_waitcnt vmcnt(0)")
    tagtest(checks, vacc, ref)
    k(f"""s_mov_b64 exec, -1
    s_cbranch_vccz {D}
    s_add_u32 {s(sCnt)}, {s(sCnt)}, 1
    s_cmp_lt_u32 {s(sCnt)}, {SPIN}
    s_cbranch_scc1 {L}
    s_branch {D}""")
    SLOW.extend(k.out); k.out = main_out
    k.label(D)
    k.merge(st)
def check2(d, va, off, soff, nl, cnt, ra, rb):
    L, E, D = k.lab("Lpoll"), k.lab("Lslow"), k.lab("Lgot")
    ref = sT[0]; m = hex((1 << nl) - 1)
    k(f"s_add_u32 {s(ref)}, {s(sTag)}, {cnt}\nv_cmp_ne_u32 vcc, {s(ref)}, {v(d)}\ns_and_b64 vcc, vcc, {m}\ns_cbranch_scc1 {E}")
    st = k.snap(); main_out = k.out; k.out = []
    k.label(E)
    k(f"s_mov_b32 {s(sCnt)}, 0")
    k(apoll(ra, va, off, soff))
    k(f"s_sleep {opt('ps', 4)}")
    k.label(L)
    for cur, oth in ((ra, rb), (rb, ra)):
        k.st.vm = []
        k(apoll(oth, va, off, soff))
        k.st.vm = []
        k.raw("    s_waitcnt vmcnt(1)")
        k(f"v_cmp_ne_u32 vcc, {s(ref)}, {v(cur)}\ns_and_b64 vcc, vcc, {m}\ns_cbranch_scc0 {D}")
    k(f"""s_add_u32 {s(sCnt)}, {s(sCnt)}, 1
    s_cmp_lt_u32 {s(sCnt)}, {SPIN}
    s_cbranch_scc1 {L}
    s_branch {D}""")
    SLOW.extend(k.out); k.out = main_out
    k.label(D)
    k.st.vm = []
    k.merge(st)
def apoll(d, va, off, soff=None):
    return [f"v_mov_b32 {v(d)}, 0", f"buffer_atomic_add {v(d)}, {v(va)}, {ws}, {s(sRep if soff is None else soff)} offen offset:{off} sc0 sc1"]
vOne = 27
def flag(tok, soff, off=0, rep=True):
    return [lambda: k.wait_tok(tok, n=2), f"buffer_atomic_add {v(vOne)}, {v(vRep if rep else vFl0)}, {ws}, {s(soff)} offen offset:{off} sc1"]
def rdy_ld(d): return [f"s_mov_b32 {s(sT[1])}, {RDY}", f"v_lshlrev_b32 {v(d)}, 2, {v(vN)}", f"buffer_load_dword {v(d)}, {v(d)}, {ws}, {s(sT[1])} offen sc1"]
def rdy_chk(d): check(rdy_ld(d), [d], 5); stamp("rdy")
vAg, vInc, vAt = 21, 25, 26
def hflag(tok, st):
    return ([lambda: k.wait_tok(tok), f"ds_add_rtn_u32 {v(vAt)}, {v(vAg)}, {v(vOne)} offset:{256*st}"],
            [f"v_xor_b32 {v(vAt)}, 2, {v(vAt)}", f"v_lshl_add_u32 {v(vAt)}, {v(vAt)}, 29, {v(vRep)}",
             f"buffer_atomic_add {v(vInc)}, {v(vAt)}, {ws}, {s(sFl)} offen offset:{oH + 4*st} sc1"])
def bar(): k("s_waitcnt lgkmcnt(0)\ns_barrier")
def cmul(d, a, b):
    return [f"v_pk_mul_f32 {v(d,2)}, {v(a,2)}, {v(b,2)} op_sel:[0,0] op_sel_hi:[0,1]",
            f"v_pk_fma_f32 {v(d,2)}, {v(a,2)}, {v(b,2)}, {v(d,2)} op_sel:[1,1,0] op_sel_hi:[1,0,1] neg_lo:[1,0,0]"]
def zipper(*ls):
    out = []; ls = [list(l) for l in ls]
    while any(ls):
        for l in ls:
            if l: out.append(l.pop(0))
    return out
def mf16(d, a, b, c=None):
    return f"v_mfma_f32_16x16x32_bf16 {d}, {a}, {b}, {d if c is None else c}"
def groups(d):
    out = []; g_ = []
    for x in d:
        g_.append(x)
        if _kind(x) == "mem": out.append(g_); g_ = []
    assert not g_
    return out

TAPS = [list(range(-3, 8)), [-3, -2, 0, 4, 6]]
def tapsrc(rho, tap):
    if rho == 0: return tap
    return -3 if tap == -3 else -2 if tap == -2 else 0 if tap <= 2 else 4 if tap <= 5 else 6
def rb(x):
    u = int(np.float32(x).view(np.uint32))
    return int(np.uint32(((u + 0x7FFF + ((u >> 16) & 1)) >> 16) << 16).view(np.float32))
H = list(range(8)) + [256,258,260,262,512,516,768,772,1024,1280,1536,1792,2048]
idx = {}
for i, h in enumerate(H):
    for j in range(32): idx.setdefault(h + 8*j, (i, j))
def kaddr(l):
    if l < 0: return 3072
    i, j = idx[rb(l)]
    return (4*(i >> 3) + (i & 3))*256 + ((i >> 2) & 1)*128 + 4*j
TABTXT = [".p2align 7\n.type Ltab,@object\nLtab:"]
rows_ = []
for j in range(64, 128):
    assert all(rb(16*j + l) == 16*j + 8 for l in range(5, 12)) and all(rb(16*j + l) == 16*j + 16 for l in range(12, 21))
for lane in range(64):
    row = []; n_, g_ = lane & 15, lane >> 4
    for rho in range(2):
        x = 64*rho + lane
        for tap in range(-3, 8): assert kaddr(8*x + tap) == kaddr(8*x + tapsrc(rho, tap)), (rho, lane, tap)
        row += [kaddr(8*x + tp) for tp in TAPS[rho]]
    row += [kaddr(l if l <= 1028 else -1) for l in (1040 + n_ - 8*g_ - j for j in range(8))]
    row += [kaddr(1024 + 16*lane + 8), kaddr(1024 + 16*lane + 16)] + [0]*6
    row += [0x3f80 if 5 <= n_ - (8*g_ + j - 16) <= 11 else 0 for j in range(8)]
    row += [0x3f80 if 12 <= n_ - (8*g_ + j - 24) <= 20 else 0 for j in range(8)]
    rows_.append(row)
for part in range(6):
    for lane in range(64): TABTXT.append(".short " + ",".join(map(str, rows_[lane][8*part:8*part+8])))
TABTXT.append(".size Ltab, .-Ltab")
if opt("low", 1): k.raw(".p2align 8\n.type Lpad,@object\nLpad:\n.fill 128, 4, 0\n.size Lpad, .-Lpad")
else: k.raw(".p2align 12\n.type Lpad,@object\nLpad:\n.fill 832, 4, 0\n.size Lpad, .-Lpad")

k.begin(NAME + "_kernel")
stamp("start")
vTabl, vPar, vLdt, vDs = 42, 56, 74, 75
k(f"""
s_load_dwordx16 s[4:19], s[0:1], 0
s_load_dwordx16 s[20:35], s[0:1], 64
s_cmp_lt_u32 s2, 256
s_cbranch_scc1 Lstart
s_endpgm
Lstart:
s_getpc_b64 {s(sT[0],2)}
Lpc:
v_and_b32 {v(vN)}, 15, v0
s_lshr_b32 {s(sT[5])}, s2, 3
s_lshl_b32 {s(sT[4])}, {s(sT[5])}, 11
v_lshl_add_u32 v5, {v(vN)}, 7, {s(sT[4])}
v_min_u32 v5, Lcode_end-Lpc-4, v5
v_lshrrev_b32 v6, 6, v0
global_load_dword v172, v5, {s(sT[0],2)}
v_readfirstlane_b32 {s(sWv)}, v6
v_and_b32 {v(vLane)}, 63, v0
v_lshlrev_b32 {v(vL16)}, 4, {v(vLane)}
s_mul_i32 {s(sT[6])}, s2, 3
s_cmp_eq_u32 {s(sWv)}, 3
s_cselect_b32 {s(sT[7])}, 0, {s(sWv)}
s_cselect_b32 {s(sT[10])}, 255, s2
s_add_u32 {s(sT[6])}, {s(sT[6])}, {s(sT[7])}
s_min_u32 {s(sT[8])}, {s(sT[6])}, 639
s_mul_i32 {s(sT[9])}, {s(sT[8])}, 384
v_lshl_add_u32 v6, {v(vLane)}, 1, {s(sT[9])}
s_lshl_b32 {s(sT[9])}, {s(sT[8])}, 1
v_mov_b32 v7, {s(sT[9])}
""")
for i in range(9): k(f"v_mov_b64 {v(vPar+2*i,2)}, 0")
k(f"""
s_lshl2_add_u32 {s(sT[4])}, s2, {s(sWv)}
s_mul_i32 {s(sT[4])}, {s(sT[4])}, 2560
s_mul_i32 m0, {s(sWv)}, {XSP}
s_add_u32 m0, m0, {XS}
s_add_u32 {s(sXb)}, {s(pX)}, {s(sT[4])}
s_addc_u32 {s(sXb+1)}, {s(pX+1)}, 0
s_load_dword {s(sTag)}, {s(pWs,2)}, 0
s_add_u32 {s(pDbg)}, {s(sT[0])}, Ltab-Lpc+2048
s_addc_u32 {s(pDbg+1)}, {s(sT[1])}, 0
""")
k(f"global_load_lds_dwordx4 {v(vL16)}, {s(sXb,2)}", tok="x")
k(f"global_load_lds_dwordx4 {v(vL16)}, {s(sXb,2)} offset:1024", tok="x")
k("s_mov_b32 exec_hi, 0")
k(f"global_load_lds_dwordx4 {v(vL16)}, {s(sXb,2)} offset:2048", tok="x")
if opt("b0", 1): k("s_barrier")
k(f"s_mov_b32 exec_hi, -1\ns_cmp_ge_u32 {s(sT[10])}, {NCG}\ns_cbranch_scc1 Lother")
sDisp = k.snap()
stamp("xi")

vQ, vCgl, vXo, vSel, vSel3, vRo, vRo3, vLw, vLr = 150, 151, 152, 144, 147, 76, 77, 156, 157
vLa, vLb, vLr2, vM, vDI, vHc, vPt = 8, 9, 10, 12, 16, 28, 29
vW1a, vW1d = 22, 24
vFa, vFd = 23, 24
vRaw, vX, vS, vSq, vXr = 84, 100, 124, 126, 240
def srd_setup(other=False):
    if STAMP:
        for i, nm in enumerate(SEL):
            if nm not in ("start", "iss", "xi"): k(f"s_mov_b32 {s(sStamp+2*i)}, 0")
    k(f"""
    s_mov_b32 {s(WSR)}, {s(pWs)}
    s_mov_b32 {s(WSR+1)}, {s(pWs+1)}
    s_mov_b32 {s(WSR+2)}, {WS_BYTES}
    s_mov_b32 {s(WSR+3)}, 0x20000
    """)
    if other:
        k(f"""s_cmp_eq_u32 {s(sWv)}, 2
        s_cselect_b32 {s(sT[12])}, s2, 0
        s_cmp_lt_u32 {s(sT[12])}, 240
        s_cbranch_scc1 Lnoinit""")
        st_ = k.snap()
        k(f"""s_sub_u32 {s(sT[12])}, s2, 240
        s_lshl_b32 {s(sT[13])}, {s(sT[12])}, 2
        s_add_u32 {s(sT[13])}, {s(sT[13])}, {RDY}
        v_min_u32 v62, 1, {v(vLane)}
        v_lshlrev_b32 v62, 30, v62
        v_mov_b32 v5, 0
        buffer_atomic_add v5, v62, {ws}, {s(sT[13])} offen sc1
        v_lshrrev_b32 v63, 5, {v(vLane)}
        v_lshl_add_u32 v63, v63, 30, {v(vL16)}
        s_mul_i32 {s(sT[9])}, {s(sT[12])}, {RS}
        s_add_u32 {s(sT[9])}, {s(sT[9])}, {FB}
        s_lshl_b32 {s(sT[12])}, {s(sT[12])}, 9
        s_add_u32 {s(sT[12])}, {s(sT[12])}, {FA}
        s_add_u32 {s(sT[10])}, {s(sTag)}, 0x9E3779B1
        v_mov_b32 v64, {s(sT[10])}
        v_mov_b32 v65, {s(sT[10])}
        v_mov_b32 v66, {s(sT[10])}
        v_mov_b32 v67, {s(sT[10])}
        buffer_store_dwordx4 v[64:67], {v(vL16)}, {ws}, {s(sT[9])} offen sc1
        buffer_store_dwordx4 v[64:67], v63, {ws}, {s(sT[12])} offen sc1
        s_mov_b32 {s(sT[12])}, 240""")
        k.label("Lnoinit"); k.merge(st_)
def common_setup(other=False):
    k(f"""
    s_mov_b32 {s(OUTR)}, {s(pOut)}
    s_mov_b32 {s(OUTR+1)}, {s(pOut+1)}
    s_mov_b32 {s(OUTR+2)}, 2621440
    s_mov_b32 {s(OUTR+3)}, 0x20000
    v_mov_b32 v6, {OOB}
    v_mov_b32 {v(vOne)}, 1
    s_and_b32 {s(sT[4])}, s2, 7
    s_lshr_b32 {s(sMt)}, {s(sT[4])}, 2
    s_lshr_b32 {s(sT[10])}, {s(sT[5])}, 2
    s_lshl3_add_u32 {s(sMt)}, {s(sMt)}, {s(sT[10])}
    s_and_b32 {s(sNt)}, {s(sT[4])}, 3
    s_and_b32 {s(sT[10])}, {s(sT[5])}, 3
    s_lshl2_add_u32 {s(sNt)}, {s(sNt)}, {s(sT[10])}
    s_and_b32 {s(sXr)}, {s(sMt)}, {opt("xr", 0)}
    s_xor_b32 {s(sXr)}, {s(sXr)}, {s(sWv)}
    s_lshr_b32 {s(sHb)}, {s(sNt)}, 3
    s_and_b32 {s(sN2)}, {s(sNt)}, 7
    s_and_b32 {s(sRep)}, {s(sT[5])}, 15
    s_mul_i32 {s(sRep)}, {s(sRep)}, {RS}
    s_add_u32 {s(sRep)}, {s(sRep)}, {FB}
    v_cmp_ne_u32 vcc, 0, {v(vLane)}
    v_cndmask_b32 {v(vFl0)}, 0, v6, vcc
    v_cmp_gt_u32 vcc, 16, {v(vLane)}
    v_mul_u32_u24 {v(vRep)}, {RS}, {v(vLane)}
    v_cndmask_b32 {v(vRep)}, v6, {v(vRep)}, vcc
    s_lshr_b32 {s(sT[9])}, {s(sNt)}, 1
    s_lshl_b32 {s(sT[9])}, {s(sT[9])}, 7
    s_and_b32 {s(sT[10])}, {s(sMt)}, 3
    s_mul_i32 {s(sT[10])}, {s(sT[10])}, {RS}
    s_add_u32 {s(sT[9])}, {s(sT[9])}, {s(sT[10])}
    s_add_u32 {s(sT[9])}, {s(sT[9])}, {FB}
    s_lshl_b32 {s(sT[10])}, {s(sWv)}, 8
    s_max_u32 {s(sT[10])}, {s(sT[10])}, 128
    s_sub_u32 {s(sT[10])}, {s(sT[10])}, 128
    v_cmp_gt_u32 vcc, 4, {v(vLane)}
    v_lshl_add_u32 {v(vW1a)}, {v(vRep)}, 2, {s(sT[9])}
    v_lshl_add_u32 {v(vFa)}, {v(vLane)}, 7, {s(sT[10])}
    v_cndmask_b32 {v(vW1a)}, v6, {v(vW1a)}, vcc
    v_cndmask_b32 v39, v6, {v(vRep)}, vcc
    v_cmp_gt_u32 vcc, 3, {v(vLane)}
    s_cmp_eq_u32 s2, {NCG-1}
    s_cselect_b32 {s(sT[10])}, 3, 1
    v_cndmask_b32 {v(vFa)}, v6, {v(vFa)}, vcc
    v_mov_b32 {v(vInc)}, {s(sT[10])}
    v_lshlrev_b32 {v(vAg)}, 2, {v(vLane)}
    v_add_u32 {v(vAg)}, {AG + (768 if other else 0)}, {v(vAg)}
    s_lshl2_add_u32 {s(sT[9])}, {s(sNt)}, {s(sWv)}
    s_mul_i32 {s(sT[9])}, {s(sT[9])}, {W1S}
    s_add_u32 {s(sT[9])}, {s(sT[9])}, {W1P}""")
    for e in range(4):
        k(f"s_xor_b32 {s(sW1[e])}, {s(sXr)}, {e}\ns_mul_i32 {s(sW1[e])}, {s(sW1[e])}, {5*3072}\ns_add_u32 {s(sW1[e])}, {s(sW1[e])}, {s(sT[9])}")
    k(f"""
    s_mul_i32 {s(sLd)}, {s(sWv)}, 10240
    s_mul_i32 {s(sHsrc)}, {s(sMt)}, {HTM}
    s_add_u32 {s(sHsrc)}, {s(sHsrc)}, {s(sLd)}
    s_add_u32 {s(sHsrc)}, {s(sHsrc)}, {HT}
    s_mul_i32 {s(sT[9])}, {s(sT[7])}, {TKCH}
    s_mul_i32 {s(sT[10])}, {s(sT[7])}, {ULCH}
    v_and_b32 v5, 3, {v(vN)}
    v_mul_u32_u24 {v(vLa)}, {CS}, v5
    v_lshrrev_b32 v5, 2, {v(vN)}
    v_lshlrev_b32 v6, 1, {v(vG)}
    v_sub_u32 v5, v5, v6
    v_add_u32 v5, 7, v5
    v_lshl_add_u32 {v(vLa)}, v5, 3, {v(vLa)}
    v_add_u32 {v(vLa)}, {s(sT[9])}, {v(vLa)}
    v_lshl_add_u32 {v(vLr2)}, {v(vN)}, 5, {s(sT[10])}
    v_lshl_add_u32 {v(vLb)}, {v(vG)}, 4, {v(vLr2)}
    v_add_u32 {v(vLb)}, {UL}, {v(vLb)}
    s_lshl_b32 {s(sT[9])}, {s(sT[7])}, 12
    s_add_u32 {s(sT[9])}, {s(sT[9])}, {PART}
    v_add_u32 {v(vPt)}, {s(sT[9])}, {v(vL16)}""")
def x_landed():
    k(f"s_add_u32 {s(sTag)}, {s(sTag)}, 0x9E3779B1\nv_mov_b32 {v(vTagv)}, {s(sTag)}")
    stamp("ln0")
    k.wait_tok("x")
    k("s_barrier")
    stamp("lx")
def norm(X, T, w_):
    L = [f"v_and_b32 {v(T+3)}, 0xffff0000, {v(T+2)}", f"v_lshlrev_b32 {v(T+2)}, 16, {v(T+2)}"]
    for c in range(3): L += [f"v_lshlrev_b32 {v(w_+2*c)}, 16, {v(X+c)}", f"v_and_b32 {v(w_+2*c+1)}, 0xffff0000, {v(X+c)}"]
    L += [f"v_pk_mul_f32 {v(T+2,2)}, {v(T+2,2)}, {v(T,2)}"]
    for c in range(3): L += [f"v_pk_fma_f32 {v(w_+2*c,2)}, {v(w_+2*c,2)}, {v(T,2)}, {v(T+2,2)} neg_lo:[0,0,1] neg_hi:[0,0,1]"]
    for c in range(3): L += [f"v_cvt_pk_bf16_f32 {v(T+c)}, {v(w_+2*c)}, {v(w_+2*c+1)}"]
    return L
def rec_loads(X, T, n, sx, st_, o):
    L = []
    for d, b_ in ((X, sx), (T, st_)):
        L.append(f"s_add_u32 {s(sT[4])}, {s(b_)}, {1024*o}")
        L += [f"buffer_load_dwordx4 {v(d+4*j,4)}, {v(vL16)}, {ws}, {s(sT[4])} offen offset:{1024*j} sc1" for j in range(n)]
    return L
def rec_work(LD, X, T, n, w_, o):
    check(LD, [b_ + 4*j + 3 for b_ in (X, T) for j in range(n)], 5)
    k(zipper(*[norm(X+4*j, T+4*j, w_+8*j) for j in range(n)]))
    for j in range(n):
        for c in range(3):
            k(f"ds_write_addtid_b32 {v(T+4*j+c)} offset:{512 + c*ULCH + 256*(o+j)}")
            k(f"ds_write_addtid_b32 {v(X+4*j+c)} offset:{XL - UL + c*ULCH + 256*(o+j)}")
RK = opt("rk", 3); R3 = 16 - 3*RK
w1poll = [f"v_mov_b32 {v(vW1d)}, 0", f"buffer_atomic_add {v(vW1d)}, {v(vW1a)}, {ws}, 0 offen offset:{oW1} sc0 sc1"]
def w1_ready():
    if opt("p2", 0) & 4: k(f"s_mov_b32 {s(sT[1])}, 0"); check2(vW1d, vW1a, oW1, sT[1], 4, 20, 222, 223)
    else: check(w1poll, [vW1d], 5, 4, 20)
    stamp("wf1")
W1L = []
for kk in range(20):
    for t in range(3):
        e = kk // 5
        x = [f"s_add_u32 {s(sW1[e])}, {s(sW1[e])}, 3072"] if (t == 0 and kk % 5) else []
        W1L.append(x + [f"buffer_load_dwordx4 {ar(12*kk+4*t,4)}, {v(vL16)}, {ws}, {s(sW1[e])} offen offset:{1024*t} sc1"])
def hflag_ld(stage): return apoll(vFd, vFa, oH + 4*stage)
def hflag_chk(stage):
    if not (DBG & 64 and stage == 0): check(hflag_ld(stage), [vFd], 5, 3, 27)
    stamp("hf" + "ABC"[stage])
def h_dma(c):
    L = []
    for i in range(10):
        if i % 4 == 0:
            L += [f"s_add_u32 m0, {s(sLd)}, {SLOT[c % 2] + 1024*i}", f"s_add_u32 {s(sT[4])}, {s(sHsrc)}, {40960*c + 1024*i + (XB - HT if (DBG & 64 and c == 0) else 0)}"]
        L.append((f"buffer_load_dwordx4 {v(vL16)}, {ws}, {s(sT[4])} offen offset:{1024*(i % 4)} sc1 lds", f"h{c}" if c else f"h0{i//2}"))
    return groups(L)

for t in range(3):
    for i, p in enumerate([pAre, pAim, pBre, pBim, pCre, pCim]):
        k(f"global_load_short_d16_hi {v(vPar + 6*t + i)}, v6, {s(p,2)} offset:{128*t}")
def tab_loads():
    for j in range(3): k(f"global_load_dwordx4 {v(vTabl+4*j,4)}, {v(vL16)}, {s(pDbg,2)} offset:{1024*j - 2048}")
    k(f"""global_load_dword {v(vTabl+12)}, {v(vL16)}, {s(pDbg,2)} offset:1024
    global_load_dwordx4 a[120:123], {v(vL16)}, {s(pDbg,2)} offset:2048
    global_load_dwordx4 a[124:127], {v(vL16)}, {s(pDbg,2)} offset:3072""")
k(f"""
global_load_short_d16_hi {v(vLdt)}, v7, {s(pLdt,2)}
global_load_ushort {v(vDs)}, v7, {s(pDsk,2)}""")
TL = opt("tl", -1)
if TL == -1: tab_loads()
stamp("iss")
vDt, vRdA, vAcc = 78, 82, 84
k(f"""
v_lshrrev_b32 {v(vG)}, 4, {v(vLane)}
s_mul_i32 {s(sT[4])}, {s(sWv)}, {TABW}
s_add_u32 m0, {s(sT[4])}, {TAB - TOF}
s_add_u32 {s(sT[13])}, {s(sT[4])}, {TAB}
v_and_b32 v5, 31, {v(vLane)}
v_mul_u32_u24 {v(vRdA)}, {TROW}, v5
v_lshrrev_b32 v5, 5, {v(vLane)}
v_lshl_add_u32 {v(vRdA)}, v5, 4, {v(vRdA)}
v_add_u32 {v(vRdA)}, {s(sT[13])}, {v(vRdA)}
v_mov_b32 {v(vDt)}, {LOG2E}
v_mov_b32 {v(vDt+1)}, 0.15915494
v_mov_b32 v5, 0x3f80
ds_write_addtid_b32 v5 offset:{TOF}
""")
srd_setup()
common_setup()
if TL == -2: tab_loads()
if opt("tlb", 0):
    lo, n_ = {1: (0x400000, 11), 2: (0x800000, 9), 3: (0x800000, 2)}[opt("tlb", 0)]
    k(f"""v_cmp_gt_u32 vcc, {n_}, v0
    v_lshlrev_b32 v5, 21, v0
    v_mov_b32 v6, {OOB}
    v_cndmask_b32 v5, v6, v5, vcc
    v_mov_b32 v6, 0
    s_lshl_b32 {s(sT[9])}, s2, 7
    s_add_u32 {s(sT[9])}, {s(sT[9])}, {lo + 0x100000}
    buffer_atomic_add v6, v5, {ws}, {s(sT[9])} offen sc1""")
if WARM:
    k(f"""s_mov_b64 exec, 0
    s_cmp_eq_u32 {s(sWv)}, 0
    s_cbranch_scc1 Lwarm0
    s_cmp_eq_u32 {s(sWv)}, 1
    s_cbranch_scc1 Lwarm1
    s_branch Lwarm2
    Lwarm_ret:
    s_mov_b64 exec, -1
    s_cmp_ge_u32 s2, {NCG}
    s_cbranch_scc1 Lwarm_reth""")
    stamp("wrm")
x_landed()
if opt("wk", 1): k.raw(";WARM_BEGIN")
vA, vC, vZ1, vZ2, vZ4, vZ8, vZ16, vZ256 = 100, 102, 104, 106, 108, 110, 112, 114
vE, vPkd, vF, vPd = 116, 140, 192, 144
k(f"""v_and_b32 {v(vLdt)}, 0xffff0000, {v(vLdt)}
v_mul_f32 {v(vLdt)}, {v(vLdt)}, {v(vDt)}
v_exp_f32 {v(vLdt)}, {v(vLdt)}""")
k(f"v_cvt_pk_bf16_f32 {v(vDt+2)}, 0, {v(vLdt)}")
def put(src, row):
    return [f"v_cvt_pk_bf16_f32 {v(vPkd+row-1)}, {v(src)}, {'-' if row >= 32 else ''}{v(src+1)}"]
def kg_mm(t):
    return [f"v_mfma_f32_32x32x16_bf16 {v(vAcc,16)}, {v(vF+8*kk,4)}, {v(vF+8*kk+4,4)}, {'0' if (t == 0 and kk == 0) else v(vAcc,16)}" for kk in range(8)]
vKx, vKt, vKw = 160, 176, 224
KLD = rec_loads(vKx, vKt, RK, sXb, sXb+1, 0)
XBAR = opt("xb", -1)
def point(p):
    if p == TL: tab_loads()
    if p == XBAR: k("s_barrier")
    if p == opt("kl_", 15) and RK:
        k(f"""s_mul_i32 {s(sXb+1)}, {s(sWv)}, {1024*RK}
        s_add_u32 {s(sXb+1)}, {s(sXb+1)}, {1024*R3}
        s_mul_i32 {s(sXb)}, s2, {CGS}
        s_add_u32 {s(sXb)}, {s(sXb)}, {s(sXb+1)}
        s_add_u32 {s(sXb)}, {s(sXb)}, {XB}
        s_add_u32 {s(sXb+1)}, {s(sXb+1)}, {STP}""")
        k(KLD)
for t in range(3):
    P = vPar + 6*t
    point(5*t)
    k(f"""v_pk_mul_f32 {v(vA,2)}, {v(P,2)}, {v(vDt+2,2)} op_sel_hi:[1,0]
    v_pk_mul_f32 {v(P+2,2)}, {v(P+2,2)}, {v(vDt+2,2)} op_sel_hi:[1,0]
    v_pk_mul_f32 {v(vA,2)}, {v(vA,2)}, {v(vDt,2)}""")
    cm = cmul(vC, P+4, P+2)
    k([cm[0], f"v_fract_f32 {v(vA+1)}, {v(vA+1)}", f"v_exp_f32 {v(vA)}, {v(vA)}", f"v_cos_f32 {v(vZ1)}, {v(vA+1)}", f"v_sin_f32 {v(vZ1+1)}, {v(vA+1)}", cm[1],
       f"v_pk_mul_f32 {v(vZ1,2)}, {v(vZ1,2)}, {v(vA,2)} op_sel_hi:[1,0]"])
    ev = [vE, vE+2]; od = [vE+4, vE+6]; h0 = [vE+8, vE+10]; hb = [vE+12, vE+14]; hx = [vE+16, vE+18, vE+20]
    cH = put(vC, 32); prev = vC
    for j in range(1, 8):
        d = h0[j % 2]; cH += cmul(d, prev, vZ1) + put(d, 32+j); prev = d
    sq = cmul(vZ2, vZ1, vZ1) + cmul(vZ4, vZ2, vZ2) + cmul(vZ8, vZ4, vZ4) + cmul(vZ16, vZ8, vZ8)
    k(zipper(sq, cH[:8])); cH = cH[8:]
    point(5*t+1)
    cE = put(vZ16, 2); prev = vZ16; cut = None
    for j in range(4, 32, 2):
        d = ev[(j//2) % 2]; cE += cmul(d, prev, vZ16) + put(d, j); prev = d
        if j == 16: cE += cmul(vZ256, d, d); cut = len(cE)
    cO = put(vZ8, 1); prev = vZ8
    for j in range(3, 32, 2):
        d = od[(j//2) % 2]; cO += cmul(d, prev, vZ16) + put(d, j); prev = d
    cB = []; prev = vC
    rows = {1: 8, 2: 12, 3: 14, 4: 16, 5: 17, 6: 18, 7: 19, 8: 20}
    for j in range(1, 9):
        d = hb[j % 2]; cB += cmul(d, prev, vZ256) + put(d, 32+rows[j]); prev = d
        if j == 1:
            cB += cmul(hx[0], d, vZ2) + put(hx[0], 32+9) + cmul(hx[1], d, vZ4) + put(hx[1], 32+10) + cmul(hx[2], hx[0], vZ4) + put(hx[2], 32+11)
        elif j in (2, 3):
            cB += cmul(hx[0], d, vZ4) + put(hx[0], 32+rows[j]+1)
    k(zipper(cE[:cut], cH + cO[:10])); cO = cO[10:]
    point(5*t+2)
    k(zipper(cB, cO, cE[cut:]))
    point(5*t+3)
    wr = [f"ds_write_addtid_b32 {v(vPkd+r-1)} offset:{TOF + r*TROW}" for r in range(1, 53)]
    if t == 0: k(wr)
    else: weave2(k, kg_mm(t-1), wr, [], slots=6)
    for kk in range(8):
        k(f"ds_read_b128 {v(vF+8*kk,4)}, {v(vRdA)} offset:{32*TROW + 32*kk}")
        k(f"ds_read_b128 {v(vF+8*kk+4,4)}, {v(vRdA)} offset:{32*kk}")
    point(5*t+4)
    stamp(f"kt{t}")
vG0, vO, vTf, vWg, vEd = 100, 128, 20, 184, 216
fill = [f"v_add_u32_sdwa {v(vG0+i)}, {s(sT[13])}, {v(vTabl + i//2)} dst_sel:DWORD dst_unused:UNUSED_PAD src0_sel:DWORD src1_sel:WORD_{i & 1}" for i in range(26)]
fill += lines(f"""
v_and_b32 v5, 1, {v(vG)}
v_lshl_add_u32 {v(vLr2)}, v5, 4, {v(vLr2)}
v_cmp_gt_u32 vcc, 2, {v(vG)}
v_mov_b32 v6, {UL+512}
v_mov_b32 v7, {XL}
v_cndmask_b32 v6, v7, v6, vcc
v_add_u32 {v(vLr2)}, {v(vLr2)}, v6
v_mov_b32 v7, 0x3f80
v_cndmask_b32 v7, v7, {v(vDs)}, vcc
v_lshlrev_b32 v5, 3, v5
v_sub_u32 v5, {v(vN)}, v5
v_and_b32 v6, 1, v5
v_lshlrev_b32 v6, 4, v6
v_lshlrev_b32 v6, v6, v7
v_ashrrev_i32 v5, 1, v5
v_cmp_eq_u32 vcc, 0, v5
v_cmp_eq_u32 {s(sT[0],2)}, 1, v5
v_cmp_eq_u32 {s(sT[2],2)}, 2, v5
v_cndmask_b32 {v(vDI)}, 0, v6, vcc
v_cmp_eq_u32 vcc, 3, v5
v_cndmask_b32 {v(vDI+1)}, 0, v6, {s(sT[0],2)}
v_cndmask_b32 {v(vDI+2)}, 0, v6, {s(sT[2],2)}
v_cndmask_b32 {v(vDI+3)}, 0, v6, vcc
v_lshrrev_b32 v5, 2, {v(vLane)}
v_mul_u32_u24 v5, {HTM}, v5
v_and_b32 v6, 3, {v(vLane)}
s_bfe_u32 {s(sT[9])}, {s(sT[6])}, 0x10002
s_lshl_b32 {s(sT[9])}, {s(sT[9])}, 1
s_lshl_b32 {s(sT[10])}, {s(sT[6])}, 6
s_mul_i32 {s(sFl)}, s2, 2428
s_lshr_b32 {s(sFl)}, {s(sFl)}, 16
s_lshl_b32 {s(sFl)}, {s(sFl)}, {LS.bit_length()-1}
s_add_u32 {s(sFl)}, {s(sFl)}, {FB}
s_cmp_lt_u32 {s(sT[6])}, 640
s_cselect_b32 {s(sT[10])}, {s(sT[10])}, {OOB}
v_xor_b32 v7, {s(sT[9])}, v6
v_lshl_add_u32 v7, v7, 4, v5
v_add_u32 {v(vHc)}, {s(sT[10])}, v7
s_mul_i32 {s(sT[4])}, {s(sWv)}, {TKCH}
v_add_u32 v7, {s(sT[4])}, {v(vL16)}
v_lshl_add_u32 v5, {v(vLane)}, 2, {s(sT[4])}
v_lshlrev_b32 v6, 2, {v(vG)}
v_sub_u32 v6, {v(vN)}, v6
s_add_u32 {s(sT[4])}, {s(sT[4])}, {TK + 3136 - 12}
v_lshl_add_u32 {v(vTf)}, v6, 2, {s(sT[4])}
v_mov_b32 v6, 0""")
k(fill[:10])
sched(k, kg_mm(2), normal=[(0, fill[10:])], slots=6)
k(f"ds_write_addtid_b32 v6 offset:{TOF + 3072}")
for r in range(12): k(f"ds_write_addtid_b32 {v(vAcc+r)} offset:{TOF + 256*r}")
point(15)
stamp("kg1")
k.raw(";WARM_BEGIN")
gi = {}
for rho in range(2):
    for tp in TAPS[rho]: gi[(rho, tp)] = len(gi)
k(f"ds_write_b32 v5, v6 offset:{TK + 3136 - 256}")
for i in range(26): k(f"ds_read_b32 {v(vG0+i)}, {v(vG0+i)}")
for rho in range(2):
    g = lambda tap: v(vG0 + gi[(rho, tapsrc(rho, tap))])
    for sg in range(4):
        o = vO + 16*rho + 4*sg
        k(f"""v_cvt_pk_bf16_f32 {v(o)}, {g(sg)}, {g(sg-1)}
        v_cvt_pk_bf16_f32 {v(o+1)}, {g(sg-2)}, {g(sg-3)}
        v_cvt_pk_bf16_f32 {v(o+2)}, {g(sg+4)}, {g(sg+3)}
        v_cvt_pk_bf16_f32 {v(o+3)}, {g(sg+2)}, {g(sg+1)}""")
    if rho: k(f"v_cvt_pk_bf16_f32 v6, {v(vG0+24)}, {v(vG0+25)}")
    for sg in range(4):
        k(f"ds_write_b128 v7, {v(vO+16*rho+4*sg,4)} offset:{TK + sg*CS + 32 + 1024*rho}")
k(f"ds_write_b32 v5, v6 offset:{TK + 3136}")
for j in range(4): k(f"v_cvt_pk_bf16_f32 {v(vEd+j)}, {v(vG0+16+2*j)}, {v(vG0+17+2*j)}")
stamp("tp0")
if RK:
    k(f"s_mul_i32 m0, {s(sWv)}, {256*RK}\ns_add_u32 m0, m0, {UL + 256*R3}")
    rec_work(KLD, vKx, vKt, RK, vKw, 0)
stamp("tp1")

vCA, vFr, vRs, vPk = 32, 72, 232, 248
def h_out(prs, tok):
    L = []
    for pr in prs:
        p = vPk + 4*(pr % 2); a_ = vCA + 8*pr
        if pr >= 2: L += [f"v_pk_add_f32 {v(a_+2*j,2)}, {v(a_+2*j,2)}, {v(vRs+8*(pr-2)+2*j,2)}" for j in range(4)]
        L += [f"v_cvt_pk_bf16_f32 {v(p+j)}, {v(a_+2*j)}, {v(a_+2*j+1)}" for j in range(4)]
        L += [f"s_mov_b32 {s(sT[5])}, {HT + 40960*pr}", (f"buffer_store_dwordx4 {v(p,4)}, {v(vHc)}, {ws}, {s(sT[5])} offen sc1", tok)]
    return L
def conv_code(main):
    bar()
    stamp("cv0")
    SH = opt("sh", 2)
    if main: jobs = [(0, r, [0,1]) for r in range(8)] + [(0, r, [2,3]) for r in range(8)] + [(0, r, [4,5,6,7]) for r in range(5)] + [[(0, 5, [4,5,6,7])], [(0, 5, [4,5])], []][SH]
    else: jobs = [(c, r, t) for c in range(3) for r, t in [(6, [4,5,6,7]), (7, [4,5,6,7])] + [[], [(5, [6,7])], [(5, [4,5,6,7])]][SH]]
    JPC = len(jobs) // 3
    seq = []; ends = []; touched = set(); wgen = []
    for nb, (c, r, tiles) in enumerate(jobs):
        acc = (lambda i: vCA + 4*i) if main else (lambda i: vCA + 16*(c % 2) + 4*(i-4))
        grp = 0 if (main and nb < 16) else nb
        if main and nb == 16:
            for q in range(4):
                seq.append((vWg + 8*q, ("b", c, 0, q, grp), "a[120:123]", True))
                seq.append((vWg + 8*q + 4, ("u", q), "a[124:127]", True))
                wgen.append(len(seq))
        if tiles[0] < 4: order = [(i, p) for _, i, p in sorted([(max(p, i-p), i, p) for i in tiles for p in range(i+1)])]
        elif opt("ch", 0): order = [(i, p) for i in tiles for p in (3, 2, 1, 0)]
        else: order = [(i, p) for _, p, i in sorted([(i-p, -p, i) for i in tiles for p in range(4)])]; order = [(i, -p) for i, p in order]
        for i, p in order:
            if (c, i) not in touched:
                touched.add((c, i))
                if main: seq.append((acc(i), v(vDI,4), ("x", i), True))
                else: seq.append((acc(i), ("a", c, r, p, grp), ("b", c, r, i-p, grp), True)); continue
                if i >= 4: seq.append((acc(i), v(vEd,4), ("b", c, 0, i-4, grp), False))
            seq.append((acc(i), ("a", c, r, p, grp), ("b", c, r, i-p, grp), False))
        if main and nb == 17:
            for dl in range(4, 8):
                for i in range(dl, 8): seq.append((acc(i), v(vWg + 8*(i-dl), 4), ("t", dl), False))
        ends.append(len(seq))
    first, lastu = {}, {}
    for n_, (_, ka, kb, _z) in enumerate(seq):
        for key in (kb, ka):
            if isinstance(key, str): continue
            first.setdefault(key, n_); lastu[key] = n_
    home = {}; ring = [-1]*28; nr = 0; nk = 0; R = []
    for key in sorted(first, key=lambda q_: first[q_]):
        if main and key[0] != "x" and first[key] < ends[7]:
            reg = lambda o, n, b_=128 + 4*nk: ar(b_+o, n); nk += 1; early = -1
        else:
            sl = nr % 28; nr += 1; early = ring[sl]; ring[sl] = lastu[key]
            reg = lambda o, n, b_=vFr + 4*sl: v(b_+o, n)
        home[key] = reg(0, 4)
        due = max(first[key] - opt("la", 8), early)
        assert due < first[key]
        if key[0] == "x": T = [f"ds_read_b128 {reg(0,4)}, {v(vLr2)} offset:{512*key[1]}"]
        elif key[0] == "u": T = [f"ds_read_b128 {reg(0,4)}, {v(vLb)} offset:{512 + 512*key[1] - 48}"]
        elif key[0] == "t": T = [f"ds_read2_b32 {reg(2*h_,2)}, {v(vTf)} offset0:{16*(key[1]-4) + 3 - 2*h_} offset1:{16*(key[1]-4) + 2 - 2*h_}" for h_ in range(2)]
        elif key[0] == "b": T = [f"ds_read_b128 {reg(0,4)}, {v(vLb)} offset:{key[1]*ULCH + 512 + 64*(8*key[3] - key[2]) - 32}"]
        else:
            o = TK + key[1]*TKCH + 64*(8*key[3] + key[2])
            T = [f"ds_read_b64 {reg(0,2)}, {v(vLa)} offset:{o+8}", f"ds_read_b64 {reg(2,2)}, {v(vLa)} offset:{o}"]
        R += [[early, due, x] for x in T]
    for j in range(1, len(R)): R[j][0] = max(R[j][0], R[j-1][0]); R[j][1] = max(R[j][1], R[j][0])
    nom = 1e9; rd = []
    for e_, d_, x in reversed(R):
        nom = min(d_ - opt("lb", 1), nom - opt("rr", 8)/10); rd.append((e_, max(e_, int(nom // 1)), d_, x))
    rd.reverse()
    mm = [mf16(v(a_,4), home.get(ka, ka), home.get(kb, kb), "0" if z else None) for a_, ka, kb, z in seq]
    n = len(mm); urgent = []; normal = []
    print("conv mfma", n, "reads", len(rd))
    for q, e_ in enumerate(wgen):
        normal.append((wgen[-1] + 6, [f"v_cvt_pk_bf16_f32 {v(vWg+8*q+j)}, {v(vWg+8*q+j)}, {v(vWg+8*q+4+j)}" for j in range(4)]))
    if main:
        for st_, e_ in enumerate((ends[7], ends[15])):
            urgent.append((e_ + 1, [stampc("cv" + "AB"[st_])] + h_out([st_], f"hs{st_}")))
            f1, f2 = hflag(f"hs{st_}", st_); g_ = e_ + opt(f"dA{st_}", [36, 48][st_])
            urgent += [(g_, f1), (g_ + 6, f2 + [stampc(f"fl{st_}")])]
        gb = n - opt("dB", 26)
        urgent.append((gb, ["s_barrier"] + [f"ds_read_b128 {v(vRs+4*j,4)}, {v(vPt)} offset:{1024*j}" for j in range(4)]))
        urgent += [(min(n-1, gb + 2 + opt("dD", 2)*j), g_) for j, g_ in enumerate(h_dma(0))]
    else:
        for c in range(3):
            e_ = ends[JPC*c + JPC-1]
            wr = [f"ds_write_b128 {v(vPt)}, {v(vCA + 16*(c % 2) + 4*j,4)} offset:{4096*c + 1024*j}" for j in range(4)]
            if c < 2: urgent += [(e_ + 3 + 4*j, [wr[j]]) for j in range(4)]
            else: last = wr
    if WIN: urgent += [(WIN - opt("wq", 34), w1poll), (WIN, [w1_ready])]
    g0 = max(opt("w1s", 2), WIN); nw = NW1C if main else min(NW1C-2, NW1C*opt("w3f", 100)//100)
    pos = [g0 + ((gb if main else n) - 2 - g0)*j//nw for j in range(nw)]
    normal.append((40, g1setup))
    if main: assert NW1C <= 30 or pos[30] > wgen[-1]
    extra = [(ends[17] - 12, lambda U, N: (k(U + N), U.clear(), N.clear()))] if main else []
    if opt("w1pf", 0):
        urgent.append((0, lines(f"""s_and_b32 {s(sT[9])}, {s(sMt)}, 7
        s_lshl2_add_u32 {s(sT[10])}, {s(sNt)}, {s(sWv)}
        s_lshl3_add_u32 {s(sT[9])}, {s(sT[10])}, {s(sT[9])}
        s_mul_i32 {s(sT[9])}, {s(sT[9])}, 7680
        s_add_u32 {s(sT[9])}, {s(sT[9])}, {W1P}
        v_min_u32 v220, 59, {v(vLane)}
        v_lshlrev_b32 v220, 7, v220
        buffer_load_dword v220, v220, {ws}, {s(sT[9])} offen sc1""")))
    urgent += list(zip(pos, W1L))
    if DBG & 16: urgent = [(g_, [x for x in it if not (isinstance(x, str) and x.startswith('buffer_load'))]) for g_, it in urgent]
    if not main: urgent.append((n - opt("dP", 20), h0poll))
    urgent.sort(key=lambda e: e[0])
    sched(k, mm, rd, urgent, normal, extra + [(j, (lambda nm: lambda U, N: stamp(nm))(f'v{j}')) for j in range(0, n, 20)])
    if main:
        stamp("cv1")
        k(h_out([2, 3], "hB"))
        for g_ in W1L[NW1C:NW1C+NW1G]: k(g_)
    else:
        k(last)
        for g_ in W1L[nw:NW1C-2]: k(g_)
        stamp("w3e")
        if DBG & 64: pass
        elif opt("p2", 0) & 1: check2(vFd, 26, oH, None, 8, 27, 220, 221)
        else: check(h0poll[4:], [vFd], 5, 8, 27)
        stamp("hfA")
        bar()
        stamp("cv1")
        for g_ in h_dma(0) + W1L[NW1C-2:NW1C+NW1G]: k(g_)
h0poll = [f"v_lshrrev_b32 v26, 3, {v(vLane)}", "v_min_u32 v26, 1, v26", f"v_lshlrev_b32 v26, 23, v26", f"v_add_lshl_u32 v26, v26, {v(vLane)}, 7"] + apoll(vFd, 26, oH)
vOnes, vBa = 12, 64
g1setup = [f"v_mov_b32 {v(vOnes+i)}, 0x3f803f80" for i in range(4)] + lines(f"""
v_lshrrev_b32 v7, 2, {v(vLane)}
v_lshlrev_b32 v7, 6, v7
v_and_b32 v6, 3, {v(vLane)}
v_lshl_add_u32 v7, v6, 3, v7
v_and_b32 v6, 1, {v(vG)}
v_lshl_add_u32 v7, v6, 5, v7""")
for e in range(4):
    g1setup += lines(f"""s_xor_b32 {s(sT[7])}, {s(sXr)}, {e}
    s_mul_i32 {s(sT[7])}, {s(sT[7])}, 10240
    s_add_u32 {s(sT[7])}, {s(sT[7])}, {SLOT[0]}
    v_add_u32 {v(vBa+e)}, {s(sT[7])}, v7
    v_xor_b32 {v(vBa+4+e)}, 32, {v(vBa+e)}""")
conv_code(True)
k(hflag_ld(1)); gap_cs()
k("s_branch Lconvd")
sConvMain = k.snap()

k.restore(sDisp)
k.raw(";WARM_OFF")
k.label("Lother")
k(f"v_lshrrev_b32 {v(vG)}, 4, {v(vLane)}\ns_mov_b32 {s(sFl)}, {OOB}")
srd_setup(True)
k(f"s_cmp_eq_u32 {s(sWv)}, 3\ns_cbranch_scc1 Lw3")
s1 = k.snap()
sStg, sUb = 66, 67; vPa2, vW2o, vPd2 = 61, 104, 148
def w2_dma(su, off):
    k(f"s_mul_i32 {s(sT[9])}, {s(su)}, 10240\nv_add_u32 v5, {s(sT[9])}, {v(vL16)}\nv_add_u32 v6, 4096, v5\nv_add_u32 v7, 8192, v5")
    for e in range(10):
        if e % 4 == 0: k(f"s_add_u32 m0, {s(sStg)}, {off + 1024*e}")
        k(f"global_load_lds_dwordx4 {v(5 + e//4)}, {s(pWd,2)} offset:{1024*(e % 4)}", tok="w2dma")
HE = opt("he", 0)
w2sel = f"""s_sub_u32 {s(sHw)}, s2, {NCG}
s_add_u32 {s(sUb)}, {s(sHw)}, 168
s_cmp_eq_u32 {s(sWv)}, 0
s_cselect_b32 {s(sUb)}, {s(sUb)}, 192
s_lshl2_add_u32 {s(sHw)}, {s(sHw)}, {s(sWv)}
s_mul_i32 {s(sStg)}, {s(sWv)}, 20480"""
k(f"s_waitcnt vmcnt(0)\ns_cmp_lt_u32 {s(sT[12])}, 240\ns_cbranch_scc1 Lnordy")
s2_ = k.snap()
k(f"buffer_store_dword v64, v62, {ws}, {s(sT[13])} offen sc1")
stamp("ini")
k.label("Lnordy"); k.merge(s2_)
x_landed()
if HE: k(w2sel); w2_dma(sHw, 0)
k("s_branch Lnostat")
s2_ = s3_ = k.snap()
k.restore(s1)
k.label("Lw3")
vQ, vCgl, vXo, vSel, vSel3, vRo, vRo3, vLw, vLr = 32, 33, 34, 40, 43, 46, 47, 48, 49
vS, vSq, vX, vRaw, vXr = 50, 52, 56, 84, 140
k(f"""
v_and_b32 {v(vQ)}, 3, {v(vLane)}
v_lshrrev_b32 {v(vCgl)}, 2, {v(vLane)}
v_mul_u32_u24 v5, 6, {v(vCgl)}
v_and_b32 v5, -4, v5
v_mul_u32_u24 {v(vXo)}, {XSP}, {v(vQ)}
v_add_u32 {v(vXo)}, {XS}, {v(vXo)}
v_min_u32 {v(vXo+4)}, 24, v5
v_add_u32 {v(vXo+4)}, 1248, {v(vXo+4)}
v_add_u32 {v(vXo+4)}, {v(vXo+4)}, {v(vXo)}
v_add_u32 {v(vXo)}, {v(vXo)}, v5
v_add_u32 {v(vXo+1)}, 1280, {v(vXo)}
v_add_u32 {v(vXo+2)}, 960, {v(vXo)}
v_add_u32 {v(vXo+3)}, 2240, {v(vXo)}
v_add_u32 {v(vXo+5)}, 1280, {v(vXo+4)}
v_and_b32 v5, 1, {v(vCgl)}
v_mul_u32_u24 v5, 0x0202, v5
v_lshlrev_b32 v5, 16, v5
v_add_u32 {v(vSel)}, 0x01000c0c, v5
v_add_u32 {v(vSel+1)}, 0x03020c0c, v5
v_add_u32 {v(vSel+2)}, 0x05040c0c, v5
v_mov_b32 v5, 0x0c0c0c0c
v_cmp_gt_u32 vcc, 5, {v(vCgl)}
v_mul_u32_u24 {v(vRo)}, {CGS}, {v(vCgl)}
v_lshl_add_u32 {v(vRo)}, {v(vQ)}, 4, {v(vRo)}
v_cndmask_b32 {v(vSel3)}, v5, {v(vSel)}, vcc
v_cndmask_b32 {v(vSel3+1)}, v5, {v(vSel+1)}, vcc
v_cndmask_b32 {v(vSel3+2)}, v5, {v(vSel+2)}, vcc
v_cmp_eq_u32 vcc, 5, {v(vCgl)}
v_mov_b32 v5, 0x07060c0c
v_lshrrev_b32 {v(vLw)}, 1, {v(vG)}
v_cndmask_b32 {v(vSel3)}, {v(vSel3)}, v5, vcc
v_cmp_gt_u32 vcc, 6, {v(vCgl)}
v_and_b32 v5, 1, {v(vG)}
v_mov_b32 v6, {OOB}
v_cndmask_b32 {v(vRo3)}, v6, {v(vRo)}, vcc
v_lshl_add_u32 {v(vLw)}, v5, 1, {v(vLw)}
v_lshlrev_b32 {v(vLr)}, 4, {v(vQ)}
v_add_u32 {v(vLr)}, {LNS}, {v(vLr)}
v_lshl_add_u32 {v(vLw)}, {v(vLw)}, 2, {v(vLr)}
s_lshl_b32 {s(sT[4])}, s2, 6
s_add_u32 {s(sT[9])}, {s(sT[4])}, {XB}
s_add_u32 {s(sT[10])}, {s(sTag)}, 0x9E3779B1""")
vPs, vPa, vPst, vPd = 196, 200, 202, 84
sPS, sPF = [66, 67, 3], [22, 23, 64]
assert all((p*2731) >> 16 == p // 24 for p in range(192))
def w1_dma():
    k(f"s_cmp_ge_u32 s2, {NCG}\ns_cbranch_scc1 Lnodma")
    st_ = k.snap()
    for e in range(3):
        k(f"""v_add_u32 v5, {64*e}, {v(vLane)}
        v_mul_u32_u24 v6, 2731, v5
        v_lshrrev_b32 v7, 18, v6
        v_lshrrev_b32 v6, 16, v6
        v_mul_u32_u24 v6, 2688, v6
        v_mul_u32_u24 v7, 36864, v7
        v_lshlrev_b32 v5, 4, v5
        v_add3_u32 {v(vPs+e)}, v5, v6, v7""")
    kk_, g_, cp_, t_ = sT[0], sT[1], sT[2], sT[3]
    for u in range(3):
        k(f"""s_add_u32 {s(sT[11])}, {s(sT[6])}, {u}
        s_min_u32 {s(t_)}, {s(sT[11])}, 639
        s_lshr_b32 {s(kk_)}, {s(t_)}, 5
        s_bfe_u32 {s(g_)}, {s(t_)}, 0x20003
        s_and_b32 {s(cp_)}, {s(t_)}, 7
        s_lshl3_add_u32 {s(t_)}, {s(kk_)}, {s(g_)}
        s_lshl_b32 {s(t_)}, {s(t_)}, 5
        s_add_u32 {s(t_)}, {s(t_)}, {s(cp_)}
        s_mul_i32 {s(t_)}, {s(t_)}, 384""")
        for e in range(3): k(f"v_add_u32 {v(5+e)}, {s(t_)}, {v(vPs+e)}")
        extra = lines(f"""s_mul_i32 {s(sPS[u])}, {s(kk_)}, 12
        s_add_u32 {s(sPS[u])}, {s(sPS[u])}, {s(g_)}
        s_lshl_b32 {s(sPS[u])}, {s(sPS[u])}, 8
        s_mul_i32 {s(kk_)}, {s(cp_)}, {8*W1S}
        s_add_u32 {s(sPS[u])}, {s(sPS[u])}, {s(kk_)}
        s_add_u32 {s(sPS[u])}, {s(sPS[u])}, {W1P}""")
        for mat in range(2):
            for e in range(3):
                k(f"s_mov_b32 m0, {PK + 6144*u + mat*3072 + e*1024}")
                k(extra.pop(0))
                k(f"global_load_lds_dwordx4 {v(5+e)}, {s(pWg if mat == 0 else pWu, 2)}", tok="w1dma")
        k(f"""s_mul_i32 {s(g_)}, {s(g_)}, {4*RS}
        s_lshl_b32 {s(sPF[u])}, {s(cp_)}, 7
        s_add_u32 {s(sPF[u])}, {s(sPF[u])}, {s(g_)}
        s_add_u32 {s(sPF[u])}, {s(sPF[u])}, {FB + oW1}
        s_cmp_lt_u32 {s(sT[11])}, 640
        s_cselect_b32 {s(sPF[u])}, {s(sPF[u])}, {OOB}""")
    k("s_waitcnt vmcnt(18)")
    k.label("Lnodma")
    st2 = k.snap(); k.restore(st_); k.st.vm = []; k.merge(st2)
for rho in range(14): k(f"v_mov_b32 {v(vXr+4*rho+3)}, {s(sT[10])}")
k(f"s_cmp_lt_u32 s2, {NCG}\ns_cbranch_scc1 Lhasdma\ns_waitcnt vmcnt(0)\nLhasdma:")
w1_dma()
x_landed()
if opt("w2p", 0):
    k(f"""v_min_u32 v5, 59, {v(vLane)}
    s_mul_i32 {s(sT[11])}, s2, 7680
    v_lshl_add_u32 v5, v5, 7, {s(sT[11])}
    global_load_dword v203, v5, {s(pWd,2)}""")
def xrd(rho): return [f"ds_read2_b32 {v(vRaw + 4*rho + 2*e, 2)}, {v(vXo + e + (0 if rho < 10 else 2 if rho < 13 else 4))} offset0:{o} offset1:{o+1}" for e in range(2) for o in [24*rho if rho < 10 else 24*(rho-10) if rho < 13 else 0]]
for rho in range(14): k(xrd(rho))
for rho in range(14):
    X = vX + 6*(rho % 2)
    for c in range(3):
        for e in range(2):
            r = vRaw + 4*rho + 2*e
            k(f"v_perm_b32 {v(X + 2*c + e)}, {v(r+1)}, {v(r)}, {v((vSel if rho < 13 else vSel3) + c)}")
    for c in range(3):
        x = v(X + 2*c, 2)
        if rho == 0 and c == 0: k(f"v_pk_mul_f32 {v(vSq,2)}, {x}, {x}")
        else: k(f"v_pk_fma_f32 {v(vSq,2)}, {x}, {x}, {v(vSq,2)}\nv_pk_add_f32 {v(vS,2)}, {v(X,2) if (rho, c) == (0, 1) else v(vS,2)}, {x}")
        k(f"v_cvt_pk_bf16_f32 {v(vXr+4*rho+c)}, {v(X+2*c)}, {v(X+2*c+1)}")
XST = []
for rho in range(14):
    XST.append([f"buffer_store_dwordx4 {v(vXr+4*rho,4)}, {v(vRo if rho < 13 else vRo3)}, {ws}, {s(sT[9])} offen sc1"] + ([f"s_add_u32 {s(sT[9])}, {s(sT[9])}, {16*CGS}"] if rho < 13 else []))
k(f"""v_permlane32_swap_b32 {v(vSq)}, {v(vSq+1)}
v_permlane32_swap_b32 {v(vS)}, {v(vS+1)}
v_add_f32 {v(vSq)}, {v(vSq)}, {v(vSq+1)}
v_add_f32 {v(vS)}, {v(vS)}, {v(vS+1)}
v_permlane16_swap_b32 {v(vS)}, {v(vSq)}
v_add_f32 {v(vS)}, {v(vS)}, {v(vSq)}
v_add_f32_dpp {v(vS)}, {v(vS)}, {v(vS)} row_ror:8 row_mask:0xf bank_mask:0xf
v_add_f32_dpp {v(vS)}, {v(vS)}, {v(vS)} row_ror:4 row_mask:0xf bank_mask:0xf
ds_write_b32 {v(vLw)}, {v(vS)}""")
vP, vT8 = 68, 72
k(f"ds_read_b128 {v(vP,4)}, {v(vLr)}")
for g_ in XST[:opt("xs0", 4)]: k(g_)
S_, Q_, t_ = vP, vP+2, vT8
k(f"""v_mov_b32 {v(t_+6)}, {INV640}
v_cmp_gt_u32 vcc, 4, {v(vLane)}
v_mov_b32 v6, {OOB}
s_add_u32 {s(sT[4])}, {s(sT[4])}, {STP}
v_cndmask_b32 v6, v6, {v(vL16)}, vcc
v_mov_b32 {v(t_+5)}, {s(sTag)}
v_pk_mul_f32 {v(S_,2)}, {v(S_,2)}, {v(t_+6,2)} op_sel_hi:[1,0]
v_pk_mul_f32 {v(Q_,2)}, {v(Q_,2)}, {v(t_+6,2)} op_sel_hi:[1,0]
v_pk_fma_f32 {v(Q_,2)}, {v(S_,2)}, {v(S_,2)}, {v(Q_,2)} neg_lo:[1,0,0] neg_hi:[1,0,0]
v_cvt_pk_bf16_f32 {v(t_+4)}, {v(S_)}, {v(S_+1)}
v_max_f32 {v(Q_)}, 0, {v(Q_)}
v_max_f32 {v(Q_+1)}, 0, {v(Q_+1)}
v_cvt_pk_bf16_f32 {v(Q_)}, 0, {v(Q_)}
v_cvt_pk_bf16_f32 {v(Q_+1)}, 0, {v(Q_+1)}
v_add_f32 {v(Q_)}, 0x3727c5ac, {v(Q_)}
v_add_f32 {v(Q_+1)}, 0x3727c5ac, {v(Q_+1)}
v_cvt_pk_bf16_f32 {v(Q_)}, 0, {v(Q_)}
v_cvt_pk_bf16_f32 {v(Q_+1)}, 0, {v(Q_+1)}
v_sqrt_f32 {v(Q_)}, {v(Q_)}
v_sqrt_f32 {v(Q_+1)}, {v(Q_+1)}
v_cvt_pk_bf16_f32 {v(Q_)}, 0, {v(Q_)}
v_cvt_pk_bf16_f32 {v(Q_+1)}, 0, {v(Q_+1)}
v_rcp_f32 {v(t_+2)}, {v(Q_)}
v_rcp_f32 {v(t_+3)}, {v(Q_+1)}
s_nop 0
buffer_store_dwordx4 {v(t_+2,4)}, v6, {ws}, {s(sT[4])} offen sc1
""")
stamp("lnb")
for g_ in XST[opt("xs0", 4):]: k(g_)
stamp("xst")
k.label("Lnostat")
k.merge(s2_); k.merge(s3_)
common_setup(True)
k(f"s_cmp_ge_u32 s2, {NCG}\ns_cbranch_scc1 Lhelp")
sHelp = k.snap()
k.raw(";WARM_BEGIN")
k(f"""v_mov_b32 v6, 0
v_mov_b32 v7, 0
v_lshlrev_b32 v60, 3, {v(vLane)}
v_lshrrev_b32 v80, 2, {v(vLane)}
v_min_u32 v80, 11, v80
v_mul_u32_u24 v80, {CS}, v80
v_and_b32 v81, 3, {v(vLane)}
v_lshl_add_u32 v80, v81, 3, v80
s_mul_i32 {s(sT[5])}, s2, {CGS}
s_add_u32 {s(sT[5])}, {s(sT[5])}, {XB}
s_mov_b32 m0, {UL}""")
for c in range(3): k(f"ds_write_b64 v60, v[6:7] offset:{UL + c*ULCH}")
k(f"ds_write_b64 v80, v[6:7] offset:{TK}\nds_write_b64 v60, v[6:7] offset:{AG}\nds_write_b64 v60, v[6:7] offset:{AG+512}")
vRx, vRt, vW = 84, 148, 212
k(f"""v_bfe_u32 v5, {v(vLane)}, 1, 1
v_mul_u32_u24 {v(vPa)}, 3072, v5
v_bfe_u32 v5, {v(vLane)}, 2, 2
v_mul_u32_u24 v5, 384, v5
v_add_u32 v5, {PK}, v5
v_add_u32 {v(vPa)}, {v(vPa)}, v5
v_mad_u32_u24 {v(vPa)}, {v(vG)}, 48, {v(vPa)}
v_and_b32 v5, 1, {v(vLane)}
v_lshl_add_u32 {v(vPa+1)}, v5, 3, {v(vPa)}
v_lshl_add_u32 {v(vPa)}, v5, 4, {v(vPa)}
v_mul_u32_u24 v5, {W1S}, {v(vG)}
v_lshl_add_u32 {v(vPst)}, {v(vN)}, 4, v5""")
WPOS = opt("wpos", 0)
def wch():
    if WARM and W3L: k(f"s_mov_b64 exec, 0\ns_branch Lwarm3\nLwarm_ret3:\ns_mov_b64 exec, -1\ns_cmp_ge_u32 s2, {NCG}\ns_cbranch_scc1 Lwarm_reth3")
if WPOS == 1: wch()
k.wait_tok("w1dma")
stamp("pk0")
for u in range(3):
    for a_ in range(2):
        for tt in range(3):
            for hf in range(2):
                k(f"ds_read_b64_tr_b16 {ar(24*u+12*a_+4*tt+2*hf,2)}, {v(vPa + (tt == 2))} offset:{6144*u + 1536*hf + 192*a_ + (8*tt if tt < 2 else 32)}")
for u in range(3):
    if WPOS == 2 + u: wch()
    for a_ in range(2):
        if a_: k(f"s_add_u32 {s(sPS[u])}, {s(sPS[u])}, {4*W1S}")
        for tt in range(3):
            k(f"buffer_store_dwordx4 {ar(24*u+12*a_+4*tt,4)}, {v(vPst)}, {ws}, {s(sPS[u])} offen offset:{1024*tt} sc1", tok="w1st")
k(rdy_ld(40))
stamp("pk1")
if WPOS == 0: wch()
def w1sig():
    rdy_chk(40)
    k.wait_tok("w1st")
    for u in range(3): k(f"buffer_atomic_add {v(vOne)}, v39, {ws}, {s(sPF[u])} offen sc1")
    stamp("pkf")
if opt("sf", 1): w1sig()
k(f"s_mov_b32 {s(sT[9])}, {STP}")
if XBAR >= 0: k("s_barrier")
stamp("gx1")
grp = [(o, min(4, R3 - o)) for o in range(0, R3, 4)]
LD = [rec_loads(vRx+4*o, vRt+4*o, n_, sT[5], sT[9], o) for o, n_ in grp]
for L_ in LD[:2]: k(L_)
if not opt("sf", 1): w1sig()
for q, (o, n_) in enumerate(grp):
    if q + 2 < len(grp): k(LD[q+2])
    if not WIN and q == min(opt("wp", 1), len(grp)-1): k(w1poll)
    rec_work(LD[q], vRx+4*o, vRt+4*o, n_, vW, o)
    if q == 0: stamp("rx1")
stamp("tp1")
if not WIN: w1_ready()
conv_code(False)
k(hflag_ld(1)); gap_cs()
k("s_branch Lconvd")
sConv3 = k.snap()

k.restore(sHelp)
k.raw(";WARM_OFF")
k.label("Lhelp")
if WARM:
    k(f"""s_cmp_eq_u32 {s(sWv)}, 3
    s_cbranch_scc1 Lwarm_reth
    s_mov_b64 exec, 0
    s_cmp_eq_u32 {s(sWv)}, 0
    s_cbranch_scc1 Lwarm0
    s_cmp_eq_u32 {s(sWv)}, 1
    s_cbranch_scc1 Lwarm1
    s_branch Lwarm2
    Lwarm_reth:""")
def w2_pack(su, off, sf):
    k(f"""s_lshr_b32 {s(sT[10])}, {s(su)}, 2
    s_and_b32 {s(sT[8])}, {s(su)}, 3
    s_mul_i32 {s(sf)}, {s(su)}, 2731
    s_lshr_b32 {s(sf)}, {s(sf)}, 16
    s_lshl_b32 {s(sf)}, {s(sf)}, {LS.bit_length()-1}
    s_add_u32 {s(sf)}, {s(sf)}, {FB + oW2}
    s_mul_i32 {s(sT[9])}, {s(sT[10])}, 5120
    s_lshl_b32 {s(sT[8])}, {s(sT[8])}, 8
    s_add_u32 {s(sT[9])}, {s(sT[9])}, {s(sT[8])}
    s_add_u32 {s(sT[9])}, {s(sT[9])}, {W2P}""")
    k.wait_tok("w2dma")
    stamp("hp0")
    for j in range(10):
        for hf in range(2):
            k(f"ds_read_b64_tr_b16 {v(vPd2+4*j+2*hf,2)}, {v(vPa2)} offset:{off + 5120*hf + 128*j}")
    for j in range(10):
        k(f"buffer_store_dwordx4 {v(vPd2+4*j,4)}, {v(vW2o+j)}, {ws}, {s(sT[9])} offen sc1", tok="w2st")
k(w2sel)
k(f"s_mov_b32 {s(sT[13])}, {OOB}\ns_barrier")
if HE: k(f"s_cmp_lg_u32 {s(sWv)}, 3\ns_cbranch_scc1 Lw2z")
st_ = k.snap()
w2_dma(sHw, 0)
if HE: k.label("Lw2z"); k.merge(st_)
k(f"s_cmp_ge_u32 {s(sUb)}, 192\ns_cbranch_scc1 Lw2a")
st_ = k.snap()
w2_dma(sUb, 10240)
k.label("Lw2a"); k.merge(st_)
if WARM and W3L: k(f"s_cmp_lg_u32 {s(sWv)}, 3\ns_cbranch_scc1 Lwarm_reth3\ns_mov_b64 exec, 0\ns_branch Lwarm3\nLwarm_reth3:")
k(f"""v_bfe_u32 v5, {v(vLane)}, 2, 2
v_mul_u32_u24 {v(vPa2)}, 1280, v5
v_and_b32 v5, 3, {v(vLane)}
v_lshl_add_u32 {v(vPa2)}, v5, 3, {v(vPa2)}
v_lshl_add_u32 {v(vPa2)}, {v(vG)}, 5, {v(vPa2)}
v_add_u32 {v(vPa2)}, {s(sStg)}, {v(vPa2)}""")
assert all((p*13108) >> 16 == p // 5 for p in range(40))
for j in range(10):
    k(f"""v_add_u32 v5, {4*j}, {v(vG)}
    v_mul_u32_u24 v6, 13108, v5
    v_lshrrev_b32 v6, 16, v6
    v_mul_u32_u24 v6, {W2S - 5120}, v6
    v_lshl_add_u32 v6, v5, 10, v6
    v_lshl_add_u32 {v(vW2o+j)}, {v(vN)}, 4, v6""")
k(g1setup)
PE = opt("pe", 2)
def packB():
    k(f"s_cmp_ge_u32 {s(sUb)}, 192\ns_cbranch_scc1 Lw2one")
    s1 = k.snap()
    w2_pack(sUb, 10240, sT[13])
    k.label("Lw2one")
    k.merge(s1)
if PE >= 1: w2_pack(sHw, 0, sT[11])
if PE >= 2: packB()
k(f"s_cmp_lg_u32 {s(sWv)}, 3\ns_cbranch_scc1 Lhnp")
s1 = k.snap()
k(w1poll); w1_ready()
k.label("Lhnp"); k.merge(s1)
k("s_barrier")
HW = NW1C - 2
for g_ in W1L[:HW]: k(g_)
if PE < 2: packB()
if PE < 1: w2_pack(sHw, 0, sT[11])
stamp("hp1")
k(hflag_ld(0))
k(flag("w2st", sT[11]) + flag("w2st", sT[13]))
stamp("hp2")
hflag_chk(0)
for g_ in h_dma(0) + W1L[HW:NW1C+NW1G]: k(g_)
stamp("cv1")
k(hflag_ld(1)); gap_cs()

k.label("Lconvd")
k.raw(";WARM_HERE")
k.merge(sConvMain); k.merge(sConv3)
vRa, vPark = 8, 10
vWo, vAo1, vF2, vAo2, vF2a = 16, 158, 22, 159, 155
vScW = 28
vRes, vScR, vFAd, vPf, vRr, vRr4 = 32, 42, 43, 44, 46, 47
vSt = 48
vAc = 72
vFb = 120
vTm = 144
vCs = 180
sMk, sPark = 20, 19
MB = 3
setup2 = f"""
v_lshrrev_b32 v6, 1, {v(vLane)}
v_min_u32 v6, 1, v6
v_lshl_add_u32 v6, v6, 23, {v(vLane)}
s_lshl_b32 {s(sT[5])}, {s(sWv)}, 8
v_lshl_add_u32 {v(vF2a)}, v6, 7, {s(sT[5])}
s_lshl_b32 {s(sT[5])}, {s(sHb)}, 5
v_xor_b32 v7, {s(sT[5])}, v7
s_mul_i32 {s(sT[6])}, {s(sN2)}, 5120
s_add_u32 {s(sT[6])}, {s(sT[6])}, {SLOT[0]}
s_lshl_b32 {s(sT[5])}, {s(sWv)}, 10
s_add_u32 {s(sT[5])}, {s(sT[5])}, {s(sT[6])}
v_add_u32 {v(vRa)}, {s(sT[5])}, v7
s_add_u32 {s(sT[6])}, {s(sT[6])}, 4096
v_add_u32 {v(vRa+1)}, {s(sT[6])}, v7
s_lshl2_add_u32 {s(sFAc)}, {s(sMt)}, {s(sWv)}
s_lshl_b32 {s(sFAc)}, {s(sFAc)}, {LS.bit_length()-1}
s_add_u32 {s(sFAc)}, {s(sFAc)}, {FA}
v_lshlrev_b32 {v(vScW)}, 4, v0
v_add_u32 {v(vScW+1)}, 4096, {v(vScW)}
s_mov_b32 {s(sMk)}, 0x22222222
s_mov_b32 {s(sMk+1)}, 0x22222222
s_mov_b32 {s(sMk+2)}, 0x44444444
s_mov_b32 {s(sMk+3)}, 0x44444444
s_mov_b32 {s(sMk+4)}, 0x88888888
s_mov_b32 {s(sMk+5)}, 0x88888888
v_lshrrev_b32 v7, 2, {v(vN)}
v_lshl_add_u32 v6, v7, 4, {v(vN)}
v_lshrrev_b32 v7, 1, {v(vG)}
v_lshl_add_u32 v6, v6, 1, v7
v_lshlrev_b32 {v(vScR)}, 3, v6
s_mul_i32 {s(sPark)}, {s(sWv)}, {NPARK*1024}
s_add_u32 {s(sPark)}, {s(sPark)}, {PARK}
v_add_u32 {v(vPark)}, {s(sPark)}, {v(vL16)}
v_mul_u32_u24 v7, {ATS}, v7
v_lshl_add_u32 v7, {v(vN)}, 4, v7
v_and_b32 v6, 1, {v(vG)}
v_lshl_add_u32 {v(vAo1)}, v6, 8, v7
v_lshl_add_u32 {v(vAo2)}, v6, 30, v7
s_lshl2_add_u32 {s(sFa)}, {s(sNt)}, {s(sWv)}
s_mul_i32 {s(sAct)}, {s(sFa)}, 768
s_mul_i32 {s(sT[5])}, {s(sMt)}, {2*ATS}
s_add_u32 {s(sAct)}, {s(sAct)}, {s(sT[5])}
s_add_u32 {s(sAct)}, {s(sAct)}, {ACT}
s_lshr_b32 {s(sFa)}, {s(sNt)}, 2
s_lshl2_add_u32 {s(sFa)}, {s(sMt)}, {s(sFa)}
s_lshl_b32 {s(sFa)}, {s(sFa)}, {LS.bit_length()-1}
s_add_u32 {s(sFa)}, {s(sFa)}, {FA}
s_mul_i32 {s(sW2)}, {s(sN2)}, {W2S}
s_mul_i32 {s(sT[5])}, {s(sWv)}, {12*5120}
s_add_u32 {s(sW2)}, {s(sW2)}, {s(sT[5])}
s_add_u32 {s(sW2)}, {s(sW2)}, {W2P}
v_add_u32 {v(vWo+4)}, 4096, {v(vL16)}
"""
for lam in range(4):
    setup2 += f"""s_xor_b32 {s(sT[6])}, {s(sWv)}, {lam}
    s_lshl_b32 {s(sT[6])}, {s(sT[6])}, 10
    v_add_u32 {v(vWo+lam)}, {s(sT[6])}, {v(vL16)}
    """
PFL = 480 >> MB
setup2 += f"""
s_lshl1_add_u32 {s(sT[6])}, {s(sMt)}, {s(sHb)}
s_mul_i32 {s(sAin)}, {s(sT[6])}, {ATS}
s_mul_i32 {s(sT[7])}, {s(sWv)}, 12288
s_add_u32 {s(sAin)}, {s(sAin)}, {s(sT[7])}
s_add_u32 {s(sAin)}, {s(sAin)}, {ACT}
s_and_b32 {s(sOut)}, {s(sMt)}, 3
s_lshl1_add_u32 {s(sOut)}, {s(sOut)}, {s(sHb)}
s_lshl_b32 {s(sOut)}, {s(sOut)}, 5
s_and_b32 {s(sT[7])}, {s(sMt)}, 12
s_add_u32 {s(sOut)}, {s(sOut)}, {s(sT[7])}
s_mul_i32 {s(sOut)}, {s(sOut)}, 1280
s_mul_i32 {s(sT[7])}, {s(sN2)}, 160
s_add_u32 {s(sOut)}, {s(sOut)}, {s(sT[7])}
"""
sW2g, sAg = [26, 27, 28], [29, 30, 31]
setup2 += f"""
s_add_u32 {s(sT[6])}, {s(sMt)}, {s(sN2)}
s_mul_i32 {s(sT[7])}, {s(sT[6])}, 21846
s_lshr_b32 {s(sT[7])}, {s(sT[7])}, 16
s_mul_i32 {s(sT[7])}, {s(sT[7])}, 3
s_sub_u32 {s(sT[6])}, {s(sT[6])}, {s(sT[7])}
s_mul_i32 {s(sT[6])}, {s(sT[6])}, {opt("r2", 0)}
"""
for a_ in range(3):
    setup2 += f"""s_mul_i32 {s(sW2g[a_])}, {s(sT[6])}, {4*5120}
    s_add_u32 {s(sW2g[a_])}, {s(sW2g[a_])}, {s(sW2)}
    s_lshl_b32 {s(sAg[a_])}, {s(sT[6])}, 12
    s_add_u32 {s(sAg[a_])}, {s(sAg[a_])}, {s(sAin)}
    s_lshl_b32 {s(sT[6])}, {s(sT[6])}, 1
    s_lshr_b32 {s(sT[6])}, 9, {s(sT[6])}
    s_and_b32 {s(sT[6])}, {s(sT[6])}, 3
    """
def g1_reads(st):
    c, kk = divmod(st, 20); b = vFb + 8*(st % 3)
    return [f"ds_read_b64_tr_b16 {v(b+4*a+2*hf,2)}, {v(vBa+4*a+kk//5)} offset:{(kk % 5)*2048 + 1024*hf + 40960*(c % 2)}" for a in range(2) for hf in range(2)]
SE = opt('se', 1)
def g1_mm(st):
    c, kk = divmod(st, 20)
    b = vFb + 8*(st % 3); A = vAc + 24*(c % 2); z = "0" if kk == 0 else None
    L = [mf16(v(A+12*a+4*t,4), ar(12*kk+4*t,4), v(b+4*a,4), z) for a, t in ([(a, t) for t in range(3) for a in range(2)] if opt("ab", 1) else [(a, t) for a in range(2) for t in range(3)])]
    if kk // 5 == SE:
        z_ = "0" if kk % 5 == 0 else None
        L += sum([[mf16(v(vSt+4*a,4), v(b+4*a,4), v(b+4*a,4), z_), mf16(v(vSt+8+4*a,4), v(vOnes,4), v(b+4*a,4), z_)] for a in range(2)], [])
    if c == 0 and kk >= KCS: L += [mf16(v(vCs+4*t,4), ar(12*kk+4*t,4), v(vOnes,4), z) for t in range(3)]
    return L
def g1_statw(c):
    L = []
    for j in range(3):
        for a in range(2): L.append(f"v_cndmask_b32 {v(vSt+9+4*a)}, {v(vSt+4*a) if j == 0 else v(vSt+9+4*a)}, {v(vSt+4*a+1+j)}, {s(sMk+2*j,2)}")
    if opt("sw", 0): return L + [f"ds_write_b64 {v(vScW + c % 2)}, {v(vSt+8,2)}", f"ds_write_b64 {v(vScW + c % 2)}, {v(vSt+12,2)} offset:8"]
    return L + [f"ds_write2_b64 {v(vScW + c % 2)}, {v(vSt+8,2)}, {v(vSt+12,2)} offset0:0 offset1:1"]
S, Q, M, Z, S2 = vTm, vTm+1, vTm+8, vTm+10, vTm+12
def g1_statr(c):
    o = 8*(c % 2)
    return [f"ds_read2st64_b64 {v(vTm+4*w,4)}, {v(vScR)} offset0:{o+4*w} offset1:{o+4*w+2}" for w in range(2)]
def g1_epi(c, pk=False):
    A = vAc + 24*(c % 2)
    L = [f"v_add_f32 {v(S)}, {v(S)}, {v(S+2)}", f"v_add_f32 {v(Q)}, {v(Q)}, {v(Q+2)}", f"v_add_f32 {v(S+4)}, {v(S+4)}, {v(S+6)}", f"v_add_f32 {v(Q+4)}, {v(Q+4)}, {v(Q+6)}",
         f"v_add_f32 {v(S)}, {v(S)}, {v(S+4)}", f"v_add_f32 {v(Q)}, {v(Q)}, {v(Q+4)}",
         f"v_mul_f32 {v(S)}, {INV640}, {v(S)}", f"v_mul_f32 {v(Q)}, {INV640}, {v(Q)}",
         f"v_cvt_pk_bf16_f32 {v(M)}, 0, {v(S)}", f"v_cvt_pk_bf16_f32 {v(M+1)}, 0, {v(S)}",
         f"v_fma_f32 {v(Q)}, -{v(S)}, {v(S)}, {v(Q)}", f"v_max_f32 {v(Q)}, 0, {v(Q)}",
         f"v_permlane32_swap_b32 {v(M)}, {v(M+1)}",
         f"v_cvt_pk_bf16_f32 {v(Q)}, 0, {v(Q)}",
         f"v_add_f32 {v(Q)}, 0x3727c5ac, {v(Q)}", f"v_cvt_pk_bf16_f32 {v(Q)}, 0, {v(Q)}"]
    R = vTm + 16
    cen = [f"v_fma_f32 {v(A+12*a+j)}, -{v(vCs+j)}, {v(M+a)}, {v(A+12*a+j)}" for j in range(12) for a in range(2)]
    L += [f"v_sqrt_f32 {v(Q)}, {v(Q)}"] + cen[:2] + [f"v_cvt_pk_bf16_f32 {v(Q)}, 0, {v(Q)}"] + cen[2:3] + [f"v_rcp_f32 {v(Z)}, {v(Q)}", f"v_mul_f32 {v(S2)}, {v(Q)}, {v(Q)}"] + cen[3:4]
    L += [f"v_mul_f32 {v(Z)}, 0xbfb8aa3b, {v(Z)}"] + (cen[4:] if not DBG & 128 else [])
    if not DBG & 256: L += [f"v_permlane32_swap_b32 {v(A+j)}, {v(A+12+j)}" for j in range(12)]
    chains = []
    for j in range(6):
        g_, u_ = A+2*j, A+12+2*j
        z = vTm + 24 + 2*j
        if pk:
            ch = [f"v_pk_mul_f32 {v(z,2)}, {v(g_,2)}, {v(Z,2)} op_sel_hi:[1,0]",
                  f"v_exp_f32 {v(z)}, {v(z)}", f"v_exp_f32 {v(z+1)}, {v(z+1)}",
                  f"v_pk_mul_f32 {v(g_,2)}, {v(g_,2)}, {v(u_,2)}",
                  f"v_pk_fma_f32 {v(z,2)}, {v(z,2)}, {v(S2,2)}, {v(S2,2)} op_sel_hi:[1,0,0]",
                  f"v_rcp_f32 {v(z)}, {v(z)}", f"v_rcp_f32 {v(z+1)}, {v(z+1)}",
                  f"v_pk_mul_f32 {v(g_,2)}, {v(g_,2)}, {v(z,2)}"]
        else:
            ch = [f"v_mul_f32 {v(z)}, {v(g_)}, {v(Z)}", f"v_mul_f32 {v(z+1)}, {v(g_+1)}, {v(Z)}",
                  f"v_exp_f32 {v(z)}, {v(z)}", f"v_exp_f32 {v(z+1)}, {v(z+1)}", f"v_mul_f32 {v(g_)}, {v(g_)}, {v(u_)}", f"v_mul_f32 {v(g_+1)}, {v(g_+1)}, {v(u_+1)}",
                  f"v_fma_f32 {v(z)}, {v(z)}, {v(S2)}, {v(S2)}", f"v_fma_f32 {v(z+1)}, {v(z+1)}, {v(S2)}, {v(S2)}",
                  f"v_rcp_f32 {v(z)}, {v(z)}", f"v_rcp_f32 {v(z+1)}, {v(z+1)}",
                  f"v_mul_f32 {v(g_)}, {v(g_)}, {v(z)}", f"v_mul_f32 {v(g_+1)}, {v(g_+1)}, {v(z+1)}"]
        chains.append(ch + [f"v_cvt_pk_bf16_f32 {v(R+j)}, {v(g_)}, {v(g_+1)}"])
    sw = [f"v_permlane16_swap_b32 {v(R+4)}, {v(R+6)}", f"v_permlane16_swap_b32 {v(R+5)}, {v(R+7)}"]
    sw += [f"s_add_u32 {s(sT[5])}, {s(sAct)}, {32*ATS*c}", (f"buffer_store_dwordx4 {v(R+4,4)}, {v(vAo2)}, {ws}, {s(sT[5])} offen offset:512 sc1", f"a{c}")]
    if pk:
        z01 = zipper(chains[0], chains[1])
        L += zipper(chains[4], chains[5]) + z01[:2] + sw + z01[2:] + zipper(chains[2], chains[3])
    else: L += chains[4] + chains[5] + chains[0][:2] + sw + chains[0][2:] + chains[1] + chains[2] + chains[3]
    L += [(f"buffer_store_dwordx4 {v(R,4)}, {v(vAo1)}, {ws}, {s(sT[5])} offen sc1", f"a{c}")]
    return L
w2fl = apoll(vFAd, vF2a, oW2)
def w2_ready(): check(w2fl, [vFAd], 5, 2, 24)
def w2pf(j): return [] if not opt("pf2", 0) else [f"buffer_load_dword {v(vPf+j)}, {v(vF2)}, {ws}, 0 offen offset:{PFL*64*j} sc1"]
NPRE = 20
NLATE = 60 - NPRE - NPARK
NA0 = opt("na0", 12)
def w2reg(j):
    if j < 16: return v(192 + 4*j, 4)
    if j < NPRE: return ar(240 + 4*(j-16), 4)
    if j < NPRE + NPARK: return ar(4*(NLATE + 12) + 4*(j - NPRE), 4)
    q = j - NPRE - NPARK
    return ar(4*q if q < NA0 else 4*q + 48, 4)
def w2seq(js):
    out = []; cur = None
    for j in js:
        ks, lam = divmod(j, 5)
        x = [] if ks == cur else [f"s_add_u32 {s(sT[8])}, {s(sW2g[ks//4])}, {5120*(ks % 4)}"]
        cur = ks
        if NPRE <= j < NPRE + NPARK:
            out.append(x + [f"s_add_u32 m0, {s(sPark)}, {1024*(j - NPRE)}", (f"buffer_load_dwordx4 {v(vWo+lam)}, {ws}, {s(sT[8])} offen sc1 lds", "park")])
        else: out.append(x + [f"buffer_load_dwordx4 {w2reg(j)}, {v(vWo+lam)}, {ws}, {s(sT[8])} offen sc1"])
    return out
unpark = [f"ds_read_b128 {w2reg(NPRE+j)}, {v(vPark)} offset:{1024*j}" for j in range(NPARK)]
def aflag_ld(i): return apoll(vFAd, vFl0, 4*i, sFAc)
def aflag_chk(i):
    if opt("p2", 0) & 2: check2(vFAd, vFl0, 4*i, sFAc, 1, 16, 44, 45)
    else: check(aflag_ld(i), [vFAd], 5, 1, 16)
def abuf(i, ks): return ar(4*NA0 + 4*ks, 4) if i % 3 == 0 else v(144 + 4*ks, 4) if i == 2 else v((72 if ks < 6 else 96) + 4*ks, 4)
def act_loads(i):
    L = []
    for ks in range(12):
        x = [f"s_add_u32 {s(sT[4])}, {s(sAg[ks//4])}, {32*ATS*i}"] if ks % 4 == 0 else []
        L.append(x + [f"buffer_load_dwordx4 {abuf(i, ks)}, {v(vL16)}, {ws}, {s(sT[4])} offen offset:{1024*(ks%4)} sc1"])
    return L
late = w2seq(range(NPRE+NPARK, 60))
C3L = late[:NA0] + act_loads(0) + late[NA0:]
C3L[NA0] = [lambda: aflag_chk(0)] + C3L[NA0]
def res_reads(c):
    def f():
        k(f"ds_read_b64_tr_b16 {v(vRes+2*c,2)}, {v(vRa)} offset:{40960*(c % 2)}")
        Ls = k.lab("Lr4")
        k(f"s_cmp_lg_u32 {s(sWv)}, {c}\ns_cbranch_scc1 {Ls}")
        s1 = k.snap()
        k(f"ds_read_b64_tr_b16 {v(vRes+8,2)}, {v(vRa+1)} offset:{40960*(c % 2)}")
        k.label(Ls); k.merge(s1)
    return f
mm = []; cum = []
for st in range(80): cum.append(len(mm)); mm += g1_mm(st)
cum.append(len(mm))
G = lambda c, kk, d=0: cum[20*c + kk] + d
assert opt("xr", 0) == 0
rd = []
urgent = []; normal = []; checks = []
BG = opt('bg', 1)
def boundary(c):
    def f(U, N):
        stamp(f"b{c}a"); k(list(U)); U.clear(); stamp(f"b{c}b")
        if c < 3: k.wait_tok(f"h{c+1}", n=10)
        stamp(f"b{c}c")
        bar(); stamp(f"c{c+1}")
    return f
def flush(nm):
    def f(U, N):
        print(nm, "leftover", len(U), len(N)); stamp("f" + nm[-1] + "a"); k((U + N)[:-1]); stamp("f" + nm[-1] + "b"); k((U + N)[-1:]); stamp("f" + nm[-1] + "c"); U.clear(); N.clear()
    return f
for st in range(2, 80):
    c, kk = divmod(st, 20)
    if kk == 0: rd += spread(g1_reads(st), G(c-1, 18, BG), G(c-1, 19), G(c-1, 19))
    else: rd += spread(g1_reads(st), cum[st-2], cum[st-1], cum[st-1] - 1 if kk == 19 else cum[st-1] + 1)
for c in range(4):
    urgent.append((G(c, 6), [res_reads(c)]))
    urgent.append((G(c, opt('sw_', 16), 3), g1_statw(c)))
    checks.append((G(c, 18, BG), boundary(c)))
    normal.append((G(c+1, 0, 1), g1_epi(c)))
    if c > 0: checks.append((G(c, 19, opt("fl", 5) if c < 3 else 1), flush(f"chunk {c}")))
    urgent.append((G(c, 19, 2), g1_statr(c)))
    if c >= 2: urgent.append((G(c, opt("fk", 8)), flag(f"a{c-2}", sFa, 4*(c-2), False)))
normal.append((0, lines(setup2)))
def noleft(U, N): assert not N
def pace(items, ga, gb):
    for j, g_ in enumerate(items): urgent.append((ga + (gb - ga)*j//len(items), g_))
rest = W1L[NW1C+NW1G:]
n0, n1_, p1 = opt("n0", 6), opt("n1", 13), opt("p1", 9)
hd = h_dma(1); hd[0] = [lambda: hflag_chk(1)] + hd[0]
w20 = w2seq(range(n0)); w20[0] = [w2_ready] + w2pf(0) + w20[0]
c0l = rest[:opt("r0", 12)] + hd + rest[opt("r0", 12):]
g_a = G(0, 19)*len(c0l)//(len(c0l) + n0)
pace(c0l, 1, g_a); pace(w20, g_a, G(0, 19))
H1POS = 1 + (g_a - 1)*opt('r0', 12)//len(c0l)
checks.append((g_a, noleft))
urgent.append((g_a - opt('w2q', 50), w2fl))
hd = h_dma(2); hd[0] = [lambda: hflag_chk(2)] + hd[0]
if opt("ord", 0):
    L1 = w2seq(range(n0, n1_)) + hd + w2seq(range(NPRE, NPRE+p1))
    pace(L1, G(0, 19), G(1, 19))
    urgent.append((G(0, 19) + (G(1, 19) - G(0, 19))*(n1_ - n0)//len(L1) - opt("hq", 45), hflag_ld(2)))
    pace(w2seq(range(n1_, NPRE)) + h_dma(3) + w2seq(range(NPRE+p1, NPRE+NPARK)), G(1, 19), G(2, 19))
else:
    urgent.append((G(0, opt("hp2", 11)), hflag_ld(2)))
    pace(hd + w2seq(list(range(NPRE, NPRE+p1)) + list(range(n0, n1_))), G(0, 19), G(1, 19))
    pace(h_dma(3) + w2seq(list(range(NPRE+p1, NPRE+NPARK)) + list(range(n1_, NPRE))), G(1, 19), G(2, 19))
urgent.append((G(2, 19), aflag_ld(0)))
urgent.append((G(3, 14), aflag_ld(1)))
NW2C3 = min(NW2C3, len(C3L))
for j in range(NW2C3): urgent.append((max(G(3, j//3 + 1), G(3, 1) + (G(3, 19, 4) - G(3, 1))*j//NW2C3), C3L[j]))
for st in range(80): checks.append((cum[st], (lambda nm: lambda U, N: stamp(nm))(f'g{st}')))
assert NW2C3 == len(C3L)
vRw = [12, 13, 14, 15, 47]
vA2 = [48, 96]
assert all((p*6554) >> 16 == p // 10 for p in range(256))
g2b = ""
for lam in range(4):
    g2b += f"""s_xor_b32 {s(sT[7])}, {s(sWv)}, {lam}
    s_lshl_b32 {s(sT[7])}, {s(sT[7])}, 6
    s_sub_u32 {s(sT[7])}, {s(sT[7])}, 256
    v_add_u32 {v(vRw[lam])}, {s(sT[7])}, {v(vRw[4])}
    """
normal.append((1, lines(f"""s_sub_u32 {s(sT[6])}, 3, {s(sWv)}
s_mul_i32 {s(sT[6])}, {s(sT[6])}, {4*RW}
s_add_u32 {s(sT[6])}, {s(sT[6])}, {RED + 256}
v_mul_u32_u24 v6, 336, {v(vN)}
v_lshl_add_u32 v6, {v(vG)}, 4, v6
v_add_u32 {v(vRw[4])}, {s(sT[6])}, v6""")))
vRr, vOo = [16, 17, 18], [19, 20, 21]
g2c = lines(f"""v_min_u32 v22, 239, v0
v_mul_u32_u24 v23, 6554, v22
v_lshrrev_b32 v23, 16, v23
v_lshlrev_b32 v6, 5, v22
v_lshl_add_u32 v6, v23, 4, v6
v_add_u32 {v(vRr[0])}, {RED}, v6
v_add_u32 {v(vRr[1])}, {RED + 24*336}, v6
v_min_u32 v6, {RW - 48}, v6
v_add_u32 {v(vRr[2])}, {RED + 48*336}, v6
v_mul_u32_u24 v6, 10, v23
v_sub_u32 v22, v22, v6
v_lshlrev_b32 v22, 4, v22""")
for r_, (r0, lim) in enumerate(((0, 240), (24, 240), (48, 160))):
    o = vOo[r_]
    g2c += lines(f"""v_add_u32 v6, {r0}, v23
    v_and_b32 {v(o)}, 3, v6
    v_bfe_u32 v7, v6, 2, 1
    v_lshl_add_u32 {v(o)}, v7, 8, {v(o)}
    v_bfe_u32 v7, v6, 3, 1
    v_lshl_add_u32 {v(o)}, v7, 4, {v(o)}
    v_lshrrev_b32 v7, 4, v6
    v_lshl_add_u32 {v(o)}, v7, 9, {v(o)}
    v_mul_u32_u24 {v(o)}, 1280, {v(o)}
    v_add_u32 v7, {256 - lim}, v0
    v_lshrrev_b32 v7, 8, v7
    v_lshl_add_u32 v7, v7, 30, v22
    v_add_u32 {v(o)}, {v(o)}, v7""")
def g2_init(i):
    A = vA2[i % 2]; r = vRes + 2*i
    def sel(): k(f"s_cmp_eq_u32 {s(sWv)}, {i}\ns_cselect_b32 {s(sT[9])}, 0x01000c0c, {s(sT[12])}\ns_cselect_b32 {s(sT[10])}, 0xffff0000, 0")
    return [f"s_mov_b32 {s(sT[12])}, 0x0c0c0c0c", sel,
            f"v_lshlrev_b32 {v(A)}, 16, {v(r)}", f"v_and_b32 {v(A+1)}, 0xffff0000, {v(r)}", f"v_lshlrev_b32 {v(A+2)}, 16, {v(r+1)}", f"v_and_b32 {v(A+3)}, 0xffff0000, {v(r+1)}",
            f"v_perm_b32 {v(A+16)}, {v(vRes+8)}, {v(vRes+8)}, {s(sT[9])}", f"v_and_b32 {v(A+17)}, {s(sT[10])}, {v(vRes+8)}",
            f"v_perm_b32 {v(A+18)}, {v(vRes+9)}, {v(vRes+9)}, {s(sT[9])}", f"v_and_b32 {v(A+19)}, {s(sT[10])}, {v(vRes+9)}"]
def g2_write(i, lam): return f"ds_write_b128 {v(vRw[lam])}, {v(vA2[i % 2]+4*lam,4)} offset:{RW*i}"
OF = {0: "", 1: " sc1", 2: " nt", 3: " sc0 sc1"}[opt("of", 2)]
def g2_rd(r_): return [f"ds_read_b128 {v(120 + 32*(r_ % 2) + 8*w + 4*h_,4)}, {v(vRr[r_])} offset:{4*RW*w + 16*h_}" for w in range(4) for h_ in range(2)]
def fin(r_, pk=False):
    P = 120 + 32*(r_ % 2); L = []
    for d, x in ((0, 1), (2, 3), (0, 2)):
        if pk: L += [f"v_pk_add_f32 {v(P+8*d+2*j,2)}, {v(P+8*d+2*j,2)}, {v(P+8*x+2*j,2)}" for j in range(4)]
        else: L += [f"v_add_f32 {v(P+8*d+j)}, {v(P+8*d+j)}, {v(P+8*x+j)}" for j in range(8)]
    L += [f"v_cvt_pk_bf16_f32 {v(72+4*r_+j)}, {v(P+2*j)}, {v(P+2*j+1)}" for j in range(4)]
    return L + [f"buffer_store_dwordx4 {v(72+4*r_,4)}, {v(vOo[r_])}, {s(OUTR,4)}, {s(sOut)} offen{OF}"]
T0 = len(mm); AP = opt("ap", 4); KL = opt("kl", 6)
urgent.append((G(3, 19, 3), g2_init(0)))
checks.append((T0 - 1, flush("pre tile 0")))
for i in range(4):
    A = vA2[i % 2]; b_ = T0 + 60*i
    CH = opt("ch2", 3)
    order = [(ks, lam) for k0 in range(0, 12, CH) for lam in (1, 2, 3, 0, 4) for ks in range(k0, k0+CH)]
    if i == 3: order = order[:60-5*KL] + [(ks, lam) for lam in (4, 1, 2, 3, 0) for ks in range(12-KL, 12)]
    mm += [mf16(v(A+4*lam,4), w2reg(5*ks+lam), abuf(i, ks), "0" if (ks == 0 and lam in (1, 2, 3)) else None) for ks, lam in order]
    checks.append((b_, (lambda nm: lambda U, N: stamp(nm))(f"t{i}")))
    if i < 3:
        g0 = b_ + opt(f"ac{i+1}", [0, 10, 24][i])
        if i: urgent.append((g0 - opt(f"pa{i+1}", [0, 24, 34][i]), aflag_ld(i+1)))
        urgent.append((g0, [(lambda j: lambda: aflag_chk(j))(i+1)]))
        urgent += [(g0 + (AP if i < 2 else opt('ap3', 3))*j, g_) for j, g_ in enumerate(act_loads(i+1))]
    if i:
        wsp = 2 if i == 3 else 4
        urgent += [(b_ + 1 + wsp*j, [g2_write(i-1, lam)]) for j, lam in enumerate((1, 2, 3, 0, 4))]
        if i < 3: normal.append((b_ + 24, g2_init(i+1) + (g2c if i == 1 else [])))
    if i == 3:
        gb = b_ + opt("gb", 13)
        urgent.append((gb, [bar] + g2_rd(0)))
        normal += [(gb + 7, fin(0)[:8] + g2_rd(1) + fin(0)[8:] + fin(1))]
    checks.append((b_ + 59, flush(f"tile {i}")))
normal.append((T0 + 2, [stampc("g1e")] + lines(g2b) + g2_init(1)))
rd += [(T0-1, T0 + j*9//NPARK, T0 + 4 + j//2, x) for j, x in enumerate(unpark)]
checks.append((T0 - 1, lambda U, N: k.wait_tok("park", n=NPARK)))
urgent += [(T0 + opt("f2", 22), flag("a2", sFa, 8, False)), (T0 + opt("f3", 68), flag("a3", sFa, 12, False) + [stampc("afl")])]
f1, f2 = hflag("hB", 2)
urgent += [(opt("fB", 30), f1), (opt("fB", 30) + 6, f2)]
e3 = T0 + 240
urgent += [(e3 - 4*KL + 2 + KL*j, [g2_write(3, lam)]) for j, lam in enumerate((4, 1, 2, 3))]
for j in range(0, 240, 10): checks.append((T0 + j, (lambda nm: lambda U, N: stamp(nm))(f'm{j}')))
def _t(x): return x[0] if isinstance(x, tuple) else x if isinstance(x, str) else ""
if DBG & 1: urgent = [(g_, [x for x in it if not (g_ < G(3, 0) and _t(x).startswith("buffer_load_dwordx4") and f", {s(sT[8])} offen" in _t(x))]) for g_, it in urgent]
if DBG & 2: urgent = [(g_, [x for x in it if not (g_ < G(1, 0) and _t(x).startswith("buffer_load_dwordx4 a["))]) for g_, it in urgent]
if DBG & 4: urgent = [(g_, [x for x in it if not (G(3, 0) <= g_ < T0 and _t(x).startswith("buffer_load_dwordx4"))]) for g_, it in urgent]
if DBG & 8: normal = [(g_, [x for x in it if not (g_ < T0 and _t(x).startswith("buffer_store"))]) for g_, it in normal]
urgent.sort(key=lambda e: e[0])
def dsts(items):
    out = set()
    for x in items:
        if _t(x): out |= Ins(_t(x)).dst
    return out
if not DBG:
    k.poison |= dsts(lines(setup2) + sum(rest, [])) - {"v7"} - {s(r) for r in sW1} | {f"v{r}" for r in range(192, 256)} | {f"a{r}" for r in range(240, 256)} | {"v47"}
    for kk in range(20):
        checks.insert(0, (cum[61+kk] - 1, (lambda kk: lambda U, N: k.poison.update(f"a{r}" for r in range(12*kk, 12*kk+12)))(kk)))
    checks.insert(0, (T0 - 1, lambda U, N: k.poison.update({f"v{r}" for r in list(range(72, 96)) + list(range(120, 144)) + [12, 13, 14, 15]})))
    checks.append((T0 + 59, lambda U, N: k.poison.update({f"v{r}" for r in list(range(144, 192)) + list(range(16, 22))} | {f"a{r}" for r in range(4*NA0, 4*NA0+48)})))
EARLY = opt("early", 0)
if EARLY:
    for j in range(2, 5): checks.append((cum[j-2], (lambda j: lambda U, N: k.wait_tok(f"h0{j}"))(j)))
    checks.append((cum[3], lambda U, N: (bar(), stamp("c0b"))))
    assert H1POS > cum[3]
    k.wait_tok("h00")
    stamp("c0")
    k(g1_reads(0)); k.wait_tok("h01"); k(g1_reads(1))
else:
    k.wait_tok("h04"); bar(); stamp("c0"); k(g1_reads(0) + g1_reads(1))
sched(k, mm, rd, urgent, normal, checks, slotf=lambda i: opt("s0", 5) if T0 <= i < T0 + 60 else 2)
stamp("t4")
k(g2_write(3, 0))
bar()
k(g2_rd(2))
k(fin(2, True))
stamp("g2e")
k(f"""s_or_b32 {s(sT[4])}, s2, {s(sWv)}
s_cmp_lg_u32 {s(sT[4])}, 0
s_cselect_b32 {s(sT[4])}, {OOB}, 0
buffer_store_dword {v(vTagv)}, {v(vFl0)}, {ws}, {s(sT[4])} offen""")
if STAMP:
    k("s_waitcnt vmcnt(0)")
    stamp("end")
    k(f"""s_lshl2_add_u32 {s(sT[4])}, s2, {s(sWv)}
    s_lshl_b32 {s(sT[4])}, {s(sT[4])}, 7
    s_add_u32 {s(sT[4])}, {s(sT[4])}, {STB}""")
    for i in range(len(SEL)):
        k(f"v_mov_b32 v5, {s(sStamp+2*i)}\nbuffer_store_dword v5, {v(vFl0)}, {ws}, {s(sT[4])} offen offset:{4*i}")
k("s_endpgm")
k.raw(";WARM_END")
k.out += SLOW
k.out += TABTXT
k.raw("Lcode_end:")
hdr = "".join(l for l in open("cdna_kernels/" + NAME + ".s.ref").readlines()[:18] if l.startswith(";") and "@launch" not in l)
if STAMP: hdr += "; stamps: " + ",".join(SEL) + "\n"
def add_warm():
    import subprocess, re, tempfile, os
    d = tempfile.mkdtemp()
    open(d + "/t.s", "w").write(k.text(hdr, 256, 256, LDS_BYTES).replace(";WARM_HERE", "Lwarm0:\nLwarm1:\nLwarm2:\nLwarm3:"))
    subprocess.run(["clang", "-x", "assembler", "-target", "amdgcn-amd-amdhsa", "-mcpu=gfx950", "-c", d + "/t.s", "-o", d + "/t.o"], check=True)
    dis = subprocess.run(["llvm-objdump", "-d", "--mcpu=gfx950", d + "/t.o"], capture_output=True, text=True).stdout
    dis = dis[dis.index("_kernel>:"):]
    sizes = [4*len(m.group(1).split()) for m in re.finditer(r"// [0-9A-F]+: ([0-9A-F ]+?)(?: <.*)?$", dis, re.M)]
    out = []; pos = 0; n = 0; on = False; want = False; links = []; started = False; STEP = opt("wstep", 2048)
    for l in k.out:
        if l.endswith("_kernel:"): started = True
        if l == ";WARM_BEGIN": on = True; continue
        if l in (";WARM_OFF", ";WARM_END"): on = False; want = False; continue
        if l == ";WARM_HERE":
            on = True; links.append(len(out)); out.append(None); pos += 4; want = False; continue
        out.append(l)
        if not (started and l.startswith("    ")): continue
        p0 = pos; pos += sizes[n]; n += 1
        if on and pos // STEP != p0 // STEP: want = True
        if want and (l.startswith("    v_mfma") or pos % STEP >= 40) and "exec" not in l:
            links.append(len(out)); out.append(None); pos += 4; want = False
    n3 = min(W3L, len(links) - 3)
    chains = [links[:len(links)-n3][c::3] for c in range(3)] + [links[len(links)-n3:]]
    for c, ch in enumerate(chains):
        for j, at in enumerate(ch):
            me = f"Lwarm{c}" if j == 0 else f"Lwarm{c}_{j}"
            nx = f"Lwarm{c}_{j+1}" if j+1 < len(ch) else ("Lwarm_ret" if c < 3 else "Lwarm_ret3")
            out[at] = f"{me}:\n    s_cbranch_execz {nx}"
    k.out = out
    print("warm links", [len(c) for c in chains], "code bytes", pos)
LF = {0: " sc1", 1: "", 2: " nt", 3: " sc1 nt", 4: " sc0 sc1", 5: " sc0"}
import re as _re
def relabel(l):
    if not l.startswith("    buffer_load_dwordx4"): return l
    if _re.search(r", s(6|7|8|9|58) offen", l): return l.replace(" sc1", LF[opt("lw", 0)])
    if ", s54 offen" in l: return l.replace(" sc1", LF[opt("la_", 0)])
    return l
k.out = [relabel(l) for l in k.out]
if WARM: add_warm()
open(OUT, "w").write(k.text(hdr, 256, 256, LDS_BYTES))
print("instructions", k.nins, "nops", k.nnop)
```

```python
import re, copy
NAME = "sequential_preLN__ssm_conv_s4__swiglu_ffn__prompt"

_REG = re.compile(r"^[-|]*\s*(?:abs\()?([vas])(?:(\d+)|\[(\d+):(\d+)\])\)?\|?$")
TRANS = ("v_exp_f32", "v_log_f32", "v_rcp_f32", "v_rsq_f32", "v_sqrt_f32", "v_sin_f32", "v_cos_f32", "v_rcp_iflag_f32")

def regs_of(op):
    op = op.strip()
    if op in ("vcc", "vcc_lo", "vcc_hi"): return {"vcc"}
    if op in ("exec", "exec_lo", "exec_hi"): return {"exec"}
    if op == "m0": return {"m0"}
    m = _REG.match(op)
    if not m: return set()
    k = m.group(1)
    if m.group(2) is not None: return {f"{k}{m.group(2)}"}
    return {f"{k}{i}" for i in range(int(m.group(3)), int(m.group(4)) + 1)}

class Ins:
    __slots__ = ("text", "mn", "ops", "mods", "dst", "src", "cls", "passes", "srcc", "srcab", "tok")
    def __init__(self, text, tok=None):
        self.text = text; self.tok = tok
        body = text.split(";")[0].strip()
        parts = body.split(None, 1)
        mn = self.mn = parts[0]
        rest = parts[1] if len(parts) > 1 else ""
        ops, depth, cur = [], 0, ""
        for ch in rest:
            if ch in "[(": depth += 1
            if ch in "])": depth -= 1
            if ch == "," and depth == 0: ops.append(cur.strip()); cur = ""
            else: cur += ch
        if cur.strip(): ops.append(cur.strip())
        mods = ""
        if ops:
            last = ops[-1].split(None, 1)
            ops[-1] = last[0]
            mods = last[1] if len(last) > 1 else ""
        self.ops, self.mods = ops, mods
        R = [regs_of(o) for o in ops]
        allr = set().union(*R) if R else set()
        tail = set().union(*R[1:]) if len(R) > 1 else set()
        self.passes = 0; self.srcc = set(); self.srcab = set()
        if mn.startswith("v_mfma") or mn.startswith("v_smfmac"):
            self.cls = "mfma"; self.dst = R[0]; self.src = tail
            self.srcab = R[1] | R[2]; self.srcc = R[3] if len(R) > 3 else set()
            self.passes = 8 if "32x32" in mn else 4
        elif mn.startswith("v_"):
            self.cls = "valu"
            if "permlane" in mn and "swap" in mn: self.dst = allr; self.src = allr
            elif mn.startswith(("v_add_co", "v_sub_co", "v_addc_co", "v_subb_co", "v_subrev_co", "v_mad_u64_u32", "v_div_scale")):
                self.dst = R[0] | R[1]; self.src = set().union(*R[2:])
            elif mn.startswith(("v_fmac", "v_dot2c", "v_pk_fmac", "v_writelane")) or "dpp" in mn or "row_" in mods or "quad_perm" in mods or "UNUSED_PRESERVE" in mods:
                self.dst = R[0]; self.src = allr
            elif mn == "v_nop": self.dst = set(); self.src = set()
            else: self.dst = R[0]; self.src = tail
        elif mn.startswith("ds_"):
            self.cls = "ds"
            if mn.startswith(("ds_read", "ds_bpermute", "ds_permute", "ds_swizzle")) or "_rtn" in mn:
                self.dst = R[0]; self.src = tail
                if "d16" in mn: self.src = allr
            else: self.dst = set(); self.src = allr
            if "addtid" in mn: self.src = self.src | {"m0"}
        elif mn.startswith(("buffer_", "global_")):
            self.cls = "vmem"
            islds = mn.startswith("global_load_lds") or re.search(r"\blds\b", mods) is not None
            if islds: self.dst = set(); self.src = allr | {"m0"}
            elif "_load" in mn:
                self.dst = R[0]; self.src = allr if "d16" in mn else tail
            elif "atomic" in mn and "sc0" in mods: self.dst = R[0]; self.src = allr
            else: self.dst = set(); self.src = allr
        elif mn.startswith(("s_load", "s_buffer_load", "s_memtime", "s_memrealtime")):
            self.cls = "smem"; self.dst = R[0]; self.src = tail
        elif mn.startswith("s_"):
            self.cls = "salu"
            if mn.startswith(("s_cmp", "s_bitcmp", "s_waitcnt", "s_barrier", "s_branch", "s_cbranch", "s_nop", "s_setprio", "s_sleep", "s_endpgm", "s_setpc", "s_setreg")):
                self.dst = set(); self.src = allr
                if "vcc" in mn: self.src = {"vcc"}
            elif "saveexec" in mn: self.dst = R[0] | {"exec"}; self.src = tail | {"exec"}
            elif mn.startswith(("s_addk", "s_mulk", "s_cmov")): self.dst = R[0]; self.src = allr
            else: self.dst = R[0]; self.src = tail
        else:
            raise ValueError("unknown instruction: " + text)

class State:
    def __init__(self):
        self.vm = []
        self.lg = []
        self.sm = set()
        self.hist = []

class K:
    def __init__(self):
        self.out = []; self.st = State(); self.uid = 0; self.kernels = []; self.launches = []
        self.nins = 0; self.nnop = 0; self.marks = []; self.tokn = {}; self.poison = set()
    def raw(self, s): self.out.append(s)
    def lab(self, base="L"):
        self.uid += 1; return f"{base}{self.uid}"
    def label(self, name): self.out.append(name + ":")
    def _age(self, n):
        h = [(i, a + n) for i, a in self.st.hist if a + n < 24]
        self.st.hist = h
    def _put(self, text, ins=None, states=1):
        self.out.append("    " + text); self.nins += 1
        self._age(states)
        if ins is not None: self.st.hist.append((ins, 0))
    def _need(self, q, regs, cap):
        idx = -1
        for i, e in enumerate(q):
            if e & regs: idx = i
        if idx < 0: return None
        return min(len(q) - 1 - idx, cap)
    def _wait(self, vm=None, lg=None):
        st = self.st; parts = []
        if vm is not None:
            parts.append(f"vmcnt({vm})"); st.vm = st.vm[len(st.vm) - vm:] if vm else []
        if lg is not None:
            parts.append(f"lgkmcnt({lg})"); st.lg = st.lg[len(st.lg) - lg:] if lg else []
            if lg == 0: st.sm = set()
        if parts: self._put("s_waitcnt " + " ".join(parts))
    def wait_tok(self, *toks, n=1):
        for x in toks: assert self.tokn.get(x, 0) >= n, (x, self.tokn.get(x, 0), n)
        t = {"#" + x for x in toks}
        vm = self._need(self.st.vm, t, 63); lg = self._need(self.st.lg, t, 15)
        self._wait(vm, lg)
    def wait_all(self, vm=True, lg=True):
        self._wait(0 if vm else None, 0 if lg else None)
    def _hazard(self, c):
        need = 0
        touch = c.src | c.dst
        for p, age in self.st.hist:
            w = 0
            if p.cls == "valu":
                vd = {r for r in p.dst if r[0] in "va" and r != "vcc"}
                sd = p.dst - vd
                if vd & c.src:
                    if c.cls == "mfma": w = 2
                    elif c.cls == "valu":
                        if "permlane" in c.mn or "dpp" in c.mn or "row_" in c.mods or "quad_perm" in c.mods: w = 2
                        elif c.mn.startswith(("v_readlane", "v_readfirstlane")): w = 1
                        if p.mn.startswith(TRANS): w = max(w, 1)
                        if p.mn.startswith("v_dot2") and p.mn != c.mn: w = max(w, 3)
                        if "sdwa" in p.mn and "dst_sel:DWORD" not in p.mods: w = max(w, 1)
                if c.cls == "mfma" and p.mn.startswith(("v_pk_", "v_dot", "v_mov_b64")): w = max(w, 2)
                if sd & c.src:
                    if c.cls == "vmem": w = max(w, 5)
                    elif c.cls == "valu": w = max(w, 4 if "lane" in c.mn else 2)
                    elif c.cls == "salu" and "cbranch" not in c.mn: w = max(w, 1)
            elif p.cls == "mfma":
                big = p.passes == 8
                if c.cls == "mfma":
                    if p.dst & c.srcab: w = 12 if big else 8
                    if p.dst & c.srcc and not (p.dst == c.srcc and p.passes == c.passes): w = max(w, 10 if big else 6)
                    if p.dst & c.dst and not (p.dst == c.dst and p.passes == c.passes): w = max(w, 10 if big else 6)
                elif p.dst & touch: w = 12 if big else 8
                if c.cls == "valu" and p.srcc & c.dst: w = max(w, 7 if big else 3)
            elif p.cls == "salu":
                if "m0" in p.dst and "m0" in c.src and c.cls in ("ds", "vmem"): w = 1
            elif p.cls == "vmem":
                if ("store" in p.mn) and ("x3" in p.mn or "x4" in p.mn) and c.cls != "salu":
                    data = regs_of(p.ops[0]) if p.mn.startswith("buffer") else regs_of(p.ops[1])
                    if data & c.dst: w = 2
            need = max(need, w - age)
        return need
    def ins(self, text, tok=None):
        c = Ins(text, tok); st = self.st
        if c.mn == "s_waitcnt":
            vm = re.search(r"vmcnt\((\d+)\)", text); lg = re.search(r"lgkmcnt\((\d+)\)", text)
            vm = int(vm.group(1)) if vm else None; lg = int(lg.group(1)) if lg else None
            if vm is not None and vm > len(st.vm): st.vm = [set()] * (vm - len(st.vm)) + st.vm
            if lg is not None and lg > len(st.lg): st.lg = [set()] * (lg - len(st.lg)) + st.lg
            self._wait(vm, lg); return
        assert not (c.src & self.poison), (text, c.src & self.poison)
        self.poison -= c.dst
        touch = c.src | c.dst
        vm = self._need(st.vm, touch, 63); lg = self._need(st.lg, touch, 15)
        if st.sm & touch: lg = 0
        self._wait(vm, lg)
        n = self._hazard(c)
        while n > 0:
            k = min(n, 16); self._put(f"s_nop {k-1}", None, k); self.nnop += 1; n -= k
        states = int(c.ops[0]) + 1 if c.mn == "s_nop" else 1
        self._put(text, c, states)
        if tok: self.tokn[tok] = self.tokn.get(tok, 0) + 1
        e = set(c.dst) | ({"#" + tok} if tok else set())
        if c.cls == "vmem": st.vm.append(e)
        elif c.cls == "ds": st.lg.append(e)
        elif c.cls == "smem": st.sm |= (c.dst or {"?"})
    def __call__(self, s, tok=None):
        if isinstance(s, (list, tuple)):
            for x in s:
                if callable(x): x()
                elif isinstance(x, tuple): self(x[0], x[1])
                else: self(x)
            return
        for l in s.split("\n"):
            l = l.strip()
            if not l or l.startswith(";"): continue
            if l.endswith(":"): self.label(l[:-1])
            elif l.startswith("."): self.raw(l)
            else: self.ins(l, tok)
    def snap(self): return copy.deepcopy(self.st)
    def restore(self, s): self.st = copy.deepcopy(s)
    def merge(self, other):
        def mq(a, b):
            n = max(len(a), len(b)); pos = {}
            for q in (a, b):
                for i, e in enumerate(q):
                    k = len(q) - 1 - i
                    for r in e: pos[r] = min(pos.get(r, 1 << 30), k)
            out = [set() for _ in range(n)]
            for r, k in pos.items(): out[n - 1 - k].add(r)
            return out
        st = self.st
        st.vm = mq(st.vm, other.vm); st.lg = mq(st.lg, other.lg); st.sm |= other.sm
        st.hist = st.hist + other.hist
    def begin(self, name):
        self.out.append(f".globl {name}\n.p2align 8\n.type {name},@function\n{name}:"); self.st = State()
    def text(self, header, grid, block, lds, vgpr=512, accum=256, sgpr=102):
        n = NAME + "_kernel"
        o = [header.rstrip("\n"), f"; @launch grid=({grid},1,1) block=({block},1,1) lds={lds}",
             '.amdgcn_target "amdgcn-amd-amdhsa--gfx950"', ".text"] + self.out
        o.append(f""".section .rodata,"a"
.p2align 6
.amdhsa_kernel {n}
  .amdhsa_next_free_vgpr {vgpr}
  .amdhsa_next_free_sgpr {sgpr}
  .amdhsa_accum_offset {accum}
  .amdhsa_group_segment_fixed_size 0
  .amdhsa_kernarg_size 128
  .amdhsa_user_sgpr_count 2
  .amdhsa_user_sgpr_kernarg_segment_ptr 1
  .amdhsa_system_sgpr_workgroup_id_x 1
.end_amdhsa_kernel""")
        return "\n".join(o) + "\n"

def weave(main, fill, per=2, start=0):
    out = []; fill = list(fill)
    def cost(x):
        t = x[0] if isinstance(x, tuple) else x
        if callable(t): return 0
        return 2 if t.split()[0].startswith(TRANS) else 1
    for i, m in enumerate(main):
        out.append(m)
        if i < start: continue
        b = per
        while fill and cost(fill[0]) <= b:
            b -= cost(fill[0]); out.append(fill.pop(0))
    return out, fill
def v(a, n=1): return f"v{a}" if n == 1 else f"v[{a}:{a+n-1}]"
def ar(a, n=1): return f"a{a}" if n == 1 else f"a[{a}:{a+n-1}]"
def s(a, n=1): return f"s{a}" if n == 1 else f"s[{a}:{a+n-1}]"

def _txt(x): return x[0] if isinstance(x, tuple) else x
def _kind(x):
    t = _txt(x)
    if callable(t): return "call"
    m = t.split()[0]
    if m.startswith(("ds_", "buffer_", "global_")): return "mem"
    if m.startswith("s_"): return "salu"
    if m.startswith(TRANS) or (SWAP2 and "_swap_" in m): return "trans"
    return "valu"
def prewait(k, text):
    c = Ins(text); st = k.st; touch = c.src | c.dst
    vm = k._need(st.vm, touch, 63); lg = k._need(st.lg, touch, 15)
    n0 = k.nins; k._wait(vm, lg); return k.nins != n0
def weave2(k, mm, rd, fill, nxt=None, slots=2, start=0, minfill=0):
    rd = list(rd); n = len(mm)
    for i, m in enumerate(mm):
        k(m)
        nx = mm[i+1] if i+1 < n else nxt
        free_s = not (nx is not None and prewait(k, nx))
        b = slots; had_valu = False
        if i >= start:
            while fill and (_kind(fill[0]) == "call" or (_kind(fill[0]) == "salu" and free_s)):
                if _kind(fill[0]) == "salu": free_s = False
                n0 = k.nins; k([fill.pop(0)])
                if k.nins != n0: free_s = False
        q = -(-len(rd) // (n - i))
        for _ in range(q): k([rd.pop(0)]); b -= 1
        if i < start: continue
        b = max(b, minfill)
        while fill and b > 0:
            kd = _kind(fill[0])
            if kd == "call": break
            if kd == "mem" and had_valu: break
            c = 2 if kd == "trans" else 1
            if c > b: break
            if kd in ("valu", "trans"): had_valu = True
            k([fill.pop(0)]); b -= c
    assert not rd

VCOST = 1
SWAP2 = 1
M0FIX = 1
def sched(k, mm, rd=(), urgent=(), normal=(), checks=(), slots=2, tail=True, slotf=None):
    rd = list(rd); U, N = [], []; n = len(mm); slots0 = slots; hold = [False]
    def q(): return U if (U and not hold[0]) else N
    def peek(j):
        a = N if hold[0] else U + N
        return _kind(a[j]) if j < len(a) else None
    for g_, it in urgent:
        if g_ < 0: k(list(it))
    while rd and rd[0][2] < 0: k([rd.pop(0)[3]])
    for i, m in enumerate(mm):
        k(m)
        for g_, fn in checks:
            if g_ == i: fn(U, N)
        for g_, it in urgent:
            if g_ == i: U += list(it)
        for g_, it in normal:
            if g_ == i: N += list(it)
        free_s = not (i+1 < n and prewait(k, mm[i+1]))
        held = hold[0]; hold[0] = False
        while (U or N) and (peek(0) == "call" or (peek(0) == "salu" and free_s)):
            n0 = k.nins; k([q().pop(0)])
            if k.nins != n0: free_s = False
        if U and N and _kind(U[0]) == 'salu' and not held: hold[0] = True
        slots = slotf(i) if slotf else slots0
        b = slots
        must = sum(1 for r in rd if r[2] <= i); avail = sum(1 for r in rd if r[0] <= i); nom = sum(1 for r in rd if r[1] <= i)
        p0, p1 = peek(0), peek(1)
        big = lambda x: VCOST > 1 and not callable(x) and _txt(x).startswith(("buffer_", "global_"))
        if p0 == "mem" and big(q()[0]): p0 = "trans"
        if p0 is None: nr = min(avail, max(nom, must)) if nom <= slots else max(slots, must)
        elif p0 == "trans": nr = max(must, min(avail, slots)) if (must or nom >= 2) else 0
        elif p1 == "trans" or p1 is None or (p0 == "valu" and p1 == "mem"): nr = max(must, min(avail, slots-1))
        else: nr = max(must, min(nom, slots-1 if nom < 3 else slots))
        if M0FIX and nr == 0 and p0 == "mem" and " m0," in k.out[-1]:
            if avail: nr = 1
            elif N: hold[0] = True
        for _ in range(nr): k([rd.pop(0)[3]]); b -= 1
        if U and not hold[0]: b = max(b, 1)
        had = False
        while b > 0:
            if U and N and not hold[0] and _kind(U[0]) == 'salu' and not held: hold[0] = True
            kd = peek(0)
            if kd is None: break
            if kd == "call" or (kd == "mem" and had): break
            c = 2 if kd == "trans" else 1
            if c > b: break
            if kd == "mem" and big(q()[0]): c = 2
            if kd in ("valu", "trans"): had = True
            k([q().pop(0)]); b -= c
    assert not rd
    left = U + N
    if tail: k(left)
    return left
def spread(items, a, b, late=None):
    n = len(items); late = b-1 if late is None else late
    return [(a, a + (b-a)*j//n, late, x) for j, x in enumerate(items)]
```

```python
import sys, numpy as np
import gk
from gk import *
from gk import _kind

STAMP = "--stamp" in sys.argv
OUT = [a for a in sys.argv[1:] if a.endswith(".s")]
OUT = OUT[0] if OUT else "v3.s"
def opt(name, default):
    x = [a.split("=")[1] for a in sys.argv if a.startswith(f"--{name}=")]
    return int(x[0]) if x else default
NW1C = opt("w1conv", 30)
NW1G = opt("w1gap", 6)
NW2C3 = opt("w2c3", 35)
SLEEP = opt("sleep", 0)
DBG = opt("dbg", 0)
MB = opt("mb", 3)
XEARLY = opt("xearly", 2)
WARM = opt("warm", 1)
W3L = opt("w3l", 5)
gk.VCOST = opt("vc", 1); gk.SWAP2 = opt("sw2", 1); gk.M0FIX = opt("m0f", 1)
WIN = opt("win", 0)
KCS = opt("kcs", 6)
def gap_cs():
    for kk in range(KCS):
        for t in range(3): k(mf16(v(180+4*t,4), ar(12*kk+4*t,4), v(12,4), "0" if kk == 0 else None))

STP, STB = 0x18000, 0x20000
LS = 128
FB, RS = 0x40000, opt("rs", 1152)
oH, oW2, oW1 = 0, 12, 16
FA = FB + 16*RS
RDY = FA + 64*LS
CGS = 16384 + opt("pc", 128)
HTM = 163840 + opt("ph", 0)
ATS = 49152 + opt("pa", 0)
W1S = 61440 + opt("pw", 0)
W2S = 245760 + opt("pv", 0)
_sz = dict(X=214*CGS + 0x1000 & ~0xfff, H=16*HTM, G=64*W1S, D=8*W2S, A=128*ATS)
_at = {}; _p = 0x80000 + opt("o0", 0)
for _c in ["XHGDA", "XGHDA", "XGDHA", "GXHDA", "XHAGD", "HXGDA", "AXHGD", "XAHGD"][opt("lay", 1)]:
    _at[_c] = _p; _p += _sz[_c] + opt("og", 0)
XB, HT, W1P, W2P, ACT = (_at[c_] for c_ in "XHGDA")
WS_BYTES = 0x10000000
OOB = 0x40000000
NCG = 214
TK, TKCH, CS = 0, 16640, 4160
UL, ULCH = 49920, 4608
XL = UL + 3 * ULCH
TAB, TABW, TROW, TOF = 77568, 17408, 272, 51000
PK = 129792
XS, XSP = 148224, 2592
LNS = 158592
PART = 122880
AG = 2*CS + 2304
SLOT = [81920, 122880]
SC, PARK, NPARK = 0, 8192, 18
RED, RW = 77824, 5376
LDS_BYTES = 163840
SPIN = 1 << 15
LOG2E = 0x3fb8aa3b
INV640 = 0x3acccccd
pX, pAre, pAim, pBre, pBim, pCre, pCim, pLdt, pDsk, pBx, pWg, pWu, pWd, pOut, pDbg, pWs = [4 + 2 * i for i in range(16)]
WSR, OUTR = 36, 40
sTag, sWv, sMt, sNt, sHb, sN2 = 44, 45, 46, 47, 48, 49
sT = list(range(50, 64))
sXb = 64
sPkS, sPkF, sFl, sCnt = 66, 67, 68, 69
sStamp = 70
sHw = 3
sXr = 4
sW1 = [6, 7, 8, 9]
sAct, sHsrc, sLd, sOut, sFa, sW2, sRep, sAin, sFAc = 10, 11, 12, 13, 14, 15, 16, 17, 18
ws = s(WSR, 4)

k = K()
SEL = [a[6:].split(",") for a in sys.argv if a.startswith("--sel=")]
SEL = SEL[0] if SEL else ["start"]
assert len(SEL) <= 16
def stamp(name):
    if STAMP and name in SEL: k(f"{'s_memtime' if opt('cyc', 0) else 's_memrealtime'} {s(sStamp + 2*SEL.index(name), 2)}")
def stampc(name): return lambda: stamp(name)
def lines(t): return [l.strip() for l in t.split("\n") if l.strip()]

vLane, vN, vG, vL16 = 1, 2, 3, 4
vTagv, vRep, vFl0 = 11, 30, 31

def tagtest(checks, vacc, ref):
    if len(checks) == 1:
        k(f"v_cmp_ne_u32 vcc, {s(ref)}, {v(checks[0])}"); return
    k(f"v_xor_b32 {v(vacc)}, {s(ref)}, {v(checks[0])}")
    for c in checks[1:]:
        k(f"v_bitop3_b32 {v(vacc)}, {v(vacc)}, {v(c)}, {s(ref)} bitop3:0xf6")
    k(f"v_cmp_ne_u32 vcc, 0, {v(vacc)}")
SLOW = []
def check(loads, checks, vacc, nl=64, cnt=0):
    L, E, D = k.lab("Lpoll"), k.lab("Lslow"), k.lab("Lgot")
    ref = sTag
    if cnt: ref = sT[0]; k(f"s_add_u32 {s(ref)}, {s(sTag)}, {cnt}")
    if 31 < nl < 64: k(f"s_bfm_b64 {s(sT[2],2)}, {nl}, 0")
    tagtest(checks, vacc, ref)
    if nl <= 31: k(f"s_and_b64 vcc, vcc, {hex((1 << nl) - 1)}\ns_cbranch_scc1 {E}")
    elif nl < 64: k(f"s_and_b64 vcc, vcc, {s(sT[2],2)}\ns_cbranch_scc1 {E}")
    else: k(f"s_cbranch_vccnz {E}")
    st = k.snap(); main_out = k.out; k.out = []
    k.label(E)
    k(f"s_mov_b32 {s(sCnt)}, 0")
    k.label(L)
    k("s_mov_b64 exec, vcc")
    if SLEEP: k(f"s_sleep {SLEEP}")
    k(loads)
    k("s_waitcnt vmcnt(0)")
    tagtest(checks, vacc, ref)
    k(f"""s_mov_b64 exec, -1
    s_cbranch_vccz {D}
    s_add_u32 {s(sCnt)}, {s(sCnt)}, 1
    s_cmp_lt_u32 {s(sCnt)}, {SPIN}
    s_cbranch_scc1 {L}
    s_branch {D}""")
    SLOW.extend(k.out); k.out = main_out
    k.label(D)
    k.merge(st)
def check2(d, va, off, soff, nl, cnt, ra, rb):
    L, E, D = k.lab("Lpoll"), k.lab("Lslow"), k.lab("Lgot")
    ref = sT[0]; m = hex((1 << nl) - 1)
    k(f"s_add_u32 {s(ref)}, {s(sTag)}, {cnt}\nv_cmp_ne_u32 vcc, {s(ref)}, {v(d)}\ns_and_b64 vcc, vcc, {m}\ns_cbranch_scc1 {E}")
    st = k.snap(); main_out = k.out; k.out = []
    k.label(E)
    k(f"s_mov_b32 {s(sCnt)}, 0")
    k(apoll(ra, va, off, soff))
    k(f"s_sleep {opt('ps', 4)}")
    k.label(L)
    for cur, oth in ((ra, rb), (rb, ra)):
        k.st.vm = []
        k(apoll(oth, va, off, soff))
        k.st.vm = []
        k.raw("    s_waitcnt vmcnt(1)")
        k(f"v_cmp_ne_u32 vcc, {s(ref)}, {v(cur)}\ns_and_b64 vcc, vcc, {m}\ns_cbranch_scc0 {D}")
    k(f"""s_add_u32 {s(sCnt)}, {s(sCnt)}, 1
    s_cmp_lt_u32 {s(sCnt)}, {SPIN}
    s_cbranch_scc1 {L}
    s_branch {D}""")
    SLOW.extend(k.out); k.out = main_out
    k.label(D)
    k.st.vm = []
    k.merge(st)
def apoll(d, va, off, soff=None):
    return [f"v_mov_b32 {v(d)}, 0", f"buffer_atomic_add {v(d)}, {v(va)}, {ws}, {s(sRep if soff is None else soff)} offen offset:{off} sc0 sc1"]
vOne = 27
def flag(tok, soff, off=0, rep=True):
    return [lambda: k.wait_tok(tok, n=2), f"buffer_atomic_add {v(vOne)}, {v(vRep if rep else vFl0)}, {ws}, {s(soff)} offen offset:{off} sc1"]
def rdy_ld(d): return [f"s_mov_b32 {s(sT[1])}, {RDY}", f"v_lshlrev_b32 {v(d)}, 2, {v(vN)}", f"buffer_load_dword {v(d)}, {v(d)}, {ws}, {s(sT[1])} offen sc1"]
def rdy_chk(d): check(rdy_ld(d), [d], 5); stamp("rdy")
vAg, vInc, vAt = 21, 25, 26
def hflag(tok, st):
    return ([lambda: k.wait_tok(tok), f"ds_add_rtn_u32 {v(vAt)}, {v(vAg)}, {v(vOne)} offset:{256*st}"],
            [f"v_xor_b32 {v(vAt)}, 2, {v(vAt)}", f"v_lshl_add_u32 {v(vAt)}, {v(vAt)}, 29, {v(vRep)}",
             f"buffer_atomic_add {v(vInc)}, {v(vAt)}, {ws}, {s(sFl)} offen offset:{oH + 4*st} sc1"])
def bar(): k("s_waitcnt lgkmcnt(0)\ns_barrier")
def cmul(d, a, b):
    return [f"v_pk_mul_f32 {v(d,2)}, {v(a,2)}, {v(b,2)} op_sel:[0,0] op_sel_hi:[0,1]",
            f"v_pk_fma_f32 {v(d,2)}, {v(a,2)}, {v(b,2)}, {v(d,2)} op_sel:[1,1,0] op_sel_hi:[1,0,1] neg_lo:[1,0,0]"]
def zipper(*ls):
    out = []; ls = [list(l) for l in ls]
    while any(ls):
        for l in ls:
            if l: out.append(l.pop(0))
    return out
def mf16(d, a, b, c=None):
    return f"v_mfma_f32_16x16x32_bf16 {d}, {a}, {b}, {d if c is None else c}"
def groups(d):
    out = []; g_ = []
    for x in d:
        g_.append(x)
        if _kind(x) == "mem": out.append(g_); g_ = []
    assert not g_
    return out

TAPS = [list(range(-3, 8)), [-3, -2, 0, 4, 6]]
def tapsrc(rho, tap):
    if rho == 0: return tap
    return -3 if tap == -3 else -2 if tap == -2 else 0 if tap <= 2 else 4 if tap <= 5 else 6
def rb(x):
    u = int(np.float32(x).view(np.uint32))
    return int(np.uint32(((u + 0x7FFF + ((u >> 16) & 1)) >> 16) << 16).view(np.float32))
H = list(range(8)) + [256,258,260,262,512,516,768,772,1024,1280,1536,1792,2048]
idx = {}
for i, h in enumerate(H):
    for j in range(32): idx.setdefault(h + 8*j, (i, j))
def kaddr(l):
    if l < 0: return 3072
    i, j = idx[rb(l)]
    return (4*(i >> 3) + (i & 3))*256 + ((i >> 2) & 1)*128 + 4*j
TABTXT = [".p2align 7\n.type Ltab,@object\nLtab:"]
rows_ = []
for j in range(64, 128):
    assert all(rb(16*j + l) == 16*j + 8 for l in range(5, 12)) and all(rb(16*j + l) == 16*j + 16 for l in range(12, 21))
for lane in range(64):
    row = []; n_, g_ = lane & 15, lane >> 4
    for rho in range(2):
        x = 64*rho + lane
        for tap in range(-3, 8): assert kaddr(8*x + tap) == kaddr(8*x + tapsrc(rho, tap)), (rho, lane, tap)
        row += [kaddr(8*x + tp) for tp in TAPS[rho]]
    row += [kaddr(l if l <= 1028 else -1) for l in (1040 + n_ - 8*g_ - j for j in range(8))]
    row += [kaddr(1024 + 16*lane + 8), kaddr(1024 + 16*lane + 16)] + [0]*6
    row += [0x3f80 if 5 <= n_ - (8*g_ + j - 16) <= 11 else 0 for j in range(8)]
    row += [0x3f80 if 12 <= n_ - (8*g_ + j - 24) <= 20 else 0 for j in range(8)]
    rows_.append(row)
for part in range(6):
    for lane in range(64): TABTXT.append(".short " + ",".join(map(str, rows_[lane][8*part:8*part+8])))
TABTXT.append(".size Ltab, .-Ltab")
if opt("low", 1): k.raw(".p2align 8\n.type Lpad,@object\nLpad:\n.fill 128, 4, 0\n.size Lpad, .-Lpad")
else: k.raw(".p2align 12\n.type Lpad,@object\nLpad:\n.fill 832, 4, 0\n.size Lpad, .-Lpad")

k.begin(NAME + "_kernel")
stamp("start")
vTabl, vPar, vLdt, vDs = 42, 56, 74, 75
k(f"""
s_load_dwordx16 s[4:19], s[0:1], 0
s_load_dwordx16 s[20:35], s[0:1], 64
s_cmp_lt_u32 s2, 256
s_cbranch_scc1 Lstart
s_endpgm
Lstart:
s_getpc_b64 {s(sT[0],2)}
Lpc:
v_and_b32 {v(vN)}, 15, v0
s_lshr_b32 {s(sT[5])}, s2, 3
s_lshl_b32 {s(sT[4])}, {s(sT[5])}, 11
v_lshl_add_u32 v5, {v(vN)}, 7, {s(sT[4])}
v_min_u32 v5, Lcode_end-Lpc-4, v5
v_lshrrev_b32 v6, 6, v0
global_load_dword v172, v5, {s(sT[0],2)}
v_readfirstlane_b32 {s(sWv)}, v6
v_and_b32 {v(vLane)}, 63, v0
v_lshlrev_b32 {v(vL16)}, 4, {v(vLane)}
s_mul_i32 {s(sT[6])}, s2, 3
s_cmp_eq_u32 {s(sWv)}, 3
s_cselect_b32 {s(sT[7])}, 0, {s(sWv)}
s_cselect_b32 {s(sT[10])}, 255, s2
s_add_u32 {s(sT[6])}, {s(sT[6])}, {s(sT[7])}
s_min_u32 {s(sT[8])}, {s(sT[6])}, 639
s_mul_i32 {s(sT[9])}, {s(sT[8])}, 384
v_lshl_add_u32 v6, {v(vLane)}, 1, {s(sT[9])}
s_lshl_b32 {s(sT[9])}, {s(sT[8])}, 1
v_mov_b32 v7, {s(sT[9])}
""")
for i in range(9): k(f"v_mov_b64 {v(vPar+2*i,2)}, 0")
k(f"""
s_lshl2_add_u32 {s(sT[4])}, s2, {s(sWv)}
s_mul_i32 {s(sT[4])}, {s(sT[4])}, 2560
s_mul_i32 m0, {s(sWv)}, {XSP}
s_add_u32 m0, m0, {XS}
s_add_u32 {s(sXb)}, {s(pX)}, {s(sT[4])}
s_addc_u32 {s(sXb+1)}, {s(pX+1)}, 0
s_load_dword {s(sTag)}, {s(pWs,2)}, 0
s_add_u32 {s(pDbg)}, {s(sT[0])}, Ltab-Lpc+2048
s_addc_u32 {s(pDbg+1)}, {s(sT[1])}, 0
""")
k(f"global_load_lds_dwordx4 {v(vL16)}, {s(sXb,2)}", tok="x")
k(f"global_load_lds_dwordx4 {v(vL16)}, {s(sXb,2)} offset:1024", tok="x")
k("s_mov_b32 exec_hi, 0")
k(f"global_load_lds_dwordx4 {v(vL16)}, {s(sXb,2)} offset:2048", tok="x")
if opt("b0", 1): k("s_barrier")
k(f"s_mov_b32 exec_hi, -1\ns_cmp_ge_u32 {s(sT[10])}, {NCG}\ns_cbranch_scc1 Lother")
sDisp = k.snap()
stamp("xi")

vQ, vCgl, vXo, vSel, vSel3, vRo, vRo3, vLw, vLr = 150, 151, 152, 144, 147, 76, 77, 156, 157
vLa, vLb, vLr2, vM, vDI, vHc, vPt = 8, 9, 10, 12, 16, 28, 29
vW1a, vW1d = 22, 24
vFa, vFd = 23, 24
vRaw, vX, vS, vSq, vXr = 84, 100, 124, 126, 240
def srd_setup(other=False):
    if STAMP:
        for i, nm in enumerate(SEL):
            if nm not in ("start", "iss", "xi"): k(f"s_mov_b32 {s(sStamp+2*i)}, 0")
    k(f"""
    s_mov_b32 {s(WSR)}, {s(pWs)}
    s_mov_b32 {s(WSR+1)}, {s(pWs+1)}
    s_mov_b32 {s(WSR+2)}, {WS_BYTES}
    s_mov_b32 {s(WSR+3)}, 0x20000
    """)
    if other:
        k(f"""s_cmp_eq_u32 {s(sWv)}, 2
        s_cselect_b32 {s(sT[12])}, s2, 0
        s_cmp_lt_u32 {s(sT[12])}, 240
        s_cbranch_scc1 Lnoinit""")
        st_ = k.snap()
        k(f"""s_sub_u32 {s(sT[12])}, s2, 240
        s_lshl_b32 {s(sT[13])}, {s(sT[12])}, 2
        s_add_u32 {s(sT[13])}, {s(sT[13])}, {RDY}
        v_min_u32 v62, 1, {v(vLane)}
        v_lshlrev_b32 v62, 30, v62
        v_mov_b32 v5, 0
        buffer_atomic_add v5, v62, {ws}, {s(sT[13])} offen sc1
        v_lshrrev_b32 v63, 5, {v(vLane)}
        v_lshl_add_u32 v63, v63, 30, {v(vL16)}
        s_mul_i32 {s(sT[9])}, {s(sT[12])}, {RS}
        s_add_u32 {s(sT[9])}, {s(sT[9])}, {FB}
        s_lshl_b32 {s(sT[12])}, {s(sT[12])}, 9
        s_add_u32 {s(sT[12])}, {s(sT[12])}, {FA}
        s_add_u32 {s(sT[10])}, {s(sTag)}, 0x9E3779B1
        v_mov_b32 v64, {s(sT[10])}
        v_mov_b32 v65, {s(sT[10])}
        v_mov_b32 v66, {s(sT[10])}
        v_mov_b32 v67, {s(sT[10])}
        buffer_store_dwordx4 v[64:67], {v(vL16)}, {ws}, {s(sT[9])} offen sc1
        buffer_store_dwordx4 v[64:67], v63, {ws}, {s(sT[12])} offen sc1
        s_mov_b32 {s(sT[12])}, 240""")
        k.label("Lnoinit"); k.merge(st_)
def common_setup(other=False):
    k(f"""
    s_mov_b32 {s(OUTR)}, {s(pOut)}
    s_mov_b32 {s(OUTR+1)}, {s(pOut+1)}
    s_mov_b32 {s(OUTR+2)}, 2621440
    s_mov_b32 {s(OUTR+3)}, 0x20000
    v_mov_b32 v6, {OOB}
    v_mov_b32 {v(vOne)}, 1
    s_and_b32 {s(sT[4])}, s2, 7
    s_lshr_b32 {s(sMt)}, {s(sT[4])}, 2
    s_lshr_b32 {s(sT[10])}, {s(sT[5])}, 2
    s_lshl3_add_u32 {s(sMt)}, {s(sMt)}, {s(sT[10])}
    s_and_b32 {s(sNt)}, {s(sT[4])}, 3
    s_and_b32 {s(sT[10])}, {s(sT[5])}, 3
    s_lshl2_add_u32 {s(sNt)}, {s(sNt)}, {s(sT[10])}
    s_and_b32 {s(sXr)}, {s(sMt)}, {opt("xr", 0)}
    s_xor_b32 {s(sXr)}, {s(sXr)}, {s(sWv)}
    s_lshr_b32 {s(sHb)}, {s(sNt)}, 3
    s_and_b32 {s(sN2)}, {s(sNt)}, 7
    s_and_b32 {s(sRep)}, {s(sT[5])}, 15
    s_mul_i32 {s(sRep)}, {s(sRep)}, {RS}
    s_add_u32 {s(sRep)}, {s(sRep)}, {FB}
    v_cmp_ne_u32 vcc, 0, {v(vLane)}
    v_cndmask_b32 {v(vFl0)}, 0, v6, vcc
    v_cmp_gt_u32 vcc, 16, {v(vLane)}
    v_mul_u32_u24 {v(vRep)}, {RS}, {v(vLane)}
    v_cndmask_b32 {v(vRep)}, v6, {v(vRep)}, vcc
    s_lshr_b32 {s(sT[9])}, {s(sNt)}, 1
    s_lshl_b32 {s(sT[9])}, {s(sT[9])}, 7
    s_and_b32 {s(sT[10])}, {s(sMt)}, 3
    s_mul_i32 {s(sT[10])}, {s(sT[10])}, {RS}
    s_add_u32 {s(sT[9])}, {s(sT[9])}, {s(sT[10])}
    s_add_u32 {s(sT[9])}, {s(sT[9])}, {FB}
    s_lshl_b32 {s(sT[10])}, {s(sWv)}, 8
    s_max_u32 {s(sT[10])}, {s(sT[10])}, 128
    s_sub_u32 {s(sT[10])}, {s(sT[10])}, 128
    v_cmp_gt_u32 vcc, 4, {v(vLane)}
    v_lshl_add_u32 {v(vW1a)}, {v(vRep)}, 2, {s(sT[9])}
    v_lshl_add_u32 {v(vFa)}, {v(vLane)}, 7, {s(sT[10])}
    v_cndmask_b32 {v(vW1a)}, v6, {v(vW1a)}, vcc
    v_cndmask_b32 v39, v6, {v(vRep)}, vcc
    v_cmp_gt_u32 vcc, 3, {v(vLane)}
    s_cmp_eq_u32 s2, {NCG-1}
    s_cselect_b32 {s(sT[10])}, 3, 1
    v_cndmask_b32 {v(vFa)}, v6, {v(vFa)}, vcc
    v_mov_b32 {v(vInc)}, {s(sT[10])}
    v_lshlrev_b32 {v(vAg)}, 2, {v(vLane)}
    v_add_u32 {v(vAg)}, {AG + (768 if other else 0)}, {v(vAg)}
    s_lshl2_add_u32 {s(sT[9])}, {s(sNt)}, {s(sWv)}
    s_mul_i32 {s(sT[9])}, {s(sT[9])}, {W1S}
    s_add_u32 {s(sT[9])}, {s(sT[9])}, {W1P}""")
    for e in range(4):
        k(f"s_xor_b32 {s(sW1[e])}, {s(sXr)}, {e}\ns_mul_i32 {s(sW1[e])}, {s(sW1[e])}, {5*3072}\ns_add_u32 {s(sW1[e])}, {s(sW1[e])}, {s(sT[9])}")
    k(f"""
    s_mul_i32 {s(sLd)}, {s(sWv)}, 10240
    s_mul_i32 {s(sHsrc)}, {s(sMt)}, {HTM}
    s_add_u32 {s(sHsrc)}, {s(sHsrc)}, {s(sLd)}
    s_add_u32 {s(sHsrc)}, {s(sHsrc)}, {HT}
    s_mul_i32 {s(sT[9])}, {s(sT[7])}, {TKCH}
    s_mul_i32 {s(sT[10])}, {s(sT[7])}, {ULCH}
    v_and_b32 v5, 3, {v(vN)}
    v_mul_u32_u24 {v(vLa)}, {CS}, v5
    v_lshrrev_b32 v5, 2, {v(vN)}
    v_lshlrev_b32 v6, 1, {v(vG)}
    v_sub_u32 v5, v5, v6
    v_add_u32 v5, 7, v5
    v_lshl_add_u32 {v(vLa)}, v5, 3, {v(vLa)}
    v_add_u32 {v(vLa)}, {s(sT[9])}, {v(vLa)}
    v_lshl_add_u32 {v(vLr2)}, {v(vN)}, 5, {s(sT[10])}
    v_lshl_add_u32 {v(vLb)}, {v(vG)}, 4, {v(vLr2)}
    v_add_u32 {v(vLb)}, {UL}, {v(vLb)}
    s_lshl_b32 {s(sT[9])}, {s(sT[7])}, 12
    s_add_u32 {s(sT[9])}, {s(sT[9])}, {PART}
    v_add_u32 {v(vPt)}, {s(sT[9])}, {v(vL16)}""")
def x_landed():
    k(f"s_add_u32 {s(sTag)}, {s(sTag)}, 0x9E3779B1\nv_mov_b32 {v(vTagv)}, {s(sTag)}")
    stamp("ln0")
    k.wait_tok("x")
    k("s_barrier")
    stamp("lx")
def norm(X, T, w_):
    L = [f"v_and_b32 {v(T+3)}, 0xffff0000, {v(T+2)}", f"v_lshlrev_b32 {v(T+2)}, 16, {v(T+2)}"]
    for c in range(3): L += [f"v_lshlrev_b32 {v(w_+2*c)}, 16, {v(X+c)}", f"v_and_b32 {v(w_+2*c+1)}, 0xffff0000, {v(X+c)}"]
    L += [f"v_pk_mul_f32 {v(T+2,2)}, {v(T+2,2)}, {v(T,2)}"]
    for c in range(3): L += [f"v_pk_fma_f32 {v(w_+2*c,2)}, {v(w_+2*c,2)}, {v(T,2)}, {v(T+2,2)} neg_lo:[0,0,1] neg_hi:[0,0,1]"]
    for c in range(3): L += [f"v_cvt_pk_bf16_f32 {v(T+c)}, {v(w_+2*c)}, {v(w_+2*c+1)}"]
    return L
def rec_loads(X, T, n, sx, st_, o):
    L = []
    for d, b_ in ((X, sx), (T, st_)):
        L.append(f"s_add_u32 {s(sT[4])}, {s(b_)}, {1024*o}")
        L += [f"buffer_load_dwordx4 {v(d+4*j,4)}, {v(vL16)}, {ws}, {s(sT[4])} offen offset:{1024*j} sc1" for j in range(n)]
    return L
def rec_work(LD, X, T, n, w_, o):
    check(LD, [b_ + 4*j + 3 for b_ in (X, T) for j in range(n)], 5)
    k(zipper(*[norm(X+4*j, T+4*j, w_+8*j) for j in range(n)]))
    for j in range(n):
        for c in range(3):
            k(f"ds_write_addtid_b32 {v(T+4*j+c)} offset:{512 + c*ULCH + 256*(o+j)}")
            k(f"ds_write_addtid_b32 {v(X+4*j+c)} offset:{XL - UL + c*ULCH + 256*(o+j)}")
RK = opt("rk", 3); R3 = 16 - 3*RK
w1poll = [f"v_mov_b32 {v(vW1d)}, 0", f"buffer_atomic_add {v(vW1d)}, {v(vW1a)}, {ws}, 0 offen offset:{oW1} sc0 sc1"]
def w1_ready():
    if opt("p2", 0) & 4: k(f"s_mov_b32 {s(sT[1])}, 0"); check2(vW1d, vW1a, oW1, sT[1], 4, 20, 222, 223)
    else: check(w1poll, [vW1d], 5, 4, 20)
    stamp("wf1")
W1L = []
for kk in range(20):
    for t in range(3):
        e = kk // 5
        x = [f"s_add_u32 {s(sW1[e])}, {s(sW1[e])}, 3072"] if (t == 0 and kk % 5) else []
        W1L.append(x + [f"buffer_load_dwordx4 {ar(12*kk+4*t,4)}, {v(vL16)}, {ws}, {s(sW1[e])} offen offset:{1024*t} sc1"])
def hflag_ld(stage): return apoll(vFd, vFa, oH + 4*stage)
def hflag_chk(stage):
    if not (DBG & 64 and stage == 0): check(hflag_ld(stage), [vFd], 5, 3, 27)
    stamp("hf" + "ABC"[stage])
def h_dma(c):
    L = []
    for i in range(10):
        if i % 4 == 0:
            L += [f"s_add_u32 m0, {s(sLd)}, {SLOT[c % 2] + 1024*i}", f"s_add_u32 {s(sT[4])}, {s(sHsrc)}, {40960*(0 if DBG & 32768 else c) + 1024*i + (XB - HT if (DBG & 64 and c == 0) else 0)}"]
        L.append((f"buffer_load_dwordx4 {v(vL16)}, {ws}, {s(sT[4])} offen offset:{1024*(i % 4)} sc1 lds", f"h{c}" if c else f"h0{i//2}"))
    return groups(L)

PL = opt("pl", 0)
if PL: k(f"global_load_short_d16_hi {v(vLdt)}, v7, {s(pLdt,2)}")
if PL < 2:
    for t in range(3):
        for i, p in enumerate([pAre, pAim, pBre, pBim, pCre, pCim]):
            k(f"global_load_short_d16_hi {v(vPar + 6*t + i)}, v6, {s(p,2)} offset:{128*t}")
else:
    k(f"v_lshl_add_u32 v5, {v(vLane)}, 1, v6")
    for i, p in enumerate([pAre, pAim, pBre, pBim, pCre, pCim]): k(f"global_load_short_d16_hi {v(vPar + i)}, v6, {s(p,2)} offset:256")
    for i, p in enumerate([pAre, pAim, pBre, pBim, pCre, pCim]): k(f"global_load_dword {v(vPar + 12 + i)}, v5, {s(p,2)}")
def tab_loads():
    for j in range(3): k(f"global_load_dwordx4 {v(vTabl+4*j,4)}, {v(vL16)}, {s(pDbg,2)} offset:{1024*j - 2048}")
    k(f"""global_load_dword {v(vTabl+12)}, {v(vL16)}, {s(pDbg,2)} offset:1024
    global_load_dwordx4 a[120:123], {v(vL16)}, {s(pDbg,2)} offset:2048
    global_load_dwordx4 a[124:127], {v(vL16)}, {s(pDbg,2)} offset:3072""")
k(f"""
{"" if PL else f"global_load_short_d16_hi {v(vLdt)}, v7, {s(pLdt,2)}"}
global_load_ushort {v(vDs)}, v7, {s(pDsk,2)}""")
TL = opt("tl", -1)
if TL == -1: tab_loads()
stamp("iss")
vDt, vRdA, vAcc = 78, 82, 84
k(f"""
v_lshrrev_b32 {v(vG)}, 4, {v(vLane)}
s_mul_i32 {s(sT[4])}, {s(sWv)}, {TABW}
s_add_u32 m0, {s(sT[4])}, {TAB - TOF}
s_add_u32 {s(sT[13])}, {s(sT[4])}, {TAB}
v_and_b32 v5, 31, {v(vLane)}
v_mul_u32_u24 {v(vRdA)}, {TROW}, v5
v_lshrrev_b32 v5, 5, {v(vLane)}
v_lshl_add_u32 {v(vRdA)}, v5, 4, {v(vRdA)}
v_add_u32 {v(vRdA)}, {s(sT[13])}, {v(vRdA)}
v_mov_b32 {v(vDt)}, {LOG2E}
v_mov_b32 {v(vDt+1)}, 0.15915494
v_mov_b32 v5, 0x3f80
ds_write_addtid_b32 v5 offset:{TOF}
""")
srd_setup()
common_setup()
if TL == -2: tab_loads()
if opt("tlb", 0):
    lo, n_ = {1: (0x400000, 11), 2: (0x800000, 9), 3: (0x800000, 2)}[opt("tlb", 0)]
    k(f"""v_cmp_gt_u32 vcc, {n_}, v0
    v_lshlrev_b32 v5, 21, v0
    v_mov_b32 v6, {OOB}
    v_cndmask_b32 v5, v6, v5, vcc
    v_mov_b32 v6, 0
    s_lshl_b32 {s(sT[9])}, s2, 7
    s_add_u32 {s(sT[9])}, {s(sT[9])}, {lo + 0x100000}
    buffer_atomic_add v6, v5, {ws}, {s(sT[9])} offen sc1""")
if WARM:
    k(f"""s_mov_b64 exec, 0
    s_cmp_eq_u32 {s(sWv)}, 0
    s_cbranch_scc1 Lwarm0
    s_cmp_eq_u32 {s(sWv)}, 1
    s_cbranch_scc1 Lwarm1
    s_branch Lwarm2
    Lwarm_ret:
    s_mov_b64 exec, -1
    s_cmp_ge_u32 s2, {NCG}
    s_cbranch_scc1 Lwarm_reth""")
    stamp("wrm")
x_landed()
if opt("wk", 1): k.raw(";WARM_BEGIN")
vA, vC, vZ1, vZ2, vZ4, vZ8, vZ16, vZ256 = 100, 102, 104, 106, 108, 110, 112, 114
vE, vPkd, vF, vPd = 116, 140, 192, 144
k(f"""v_and_b32 {v(vLdt)}, 0xffff0000, {v(vLdt)}
v_mul_f32 {v(vLdt)}, {v(vLdt)}, {v(vDt)}
v_exp_f32 {v(vLdt)}, {v(vLdt)}""")
k(f"v_cvt_pk_bf16_f32 {v(vDt+2)}, 0, {v(vLdt)}")
def put(src, row):
    return [f"v_cvt_pk_bf16_f32 {v(vPkd+row-1)}, {v(src)}, {'-' if row >= 32 else ''}{v(src+1)}"]
def kg_mm(t):
    return [f"v_mfma_f32_32x32x16_bf16 {v(vAcc,16)}, {v(vF+8*kk,4)}, {v(vF+8*kk+4,4)}, {'0' if (t == 0 and kk == 0) else v(vAcc,16)}" for kk in range(8)]
vKx, vKt, vKw = 160, 176, 224
KLD = rec_loads(vKx, vKt, RK, sXb, sXb+1, 0)
XBAR = opt("xb", -1)
def point(p):
    stamp(f"p{p}")
    if p == TL: tab_loads()
    if p == XBAR: k("s_barrier")
    if p == opt("kl_", 15) and RK:
        k(f"""s_mul_i32 {s(sXb+1)}, {s(sWv)}, {1024*RK}
        s_add_u32 {s(sXb+1)}, {s(sXb+1)}, {1024*R3}
        s_mul_i32 {s(sXb)}, s2, {CGS}
        s_add_u32 {s(sXb)}, {s(sXb)}, {s(sXb+1)}
        s_add_u32 {s(sXb)}, {s(sXb)}, {XB}
        s_add_u32 {s(sXb+1)}, {s(sXb+1)}, {STP}""")
        k(KLD)
for t in range(3):
    P = vPar + 6*t
    point(5*t)
    if PL == 2 and t == 1:
        for i in range(6): k(f"v_lshlrev_b32 {v(P+i)}, 16, {v(P+6+i)}\nv_and_b32 {v(P+6+i)}, 0xffff0000, {v(P+6+i)}")
    k(f"""v_pk_mul_f32 {v(vA,2)}, {v(P,2)}, {v(vDt+2,2)} op_sel_hi:[1,0]
    v_pk_mul_f32 {v(P+2,2)}, {v(P+2,2)}, {v(vDt+2,2)} op_sel_hi:[1,0]
    v_pk_mul_f32 {v(vA,2)}, {v(vA,2)}, {v(vDt,2)}""")
    cm = cmul(vC, P+4, P+2)
    k([cm[0], f"v_fract_f32 {v(vA+1)}, {v(vA+1)}", f"v_exp_f32 {v(vA)}, {v(vA)}", f"v_cos_f32 {v(vZ1)}, {v(vA+1)}", f"v_sin_f32 {v(vZ1+1)}, {v(vA+1)}", cm[1],
       f"v_pk_mul_f32 {v(vZ1,2)}, {v(vZ1,2)}, {v(vA,2)} op_sel_hi:[1,0]"])
    ev = [vE, vE+2]; od = [vE+4, vE+6]; h0 = [vE+8, vE+10]; hb = [vE+12, vE+14]; hx = [vE+16, vE+18, vE+20]
    cH = put(vC, 32); prev = vC
    for j in range(1, 8):
        d = h0[j % 2]; cH += cmul(d, prev, vZ1) + put(d, 32+j); prev = d
    sq = cmul(vZ2, vZ1, vZ1) + cmul(vZ4, vZ2, vZ2) + cmul(vZ8, vZ4, vZ4) + cmul(vZ16, vZ8, vZ8)
    k(zipper(sq, cH[:8])); cH = cH[8:]
    point(5*t+1)
    cE = put(vZ16, 2); prev = vZ16; cut = None
    for j in range(4, 32, 2):
        d = ev[(j//2) % 2]; cE += cmul(d, prev, vZ16) + put(d, j); prev = d
        if j == 16: cE += cmul(vZ256, d, d); cut = len(cE)
    cO = put(vZ8, 1); prev = vZ8
    for j in range(3, 32, 2):
        d = od[(j//2) % 2]; cO += cmul(d, prev, vZ16) + put(d, j); prev = d
    cB = []; prev = vC
    rows = {1: 8, 2: 12, 3: 14, 4: 16, 5: 17, 6: 18, 7: 19, 8: 20}
    for j in range(1, 9):
        d = hb[j % 2]; cB += cmul(d, prev, vZ256) + put(d, 32+rows[j]); prev = d
        if j == 1:
            cB += cmul(hx[0], d, vZ2) + put(hx[0], 32+9) + cmul(hx[1], d, vZ4) + put(hx[1], 32+10) + cmul(hx[2], hx[0], vZ4) + put(hx[2], 32+11)
        elif j in (2, 3):
            cB += cmul(hx[0], d, vZ4) + put(hx[0], 32+rows[j]+1)
    NB = opt("nb", 1)
    body = zipper(cE[:cut], cH + cO[:10]) + zipper(cB, cO[10:], cE[cut:])
    wrt = lambda r: f"ds_write_addtid_b32 {v(vPkd+r-1)} offset:{TOF + r*TROW}"
    ready = [32, 33, 34]; sent = 0; mms = kg_mm(t-1) if t else []; nbat = 0
    for n_, x in enumerate(body):
        k(x)
        if x.startswith("v_cvt"): ready.append(int(x.split()[1][1:-1]) - vPkd + 1)
        if len(ready) >= 52*(nbat+1)//NB and x.startswith("v_cvt"):
            if nbat == NB-1: point(5*t+3)
            wr = [wrt(r) for r in ready[sent:]]; sent = len(ready)
            m_ = mms[8*nbat//NB:8*(nbat+1)//NB]; nbat += 1
            if m_: weave2(k, m_, wr, [], slots=6)
            else: k(wr)
    assert sent == 52 and sorted(ready) == list(range(1, 53))
    for kk in range(8):
        k(f"ds_read_b128 {v(vF+8*kk,4)}, {v(vRdA)} offset:{32*TROW + 32*kk}")
        k(f"ds_read_b128 {v(vF+8*kk+4,4)}, {v(vRdA)} offset:{32*kk}")
    point(5*t+4)
    stamp(f"kt{t}")
vG0, vO, vTf, vWg, vEd = 100, 128, 20, 184, 216
fill = [f"v_add_u32_sdwa {v(vG0+i)}, {s(sT[13])}, {v(vTabl + i//2)} dst_sel:DWORD dst_unused:UNUSED_PAD src0_sel:DWORD src1_sel:WORD_{i & 1}" for i in range(26)]
fill += lines(f"""
v_and_b32 v5, 1, {v(vG)}
v_lshl_add_u32 {v(vLr2)}, v5, 4, {v(vLr2)}
v_cmp_gt_u32 vcc, 2, {v(vG)}
v_mov_b32 v6, {UL+512}
v_mov_b32 v7, {XL}
v_cndmask_b32 v6, v7, v6, vcc
v_add_u32 {v(vLr2)}, {v(vLr2)}, v6
v_mov_b32 v7, 0x3f80
v_cndmask_b32 v7, v7, {v(vDs)}, vcc
v_lshlrev_b32 v5, 3, v5
v_sub_u32 v5, {v(vN)}, v5
v_and_b32 v6, 1, v5
v_lshlrev_b32 v6, 4, v6
v_lshlrev_b32 v6, v6, v7
v_ashrrev_i32 v5, 1, v5
v_cmp_eq_u32 vcc, 0, v5
v_cmp_eq_u32 {s(sT[0],2)}, 1, v5
v_cmp_eq_u32 {s(sT[2],2)}, 2, v5
v_cndmask_b32 {v(vDI)}, 0, v6, vcc
v_cmp_eq_u32 vcc, 3, v5
v_cndmask_b32 {v(vDI+1)}, 0, v6, {s(sT[0],2)}
v_cndmask_b32 {v(vDI+2)}, 0, v6, {s(sT[2],2)}
v_cndmask_b32 {v(vDI+3)}, 0, v6, vcc
v_lshrrev_b32 v5, 2, {v(vLane)}
v_mul_u32_u24 v5, {HTM}, v5
v_and_b32 v6, 3, {v(vLane)}
s_bfe_u32 {s(sT[9])}, {s(sT[6])}, 0x10002
s_lshl_b32 {s(sT[9])}, {s(sT[9])}, 1
s_lshl_b32 {s(sT[10])}, {s(sT[6])}, 6
s_mul_i32 {s(sFl)}, s2, 2428
s_lshr_b32 {s(sFl)}, {s(sFl)}, 16
s_lshl_b32 {s(sFl)}, {s(sFl)}, {LS.bit_length()-1}
s_add_u32 {s(sFl)}, {s(sFl)}, {FB}
s_cmp_lt_u32 {s(sT[6])}, 640
s_cselect_b32 {s(sT[10])}, {s(sT[10])}, {OOB}
v_xor_b32 v7, {s(sT[9])}, v6
v_lshl_add_u32 v7, v7, 4, v5
v_add_u32 {v(vHc)}, {s(sT[10])}, v7
s_mul_i32 {s(sT[4])}, {s(sWv)}, {TKCH}
v_add_u32 v7, {s(sT[4])}, {v(vL16)}
v_lshl_add_u32 v5, {v(vLane)}, 2, {s(sT[4])}
v_lshlrev_b32 v6, 2, {v(vG)}
v_sub_u32 v6, {v(vN)}, v6
s_add_u32 {s(sT[4])}, {s(sT[4])}, {TK + 3136 - 12}
v_lshl_add_u32 {v(vTf)}, v6, 2, {s(sT[4])}
v_mov_b32 v6, 0""")
k(fill[:10])
sched(k, kg_mm(2), normal=[(0, fill[10:])], slots=6)
k(f"ds_write_addtid_b32 v6 offset:{TOF + 3072}")
for r in range(12): k(f"ds_write_addtid_b32 {v(vAcc+r)} offset:{TOF + 256*r}")
point(15)
stamp("kg1")
k.raw(";WARM_BEGIN")
gi = {}
for rho in range(2):
    for tp in TAPS[rho]: gi[(rho, tp)] = len(gi)
k(f"ds_write_b32 v5, v6 offset:{TK + 3136 - 256}")
for i in range(26): k(f"ds_read_b32 {v(vG0+i)}, {v(vG0+i)}")
for rho in range(2):
    g = lambda tap: v(vG0 + gi[(rho, tapsrc(rho, tap))])
    for sg in range(4):
        o = vO + 16*rho + 4*sg
        k(f"""v_cvt_pk_bf16_f32 {v(o)}, {g(sg)}, {g(sg-1)}
        v_cvt_pk_bf16_f32 {v(o+1)}, {g(sg-2)}, {g(sg-3)}
        v_cvt_pk_bf16_f32 {v(o+2)}, {g(sg+4)}, {g(sg+3)}
        v_cvt_pk_bf16_f32 {v(o+3)}, {g(sg+2)}, {g(sg+1)}""")
    if rho: k(f"v_cvt_pk_bf16_f32 v6, {v(vG0+24)}, {v(vG0+25)}")
    for sg in range(4):
        k(f"ds_write_b128 v7, {v(vO+16*rho+4*sg,4)} offset:{TK + sg*CS + 32 + 1024*rho}")
k(f"ds_write_b32 v5, v6 offset:{TK + 3136}")
for j in range(4): k(f"v_cvt_pk_bf16_f32 {v(vEd+j)}, {v(vG0+16+2*j)}, {v(vG0+17+2*j)}")
stamp("tp0")
if RK:
    k(f"s_mul_i32 m0, {s(sWv)}, {256*RK}\ns_add_u32 m0, m0, {UL + 256*R3}")
    rec_work(KLD, vKx, vKt, RK, vKw, 0)
stamp("tp1")

vCA, vFr, vRs, vPk = 32, 72, 232, 248
def h_out(prs, tok):
    L = []
    for pr in prs:
        p = vPk + 4*(pr % 2); a_ = vCA + 8*pr
        if pr >= 2: L += [f"v_pk_add_f32 {v(a_+2*j,2)}, {v(a_+2*j,2)}, {v(vRs+8*(pr-2)+2*j,2)}" for j in range(4)]
        L += [f"v_cvt_pk_bf16_f32 {v(p+j)}, {v(a_+2*j)}, {v(a_+2*j+1)}" for j in range(4)]
        L += [f"s_mov_b32 {s(sT[5])}, {HT + 40960*pr}", (f"buffer_store_dwordx4 {v(p,4)}, {v(vHc)}, {ws}, {s(sT[5])} offen sc1", tok)]
    return L
def conv_code(main):
    bar()
    stamp("cv0")
    SH = opt("sh", 2)
    if main: jobs = [(0, r, [0,1]) for r in range(8)] + [(0, r, [2,3]) for r in range(8)] + [(0, r, [4,5,6,7]) for r in range(4 if DBG & 4096 else 5)] + [[(0, 5, [4,5,6,7])], [(0, 5, [4,5])], []][SH]
    else: jobs = [(c, r, t) for c in range(3) for r, t in [(6, [4,5,6,7]), (7, [4,5,6,7])] + [[], [(5, [6,7])], [(5, [4,5,6,7])]][SH]]
    JPC = len(jobs) // 3
    seq = []; ends = []; touched = set(); wgen = []
    for nb, (c, r, tiles) in enumerate(jobs):
        acc = (lambda i: vCA + 4*i) if main else (lambda i: vCA + 16*(c % 2) + 4*(i-4))
        grp = 0 if (main and nb < 16) else nb
        if main and nb == 16:
            for q in range(4):
                seq.append((vWg + 8*q, ("b", c, 0, q, grp), "a[120:123]", True))
                seq.append((vWg + 8*q + 4, ("u", q), "a[124:127]", True))
                wgen.append(len(seq))
        if tiles[0] < 4: order = [(i, p) for _, i, p in sorted([(max(p, i-p), i, p) for i in tiles for p in range(i+1)])]
        elif opt("ch", 0): order = [(i, p) for i in tiles for p in (3, 2, 1, 0)]
        else: order = [(i, p) for _, p, i in sorted([(i-p, -p, i) for i in tiles for p in range(4)])]; order = [(i, -p) for i, p in order]
        for i, p in order:
            if (c, i) not in touched:
                touched.add((c, i))
                if main: seq.append((acc(i), v(vDI,4), ("x", i), True))
                else: seq.append((acc(i), ("a", c, r, p, grp), ("b", c, r, i-p, grp), True)); continue
                if i >= 4: seq.append((acc(i), v(vEd,4), ("b", c, 0, i-4, grp), False))
            seq.append((acc(i), ("a", c, r, p, grp), ("b", c, r, i-p, grp), False))
        if main and nb == 17:
            for dl in range(4, 8):
                for i in range(dl, 8): seq.append((acc(i), v(vWg + 8*(i-dl), 4), ("t", dl), False))
        ends.append(len(seq))
    first, lastu = {}, {}
    for n_, (_, ka, kb, _z) in enumerate(seq):
        for key in (kb, ka):
            if isinstance(key, str): continue
            first.setdefault(key, n_); lastu[key] = n_
    home = {}; ring = [-1]*28; nr = 0; nk = 0; R = []
    for key in sorted(first, key=lambda q_: first[q_]):
        if main and key[0] != "x" and first[key] < ends[7]:
            reg = lambda o, n, b_=128 + 4*nk: ar(b_+o, n); nk += 1; early = -1
        else:
            sl = nr % 28; nr += 1; early = ring[sl]; ring[sl] = lastu[key]
            reg = lambda o, n, b_=vFr + 4*sl: v(b_+o, n)
        home[key] = reg(0, 4)
        due = max(first[key] - opt("la", 8), early)
        assert due < first[key]
        if key[0] == "x": T = [f"ds_read_b128 {reg(0,4)}, {v(vLr2)} offset:{512*key[1]}"]
        elif key[0] == "u": T = [f"ds_read_b128 {reg(0,4)}, {v(vLb)} offset:{512 + 512*key[1] - 48}"]
        elif key[0] == "t": T = [f"ds_read2_b32 {reg(2*h_,2)}, {v(vTf)} offset0:{16*(key[1]-4) + 3 - 2*h_} offset1:{16*(key[1]-4) + 2 - 2*h_}" for h_ in range(2)]
        elif key[0] == "b": T = [f"ds_read_b128 {reg(0,4)}, {v(vLb)} offset:{key[1]*ULCH + 512 + 64*(8*key[3] - key[2]) - 32}"]
        else:
            o = TK + key[1]*TKCH + 64*(8*key[3] + key[2])
            T = [f"ds_read_b64 {reg(0,2)}, {v(vLa)} offset:{o+8}", f"ds_read_b64 {reg(2,2)}, {v(vLa)} offset:{o}"]
        R += [[early, due, x] for x in T]
    for j in range(1, len(R)): R[j][0] = max(R[j][0], R[j-1][0]); R[j][1] = max(R[j][1], R[j][0])
    nom = 1e9; rd = []
    for e_, d_, x in reversed(R):
        nom = min(d_ - opt("lb", 1), nom - opt("rr", 8)/10); rd.append((e_, max(e_, int(nom // 1)), d_, x))
    rd.reverse()
    mm = [mf16(v(a_,4), home.get(ka, ka), home.get(kb, kb), "0" if z else None) for a_, ka, kb, z in seq]
    n = len(mm); urgent = []; normal = []
    print("conv mfma", n, "reads", len(rd))
    for q, e_ in enumerate(wgen):
        normal.append((wgen[-1] + 6, [f"v_cvt_pk_bf16_f32 {v(vWg+8*q+j)}, {v(vWg+8*q+j)}, {v(vWg+8*q+4+j)}" for j in range(4)]))
    if main:
        for st_, e_ in enumerate((ends[7], ends[15])):
            urgent.append((e_ + 1, [stampc("cv" + "AB"[st_])] + h_out([st_], f"hs{st_}")))
            f1, f2 = hflag(f"hs{st_}", st_); g_ = e_ + opt(f"dA{st_}", [36, 48][st_])
            urgent += [(g_, f1), (g_ + 6, f2 + [stampc(f"fl{st_}")])]
        gb = n - opt("dB", 26)
        urgent.append((gb, ["s_barrier"] + [f"ds_read_b128 {v(vRs+4*j,4)}, {v(vPt)} offset:{1024*j}" for j in range(4)]))
        urgent += [(min(n-1, gb + 2 + opt("dD", 2)*j), g_) for j, g_ in enumerate(h_dma(0))]
    else:
        for c in range(3):
            e_ = ends[JPC*c + JPC-1]
            wr = [f"ds_write_b128 {v(vPt)}, {v(vCA + 16*(c % 2) + 4*j,4)} offset:{4096*c + 1024*j}" for j in range(4)]
            if c < 2: urgent += [(e_ + 3 + 4*j, [wr[j]]) for j in range(4)]
            else: last = wr
    if WIN: urgent += [(WIN - opt("wq", 34), w1poll), (WIN, [w1_ready])]
    g0 = max(opt("w1s", 2), WIN); nw = NW1C if main else min(NW1C-2, NW1C*opt("w3f", 100)//100)
    pos = [g0 + ((gb if main else n) - 2 - g0)*j//nw for j in range(nw)]
    normal.append((40, g1setup))
    if main: assert NW1C <= 30 or pos[30] > wgen[-1]
    extra = [(ends[17] - 12, lambda U, N: (k(U + N), U.clear(), N.clear()))] if main else []
    if opt("w1pf", 0):
        urgent.append((0, lines(f"""s_and_b32 {s(sT[9])}, {s(sMt)}, 7
        s_lshl2_add_u32 {s(sT[10])}, {s(sNt)}, {s(sWv)}
        s_lshl3_add_u32 {s(sT[9])}, {s(sT[10])}, {s(sT[9])}
        s_mul_i32 {s(sT[9])}, {s(sT[9])}, 7680
        s_add_u32 {s(sT[9])}, {s(sT[9])}, {W1P}
        v_min_u32 v220, 59, {v(vLane)}
        v_lshlrev_b32 v220, 7, v220
        buffer_load_dword v220, v220, {ws}, {s(sT[9])} offen sc1""")))
    urgent += list(zip(pos, W1L))
    if DBG & 16: urgent = [(g_, [x for x in it if not (isinstance(x, str) and x.startswith('buffer_load'))]) for g_, it in urgent]
    if not main: urgent.append((n - opt("dP", 20), h0poll))
    urgent.sort(key=lambda e: e[0])
    sched(k, mm, rd, urgent, normal, extra + [(j, (lambda nm: lambda U, N: stamp(nm))(f'v{j}')) for j in range(0, n, 20)])
    if main:
        stamp("cv1")
        k(h_out([2, 3], "hB"))
        for g_ in W1L[NW1C:NW1C+NW1G]: k(g_)
    else:
        k(last)
        for g_ in W1L[nw:NW1C-2]: k(g_)
        stamp("w3e")
        if DBG & 64: pass
        elif opt("p2", 0) & 1: check2(vFd, 26, oH, None, 8, 27, 220, 221)
        else: check(h0poll[4:], [vFd], 5, 8, 27)
        stamp("hfA")
        bar()
        stamp("cv1")
        for g_ in h_dma(0) + W1L[NW1C-2:NW1C+NW1G]: k(g_)
h0poll = [f"v_lshrrev_b32 v26, 3, {v(vLane)}", "v_min_u32 v26, 1, v26", f"v_lshlrev_b32 v26, 23, v26", f"v_add_lshl_u32 v26, v26, {v(vLane)}, 7"] + apoll(vFd, 26, oH)
vOnes, vBa = 12, 64
g1setup = [f"v_mov_b32 {v(vOnes+i)}, 0x3f803f80" for i in range(4)] + lines(f"""
v_lshrrev_b32 v7, 2, {v(vLane)}
v_lshlrev_b32 v7, 6, v7
v_and_b32 v6, 3, {v(vLane)}
v_lshl_add_u32 v7, v6, 3, v7
v_and_b32 v6, 1, {v(vG)}
v_lshl_add_u32 v7, v6, 5, v7""")
for e in range(4):
    g1setup += lines(f"""s_xor_b32 {s(sT[7])}, {s(sXr)}, {e}
    s_mul_i32 {s(sT[7])}, {s(sT[7])}, 10240
    s_add_u32 {s(sT[7])}, {s(sT[7])}, {SLOT[0]}
    v_add_u32 {v(vBa+e)}, {s(sT[7])}, v7
    v_xor_b32 {v(vBa+4+e)}, 32, {v(vBa+e)}""")
conv_code(True)
k(hflag_ld(1)); gap_cs()
k("s_branch Lconvd")
sConvMain = k.snap()

k.restore(sDisp)
k.raw(";WARM_OFF")
k.label("Lother")
k(f"v_lshrrev_b32 {v(vG)}, 4, {v(vLane)}\ns_mov_b32 {s(sFl)}, {OOB}")
srd_setup(True)
k(f"s_cmp_eq_u32 {s(sWv)}, 3\ns_cbranch_scc1 Lw3")
s1 = k.snap()
sStg, sUb = 66, 67; vPa2, vW2o, vPd2 = 61, 104, 148
def w2_dma(su, off):
    k(f"s_mul_i32 {s(sT[9])}, {s(su)}, 10240\nv_add_u32 v5, {s(sT[9])}, {v(vL16)}\nv_add_u32 v6, 4096, v5\nv_add_u32 v7, 8192, v5")
    for e in range(10):
        if e % 4 == 0: k(f"s_add_u32 m0, {s(sStg)}, {off + 1024*e}")
        k(f"global_load_lds_dwordx4 {v(5 + e//4)}, {s(pWd,2)} offset:{1024*(e % 4)}", tok="w2dma")
HE = opt("he", 0)
w2sel = f"""s_sub_u32 {s(sHw)}, s2, {NCG}
s_add_u32 {s(sUb)}, {s(sHw)}, 168
s_cmp_eq_u32 {s(sWv)}, 0
s_cselect_b32 {s(sUb)}, {s(sUb)}, 192
s_lshl2_add_u32 {s(sHw)}, {s(sHw)}, {s(sWv)}
s_mul_i32 {s(sStg)}, {s(sWv)}, 20480"""
k(f"s_waitcnt vmcnt(0)\ns_cmp_lt_u32 {s(sT[12])}, 240\ns_cbranch_scc1 Lnordy")
s2_ = k.snap()
k(f"buffer_store_dword v64, v62, {ws}, {s(sT[13])} offen sc1")
stamp("ini")
k.label("Lnordy"); k.merge(s2_)
x_landed()
if HE: k(w2sel); w2_dma(sHw, 0)
k("s_branch Lnostat")
s2_ = s3_ = k.snap()
k.restore(s1)
k.label("Lw3")
vQ, vCgl, vXo, vSel, vSel3, vRo, vRo3, vLw, vLr = 32, 33, 34, 40, 43, 46, 47, 48, 49
vS, vSq, vX, vRaw, vXr = 50, 52, 56, 84, 140
k(f"""
v_and_b32 {v(vQ)}, 3, {v(vLane)}
v_lshrrev_b32 {v(vCgl)}, 2, {v(vLane)}
v_mul_u32_u24 v5, 6, {v(vCgl)}
v_and_b32 v5, -4, v5
v_mul_u32_u24 {v(vXo)}, {XSP}, {v(vQ)}
v_add_u32 {v(vXo)}, {XS}, {v(vXo)}
v_min_u32 {v(vXo+4)}, 24, v5
v_add_u32 {v(vXo+4)}, 1248, {v(vXo+4)}
v_add_u32 {v(vXo+4)}, {v(vXo+4)}, {v(vXo)}
v_add_u32 {v(vXo)}, {v(vXo)}, v5
v_add_u32 {v(vXo+1)}, 1280, {v(vXo)}
v_add_u32 {v(vXo+2)}, 960, {v(vXo)}
v_add_u32 {v(vXo+3)}, 2240, {v(vXo)}
v_add_u32 {v(vXo+5)}, 1280, {v(vXo+4)}
v_and_b32 v5, 1, {v(vCgl)}
v_mul_u32_u24 v5, 0x0202, v5
v_lshlrev_b32 v5, 16, v5
v_add_u32 {v(vSel)}, 0x01000c0c, v5
v_add_u32 {v(vSel+1)}, 0x03020c0c, v5
v_add_u32 {v(vSel+2)}, 0x05040c0c, v5
v_mov_b32 v5, 0x0c0c0c0c
v_cmp_gt_u32 vcc, 5, {v(vCgl)}
v_mul_u32_u24 {v(vRo)}, {CGS}, {v(vCgl)}
v_lshl_add_u32 {v(vRo)}, {v(vQ)}, 4, {v(vRo)}
v_cndmask_b32 {v(vSel3)}, v5, {v(vSel)}, vcc
v_cndmask_b32 {v(vSel3+1)}, v5, {v(vSel+1)}, vcc
v_cndmask_b32 {v(vSel3+2)}, v5, {v(vSel+2)}, vcc
v_cmp_eq_u32 vcc, 5, {v(vCgl)}
v_mov_b32 v5, 0x07060c0c
v_lshrrev_b32 {v(vLw)}, 1, {v(vG)}
v_cndmask_b32 {v(vSel3)}, {v(vSel3)}, v5, vcc
v_cmp_gt_u32 vcc, 6, {v(vCgl)}
v_and_b32 v5, 1, {v(vG)}
v_mov_b32 v6, {OOB}
v_cndmask_b32 {v(vRo3)}, v6, {v(vRo)}, vcc
v_lshl_add_u32 {v(vLw)}, v5, 1, {v(vLw)}
v_lshlrev_b32 {v(vLr)}, 4, {v(vQ)}
v_add_u32 {v(vLr)}, {LNS}, {v(vLr)}
v_lshl_add_u32 {v(vLw)}, {v(vLw)}, 2, {v(vLr)}
s_lshl_b32 {s(sT[4])}, s2, 6
s_add_u32 {s(sT[9])}, {s(sT[4])}, {XB}
s_add_u32 {s(sT[10])}, {s(sTag)}, 0x9E3779B1""")
vPs, vPa, vPst, vPd = 196, 200, 202, 84
sPS, sPF = [66, 67, 3], [22, 23, 64]
assert all((p*2731) >> 16 == p // 24 for p in range(192))
def w1_dma():
    k(f"s_cmp_ge_u32 s2, {NCG}\ns_cbranch_scc1 Lnodma")
    st_ = k.snap()
    for e in range(3):
        k(f"""v_add_u32 v5, {64*e}, {v(vLane)}
        v_mul_u32_u24 v6, 2731, v5
        v_lshrrev_b32 v7, 18, v6
        v_lshrrev_b32 v6, 16, v6
        v_mul_u32_u24 v6, 2688, v6
        v_mul_u32_u24 v7, 36864, v7
        v_lshlrev_b32 v5, 4, v5
        v_add3_u32 {v(vPs+e)}, v5, v6, v7""")
    kk_, g_, cp_, t_ = sT[0], sT[1], sT[2], sT[3]
    for u in range(3):
        k(f"""s_add_u32 {s(sT[11])}, {s(sT[6])}, {u}
        s_min_u32 {s(t_)}, {s(sT[11])}, 639
        s_lshr_b32 {s(kk_)}, {s(t_)}, 5
        s_bfe_u32 {s(g_)}, {s(t_)}, 0x20003
        s_and_b32 {s(cp_)}, {s(t_)}, 7
        s_lshl3_add_u32 {s(t_)}, {s(kk_)}, {s(g_)}
        s_lshl_b32 {s(t_)}, {s(t_)}, 5
        s_add_u32 {s(t_)}, {s(t_)}, {s(cp_)}
        s_mul_i32 {s(t_)}, {s(t_)}, 384""")
        for e in range(3): k(f"v_add_u32 {v(5+e)}, {s(t_)}, {v(vPs+e)}")
        extra = lines(f"""s_mul_i32 {s(sPS[u])}, {s(kk_)}, 12
        s_add_u32 {s(sPS[u])}, {s(sPS[u])}, {s(g_)}
        s_lshl_b32 {s(sPS[u])}, {s(sPS[u])}, 8
        s_mul_i32 {s(kk_)}, {s(cp_)}, {8*W1S}
        s_add_u32 {s(sPS[u])}, {s(sPS[u])}, {s(kk_)}
        s_add_u32 {s(sPS[u])}, {s(sPS[u])}, {W1P}""")
        for mat in range(2):
            for e in range(3):
                k(f"s_mov_b32 m0, {PK + 6144*u + mat*3072 + e*1024}")
                k(extra.pop(0))
                k(f"global_load_lds_dwordx4 {v(5+e)}, {s(pWg if mat == 0 else pWu, 2)}", tok="w1dma")
        k(f"""s_mul_i32 {s(g_)}, {s(g_)}, {4*RS}
        s_lshl_b32 {s(sPF[u])}, {s(cp_)}, 7
        s_add_u32 {s(sPF[u])}, {s(sPF[u])}, {s(g_)}
        s_add_u32 {s(sPF[u])}, {s(sPF[u])}, {FB + oW1}
        s_cmp_lt_u32 {s(sT[11])}, 640
        s_cselect_b32 {s(sPF[u])}, {s(sPF[u])}, {OOB}""")
    k("s_waitcnt vmcnt(18)")
    k.label("Lnodma")
    st2 = k.snap(); k.restore(st_); k.st.vm = []; k.merge(st2)
for rho in range(14): k(f"v_mov_b32 {v(vXr+4*rho+3)}, {s(sT[10])}")
k(f"s_cmp_lt_u32 s2, {NCG}\ns_cbranch_scc1 Lhasdma\ns_waitcnt vmcnt(0)\nLhasdma:")
w1_dma()
x_landed()
if opt("w2p", 0):
    k(f"""v_min_u32 v5, 59, {v(vLane)}
    s_mul_i32 {s(sT[11])}, s2, 7680
    v_lshl_add_u32 v5, v5, 7, {s(sT[11])}
    global_load_dword v203, v5, {s(pWd,2)}""")
def xrd(rho): return [f"ds_read2_b32 {v(vRaw + 4*rho + 2*e, 2)}, {v(vXo + e + (0 if rho < 10 else 2 if rho < 13 else 4))} offset0:{o} offset1:{o+1}" for e in range(2) for o in [24*rho if rho < 10 else 24*(rho-10) if rho < 13 else 0]]
for rho in range(14): k(xrd(rho))
for rho in range(14):
    X = vX + 6*(rho % 2)
    for c in range(3):
        for e in range(2):
            r = vRaw + 4*rho + 2*e
            k(f"v_perm_b32 {v(X + 2*c + e)}, {v(r+1)}, {v(r)}, {v((vSel if rho < 13 else vSel3) + c)}")
    for c in range(3):
        x = v(X + 2*c, 2)
        if rho == 0 and c == 0: k(f"v_pk_mul_f32 {v(vSq,2)}, {x}, {x}")
        else: k(f"v_pk_fma_f32 {v(vSq,2)}, {x}, {x}, {v(vSq,2)}\nv_pk_add_f32 {v(vS,2)}, {v(X,2) if (rho, c) == (0, 1) else v(vS,2)}, {x}")
        k(f"v_cvt_pk_bf16_f32 {v(vXr+4*rho+c)}, {v(X+2*c)}, {v(X+2*c+1)}")
XST = []
for rho in range(14):
    XST.append([f"buffer_store_dwordx4 {v(vXr+4*rho,4)}, {v(vRo if rho < 13 else vRo3)}, {ws}, {s(sT[9])} offen sc1"] + ([f"s_add_u32 {s(sT[9])}, {s(sT[9])}, {16*CGS}"] if rho < 13 else []))
k(f"""v_permlane32_swap_b32 {v(vSq)}, {v(vSq+1)}
v_permlane32_swap_b32 {v(vS)}, {v(vS+1)}
v_add_f32 {v(vSq)}, {v(vSq)}, {v(vSq+1)}
v_add_f32 {v(vS)}, {v(vS)}, {v(vS+1)}
v_permlane16_swap_b32 {v(vS)}, {v(vSq)}
v_add_f32 {v(vS)}, {v(vS)}, {v(vSq)}
v_add_f32_dpp {v(vS)}, {v(vS)}, {v(vS)} row_ror:8 row_mask:0xf bank_mask:0xf
v_add_f32_dpp {v(vS)}, {v(vS)}, {v(vS)} row_ror:4 row_mask:0xf bank_mask:0xf
ds_write_b32 {v(vLw)}, {v(vS)}""")
vP, vT8 = 68, 72
k(f"ds_read_b128 {v(vP,4)}, {v(vLr)}")
for g_ in XST[:opt("xs0", 4)]: k(g_)
S_, Q_, t_ = vP, vP+2, vT8
k(f"""v_mov_b32 {v(t_+6)}, {INV640}
v_cmp_gt_u32 vcc, 4, {v(vLane)}
v_mov_b32 v6, {OOB}
s_add_u32 {s(sT[4])}, {s(sT[4])}, {STP}
v_cndmask_b32 v6, v6, {v(vL16)}, vcc
v_mov_b32 {v(t_+5)}, {s(sTag)}
v_pk_mul_f32 {v(S_,2)}, {v(S_,2)}, {v(t_+6,2)} op_sel_hi:[1,0]
v_pk_mul_f32 {v(Q_,2)}, {v(Q_,2)}, {v(t_+6,2)} op_sel_hi:[1,0]
v_pk_fma_f32 {v(Q_,2)}, {v(S_,2)}, {v(S_,2)}, {v(Q_,2)} neg_lo:[1,0,0] neg_hi:[1,0,0]
v_cvt_pk_bf16_f32 {v(t_+4)}, {v(S_)}, {v(S_+1)}
v_max_f32 {v(Q_)}, 0, {v(Q_)}
v_max_f32 {v(Q_+1)}, 0, {v(Q_+1)}
v_cvt_pk_bf16_f32 {v(Q_)}, 0, {v(Q_)}
v_cvt_pk_bf16_f32 {v(Q_+1)}, 0, {v(Q_+1)}
v_add_f32 {v(Q_)}, 0x3727c5ac, {v(Q_)}
v_add_f32 {v(Q_+1)}, 0x3727c5ac, {v(Q_+1)}
v_cvt_pk_bf16_f32 {v(Q_)}, 0, {v(Q_)}
v_cvt_pk_bf16_f32 {v(Q_+1)}, 0, {v(Q_+1)}
v_sqrt_f32 {v(Q_)}, {v(Q_)}
v_sqrt_f32 {v(Q_+1)}, {v(Q_+1)}
v_cvt_pk_bf16_f32 {v(Q_)}, 0, {v(Q_)}
v_cvt_pk_bf16_f32 {v(Q_+1)}, 0, {v(Q_+1)}
v_rcp_f32 {v(t_+2)}, {v(Q_)}
v_rcp_f32 {v(t_+3)}, {v(Q_+1)}
s_nop 0
buffer_store_dwordx4 {v(t_+2,4)}, v6, {ws}, {s(sT[4])} offen sc1
""")
stamp("lnb")
for g_ in XST[opt("xs0", 4):]: k(g_)
stamp("xst")
k.label("Lnostat")
k.merge(s2_); k.merge(s3_)
common_setup(True)
k(f"s_cmp_ge_u32 s2, {NCG}\ns_cbranch_scc1 Lhelp")
sHelp = k.snap()
k.raw(";WARM_BEGIN")
k(f"""v_mov_b32 v6, 0
v_mov_b32 v7, 0
v_lshlrev_b32 v60, 3, {v(vLane)}
v_lshrrev_b32 v80, 2, {v(vLane)}
v_min_u32 v80, 11, v80
v_mul_u32_u24 v80, {CS}, v80
v_and_b32 v81, 3, {v(vLane)}
v_lshl_add_u32 v80, v81, 3, v80
s_mul_i32 {s(sT[5])}, s2, {CGS}
s_add_u32 {s(sT[5])}, {s(sT[5])}, {XB}
s_mov_b32 m0, {UL}""")
for c in range(3): k(f"ds_write_b64 v60, v[6:7] offset:{UL + c*ULCH}")
k(f"ds_write_b64 v80, v[6:7] offset:{TK}\nds_write_b64 v60, v[6:7] offset:{AG}\nds_write_b64 v60, v[6:7] offset:{AG+512}")
vRx, vRt, vW = 84, 148, 212
k(f"""v_bfe_u32 v5, {v(vLane)}, 1, 1
v_mul_u32_u24 {v(vPa)}, 3072, v5
v_bfe_u32 v5, {v(vLane)}, 2, 2
v_mul_u32_u24 v5, 384, v5
v_add_u32 v5, {PK}, v5
v_add_u32 {v(vPa)}, {v(vPa)}, v5
v_mad_u32_u24 {v(vPa)}, {v(vG)}, 48, {v(vPa)}
v_and_b32 v5, 1, {v(vLane)}
v_lshl_add_u32 {v(vPa+1)}, v5, 3, {v(vPa)}
v_lshl_add_u32 {v(vPa)}, v5, 4, {v(vPa)}
v_mul_u32_u24 v5, {W1S}, {v(vG)}
v_lshl_add_u32 {v(vPst)}, {v(vN)}, 4, v5""")
WPOS = opt("wpos", 0)
def wch():
    if WARM and W3L: k(f"s_mov_b64 exec, 0\ns_branch Lwarm3\nLwarm_ret3:\ns_mov_b64 exec, -1\ns_cmp_ge_u32 s2, {NCG}\ns_cbranch_scc1 Lwarm_reth3")
if WPOS == 1: wch()
k.wait_tok("w1dma")
stamp("pk0")
for u in range(3):
    for a_ in range(2):
        for tt in range(3):
            for hf in range(2):
                k(f"ds_read_b64_tr_b16 {ar(24*u+12*a_+4*tt+2*hf,2)}, {v(vPa + (tt == 2))} offset:{6144*u + 1536*hf + 192*a_ + (8*tt if tt < 2 else 32)}")
for u in range(3):
    if WPOS == 2 + u: wch()
    for a_ in range(2):
        if a_: k(f"s_add_u32 {s(sPS[u])}, {s(sPS[u])}, {4*W1S}")
        for tt in range(3):
            k(f"buffer_store_dwordx4 {ar(24*u+12*a_+4*tt,4)}, {v(vPst)}, {ws}, {s(sPS[u])} offen offset:{1024*tt} sc1", tok="w1st")
k(rdy_ld(40))
stamp("pk1")
if WPOS == 0: wch()
def w1sig():
    rdy_chk(40)
    k.wait_tok("w1st")
    for u in range(3): k(f"buffer_atomic_add {v(vOne)}, v39, {ws}, {s(sPF[u])} offen sc1")
    stamp("pkf")
if opt("sf", 1): w1sig()
k(f"s_mov_b32 {s(sT[9])}, {STP}")
if XBAR >= 0: k("s_barrier")
stamp("gx1")
grp = [(o, min(4, R3 - o)) for o in range(0, R3, 4)]
LD = [rec_loads(vRx+4*o, vRt+4*o, n_, sT[5], sT[9], o) for o, n_ in grp]
for L_ in LD[:2]: k(L_)
if not opt("sf", 1): w1sig()
for q, (o, n_) in enumerate(grp):
    if q + 2 < len(grp): k(LD[q+2])
    if not WIN and q == min(opt("wp", 1), len(grp)-1): k(w1poll)
    rec_work(LD[q], vRx+4*o, vRt+4*o, n_, vW, o)
    if q == 0: stamp("rx1")
stamp("tp1")
if not WIN: w1_ready()
conv_code(False)
k(hflag_ld(1)); gap_cs()
k("s_branch Lconvd")
sConv3 = k.snap()

k.restore(sHelp)
k.raw(";WARM_OFF")
k.label("Lhelp")
if WARM:
    k(f"""s_cmp_eq_u32 {s(sWv)}, 3
    s_cbranch_scc1 Lwarm_reth
    s_mov_b64 exec, 0
    s_cmp_eq_u32 {s(sWv)}, 0
    s_cbranch_scc1 Lwarm0
    s_cmp_eq_u32 {s(sWv)}, 1
    s_cbranch_scc1 Lwarm1
    s_branch Lwarm2
    Lwarm_reth:""")
def w2_pack(su, off, sf):
    k(f"""s_lshr_b32 {s(sT[10])}, {s(su)}, 2
    s_and_b32 {s(sT[8])}, {s(su)}, 3
    s_mul_i32 {s(sf)}, {s(su)}, 2731
    s_lshr_b32 {s(sf)}, {s(sf)}, 16
    s_lshl_b32 {s(sf)}, {s(sf)}, {LS.bit_length()-1}
    s_add_u32 {s(sf)}, {s(sf)}, {FB + oW2}
    s_mul_i32 {s(sT[9])}, {s(sT[10])}, 5120
    s_lshl_b32 {s(sT[8])}, {s(sT[8])}, 8
    s_add_u32 {s(sT[9])}, {s(sT[9])}, {s(sT[8])}
    s_add_u32 {s(sT[9])}, {s(sT[9])}, {W2P}""")
    k.wait_tok("w2dma")
    stamp("hp0")
    for j in range(10):
        for hf in range(2):
            k(f"ds_read_b64_tr_b16 {v(vPd2+4*j+2*hf,2)}, {v(vPa2)} offset:{off + 5120*hf + 128*j}")
    for j in range(10):
        k(f"buffer_store_dwordx4 {v(vPd2+4*j,4)}, {v(vW2o+j)}, {ws}, {s(sT[9])} offen sc1", tok="w2st")
k(w2sel)
k(f"s_mov_b32 {s(sT[13])}, {OOB}\ns_barrier")
if HE: k(f"s_cmp_lg_u32 {s(sWv)}, 3\ns_cbranch_scc1 Lw2z")
st_ = k.snap()
w2_dma(sHw, 0)
if HE: k.label("Lw2z"); k.merge(st_)
k(f"s_cmp_ge_u32 {s(sUb)}, 192\ns_cbranch_scc1 Lw2a")
st_ = k.snap()
w2_dma(sUb, 10240)
k.label("Lw2a"); k.merge(st_)
if WARM and W3L: k(f"s_cmp_lg_u32 {s(sWv)}, 3\ns_cbranch_scc1 Lwarm_reth3\ns_mov_b64 exec, 0\ns_branch Lwarm3\nLwarm_reth3:")
k(f"""v_bfe_u32 v5, {v(vLane)}, 2, 2
v_mul_u32_u24 {v(vPa2)}, 1280, v5
v_and_b32 v5, 3, {v(vLane)}
v_lshl_add_u32 {v(vPa2)}, v5, 3, {v(vPa2)}
v_lshl_add_u32 {v(vPa2)}, {v(vG)}, 5, {v(vPa2)}
v_add_u32 {v(vPa2)}, {s(sStg)}, {v(vPa2)}""")
assert all((p*13108) >> 16 == p // 5 for p in range(40))
for j in range(10):
    k(f"""v_add_u32 v5, {4*j}, {v(vG)}
    v_mul_u32_u24 v6, 13108, v5
    v_lshrrev_b32 v6, 16, v6
    v_mul_u32_u24 v6, {W2S - 5120}, v6
    v_lshl_add_u32 v6, v5, 10, v6
    v_lshl_add_u32 {v(vW2o+j)}, {v(vN)}, 4, v6""")
k(g1setup)
PE = opt("pe", 2)
def packB():
    k(f"s_cmp_ge_u32 {s(sUb)}, 192\ns_cbranch_scc1 Lw2one")
    s1 = k.snap()
    w2_pack(sUb, 10240, sT[13])
    k.label("Lw2one")
    k.merge(s1)
if PE >= 1: w2_pack(sHw, 0, sT[11])
if PE >= 2: packB()
k(f"s_cmp_lg_u32 {s(sWv)}, 3\ns_cbranch_scc1 Lhnp")
s1 = k.snap()
k(w1poll); w1_ready()
k.label("Lhnp"); k.merge(s1)
k("s_barrier")
HW = NW1C - 2
for g_ in W1L[:HW]: k(g_)
if PE < 2: packB()
if PE < 1: w2_pack(sHw, 0, sT[11])
stamp("hp1")
k(hflag_ld(0))
k(flag("w2st", sT[11]) + flag("w2st", sT[13]))
stamp("hp2")
hflag_chk(0)
for g_ in h_dma(0) + W1L[HW:NW1C+NW1G]: k(g_)
stamp("cv1")
k(hflag_ld(1)); gap_cs()

k.label("Lconvd")
k.raw(";WARM_HERE")
k.merge(sConvMain); k.merge(sConv3)
vRa, vPark = 8, 10
vWo, vAo1, vF2, vAo2, vF2a = 16, 158, 22, 159, 155
vScW = 28
vRes, vScR, vFAd, vPf, vRr, vRr4 = 32, 42, 43, 44, 46, 47
vSt = 48
vAc = 72
vFb = 120
vTm = 144
vCs = 180
sMk, sPark = 20, 19
MB = 3
setup2 = f"""
v_lshrrev_b32 v6, 1, {v(vLane)}
v_min_u32 v6, 1, v6
v_lshl_add_u32 v6, v6, 23, {v(vLane)}
s_lshl_b32 {s(sT[5])}, {s(sWv)}, 8
v_lshl_add_u32 {v(vF2a)}, v6, 7, {s(sT[5])}
s_lshl_b32 {s(sT[5])}, {s(sHb)}, 5
v_xor_b32 v7, {s(sT[5])}, v7
s_mul_i32 {s(sT[6])}, {s(sN2)}, 5120
s_add_u32 {s(sT[6])}, {s(sT[6])}, {SLOT[0]}
s_lshl_b32 {s(sT[5])}, {s(sWv)}, 10
s_add_u32 {s(sT[5])}, {s(sT[5])}, {s(sT[6])}
v_add_u32 {v(vRa)}, {s(sT[5])}, v7
s_add_u32 {s(sT[6])}, {s(sT[6])}, 4096
v_add_u32 {v(vRa+1)}, {s(sT[6])}, v7
s_lshl2_add_u32 {s(sFAc)}, {s(sMt)}, {s(sWv)}
s_lshl_b32 {s(sFAc)}, {s(sFAc)}, {LS.bit_length()-1}
s_add_u32 {s(sFAc)}, {s(sFAc)}, {FA}
v_lshlrev_b32 {v(vScW)}, 4, v0
v_add_u32 {v(vScW+1)}, 4096, {v(vScW)}
s_mov_b32 {s(sMk)}, 0x22222222
s_mov_b32 {s(sMk+1)}, 0x22222222
s_mov_b32 {s(sMk+2)}, 0x44444444
s_mov_b32 {s(sMk+3)}, 0x44444444
s_mov_b32 {s(sMk+4)}, 0x88888888
s_mov_b32 {s(sMk+5)}, 0x88888888
v_lshrrev_b32 v7, 2, {v(vN)}
v_lshl_add_u32 v6, v7, 4, {v(vN)}
v_lshrrev_b32 v7, 1, {v(vG)}
v_lshl_add_u32 v6, v6, 1, v7
v_lshlrev_b32 {v(vScR)}, 3, v6
s_mul_i32 {s(sPark)}, {s(sWv)}, {NPARK*1024}
s_add_u32 {s(sPark)}, {s(sPark)}, {PARK}
v_add_u32 {v(vPark)}, {s(sPark)}, {v(vL16)}
v_mul_u32_u24 v7, {ATS}, v7
v_lshl_add_u32 v7, {v(vN)}, 4, v7
v_and_b32 v6, 1, {v(vG)}
v_lshl_add_u32 {v(vAo1)}, v6, 8, v7
v_lshl_add_u32 {v(vAo2)}, v6, 30, v7
s_lshl2_add_u32 {s(sFa)}, {s(sNt)}, {s(sWv)}
s_mul_i32 {s(sAct)}, {s(sFa)}, 768
s_mul_i32 {s(sT[5])}, {s(sMt)}, {2*ATS}
s_add_u32 {s(sAct)}, {s(sAct)}, {s(sT[5])}
s_add_u32 {s(sAct)}, {s(sAct)}, {ACT}
s_lshr_b32 {s(sFa)}, {s(sNt)}, 2
s_lshl2_add_u32 {s(sFa)}, {s(sMt)}, {s(sFa)}
s_lshl_b32 {s(sFa)}, {s(sFa)}, {LS.bit_length()-1}
s_add_u32 {s(sFa)}, {s(sFa)}, {FA}
s_mul_i32 {s(sW2)}, {s(sN2)}, {W2S}
s_mul_i32 {s(sT[5])}, {s(sWv)}, {12*5120}
s_add_u32 {s(sW2)}, {s(sW2)}, {s(sT[5])}
s_add_u32 {s(sW2)}, {s(sW2)}, {W2P}
v_add_u32 {v(vWo+4)}, 4096, {v(vL16)}
"""
for lam in range(4):
    setup2 += f"""s_xor_b32 {s(sT[6])}, {s(sWv)}, {lam}
    s_lshl_b32 {s(sT[6])}, {s(sT[6])}, 10
    v_add_u32 {v(vWo+lam)}, {s(sT[6])}, {v(vL16)}
    """
PFL = 480 >> MB
setup2 += f"""
s_lshl1_add_u32 {s(sT[6])}, {s(sMt)}, {s(sHb)}
s_mul_i32 {s(sAin)}, {s(sT[6])}, {ATS}
s_mul_i32 {s(sT[7])}, {s(sWv)}, 12288
s_add_u32 {s(sAin)}, {s(sAin)}, {s(sT[7])}
s_add_u32 {s(sAin)}, {s(sAin)}, {ACT}
s_and_b32 {s(sOut)}, {s(sMt)}, 3
s_lshl1_add_u32 {s(sOut)}, {s(sOut)}, {s(sHb)}
s_lshl_b32 {s(sOut)}, {s(sOut)}, 5
s_and_b32 {s(sT[7])}, {s(sMt)}, 12
s_add_u32 {s(sOut)}, {s(sOut)}, {s(sT[7])}
s_mul_i32 {s(sOut)}, {s(sOut)}, 1280
s_mul_i32 {s(sT[7])}, {s(sN2)}, 160
s_add_u32 {s(sOut)}, {s(sOut)}, {s(sT[7])}
"""
sW2g, sAg = [26, 27, 28], [29, 30, 31]
setup2 += f"""
s_add_u32 {s(sT[6])}, {s(sMt)}, {s(sN2)}
s_mul_i32 {s(sT[7])}, {s(sT[6])}, 21846
s_lshr_b32 {s(sT[7])}, {s(sT[7])}, 16
s_mul_i32 {s(sT[7])}, {s(sT[7])}, 3
s_sub_u32 {s(sT[6])}, {s(sT[6])}, {s(sT[7])}
s_mul_i32 {s(sT[6])}, {s(sT[6])}, {opt("r2", 0)}
"""
for a_ in range(3):
    setup2 += f"""s_mul_i32 {s(sW2g[a_])}, {s(sT[6])}, {4*5120}
    s_add_u32 {s(sW2g[a_])}, {s(sW2g[a_])}, {s(sW2)}
    s_lshl_b32 {s(sAg[a_])}, {s(sT[6])}, 12
    s_add_u32 {s(sAg[a_])}, {s(sAg[a_])}, {s(sAin)}
    s_lshl_b32 {s(sT[6])}, {s(sT[6])}, 1
    s_lshr_b32 {s(sT[6])}, 9, {s(sT[6])}
    s_and_b32 {s(sT[6])}, {s(sT[6])}, 3
    """
def g1_reads(st):
    c, kk = divmod(st, 20); b = vFb + 8*(st % 3)
    return [f"ds_read_b64_tr_b16 {v(b+4*a+2*hf,2)}, {v(vBa+4*a+kk//5)} offset:{(kk % 5)*2048 + 1024*hf + 40960*(c % 2)}" for a in range(2) for hf in range(2)]
SE = opt('se', 1)
def g1_mm(st):
    c, kk = divmod(st, 20)
    b = vFb + 8*(st % 3); A = vAc + 24*(c % 2); z = "0" if kk == 0 else None
    L = [mf16(v(A+12*a+4*t,4), ar(12*kk+4*t,4), v(b+4*a,4), z) for a, t in ([(a, t) for t in range(3) for a in range(2)] if opt("ab", 1) else [(a, t) for a in range(2) for t in range(3)])]
    if kk // 5 == SE and not (DBG & 8192 and kk % 5):
        z_ = "0" if kk % 5 == 0 else None
        L += sum([[mf16(v(vSt+4*a,4), v(b+4*a,4), v(b+4*a,4), z_), mf16(v(vSt+8+4*a,4), v(vOnes,4), v(b+4*a,4), z_)] for a in range(2)], [])
    if c == 0 and kk >= KCS and not DBG & 2048: L += [mf16(v(vCs+4*t,4), ar(12*kk+4*t,4), v(vOnes,4), z) for t in range(3)]
    return L
def g1_statw(c):
    L = []
    for j in range(3):
        for a in range(2): L.append(f"v_cndmask_b32 {v(vSt+9+4*a)}, {v(vSt+4*a) if j == 0 else v(vSt+9+4*a)}, {v(vSt+4*a+1+j)}, {s(sMk+2*j,2)}")
    if opt("sw", 0): return L + [f"ds_write_b64 {v(vScW + c % 2)}, {v(vSt+8,2)}", f"ds_write_b64 {v(vScW + c % 2)}, {v(vSt+12,2)} offset:8"]
    return L + [f"ds_write2_b64 {v(vScW + c % 2)}, {v(vSt+8,2)}, {v(vSt+12,2)} offset0:0 offset1:1"]
S, Q, M, Z, S2 = vTm, vTm+1, vTm+8, vTm+10, vTm+12
def g1_statr(c):
    o = 8*(c % 2)
    return [f"ds_read2st64_b64 {v(vTm+4*w,4)}, {v(vScR)} offset0:{o+4*w} offset1:{o+4*w+2}" for w in range(2)]
def g1_epi(c, pk=False):
    A = vAc + 24*(c % 2)
    L = [f"v_add_f32 {v(S)}, {v(S)}, {v(S+2)}", f"v_add_f32 {v(Q)}, {v(Q)}, {v(Q+2)}", f"v_add_f32 {v(S+4)}, {v(S+4)}, {v(S+6)}", f"v_add_f32 {v(Q+4)}, {v(Q+4)}, {v(Q+6)}",
         f"v_add_f32 {v(S)}, {v(S)}, {v(S+4)}", f"v_add_f32 {v(Q)}, {v(Q)}, {v(Q+4)}",
         f"v_mul_f32 {v(S)}, {INV640}, {v(S)}", f"v_mul_f32 {v(Q)}, {INV640}, {v(Q)}",
         f"v_cvt_pk_bf16_f32 {v(M)}, 0, {v(S)}", f"v_cvt_pk_bf16_f32 {v(M+1)}, 0, {v(S)}",
         f"v_fma_f32 {v(Q)}, -{v(S)}, {v(S)}, {v(Q)}", f"v_max_f32 {v(Q)}, 0, {v(Q)}",
         f"v_permlane32_swap_b32 {v(M)}, {v(M+1)}",
         f"v_cvt_pk_bf16_f32 {v(Q)}, 0, {v(Q)}",
         f"v_add_f32 {v(Q)}, 0x3727c5ac, {v(Q)}", f"v_cvt_pk_bf16_f32 {v(Q)}, 0, {v(Q)}"]
    R = vTm + 16
    cen = [f"v_fma_f32 {v(A+12*a+j)}, -{v(vCs+j)}, {v(M+a)}, {v(A+12*a+j)}" for j in range(12) for a in range(2)]
    L += [f"v_sqrt_f32 {v(Q)}, {v(Q)}"] + cen[:2] + [f"v_cvt_pk_bf16_f32 {v(Q)}, 0, {v(Q)}"] + cen[2:3] + [f"v_rcp_f32 {v(Z)}, {v(Q)}", f"v_mul_f32 {v(S2)}, {v(Q)}, {v(Q)}"] + cen[3:4]
    L += [f"v_mul_f32 {v(Z)}, 0xbfb8aa3b, {v(Z)}"] + (cen[4:] if not DBG & 128 else [])
    if not DBG & 256: L += [f"v_permlane32_swap_b32 {v(A+j)}, {v(A+12+j)}" for j in range(12)]
    chains = []
    for j in range(6):
        g_, u_ = A+2*j, A+12+2*j
        z = vTm + 24 + 2*(j % 2)
        if pk:
            ch = [f"v_pk_mul_f32 {v(z,2)}, {v(g_,2)}, {v(Z,2)} op_sel_hi:[1,0]",
                  f"v_exp_f32 {v(z)}, {v(z)}", f"v_exp_f32 {v(z+1)}, {v(z+1)}",
                  f"v_pk_mul_f32 {v(g_,2)}, {v(g_,2)}, {v(u_,2)}",
                  f"v_pk_fma_f32 {v(z,2)}, {v(z,2)}, {v(S2,2)}, {v(S2,2)} op_sel_hi:[1,0,0]",
                  f"v_rcp_f32 {v(z)}, {v(z)}", f"v_rcp_f32 {v(z+1)}, {v(z+1)}",
                  f"v_pk_mul_f32 {v(g_,2)}, {v(g_,2)}, {v(z,2)}"]
        else:
            ch = [f"v_mul_f32 {v(z)}, {v(g_)}, {v(Z)}", f"v_mul_f32 {v(z+1)}, {v(g_+1)}, {v(Z)}",
                  f"v_exp_f32 {v(z)}, {v(z)}", f"v_exp_f32 {v(z+1)}, {v(z+1)}", f"v_mul_f32 {v(g_)}, {v(g_)}, {v(u_)}", f"v_mul_f32 {v(g_+1)}, {v(g_+1)}, {v(u_+1)}",
                  f"v_fma_f32 {v(z)}, {v(z)}, {v(S2)}, {v(S2)}", f"v_fma_f32 {v(z+1)}, {v(z+1)}, {v(S2)}, {v(S2)}",
                  f"v_rcp_f32 {v(z)}, {v(z)}", f"v_rcp_f32 {v(z+1)}, {v(z+1)}",
                  f"v_mul_f32 {v(g_)}, {v(g_)}, {v(z)}", f"v_mul_f32 {v(g_+1)}, {v(g_+1)}, {v(z+1)}"]
        chains.append(ch + [f"v_cvt_pk_bf16_f32 {v(R+j)}, {v(g_)}, {v(g_+1)}"])
    sw = [f"v_permlane16_swap_b32 {v(R+4)}, {v(R+6)}", f"v_permlane16_swap_b32 {v(R+5)}, {v(R+7)}"]
    sw += [f"s_add_u32 {s(sT[5])}, {s(sAct)}, {32*ATS*c}", (f"buffer_store_dwordx4 {v(R+4,4)}, {v(vAo2)}, {ws}, {s(sT[5])} offen offset:512 sc1", f"a{c}")]
    if pk:
        z01 = zipper(chains[0], chains[1])
        L += zipper(chains[4], chains[5]) + z01[:2] + sw + z01[2:] + zipper(chains[2], chains[3])
    else: L += chains[4] + chains[5] + chains[0][:2] + sw + chains[0][2:] + chains[1] + chains[2] + chains[3]
    L += [(f"buffer_store_dwordx4 {v(R,4)}, {v(vAo1)}, {ws}, {s(sT[5])} offen sc1", f"a{c}")]
    return L
w2fl = apoll(vFAd, vF2a, oW2)
def w2_ready(): check(w2fl, [vFAd], 5, 2, 24)
def w2pf(j): return [] if not opt("pf2", 0) else [f"buffer_load_dword {v(vPf+j)}, {v(vF2)}, {ws}, 0 offen offset:{PFL*64*j} sc1"]
NPRE = opt('npre', 21)
NLATE = 60 - NPRE - NPARK
NA0 = opt("na0", 12)
def w2reg(j):
    if j < 16: return v(192 + 4*j, 4)
    if j < 20: return ar(240 + 4*(j-16), 4)
    if j < NPRE: return v([44][j-20], 4)
    if j < NPRE + NPARK: return ar(4*(NLATE + 12) + 4*(j - NPRE), 4)
    q = j - NPRE - NPARK
    return ar(4*q if q < NA0 else 4*q + 48, 4)
def w2seq(js):
    out = []; cur = None
    for j in js:
        ks, lam = divmod(j, 5)
        x = [] if ks == cur else [f"s_add_u32 {s(sT[8])}, {s(sW2g[0 if DBG & 16384 else ks//4])}, {0 if DBG & 16384 else 5120*(ks % 4)}"]
        cur = ks
        if NPRE <= j < NPRE + NPARK:
            out.append(x + [f"s_add_u32 m0, {s(sPark)}, {1024*(j - NPRE)}", (f"buffer_load_dwordx4 {v(vWo+lam)}, {ws}, {s(sT[8])} offen sc1 lds", "park")])
        else: out.append(x + [f"buffer_load_dwordx4 {w2reg(j)}, {v(vWo+lam)}, {ws}, {s(sT[8])} offen sc1"])
    return out
unpark = [f"ds_read_b128 {w2reg(NPRE+j)}, {v(vPark)} offset:{1024*j}" for j in range(NPARK)]
def aflag_ld(i): return apoll(vFAd, vFl0, 4*i, sFAc)
def aflag_chk(i):
    if DBG & 1024 and i >= 2: return
    if opt("p2", 0) & 2: check2(vFAd, vFl0, 4*i, sFAc, 1, 16, 44, 45)
    else: check(aflag_ld(i), [vFAd], 5, 1, 16)
def abuf(i, ks): return ar(4*NA0 + 4*ks, 4) if i % 3 == 0 else v([144, 148, 152, 156, 160, 164, 168, 180, 184, 188, 116, 68][ks], 4) if i == 2 else v((72 if ks < 6 else 96) + 4*ks, 4)
def act_loads(i):
    L = []
    for ks in range(12):
        x = [f"s_add_u32 {s(sT[4])}, {s(sAg[ks//4])}, {32*ATS*(i & 1) + (ATS if i >= 2 else 0) if DBG & 1024 else 32*ATS*i}"] if ks % 4 == 0 else []
        L.append(x + [f"buffer_load_dwordx4 {abuf(i, ks)}, {v(vL16)}, {ws}, {s(sT[4])} offen offset:{1024*(ks%4)} sc1"])
    return L
late = w2seq(range(NPRE+NPARK, 60))
C3L = late[:NA0] + act_loads(0) + late[NA0:]
C3L[NA0] = [lambda: aflag_chk(0)] + C3L[NA0]
vRes4 = 172
def res_reads(c): return [f"ds_read_b64_tr_b16 {v(vRes+2*c,2)}, {v(vRa)} offset:{40960*(c % 2)}", f"ds_read_b64_tr_b16 {v(vRes4+2*c,2)}, {v(vRa+1)} offset:{40960*(c % 2)}"]
mm = []; cum = []
for st in range(80): cum.append(len(mm)); mm += g1_mm(st)
cum.append(len(mm))
G = lambda c, kk, d=0: cum[20*c + kk] + d
assert opt("xr", 0) == 0
rd = []
urgent = []; normal = []; checks = []
BG = opt('bg', 1)
def boundary(c):
    def f(U, N):
        stamp(f"b{c}a"); k(list(U)); U.clear(); stamp(f"b{c}b")
        if c < 3: k.wait_tok(f"h{c+1}", n=10)
        stamp(f"b{c}c")
        bar(); stamp(f"c{c+1}")
    return f
def flush(nm):
    def f(U, N):
        print(nm, "leftover", len(U), len(N)); stamp("f" + nm[-1] + "a"); k((U + N)[:-1]); stamp("f" + nm[-1] + "b"); k((U + N)[-1:]); stamp("f" + nm[-1] + "c"); U.clear(); N.clear()
    return f
for st in range(2, 80):
    c, kk = divmod(st, 20)
    if kk == 0: rd += spread(g1_reads(st), G(c-1, 18, BG), G(c-1, 19), G(c-1, 19))
    else: rd += spread(g1_reads(st), cum[st-2], cum[st-1], cum[st-1] - 1 if kk == 19 else cum[st-1] + 1)
for c in range(4):
    urgent.append((G(c, opt('rs_', 7), 4), res_reads(c)))
    urgent.append((G(c, opt('sw_', 16), 3), g1_statw(c)))
    checks.append((G(c, 18, BG), boundary(c)))
    normal.append((G(c+1, 0, 1), g1_epi(c)))
    if c > 0: checks.append((G(c, 19, opt("fl", 5) if c < 3 else 1), flush(f"chunk {c}")))
    urgent.append((G(c, 19, 2), g1_statr(c)))
    if c >= 2: urgent.append((G(c, opt("fk", 8)), flag(f"a{c-2}", sFa, 4*(c-2), False)))
normal.append((0, lines(setup2)))
def noleft(U, N): assert not N
def pace(items, ga, gb):
    for j, g_ in enumerate(items): urgent.append((ga + (gb - ga)*j//len(items), g_))
rest = W1L[NW1C+NW1G:]
n0, n1_, p1 = opt("n0", 6), opt("n1", 13), opt("p1", 9)
hd = h_dma(1); hd[0] = [lambda: hflag_chk(1)] + hd[0]
w20 = w2seq(range(n0)); w20[0] = [w2_ready] + w2pf(0) + w20[0]
c0l = rest[:opt("r0", 12)] + hd + rest[opt("r0", 12):]
g_a = G(0, 19)*len(c0l)//(len(c0l) + n0)
pace(c0l, 1, g_a); pace(w20, g_a, G(0, 19))
H1POS = 1 + (g_a - 1)*opt('r0', 12)//len(c0l)
checks.append((g_a, noleft))
urgent.append((g_a - opt('w2q', 50), w2fl))
hd = h_dma(2); hd[0] = [lambda: hflag_chk(2)] + hd[0]
if opt("ord", 0):
    L1 = w2seq(range(n0, n1_)) + hd + w2seq(range(NPRE, NPRE+p1))
    pace(L1, G(0, 19), G(1, 19))
    urgent.append((G(0, 19) + (G(1, 19) - G(0, 19))*(n1_ - n0)//len(L1) - opt("hq", 45), hflag_ld(2)))
    pace(w2seq(range(n1_, NPRE)) + h_dma(3) + w2seq(range(NPRE+p1, NPRE+NPARK)), G(1, 19), G(2, 19))
else:
    urgent.append((G(0, opt("hp2", 11)), hflag_ld(2)))
    pace(hd + w2seq(list(range(NPRE, NPRE+p1)) + list(range(n0, n1_))), G(0, 19), G(1, 19))
    pace(h_dma(3) + w2seq(list(range(NPRE+p1, NPRE+NPARK)) + list(range(n1_, NPRE))), G(1, 19), G(2, 19))
urgent.append((G(2, 19), aflag_ld(0)))
urgent.append((G(3, 14), aflag_ld(1)))
NW2C3 = min(NW2C3, len(C3L))
for j in range(NW2C3): urgent.append((max(G(3, j//3 + 1), G(3, 1) + (G(3, 19, 4) - G(3, 1))*j//NW2C3), C3L[j]))
for st in range(80): checks.append((cum[st], (lambda nm: lambda U, N: stamp(nm))(f'g{st}')))
vRw = [12, 13, 14, 15, 22]
vA2 = [48, 96]
assert all((p*6554) >> 16 == p // 10 for p in range(256))
g2b = ""
for lam in range(4):
    g2b += f"""s_xor_b32 {s(sT[7])}, {s(sWv)}, {lam}
    s_lshl_b32 {s(sT[7])}, {s(sT[7])}, 6
    s_sub_u32 {s(sT[7])}, {s(sT[7])}, 256
    v_add_u32 {v(vRw[lam])}, {s(sT[7])}, {v(vRw[4])}
    """
normal.append((1, lines(f"""s_sub_u32 {s(sT[6])}, 3, {s(sWv)}
s_mul_i32 {s(sT[6])}, {s(sT[6])}, {4*RW}
s_add_u32 {s(sT[6])}, {s(sT[6])}, {RED + 256}
v_mul_u32_u24 v6, 336, {v(vN)}
v_lshl_add_u32 v6, {v(vG)}, 4, v6
v_add_u32 {v(vRw[4])}, {s(sT[6])}, v6""")))
vRr, vOo = [16, 17, 18], [19, 20, 21]
g2c = lines(f"""v_min_u32 v24, 239, v0
v_mul_u32_u24 v23, 6554, v24
v_lshrrev_b32 v23, 16, v23
v_lshlrev_b32 v6, 5, v24
v_lshl_add_u32 v6, v23, 4, v6
v_add_u32 {v(vRr[0])}, {RED}, v6
v_add_u32 {v(vRr[1])}, {RED + 24*336}, v6
v_min_u32 v6, {RW - 48}, v6
v_add_u32 {v(vRr[2])}, {RED + 48*336}, v6
v_mul_u32_u24 v6, 10, v23
v_sub_u32 v24, v24, v6
v_lshlrev_b32 v24, 4, v24""")
for r_, (r0, lim) in enumerate(((0, 240), (24, 240), (48, 160))):
    o = vOo[r_]
    g2c += lines(f"""v_add_u32 v6, {r0}, v23
    v_and_b32 {v(o)}, 3, v6
    v_bfe_u32 v7, v6, 2, 1
    v_lshl_add_u32 {v(o)}, v7, 8, {v(o)}
    v_bfe_u32 v7, v6, 3, 1
    v_lshl_add_u32 {v(o)}, v7, 4, {v(o)}
    v_lshrrev_b32 v7, 4, v6
    v_lshl_add_u32 {v(o)}, v7, 9, {v(o)}
    v_mul_u32_u24 {v(o)}, 1280, {v(o)}
    v_add_u32 v7, {256 - lim}, v0
    v_lshrrev_b32 v7, 8, v7
    v_lshl_add_u32 v7, v7, 30, v24
    v_add_u32 {v(o)}, {v(o)}, v7""")
def g2_init(i):
    A = vA2[i % 2]; r = vRes + 2*i; q = vRes4 + 2*i
    return [f"v_lshlrev_b32 {v(A)}, 16, {v(r)}", f"v_and_b32 {v(A+1)}, 0xffff0000, {v(r)}", f"v_lshlrev_b32 {v(A+2)}, 16, {v(r+1)}", f"v_and_b32 {v(A+3)}, 0xffff0000, {v(r+1)}",
            f"v_perm_b32 {v(A+16)}, {v(q)}, {v(q)}, {s(sT[9])}", f"v_and_b32 {v(A+17)}, {s(sT[10])}, {v(q)}",
            f"v_perm_b32 {v(A+18)}, {v(q+1)}, {v(q+1)}, {s(sT[9])}", f"v_and_b32 {v(A+19)}, {s(sT[10])}, {v(q+1)}"]
normal.append((2, [f"s_mov_b32 {s(sT[12])}, 0x0c0c0c0c", lambda: k(f"s_cmp_eq_u32 {s(sWv)}, 0\ns_cselect_b32 {s(sT[9])}, 0x01000c0c, {s(sT[12])}\ns_cselect_b32 {s(sT[10])}, 0xffff0000, 0")]))
def g2_write(i, lam): return f"ds_write_b128 {v(vRw[lam])}, {v(vA2[i % 2]+4*lam,4)} offset:{RW*i}"
OF = {0: "", 1: " sc1", 2: " nt", 3: " sc0 sc1"}[opt("of", 2)]
RT = [[120, 128, 136, 144], [152, 160, 180, 88]]
def g2_rd(r_): return [f"ds_read_b128 {v(RT[r_ % 2][w] + 4*h_,4)}, {v(vRr[r_])} offset:{4*RW*w + 16*h_}" for w in range(4) for h_ in range(2)]
def fin(r_, pk=False):
    P = RT[r_ % 2]; L = []
    for d, x in ((0, 1), (2, 3), (0, 2)):
        if pk: L += [f"v_pk_add_f32 {v(P[d]+2*j,2)}, {v(P[d]+2*j,2)}, {v(P[x]+2*j,2)}" for j in range(4)]
        else: L += [f"v_add_f32 {v(P[d]+j)}, {v(P[d]+j)}, {v(P[x]+j)}" for j in range(8)]
    L += [f"v_cvt_pk_bf16_f32 {v(72+4*r_+j)}, {v(P[0]+2*j)}, {v(P[0]+2*j+1)}" for j in range(4)]
    return L + [f"buffer_store_dwordx4 {v(72+4*r_,4)}, {v(vOo[r_])}, {s(OUTR,4)}, {s(sOut)} offen{OF}"]
T0 = len(mm); AP = opt("ap", 4); KL = opt("kl", 6)
urgent.append((G(3, 19, 3), g2_init(0)))
NLT = len(C3L) - NW2C3
urgent += [(T0 + opt("lp", 2)*j, g_) for j, g_ in enumerate(C3L[NW2C3:])]
checks.append((T0 - 1, flush("pre tile 0")))
for i in range(4):
    A = vA2[i % 2]; b_ = T0 + 60*i
    CH = opt("ch2", 3)
    order = [(ks, lam) for k0 in range(0, 12, CH) for lam in (1, 2, 3, 0, 4) for ks in range(k0, k0+CH)]
    if i == 3: order = order[:60-5*KL] + [(ks, lam) for lam in (4, 1, 2, 3, 0) for ks in range(12-KL, 12)]
    mm += [mf16(v(A+4*lam,4), w2reg(5*ks+lam), abuf(i, ks), "0" if (ks == 0 and lam in (1, 2, 3)) else None) for ks, lam in order]
    checks.append((b_, (lambda nm: lambda U, N: stamp(nm))(f"t{i}")))
    if i < 3:
        g0 = b_ + opt(f"ac{i+1}", [opt("lp", 2)*NLT, 10, 24][i])
        if i: urgent.append((g0 - opt(f"pa{i+1}", [0, 24, 34][i]), aflag_ld(i+1)))
        urgent.append((g0, [(lambda j: lambda: aflag_chk(j))(i+1)]))
        urgent += [(g0 + [opt('ap1', 4), AP, opt('ap3', 3)][i]*j, g_) for j, g_ in enumerate(act_loads(i+1))]
    if i:
        wsp = 2 if i == 3 else 4
        urgent += [(b_ + 1 + wsp*j, [g2_write(i-1, lam)]) for j, lam in enumerate((1, 2, 3, 0, 4))]
        if i < 3: normal.append((b_ + 24, g2_init(i+1) + (g2c if i == 1 else [])))
    if i == 3:
        gb = b_ + opt("gb", 13)
        urgent.append((gb, [bar] + g2_rd(0)))
        normal += [(gb + 7, fin(0)[:8] + g2_rd(1) + fin(0)[8:] + fin(1))]
    checks.append((b_ + 59, flush(f"tile {i}")))
normal.append((T0 + 2, [stampc("g1e")] + lines(g2b) + g2_init(1)))
rd += [(T0-1, T0 + j*9//NPARK, T0 + 4 + j//2, x) for j, x in enumerate(unpark)]
checks.append((T0 - 1, lambda U, N: k.wait_tok("park", n=NPARK)))
urgent += [(T0 + opt("f2", 22), flag("a2", sFa, 8, False)), (T0 + opt("f3", 68), flag("a3", sFa, 12, False) + [stampc("afl")])]
f1, f2 = hflag("hB", 2)
urgent += [(opt("fB", 30), f1), (opt("fB", 30) + 6, f2)]
e3 = T0 + 240
urgent += [(e3 - 4*KL + 2 + KL*j, [g2_write(3, lam)]) for j, lam in enumerate((4, 1, 2, 3))]
for j in range(0, 240, 10): checks.append((T0 + j, (lambda nm: lambda U, N: stamp(nm))(f'm{j}')))
def _t(x): return x[0] if isinstance(x, tuple) else x if isinstance(x, str) else ""
if DBG & 1: urgent = [(g_, [x for x in it if not (g_ < G(3, 0) and _t(x).startswith("buffer_load_dwordx4") and f", {s(sT[8])} offen" in _t(x))]) for g_, it in urgent]
if DBG & 2: urgent = [(g_, [x for x in it if not (g_ < G(1, 0) and _t(x).startswith("buffer_load_dwordx4 a["))]) for g_, it in urgent]
if DBG & 4: urgent = [(g_, [x for x in it if not (G(3, 0) <= g_ < T0 and _t(x).startswith("buffer_load_dwordx4"))]) for g_, it in urgent]
if DBG & 8: normal = [(g_, [x for x in it if not (g_ < T0 and _t(x).startswith("buffer_store"))]) for g_, it in normal]
urgent.sort(key=lambda e: e[0])
def dsts(items):
    out = set()
    for x in items:
        if _t(x): out |= Ins(_t(x)).dst
    return out
if not DBG:
    k.poison |= dsts(lines(setup2) + sum(rest, [])) - {"v7"} - {s(r) for r in sW1} | {f"v{r}" for r in range(192, 256)} | {f"a{r}" for r in range(240, 256)} | {"v22"} | {f"v{r}" for r in list(range(44, 48)) + list(range(172, 180))}
    for kk in range(20):
        checks.insert(0, (cum[61+kk] - 1, (lambda kk: lambda U, N: k.poison.update(f"a{r}" for r in range(12*kk, 12*kk+12)))(kk)))
    checks.insert(0, (T0 - 1, lambda U, N: k.poison.update({f"v{r}" for r in list(range(72, 96)) + list(range(120, 144)) + [12, 13, 14, 15]})))
    checks.append((T0 + 59, lambda U, N: k.poison.update({f"v{r}" for r in list(range(144, 172)) + list(range(180, 192)) + list(range(116, 120)) + list(range(68, 72)) + list(range(16, 22))} | {f"a{r}" for r in range(4*NA0, 4*NA0+48)})))
EARLY = opt("early", 0)
if EARLY:
    for j in range(2, 5): checks.append((cum[j-2], (lambda j: lambda U, N: k.wait_tok(f"h0{j}"))(j)))
    checks.append((cum[3], lambda U, N: (bar(), stamp("c0b"))))
    assert H1POS > cum[3]
    k.wait_tok("h00")
    stamp("c0")
    k(g1_reads(0)); k.wait_tok("h01"); k(g1_reads(1))
else:
    k.wait_tok("h04"); bar(); stamp("c0"); k(g1_reads(0) + g1_reads(1))
sched(k, mm, rd, urgent, normal, checks, slotf=lambda i: opt("s0", 5) if T0 <= i < T0 + 60 else 2)
stamp("t4")
k(g2_write(3, 0))
bar()
k(g2_rd(2))
k(fin(2, True))
stamp("g2e")
k(f"""s_or_b32 {s(sT[4])}, s2, {s(sWv)}
s_cmp_lg_u32 {s(sT[4])}, 0
s_cselect_b32 {s(sT[4])}, {OOB}, 0
buffer_store_dword {v(vTagv)}, {v(vFl0)}, {ws}, {s(sT[4])} offen""")
if STAMP:
    k("s_waitcnt vmcnt(0)")
    stamp("end")
    k(f"""s_lshl2_add_u32 {s(sT[4])}, s2, {s(sWv)}
    s_lshl_b32 {s(sT[4])}, {s(sT[4])}, 7
    s_add_u32 {s(sT[4])}, {s(sT[4])}, {STB}""")
    for i in range(len(SEL)):
        k(f"v_mov_b32 v5, {s(sStamp+2*i)}\nbuffer_store_dword v5, {v(vFl0)}, {ws}, {s(sT[4])} offen offset:{4*i}")
k("s_endpgm")
k.raw(";WARM_END")
k.out += SLOW
k.out += TABTXT
k.raw("Lcode_end:")
hdr = "".join(l for l in open("cdna_kernels/" + NAME + ".s.ref").readlines()[:17] if l.startswith(";") and "@launch" not in l)
DOC = """
One persistent launch, 256 workgroups (one per CU) of 4 waves, 512 registers per wave. Generated by my own scripts.
  LN1      wave 3 of every WG: 8 rows, transposed x records + row statistics handed over through d_ws (16-byte tagged granules).
  K        waves 0-2 of WGs 0..213, one channel each: K at the 641 distinct bf16(l) values as a 21 x 32 product table (MFMA over states).
  conv     Toeplitz MFMA, taps <= 1028 dense, taps above as equal-valued cells times window sums; residual x + D*u folded in; h -> d_ws.
  FFN      gate/up weights (repacked once into fragment order) stay in AGPRs, h streams through LDS, LN2 folded into the epilogue;
           act -> d_ws; down projection split over the waves along k, reduced in LDS, + h.
Hand-offs: write-through stores, drained, then atomic counters that start from tag = d_ws[0] + const (d_ws[0] is advanced at the end);
every wait is bounded. The s_cbranch_execz links are walked with EXEC = 0 by waiting waves to fetch later code early.
"""
hdr += "".join("; " + l + "\n" for l in DOC.strip().split("\n"))
if STAMP: hdr += "; stamps: " + ",".join(SEL) + "\n"
def add_warm():
    import subprocess, re, tempfile, os
    d = tempfile.mkdtemp()
    open(d + "/t.s", "w").write(k.text(hdr, 256, 256, LDS_BYTES).replace(";WARM_HERE", "Lwarm0:\nLwarm1:\nLwarm2:\nLwarm3:"))
    subprocess.run(["clang", "-x", "assembler", "-target", "amdgcn-amd-amdhsa", "-mcpu=gfx950", "-c", d + "/t.s", "-o", d + "/t.o"], check=True)
    dis = subprocess.run(["llvm-objdump", "-d", "--mcpu=gfx950", d + "/t.o"], capture_output=True, text=True).stdout
    dis = dis[dis.index("_kernel>:"):]
    sizes = [4*len(m.group(1).split()) for m in re.finditer(r"// [0-9A-F]+: ([0-9A-F ]+?)(?: <.*)?$", dis, re.M)]
    out = []; pos = 0; n = 0; on = False; want = False; links = []; started = False; STEP = opt("wstep", 2048)
    for l in k.out:
        if l.endswith("_kernel:"): started = True
        if l == ";WARM_BEGIN": on = True; continue
        if l in (";WARM_OFF", ";WARM_END"): on = False; want = False; continue
        if l == ";WARM_HERE":
            on = True; links.append(len(out)); out.append(None); pos += 4; want = False; continue
        out.append(l)
        if not (started and l.startswith("    ")): continue
        p0 = pos; pos += sizes[n]; n += 1
        if on and pos // STEP != p0 // STEP: want = True
        if want and (l.startswith("    v_mfma") or pos % STEP >= 40) and "exec" not in l:
            links.append(len(out)); out.append(None); pos += 4; want = False
    n3 = min(W3L, len(links) - 3)
    chains = [links[:len(links)-n3][c::3] for c in range(3)] + [links[len(links)-n3:]]
    for c, ch in enumerate(chains):
        for j, at in enumerate(ch):
            me = f"Lwarm{c}" if j == 0 else f"Lwarm{c}_{j}"
            nx = f"Lwarm{c}_{j+1}" if j+1 < len(ch) else ("Lwarm_ret" if c < 3 else "Lwarm_ret3")
            out[at] = f"{me}:\n    s_cbranch_execz {nx}"
    k.out = out
    print("warm links", [len(c) for c in chains], "code bytes", pos)
LF = {0: " sc1", 1: "", 2: " nt", 3: " sc1 nt", 4: " sc0 sc1", 5: " sc0"}
import re as _re
def relabel(l):
    if not l.startswith("    buffer_load_dwordx4"): return l
    if _re.search(r", s(6|7|8|9|58) offen", l): return l.replace(" sc1", LF[opt("lw", 0)])
    if ", s54 offen" in l: return l.replace(" sc1", LF[opt("la_", 0)])
    return l
k.out = [relabel(l) for l in k.out]
if WARM: add_warm()
open(OUT, "w").write(k.text(hdr, 256, 256, LDS_BYTES))
print("instructions", k.nins, "nops", k.nnop)
```
